```python
import torch

def _softmax(x, axis=-1):
    return torch.softmax(x, dim=axis)
def _gelu(x):
    return torch.nn.functional.gelu(x, approximate="tanh")
def _silu(x):
    return torch.nn.functional.silu(x)
def _sigmoid(x):
    return torch.sigmoid(x)
def _layernorm(x, axis=-1, eps=1e-5):
    m = x.mean(dim=axis, keepdim=True)
    v = x.var(dim=axis, keepdim=True, unbiased=False)
    return (x - m) / torch.sqrt(v + eps)
def _scatter_add(tgt, idx, src, axis=0):
    return tgt.clone().index_add_(axis, idx, src)
def _segment_sum(src, seg, n):
    out = torch.zeros((n,) + src.shape[1:], dtype=src.dtype)
    return out.index_add_(0, seg, src)
def _pad(x, pw):
    flat = tuple(v for pair in reversed(pw) for v in pair)
    return torch.nn.functional.pad(x, flat)

kernel_name = 'parallel_sum__sliding_block__mixer_token_mlp__prompt'

def setup_inputs():

    _w = (lambda a: (lambda t: t.to(torch.bfloat16) if t.is_floating_point() else t)(torch.as_tensor(a)))
    def _A_setup():
        B, S, D = 1, 2048, 640
        return {
            "x": _w((lambda *s: torch.randn(*s, dtype=torch.bfloat16) * 0.05)(B, S, D)),
            "wqkv": _w((lambda *s: torch.randn(*s, dtype=torch.bfloat16) * 0.05)(D, 3 * D)),
            "wo": _w((lambda *s: torch.randn(*s, dtype=torch.bfloat16) * 0.05)(D, D)),
        }
    _A_in = _A_setup()

    def _B_setup():
        B, S, D, F = 1, 2048, 640, 1536
        return {
            "x": _w((lambda *s: torch.randn(*s, dtype=torch.bfloat16) * 0.05)(B, S, D)),
            "w1": _w((lambda *s: torch.randn(*s, dtype=torch.bfloat16) * 0.8)(S, F) * (S ** -0.5)),
            "b1": _w((lambda *s: torch.randn(*s, dtype=torch.bfloat16) * 0.8)(F) * 0.02),
            "w2": _w((lambda *s: torch.randn(*s, dtype=torch.bfloat16) * 0.8)(F, S) * (F ** -0.5)),
            "b2": _w((lambda *s: torch.randn(*s, dtype=torch.bfloat16) * 0.8)(S) * 0.02),
        }
    _B_in = _B_setup()

    return {
        "A_x": _A_in["x"],
        "A_wqkv": _A_in["wqkv"],
        "A_wo": _A_in["wo"],
        "B_x": _B_in["x"],
        "B_w1": _B_in["w1"],
        "B_b1": _B_in["b1"],
        "B_w2": _B_in["w2"],
        "B_b2": _B_in["b2"],
    }

def reference(A_x, A_wqkv, A_wo, B_x, B_w1, B_b1, B_w2, B_b2):
    def _A_ref(x, wqkv, wo):
        B, S, D = x.shape
        H = 32; Dh = D // H; W = 256
        qkv = (lambda x, *d: x.permute(*d))((x @ wqkv).reshape(B, S, 3, H, Dh), 2, 0, 3, 1, 4)
        q, k, v = qkv[0], qkv[1], qkv[2]
        scores = torch.einsum("bhqd,bhkd->bhqk", q, k) * (Dh ** -0.5)
        idx = torch.arange(S)
        mask = (idx[:, None] - idx[None, :] >= 0) & (idx[:, None] - idx[None, :] < W)
        scores = torch.where(mask[None, None], scores, -1e9)
        p = _softmax(scores, axis=-1)
        o = torch.einsum("bhqk,bhkd->bhqd", p, v)
        return (lambda x, *d: x.permute(*d))(o, 0, 2, 1, 3).reshape(B, S, D) @ wo

    def _B_ref(x, w1, b1, w2, b2):
        B, S, D = x.shape
        h = _layernorm(x, axis=-1)
        u = torch.einsum("bsd,sf->bdf", h, w1) + b1
        u = _gelu(u)
        y = torch.einsum("bdf,fs->bds", u, w2) + b2
        return (lambda x, *d: x.permute(*d))(y, 0, 2, 1)

    x = A_x
    xn = _layernorm(x, axis=-1)
    return x + _A_ref(xn, A_wqkv, A_wo) + _B_ref(xn, B_w1, B_b1, B_w2, B_b2)
```

```python
import re

TRANS = ("v_exp_f32", "v_log_f32", "v_rcp_f32", "v_rsq_f32", "v_sqrt_f32", "v_sin_f32", "v_cos_f32")


def v(n, cnt=1):
    return f"v{n}" if cnt == 1 else f"v[{n}:{n + cnt - 1}]"


def s(n, cnt=1):
    return f"s{n}" if cnt == 1 else f"s[{n}:{n + cnt - 1}]"


_REG = re.compile(r"^(-|abs\()?\s*([vsa])(?:(\d+)|\[(\d+):(\d+)\])\)?$")


def regs_of(tok):
    tok = tok.strip()
    if tok == "vcc":
        return {("s", "vcc")}
    if tok == "exec":
        return {("s", "exec")}
    if tok == "m0":
        return {("s", "m0")}
    m = _REG.match(tok)
    if not m:
        return set()
    c = m.group(2)
    if m.group(3) is not None:
        return {(c, int(m.group(3)))}
    return {(c, i) for i in range(int(m.group(4)), int(m.group(5)) + 1)}


class Ins:
    __slots__ = ("text", "mn", "ops", "kind", "wr", "rd", "srcc", "passes", "nops", "label", "target")

    def __init__(self, text):
        self.text = text
        self.label = None
        self.target = None
        self.srcc = set()
        self.passes = 0
        self.nops = 1
        self.wr = set()
        self.rd = set()
        t = text.split(";")[0].strip()
        if t.endswith(":"):
            self.kind = "label"
            self.label = t[:-1]
            self.mn = ""
            self.ops = []
            self.nops = 0
            return
        if not t or t.startswith("."):
            self.kind = "dir"
            self.mn = ""
            self.ops = []
            self.nops = 0
            return
        parts = t.split(None, 1)
        self.mn = mn = parts[0]
        rest = parts[1] if len(parts) > 1 else ""
        ops = []
        depth = 0
        cur = ""
        for ch in rest:
            if ch == "[":
                depth += 1
            if ch == "]":
                depth -= 1
            if ch == "," and depth == 0:
                ops.append(cur.strip())
                cur = ""
            else:
                cur += ch
        if cur.strip():
            ops.append(cur.strip())
        mods = ""
        if ops:
            last = ops[-1].split(None, 1)
            ops[-1] = last[0]
            mods = last[1] if len(last) > 1 else ""
        self.ops = ops
        R = lambda i: regs_of(ops[i]) if i < len(ops) else set()
        allr = lambda a: set().union(*[R(i) for i in range(a, len(ops))]) if len(ops) > a else set()
        if mn == "s_nop":
            self.kind = "nop"
            self.nops = int(ops[0]) + 1
        elif mn.startswith("v_mfma"):
            self.kind = "mfma"
            self.wr = R(0)
            self.rd = allr(1)
            self.srcc = R(3)
            self.passes = 8 if "32x32" in mn else 4
        elif mn.startswith("v_cmp"):
            self.kind = "valu"
            self.wr = R(0)
            self.rd = allr(1)
        elif mn.startswith("v_readfirstlane") or mn.startswith("v_readlane"):
            self.kind = "valu"
            self.wr = R(0)
            self.rd = allr(1)
        elif mn.startswith("v_permlane") and "swap" in mn:
            self.kind = "valu"
            self.wr = R(0) | R(1)
            self.rd = R(0) | R(1)
        elif mn.startswith("v_"):
            self.kind = "valu"
            self.wr = R(0)
            self.rd = allr(1)
            if mn.startswith("v_fmac") or mn.startswith("v_mac") or "dpp" in mn:
                self.rd |= R(0)
            if mn.startswith("v_cndmask") and len(ops) == 3:
                self.rd |= {("s", "vcc")}
            if "_co_" in mn:
                self.wr |= R(1)
        elif mn.startswith("ds_read") or mn.startswith("ds_swizzle") or mn.startswith("ds_bpermute"):
            self.kind = "ds"
            self.wr = R(0)
            self.rd = allr(1)
        elif mn.startswith("ds_"):
            self.kind = "ds"
            self.rd = allr(0)
        elif mn.startswith("buffer_load") or mn.startswith("global_load"):
            self.kind = "vmem"
            if " lds" in " " + mods or mods.endswith("lds"):
                self.rd = allr(0) | {("s", "m0")}
                self.kind = "dma"
            else:
                self.wr = R(0)
                self.rd = allr(1)
        elif mn.startswith("buffer_store") or mn.startswith("global_store"):
            self.kind = "vmem"
            self.rd = allr(0)
            if "x4" in mn or "x3" in mn:
                self.srcc = R(0) if mn.startswith("buffer") else R(1)
                self.passes = -1
        elif mn.startswith("buffer_atomic"):
            self.kind = "vmem"
            self.rd = allr(0)
            if "sc0" in mods:
                self.wr = R(0)
        elif mn.startswith("buffer_"):
            self.kind = "vmem"
        elif mn.startswith("s_cbranch") or mn == "s_branch":
            self.kind = "branch"
            self.target = ops[0]
        elif mn.startswith("s_load") or mn.startswith("s_memtime") or mn.startswith("s_memrealtime"):
            self.kind = "smem"
            self.wr = R(0)
            self.rd = allr(1)
        elif mn.startswith("s_getpc"):
            self.kind = "salu"
            self.wr = R(0)
        elif mn.startswith("s_cmp") or mn in ("s_waitcnt", "s_barrier", "s_endpgm", "s_setprio", "s_sleep"):
            self.kind = "salu"
            self.rd = allr(0) if mn.startswith("s_cmp") else set()
        elif mn.startswith("s_"):
            self.kind = "salu"
            self.wr = R(0)
            self.rd = allr(1)
            if "saveexec" in mn:
                self.wr |= {("s", "exec")}
        else:
            raise ValueError("unknown instruction: " + text)


def vregs(rs):
    return {r for r in rs if r[0] in "va"}


def sregs(rs):
    return {r for r in rs if r[0] == "s"}


def need(p, c):
    n = 0
    if p.kind == "valu":
        pv, ps = vregs(p.wr), sregs(p.wr)
        if c.kind == "mfma" and pv & c.rd:
            n = max(n, 2)
        if c.kind == "valu":
            if ps & c.rd:
                n = max(n, 4 if c.mn.startswith(("v_readlane", "v_writelane")) else 2)
            if pv & c.rd:
                if c.mn.startswith(("v_readfirstlane", "v_readlane")):
                    n = max(n, 1)
                if c.mn.startswith("v_permlane") or "dpp" in c.mn:
                    n = max(n, 2)
                if p.mn.startswith(TRANS):
                    n = max(n, 1)
        if c.kind in ("vmem", "dma") and ps & c.rd:
            n = max(n, 5)
        if c.kind in ("salu", "branch") and ps & c.rd:
            n = max(n, 4)
        if c.kind == "branch" and ("s", "vcc") in ps and "vcc" in c.mn:
            n = max(n, 5)
    if p.kind == "mfma":
        big = 12 if p.passes == 8 else 8
        if c.kind == "mfma":
            ab = c.rd - c.srcc
            if p.wr & ab:
                n = max(n, big)
            if p.wr & c.srcc:
                if not (p.wr == c.srcc and p.passes == c.passes):
                    n = max(n, 10 if p.passes == 8 else 6)
            if p.wr & c.wr and not (p.wr == c.wr):
                n = max(n, big)
        elif c.kind in ("valu", "ds", "vmem", "dma"):
            if p.wr & (c.rd | c.wr):
                n = max(n, big)
            if c.kind == "valu" and p.srcc & c.wr:
                n = max(n, 7 if p.passes == 8 else 3)
    if p.kind == "salu":
        if ("s", "m0") in p.wr and c.kind == "dma":
            n = max(n, 1)
    if p.kind == "vmem" and p.passes == -1:
        if p.srcc & c.wr:
            n = max(n, 2 if c.kind == "valu" else 1)
    return n


WINDOW = 14


class Asm:
    def __init__(self):
        self.items = []
        self._uid = 0
        self.verbose = True

    def __call__(self, text):
        for line in text.strip("\n").split("\n"):
            line = line.strip()
            if line and not line.startswith(";"):
                self.items.append(Ins(line))

    def label(self, name):
        self.items.append(Ins(name + ":"))

    def uid(self, base):
        self._uid += 1
        return f"{base}_{self._uid}"

    def extend(self, other):
        self.items.extend(other.items)

    @staticmethod
    def _scan(seq_before, c):
        dist = 0
        pad = 0
        for p in reversed(seq_before):
            if p.kind in ("label", "dir"):
                continue
            r = need(p, c)
            if r > dist:
                pad = max(pad, r - dist)
            dist += p.nops
            if dist >= WINDOW:
                break
        return pad

    def finish(self):
        out = []
        for it in self.items:
            if it.kind in ("label", "dir"):
                out.append(it)
                continue
            pad = self._scan(out[-24:], it)
            while pad > 0:
                k = min(pad, 16)
                out.append(Ins(f"s_nop {k - 1}"))
                pad -= k
            out.append(it)
        self.items = out
        while True:
            fix = self._check_edges()
            if fix is None:
                break
            i, pad, msg = fix
            if self.verbose:
                print("note:", msg)
            self.items.insert(i, Ins(f"s_nop {min(pad, 16) - 1}"))
        lines = []
        for it in self.items:
            lines.append(it.text if it.kind == "label" else "    " + it.text)
        return "\n".join(lines) + "\n"

    def _check_edges(self):
        pos = {it.label: i for i, it in enumerate(self.items) if it.kind == "label"}
        for i, it in enumerate(self.items):
            if it.kind != "branch" or it.target not in pos:
                continue
            before = [x for x in self.items[max(0, i - 24): i + 1]]
            t = pos[it.target]
            seq = list(before)
            walked = 0
            for c in self.items[t: t + 40]:
                if c.kind in ("label", "dir"):
                    continue
                pad = self._scan(seq[-24:], c)
                if pad > 0:
                    kind = "BACKWARD" if t < i else "forward"
                    return i, pad, f"{kind} edge -> {it.target}: padded {pad} states for '{c.text}'"
                seq.append(c)
                walked += c.nops
                if walked >= WINDOW or c.mn in ("s_branch", "s_endpgm"):
                    break
        return None
```

```python
import math
import sys

sys.path.insert(0, "tools")
from asmlib import Asm, v, s

NAME = "parallel_sum__sliding_block__mixer_token_mlp__prompt"

WS_EPOCH = 0
WS_FLAG_LN, WS_FLAG_QKV, WS_FLAG_G, WS_FLAG_O = 0x1000, 0x1400, 0x1800, 0x1C00
WS_STATS = 0x4000
WS_H = 0x10000
WS_Q = 0x290000
WS_KV = 0x510000
WS_GT = 0xA60000
WS_O = 0xC40000
WS_USED = 0x1000000
KVROW = 168

SLOT = 36864
RING = 4 * SLOT
SCR = RING
KVBASE = 2 * SLOT
LDS_BYTES = 163840

sX, sW, sWO, sW1, sW2, sWS, sOUT, sB1, sB2, sDBG = 28, 32, 36, 40, 44, 48, 52, 56, 60, 64
sWv, sLw, sI, sP, sDt1, sFt, sSt, sDt, sWg, sNonce, sM1On = range(68, 79)
sSlot, sCnt, sOffA, sOffB, sSW = range(80, 85)
sT0, sT1, sT2, sT3, sT4, sT5 = range(86, 92)
sEx = 92
sWm, sWn = 94, 95

QSCALE = (20 ** -0.5) * math.log2(math.e)


def f32(x):
    import struct
    return "0x%08x" % struct.unpack("<I", struct.pack("<f", x))[0]


class Gen:
    def __init__(self, fused):
        self.fused = fused
        self.sc = "sc1" if fused else ""

    def prologue(self, a, lab):
        a(f"""
        s_cmp_ge_u32 s2, 256
        s_cbranch_scc1 {lab}_end
        s_load_dwordx16 s[4:19], s[0:1], 0
        s_load_dwordx4 s[20:23], s[0:1], 64
        s_load_dwordx2 s[24:25], s[0:1], 80
        v_lshrrev_b32 v1, 6, v0
        v_and_b32 v0, 63, v0
        s_mov_b32 s{sWg}, s2
        v_readfirstlane_b32 s{sWv}, v1
        s_and_b32 s{sT0}, s2, 7
        s_lshr_b32 s{sT1}, s2, 3
        s_and_b32 s{sT2}, s{sT0}, 1
        s_lshr_b32 s{sT3}, s{sT0}, 1
        s_and_b32 s{sT4}, s{sT1}, 7
        s_lshr_b32 s{sT5}, s{sT1}, 3
        s_lshl_b32 s{sI}, s{sT2}, 3
        s_add_u32 s{sI}, s{sI}, s{sT4}
        s_lshl_b32 s{sP}, s{sT3}, 2
        s_add_u32 s{sP}, s{sP}, s{sT5}
        s_lshl_b32 s{sSt}, s{sT3}, 3
        s_add_u32 s{sSt}, s{sSt}, s{sT4}
        s_lshl_b32 s{sDt}, s{sT2}, 2
        s_add_u32 s{sDt}, s{sDt}, s{sT5}
        s_cmp_lt_u32 s{sT1}, 30
        s_cselect_b32 s{sM1On}, 1, 0
        s_cselect_b32 s{sT4}, 0, 30
        s_sub_u32 s{sT1}, s{sT1}, s{sT4}
        s_mul_i32 s{sT4}, s{sT1}, 52
        s_lshr_b32 s{sT4}, s{sT4}, 8
        s_mul_i32 s{sT5}, s{sT4}, 5
        s_sub_u32 s{sT5}, s{sT1}, s{sT5}
        s_mul_i32 s{sDt1}, s{sT2}, 5
        s_add_u32 s{sDt1}, s{sDt1}, s{sT5}
        s_mul_i32 s{sFt}, s{sT3}, 6
        s_add_u32 s{sFt}, s{sFt}, s{sT4}
        s_and_b32 s{sLw}, s{sWv}, 3
        s_lshr_b32 s{sWm}, s{sLw}, 1
        s_and_b32 s{sWn}, s{sLw}, 1
        s_waitcnt lgkmcnt(0)
        """)
        for srd, ptr, size in ((sX, 4, 2048 * 1280), (sW, 6, 640 * 3840), (sWO, 8, 640 * 1280),
                               (sW1, 12, 2048 * 3072), (sB1, 14, 1536 * 2), (sW2, 16, 1536 * 4096),
                               (sB2, 18, 2048 * 2), (sOUT, 20, 2048 * 1280), (sDBG, 22, 256),
                               (sWS, 24, WS_USED)):
            a(f"""
            s_mov_b32 s{srd}, s{ptr}
            s_mov_b32 s{srd + 1}, s{ptr + 1}
            s_mov_b32 s{srd + 2}, {size}
            s_mov_b32 s{srd + 3}, 0x00020000
            """)

    def dma(self, a, srd, voff, soff, add, lds_add, dep=False):
        sc = (self.sc + " ") if (dep and self.sc) else ""
        a(f"""
        s_add_u32 m0, s{sSW}, {lds_add}
        s_add_u32 s{sT0}, s{soff}, {add}
        buffer_load_dwordx4 v{voff}, s[{srd}:{srd + 3}], s{sT0} offen {sc}lds
        """)

    def slot_begin(self, a):
        a(f"""
        s_lshl_b32 s{sSW}, s{sLw}, 10
        s_add_u32 s{sSW}, s{sSW}, s{sSlot}
        """)

    def slot_next(self, a):
        a(f"""
        s_add_u32 s{sSlot}, s{sSlot}, {SLOT}
        s_cmp_eq_u32 s{sSlot}, {RING}
        s_cselect_b32 s{sSlot}, 0, s{sSlot}
        """)

    LV_X, LV_W, LV_H, LV_W1, LV_LIN, LV_W2, LV_O, LV_WO = 2, 3, 4, 5, 6, 7, 8, 9

    def loader_consts(self, a):
        X, W, H, W1, LIN, W2, O, WO = (self.LV_X, self.LV_W, self.LV_H, self.LV_W1, self.LV_LIN,
                                       self.LV_W2, self.LV_O, self.LV_WO)
        t0, t1, t2, t3 = 20, 21, 22, 23
        a(f"""
        v_lshrrev_b32 v{t0}, 3, v0
        v_and_b32 v{t1}, 7, v0
        v_lshrrev_b32 v{t2}, 1, v{t0}
        s_and_b32 s{sT0}, s{sLw}, 1
        s_lshl_b32 s{sT0}, s{sT0}, 2
        v_or_b32 v{t3}, s{sT0}, v{t2}
        v_xor_b32 v{t3}, v{t3}, v{t1}
        v_lshlrev_b32 v{t3}, 4, v{t3}
        v_mul_u32_u24 v{X}, 1280, v{t0}
        v_add_u32 v{X}, v{X}, v{t3}
        v_and_b32 v{t3}, 1, v{t2}
        v_lshlrev_b32 v{t3}, 2, v{t3}
        v_xor_b32 v{t3}, v{t3}, v{t1}
        v_lshlrev_b32 v{t3}, 4, v{t3}
        v_mul_u32_u24 v{H}, 1280, v{t0}
        v_add_u32 v{H}, v{H}, v{t3}
        v_mul_u32_u24 v{W1}, 3072, v{t0}
        v_add_u32 v{W1}, v{W1}, v{t3}
        v_and_b32 v{t3}, 3, v{t2}
        v_lshlrev_b32 v{t3}, 1, v{t3}
        v_xor_b32 v{t3}, v{t3}, v{t1}
        v_lshlrev_b32 v{t3}, 4, v{t3}
        v_lshlrev_b32 v{W2}, 12, v{t0}
        v_add_u32 v{W2}, v{W2}, v{t3}
        v_lshlrev_b32 v{LIN}, 4, v0
        v_lshrrev_b32 v{t0}, 4, v0
        v_and_b32 v{t1}, 15, v0
        v_lshlrev_b32 v{t2}, 2, v{t0}
        v_xor_b32 v{t2}, v{t2}, v{t1}
        v_min_u32 v{t2}, 14, v{t2}
        v_mul_u32_u24 v{t3}, 52, v{t2}
        v_lshrrev_b32 v{t3}, 8, v{t3}
        v_mul_u32_u24 v{W}, 5, v{t3}
        v_sub_u32 v{W}, v{t2}, v{W}
        v_lshlrev_b32 v{W}, 4, v{W}
        v_mul_u32_u24 v{t3}, 1280, v{t3}
        v_add_u32 v{W}, v{W}, v{t3}
        v_mul_u32_u24 v{t3}, 3840, v{t0}
        v_add_u32 v{W}, v{W}, v{t3}
        s_lshl_b32 s{sT0}, s{sLw}, 2
        v_add_u32 v{t2}, s{sT0}, v{t0}
        v_xor_b32 v{t2}, v{t2}, v{t1}
        v_lshlrev_b32 v{t2}, 4, v{t2}
        v_mul_u32_u24 v{O}, 1280, v{t0}
        v_add_u32 v{O}, v{O}, v{t2}
        """)
        for t in range(5):
            a(f"""
            v_add_u32 v{t0}, {64 * t}, v0
            v_mul_u32_u24 v{t1}, 6554, v{t0}
            v_lshrrev_b32 v{t1}, 16, v{t1}
            v_mul_u32_u24 v{t2}, 10, v{t1}
            v_sub_u32 v{t2}, v{t0}, v{t2}
            v_lshlrev_b32 v{t2}, 4, v{t2}
            v_mul_u32_u24 v{t1}, 1280, v{t1}
            v_add_u32 v{WO + t}, v{t1}, v{t2}
            """)

    def q_init(self, a):
        a(f"""
        s_lshl_b32 s{sOffA}, s{sI}, 7
        s_lshl_b32 s{sT0}, s{sLw}, 3
        s_add_u32 s{sOffA}, s{sOffA}, s{sT0}
        s_mul_i32 s{sOffA}, s{sOffA}, 1280
        s_mul_i32 s{sOffB}, s{sLw}, {4 * 3840}
        s_mul_i32 s{sT0}, s{sP}, 80
        s_add_u32 s{sOffB}, s{sOffB}, s{sT0}
        """)

    def q_issue(self, a):
        self.slot_begin(a)
        for t in range(4):
            self.dma(a, sX, self.LV_X, sOffA, t * 32 * 1280, t * 4096)
            self.dma(a, sW, self.LV_W, sOffB, t * 16 * 3840, 16384 + t * 4096)
        a(f"s_add_u32 s{sOffA}, s{sOffA}, 128\ns_add_u32 s{sOffB}, s{sOffB}, {64 * 3840}")
        self.slot_next(a)

    def m_init(self, a):
        a(f"""
        s_mul_i32 s{sOffA}, s{sLw}, {8 * 1280}
        s_lshl_b32 s{sT0}, s{sDt1}, 7
        s_add_u32 s{sOffA}, s{sOffA}, s{sT0}
        s_add_u32 s{sOffA}, s{sOffA}, {WS_H}
        s_mul_i32 s{sOffB}, s{sLw}, {8 * 3072}
        s_lshl_b32 s{sT0}, s{sFt}, 7
        s_add_u32 s{sOffB}, s{sOffB}, s{sT0}
        """)

    def m_issue(self, a):
        self.slot_begin(a)
        for t in range(4):
            self.dma(a, sW1, self.LV_W1, sOffB, t * 32 * 3072, 16384 + t * 4096)
            self.dma(a, sWS, self.LV_H, sOffA, t * 32 * 1280, t * 4096, dep=True)
        a(f"s_add_u32 s{sOffA}, s{sOffA}, {128 * 1280}\ns_add_u32 s{sOffB}, s{sOffB}, {128 * 3072}")
        self.slot_next(a)

    def kv_init(self, a):
        a(f"""
        s_lshl_b32 s{sOffA}, s{sP}, 11
        s_lshl_b32 s{sT0}, s{sI}, 7
        s_add_u32 s{sOffA}, s{sOffA}, s{sT0}
        s_mul_i32 s{sOffA}, s{sOffA}, {KVROW}
        s_add_u32 s{sOffA}, s{sOffA}, {WS_KV - 256 * KVROW}
        s_lshl_b32 s{sT0}, s{sLw}, 10
        s_add_u32 s{sOffA}, s{sOffA}, s{sT0}
        s_add_u32 s{sSW}, s{sT0}, {KVBASE}
        """)

    def kv_issue(self, a, t0, t1):
        for t in range(t0, t1):
            self.dma(a, sWS, self.LV_LIN, sOffA, t * 4096, t * 4096, dep=True)

    def f_init(self, a):
        a(f"""
        s_mul_i32 s{sOffB}, s{sLw}, {8 * 4096}
        s_lshl_b32 s{sT0}, s{sSt}, 7
        s_add_u32 s{sOffB}, s{sOffB}, s{sT0}
        s_mul_i32 s{sOffA}, s{sDt}, {1536 * 160}
        s_lshl_b32 s{sT0}, s{sLw}, 10
        s_add_u32 s{sOffA}, s{sOffA}, s{sT0}
        s_add_u32 s{sOffA}, s{sOffA}, {WS_GT}
        """)

    def f_issue_w2(self, a):
        for t in range(4):
            self.dma(a, sW2, self.LV_W2, sOffB, t * 32 * 4096, t * 4096)
        a(f"s_add_u32 s{sOffB}, s{sOffB}, {128 * 4096}")

    def f_issue_g(self, a):
        for t in range(5):
            self.dma(a, sWS, self.LV_LIN, sOffA, t * 4096, 16384 + t * 4096, dep=True)
        a(f"s_add_u32 s{sOffA}, s{sOffA}, {128 * 160}")

    def f_issue(self, a):
        self.slot_begin(a)
        self.f_issue_w2(a)
        self.f_issue_g(a)
        self.slot_next(a)

    def wo_init(self, a):
        a(f"""
        s_lshl_b32 s{sOffB}, s{sSt}, 6
        s_lshl_b32 s{sT0}, s{sLw}, 2
        s_add_u32 s{sOffB}, s{sOffB}, s{sT0}
        s_mul_i32 s{sOffB}, s{sOffB}, 1280
        s_add_u32 s{sOffB}, s{sOffB}, {WS_O}
        s_mul_i32 s{sOffA}, s{sLw}, {32 * 1280}
        s_mul_i32 s{sT0}, s{sDt}, 160
        s_add_u32 s{sOffA}, s{sOffA}, s{sT0}
        """)

    def wo_issue(self, a):
        self.slot_begin(a)
        for t in range(4):
            self.dma(a, sWS, self.LV_O, sOffB, t * 16 * 1280, t * 4096, dep=True)
        a(f"s_lshl_b32 s{sT1}, s{sLw}, 12\ns_add_u32 s{sSW}, s{sSW}, s{sT1}")
        for t in range(5):
            self.dma(a, sWO, self.LV_WO + t, sOffA, 0, 16384 + t * 1024)
        a(f"s_add_u32 s{sOffA}, s{sOffA}, {128 * 1280}\ns_add_u32 s{sOffB}, s{sOffB}, 256")
        self.slot_next(a)

    def wait_bar(self, a, n):
        a(f"s_waitcnt vmcnt({n})\ns_barrier")

    def loop(self, a, n, body):
        lab = a.uid("Lloop")
        a(f"s_mov_b32 s{sCnt}, {n}")
        a.label(lab)
        body()
        a(f"s_sub_u32 s{sCnt}, s{sCnt}, 1\ns_cmp_lg_u32 s{sCnt}, 0\ns_cbranch_scc1 {lab}")

    def reduce32(self, a, x, t):
        for r in (8, 4, 2, 1):
            a(f"v_add_f32_dpp v{x}, v{x}, v{x} row_ror:{r} row_mask:0xf bank_mask:0xf")
        a(f"""
        v_mov_b32 v{t}, v{x}
        v_mov_b32 v{t + 1}, v{x}
        v_permlane16_swap_b32 v{t}, v{t + 1}
        v_add_f32 v{x}, v{t}, v{t + 1}
        """)

    def ln_loads(self, a):
        raw, off = 2, 60
        a(f"""
        s_lshl_b32 s{sT0}, s{sWg}, 3
        s_lshl_b32 s{sT1}, s{sLw}, 1
        s_add_u32 s{sT0}, s{sT0}, s{sT1}
        v_lshrrev_b32 v{off + 1}, 5, v0
        v_add_u32 v{off + 1}, s{sT0}, v{off + 1}
        v_and_b32 v{off + 2}, 31, v0
        v_lshlrev_b32 v{off + 2}, 3, v{off + 2}
        v_mul_u32_u24 v{off}, 1280, v{off + 1}
        v_add_u32 v{off}, v{off}, v{off + 2}
        """)
        for j in range(5):
            a(f"buffer_load_dwordx2 v[{raw + 2 * j}:{raw + 2 * j + 1}], v{off}, s[{sX}:{sX + 3}], 0 offen offset:{256 * j}")

    def ln_compute(self, a):
        raw, f, off, acc, t, mean, rs = 2, 20, 60, 44, 46, 50, 51
        sc = self.sc

        def unpack():
            for d in range(10):
                a(f"v_lshlrev_b32 v{f + 2 * d}, 16, v{raw + d}\nv_and_b32 v{f + 2 * d + 1}, 0xffff0000, v{raw + d}")

        def stats():
            a(f"v_pk_add_f32 v[{acc}:{acc + 1}], v[{f}:{f + 1}], v[{f + 2}:{f + 3}]")
            for d in range(2, 10):
                a(f"v_pk_add_f32 v[{acc}:{acc + 1}], v[{acc}:{acc + 1}], v[{f + 2 * d}:{f + 2 * d + 1}]")
            a(f"v_add_f32 v{acc}, v{acc}, v{acc + 1}")
            self.reduce32(a, acc, t)
            a(f"v_mul_f32 v{mean}, {f32(1 / 640)}, v{acc}")
            for d in range(10):
                a(f"v_pk_add_f32 v[{f + 2 * d}:{f + 2 * d + 1}], v[{f + 2 * d}:{f + 2 * d + 1}], v[{mean}:{mean + 1}] op_sel_hi:[1,0] neg_lo:[0,1] neg_hi:[0,1]")
            a(f"v_pk_mul_f32 v[{acc}:{acc + 1}], v[{f}:{f + 1}], v[{f}:{f + 1}]")
            for d in range(1, 10):
                a(f"v_pk_fma_f32 v[{acc}:{acc + 1}], v[{f + 2 * d}:{f + 2 * d + 1}], v[{f + 2 * d}:{f + 2 * d + 1}], v[{acc}:{acc + 1}]")
            a(f"v_add_f32 v{acc}, v{acc}, v{acc + 1}")
            self.reduce32(a, acc, t)
            a(f"""
            v_mov_b32 v{t}, {f32(1e-5)}
            v_fmac_f32 v{t}, {f32(1 / 640)}, v{acc}
            v_rsq_f32 v{rs + 1}, v{t}
            """)

        def scale_pack():
            for d in range(10):
                a(f"v_pk_mul_f32 v[{f + 2 * d}:{f + 2 * d + 1}], v[{f + 2 * d}:{f + 2 * d + 1}], v[{rs + 1}:{rs + 2}] op_sel_hi:[1,0]")
            for d in range(10):
                a(f"v_cvt_pk_bf16_f32 v{raw + d}, v{f + 2 * d}, v{f + 2 * d + 1}")

        a("s_waitcnt vmcnt(0)")
        unpack()
        stats()
        a(f"v_mov_b32 v54, v{mean}\nv_mov_b32 v55, v{rs + 1}")
        scale_pack()
        unpack()
        stats()
        scale_pack()
        a(f"v_add_u32 v{off}, {WS_H}, v{off}")
        for j in range(5):
            a(f"buffer_store_dwordx2 v[{raw + 2 * j}:{raw + 2 * j + 1}], v{off}, s[{sWS}:{sWS + 3}], 0 offen offset:{256 * j} {sc}")
        a(f"""
        v_lshlrev_b32 v{off + 1}, 3, v{off + 1}
        v_add_u32 v{off + 1}, {WS_STATS}, v{off + 1}
        v_and_b32 v{off + 2}, 31, v0
        v_cmp_eq_u32 vcc, 0, v{off + 2}
        s_and_saveexec_b64 s[{sEx}:{sEx + 1}], vcc
        buffer_store_dwordx2 v[54:55], v{off + 1}, s[{sWS}:{sWS + 3}], 0 offen {sc}
        s_mov_b64 exec, s[{sEx}:{sEx + 1}]
        """)

    Q_ACC, Q_CS, Q_ONES, Q_BUF, Q_CA, Q_CB, Q_AA, Q_AB = 64, 128, 132, 136, 168, 170, 174, 176

    def q_consts(self, a):
        t0, t1, t2, t3, t4 = 180, 181, 182, 183, 184
        CA, CB = self.Q_CA, self.Q_CB
        a(f"""
        v_and_b32 v{t0}, 15, v0
        v_lshrrev_b32 v{t1}, 2, v{t0}
        v_lshrrev_b32 v{t2}, 5, v0
        v_lshl_add_u32 v{t3}, v{t2}, 3, v{t1}
        v_lshlrev_b32 v{t3}, 8, v{t3}
        v_and_b32 v{t4}, 1, v0
        v_lshl_add_u32 v{t3}, v{t4}, 3, v{t3}
        v_add_u32 v{t3}, 16384, v{t3}
        v_bfe_u32 v{t4}, v0, 4, 1
        v_lshlrev_b32 v{t4}, 1, v{t4}
        v_bfe_u32 v{t0}, v0, 1, 1
        v_or_b32 v{t4}, v{t4}, v{t0}
        s_lshl_b32 s{sT0}, s{sWm}, 3
        v_or_b32 v{t4}, s{sT0}, v{t4}
        v_lshlrev_b32 v{t1}, 2, v{t1}
        """)
        for tm in range(2):
            a(f"""
            v_or_b32 v{t0}, {4 * tm}, v{t4}
            v_xor_b32 v{t0}, v{t0}, v{t1}
            v_lshl_add_u32 v{CA + tm}, v{t0}, 4, v{t3}
            """)
        a(f"""
        v_and_b32 v{t0}, 31, v0
        v_bfe_u32 v{t1}, v0, 1, 3
        v_lshrrev_b32 v{t2}, 5, v0
        v_bfe_u32 v{t3}, v0, 4, 1
        v_lshlrev_b32 v{t3}, 3, v{t3}
        v_bfe_u32 v{t1}, v{t0}, 1, 3
        v_xor_b32 v{t1}, v{t1}, v{t2}
        s_lshl_b32 s{sT0}, s{sWn}, 6
        v_add_u32 v{t0}, s{sT0}, v{t0}
        v_lshlrev_b32 v{t0}, 7, v{t0}
        """)
        for ks in range(4):
            a(f"""
            v_xor_b32 v{t3}, {2 * ks}, v{t1}
            v_lshl_add_u32 v{CB + ks}, v{t3}, 4, v{t0}
            """)
        ON = self.Q_ONES
        a(f"""
        v_and_b32 v{t0}, 15, v0
        v_bfe_u32 v{t1}, v0, 4, 1
        v_cmp_eq_u32 vcc, v{t0}, v{t1}
        v_mov_b32 v{t2}, 0x3f803f80
        v_cndmask_b32 v{ON}, 0, v{t2}, vcc
        v_mov_b32 v{ON + 1}, v{ON}
        v_mov_b32 v{ON + 2}, v{ON}
        v_mov_b32 v{ON + 3}, v{ON}
        """)
        for r in range(self.Q_ACC, self.Q_CS + 4):
            a(f"v_mov_b32 v{r}, 0")

    def q_reads(self, ks, b):
        base = self.Q_BUF + 16 * b
        out = []
        for tm in range(2):
            for rd in range(2):
                out.append(f"ds_read_b64_tr_b16 v[{base + 4 * tm + 2 * rd}:{base + 4 * tm + 2 * rd + 1}], v{self.Q_AA + tm} offset:{(16 * ks + 4 * rd) * 256}")
        for tn in range(2):
            out.append(f"ds_read_b128 v[{base + 8 + 4 * tn}:{base + 11 + 4 * tn}], v{self.Q_AB + ks} offset:{tn * 4096}")
        return out

    def q_mfmas(self, b):
        base = self.Q_BUF + 16 * b
        out = []
        for tm in range(2):
            for tn in range(2):
                acc = self.Q_ACC + 16 * (2 * tm + tn)
                out.append(f"v_mfma_f32_32x32x16_bf16 v[{acc}:{acc + 15}], v[{base + 4 * tm}:{base + 4 * tm + 3}], v[{base + 8 + 4 * tn}:{base + 11 + 4 * tn}], v[{acc}:{acc + 15}]")
        return out

    @staticmethod
    def interleave(a, mf, rd):
        per = -(-len(rd) // max(1, len(mf)))
        k = 0
        for m in mf:
            a(m)
            for r in rd[k:k + per]:
                a(r)
            k += per
        for r in rd[k:]:
            a(r)

    def q_stage(self, a, wn, first):
        def mf(b):
            base = self.Q_BUF + 16 * b + 4 * wn
            cs, on = self.Q_CS, self.Q_ONES
            return self.q_mfmas(b) + [f"v_mfma_f32_16x16x32_bf16 v[{cs}:{cs + 3}], v[{base}:{base + 3}], v[{on}:{on + 3}], v[{cs}:{cs + 3}]"]
        a("s_barrier")
        for tm in range(2):
            a(f"v_add_u32 v{self.Q_AA + tm}, s{sSlot}, v{self.Q_CA + tm}")
        for ks in range(4):
            a(f"v_add_u32 v{self.Q_AB + ks}, s{sSlot}, v{self.Q_CB + ks}")
        self.slot_next(a)
        if first:
            for r in self.q_reads(0, 0):
                a(r)
            for r in self.q_reads(1, 1):
                a(r)
        else:
            r0 = self.q_reads(0, 0)
            self.interleave(a, mf(1), r0)
            for r in self.q_reads(1, 1):
                a(r)
        a("s_waitcnt lgkmcnt(6)")
        self.interleave(a, mf(0)[:1], [])
        self.interleave(a, mf(0)[1:], [])
        for r in self.q_reads(2, 0):
            a(r)
        a("s_waitcnt lgkmcnt(6)")
        self.interleave(a, mf(1), [])
        for r in self.q_reads(3, 1):
            a(r)
        a("s_waitcnt lgkmcnt(6)")
        self.interleave(a, mf(0), [])
        a("s_waitcnt lgkmcnt(0)")

    def q_tail(self, a, wn):
        base = self.Q_BUF + 16 + 4 * wn
        cs, on = self.Q_CS, self.Q_ONES
        for m in self.q_mfmas(1):
            a(m)
        a(f"v_mfma_f32_16x16x32_bf16 v[{cs}:{cs + 3}], v[{base}:{base + 3}], v[{on}:{on + 3}], v[{cs}:{cs + 3}]")

    def q_csum_write(self, a):
        t0, t1 = 180, 181
        cs = self.Q_CS
        a(f"""
        v_and_b32 v{t0}, 1, v0
        v_lshlrev_b32 v{t0}, 6, v{t0}
        v_lshrrev_b32 v{t1}, 4, v0
        v_lshl_add_u32 v{t0}, v{t1}, 4, v{t0}
        s_lshl_b32 s{sT0}, s{sWm}, 8
        s_lshl_b32 s{sT1}, s{sWn}, 7
        s_add_u32 s{sT0}, s{sT0}, s{sT1}
        s_add_u32 s{sT0}, s{sT0}, {SCR}
        v_add_u32 v{t0}, s{sT0}, v{t0}
        v_and_b32 v{t1}, 14, v0
        v_cmp_eq_u32 vcc, 0, v{t1}
        s_and_saveexec_b64 s[{sEx}:{sEx + 1}], vcc
        ds_write_b128 v{t0}, v[{cs}:{cs + 3}]
        s_mov_b64 exec, s[{sEx}:{sEx + 1}]
        s_waitcnt lgkmcnt(0)
        """)

    def q_epilogue(self, a, wm):
        sc = self.sc
        C, ST, AB, TK, VQ, VKV, T = 136, 168, 172, 180, 182, 184, 188
        a(f"""
        v_lshrrev_b32 v{T}, 5, v0
        v_lshlrev_b32 v{T}, 4, v{T}
        v_add_u32 v{T}, {SCR + wm * 256}, v{T}
        """)
        for tm in range(2):
            for q in range(4):
                r = C + 16 * tm + 4 * q
                a(f"ds_read_b128 v[{r}:{r + 3}], v{T} offset:{tm * 128 + q * 32}")
        a(f"""
        s_lshl_b32 s{sT0}, s{sI}, 7
        s_lshl_b32 s{sT1}, s{sWn}, 6
        s_add_u32 s{sT0}, s{sT0}, s{sT1}
        v_and_b32 v{TK}, 31, v0
        v_add_u32 v{TK}, s{sT0}, v{TK}
        v_add_u32 v{TK + 1}, 32, v{TK}
        """)
        for tn in range(2):
            a(f"""
            v_lshlrev_b32 v{T + 1}, 3, v{TK + tn}
            v_add_u32 v{T + 1}, {WS_STATS}, v{T + 1}
            buffer_load_dwordx2 v[{ST + 2 * tn}:{ST + 2 * tn + 1}], v{T + 1}, s[{sWS}:{sWS + 3}], 0 offen {sc}
            """)
        a(f"""
        s_lshl_b32 s{sT0}, s{sP}, 11
        v_lshrrev_b32 v{T + 2}, 5, v0
        v_lshlrev_b32 v{T + 2}, 3, v{T + 2}
        v_mov_b32 v{T + 3}, 0x7ff00000
        """)
        for tn in range(2):
            a(f"""
            v_add_u32 v{T + 1}, s{sT0}, v{TK + tn}
            v_mul_u32_u24 v{VQ + tn}, 80, v{T + 1}
            v_add_u32 v{VQ + tn}, v{VQ + tn}, v{T + 2}
            v_add_u32 v{VQ + tn}, {WS_Q}, v{VQ + tn}
            v_mul_u32_u24 v{VKV + tn}, {KVROW}, v{T + 1}
            v_add_u32 v{VKV + tn}, v{VKV + tn}, v{T + 2}
            v_add_u32 v{VKV + tn}, {WS_KV}, v{VKV + tn}
            """)
        a("s_waitcnt vmcnt(0) lgkmcnt(0)")
        for tn in range(2):
            m_, r_ = ST + 2 * tn, ST + 2 * tn + 1
            o = AB + 4 * tn
            a(f"""
            v_mov_b32 v{o}, v{r_}
            v_mul_f32 v{o + 1}, v{m_}, v{r_}
            v_mul_f32 v{o + 2}, {f32(QSCALE)}, v{r_}
            v_mul_f32 v{o + 3}, {f32(QSCALE)}, v{o + 1}
            """)
        for tn in range(2):
            for tm in range(2):
                acc = self.Q_ACC + 16 * (2 * tm + tn)
                for q in range(4):
                    Q0 = 16 * wm + 8 * tm + 2 * q
                    isq = Q0 < 10
                    o = AB + 4 * tn + (2 if isq else 0)
                    c = C + 16 * tm + 4 * q
                    x = acc + 4 * q
                    if Q0 == 30:
                        a(f"v_mov_b32 v{x}, 0x00003f80\nv_mov_b32 v{x + 1}, 0")
                        a(f"""
                        v_cmp_gt_u32 vcc, 32, v0
                        v_cndmask_b32 v{T + 1}, v{T + 3}, v{VKV + tn}, vcc
                        buffer_store_dwordx2 v[{x}:{x + 1}], v{T + 1}, s[{sWS}:{sWS + 3}], 0 offen offset:160 {sc}
                        """)
                        continue
                    for hf in range(2):
                        a(f"v_pk_mul_f32 v[{x + 2 * hf}:{x + 2 * hf + 1}], v[{x + 2 * hf}:{x + 2 * hf + 1}], v[{o}:{o + 1}] op_sel_hi:[1,0]")
                        a(f"v_pk_fma_f32 v[{x + 2 * hf}:{x + 2 * hf + 1}], v[{c + 2 * hf}:{c + 2 * hf + 1}], v[{o}:{o + 1}], v[{x + 2 * hf}:{x + 2 * hf + 1}] op_sel:[0,1,0] op_sel_hi:[1,1,1] neg_lo:[1,0,0] neg_hi:[1,0,0]")
                    a(f"v_cvt_pk_bf16_f32 v{x}, v{x}, v{x + 1}\nv_cvt_pk_bf16_f32 v{x + 1}, v{x + 2}, v{x + 3}")
                    if isq:
                        a(f"buffer_store_dwordx2 v[{x}:{x + 1}], v{VQ + tn}, s[{sWS}:{sWS + 3}], 0 offen offset:{Q0 * 8} {sc}")
                    else:
                        a(f"buffer_store_dwordx2 v[{x}:{x + 1}], v{VKV + tn}, s[{sWS}:{sWS + 3}], 0 offen offset:{(Q0 - 10) * 8} {sc}")

    M_ACC, M_BUF, M_CA, M_CB, M_AA, M_AB = 64, 136, 184, 186, 187, 189

    def m_consts(self, a):
        t0, t1, t2, t3, t4 = 190, 191, 192, 193, 194
        a(f"""
        v_and_b32 v{t0}, 15, v0
        v_lshrrev_b32 v{t1}, 2, v{t0}
        v_lshrrev_b32 v{t2}, 5, v0
        v_lshl_add_u32 v{t3}, v{t2}, 3, v{t1}
        s_lshl_b32 s{sT0}, s{sWm}, 6
        v_add_u32 v{t3}, s{sT0}, v{t3}
        v_lshlrev_b32 v{t3}, 7, v{t3}
        v_and_b32 v{t4}, 1, v0
        v_lshl_add_u32 v{t3}, v{t4}, 3, v{t3}
        v_bfe_u32 v{t4}, v0, 4, 1
        v_lshlrev_b32 v{t4}, 1, v{t4}
        v_bfe_u32 v{t0}, v0, 1, 1
        v_or_b32 v{t4}, v{t4}, v{t0}
        v_bfe_u32 v{t1}, v0, 3, 1
        v_lshlrev_b32 v{t1}, 2, v{t1}
        """)
        for tm in range(2):
            a(f"""
            v_or_b32 v{t0}, {4 * tm}, v{t4}
            v_xor_b32 v{t0}, v{t0}, v{t1}
            v_lshl_add_u32 v{self.M_CA + tm}, v{t0}, 4, v{t3}
            """)
        a(f"""
        s_lshl_b32 s{sT0}, s{sWn}, 2
        v_or_b32 v{t0}, s{sT0}, v{t4}
        v_xor_b32 v{t0}, v{t0}, v{t1}
        v_lshl_add_u32 v{self.M_CB}, v{t0}, 4, v{t3}
        v_add_u32 v{self.M_CB}, 16384, v{self.M_CB}
        """)
        for r in range(self.M_ACC, self.M_ACC + 32):
            a(f"v_mov_b32 v{r}, 0")

    def m_reads(self, ks):
        base = self.M_BUF + 12 * ks
        out = []
        for tm in range(2):
            for rd in range(2):
                out.append(f"ds_read_b64_tr_b16 v[{base + 4 * tm + 2 * rd}:{base + 4 * tm + 2 * rd + 1}], v{self.M_AA + tm} offset:{(16 * ks + 4 * rd) * 128}")
        for rd in range(2):
            out.append(f"ds_read_b64_tr_b16 v[{base + 8 + 2 * rd}:{base + 9 + 2 * rd}], v{self.M_AB} offset:{(16 * ks + 4 * rd) * 128}")
        return out

    def m_mfmas(self, ks):
        base = self.M_BUF + 12 * ks
        return [f"v_mfma_f32_32x32x16_bf16 v[{self.M_ACC + 16 * tm}:{self.M_ACC + 16 * tm + 15}], v[{base + 4 * tm}:{base + 4 * tm + 3}], v[{base + 8}:{base + 11}], v[{self.M_ACC + 16 * tm}:{self.M_ACC + 16 * tm + 15}]" for tm in range(2)]

    def m_stage(self, a, first):
        a("s_barrier")
        for tm in range(2):
            a(f"v_add_u32 v{self.M_AA + tm}, s{sSlot}, v{self.M_CA + tm}")
        a(f"v_add_u32 v{self.M_AB}, s{sSlot}, v{self.M_CB}")
        self.slot_next(a)
        for r in self.m_reads(0) + self.m_reads(1):
            a(r)
        if not first:
            for m in self.m_mfmas(2) + self.m_mfmas(3):
                a(m)
        a("s_waitcnt lgkmcnt(6)")
        rd = self.m_reads(2)
        self.interleave(a, self.m_mfmas(0), rd)
        a("s_waitcnt lgkmcnt(6)")
        rd = self.m_reads(3)
        self.interleave(a, self.m_mfmas(1), rd)
        a("s_waitcnt lgkmcnt(0)")

    def m_tail(self, a):
        for m in self.m_mfmas(2) + self.m_mfmas(3):
            a(m)

    def m_reduce_write(self, a, kh):
        t = 190
        src = self.M_ACC + 16 * (1 - kh)
        a(f"""
        v_lshlrev_b32 v{t}, 4, v0
        s_lshl_b32 s{sT0}, s{sLw}, 12
        s_add_u32 s{sT0}, s{sT0}, {SCR}
        v_add_u32 v{t}, s{sT0}, v{t}
        """)
        for q in range(4):
            a(f"ds_write_b128 v{t}, v[{src + 4 * q}:{src + 4 * q + 3}] offset:{q * 1024}")
        a("s_waitcnt lgkmcnt(0)")

    def m_epilogue(self, a, kh):
        sc = self.sc
        t, R, B1, AD, U = 190, 136, 152, 156, 160
        keep = self.M_ACC + 16 * kh
        a(f"""
        v_lshlrev_b32 v{t}, 4, v0
        s_xor_b32 s{sT0}, s{sLw}, 2
        s_lshl_b32 s{sT0}, s{sT0}, 12
        s_add_u32 s{sT0}, s{sT0}, {SCR}
        v_add_u32 v{t}, s{sT0}, v{t}
        """)
        for q in range(4):
            a(f"ds_read_b128 v[{R + 4 * q}:{R + 4 * q + 3}], v{t} offset:{q * 1024}")
        a(f"""
        s_lshl_b32 s{sT0}, s{sFt}, 6
        s_lshl_b32 s{sT1}, s{sWn}, 5
        s_add_u32 s{sT0}, s{sT0}, s{sT1}
        v_and_b32 v{U}, 31, v0
        v_add_u32 v{U}, s{sT0}, v{U}
        v_lshlrev_b32 v{U + 1}, 1, v{U}
        buffer_load_ushort v{B1}, v{U + 1}, s[{sB1}:{sB1 + 3}], 0 offen
        v_mul_u32_u24 v{U}, 160, v{U}
        v_add_u32 v{U}, {WS_GT}, v{U}
        s_lshl_b32 s{sT0}, s{sDt1}, 6
        s_add_u32 s{sT0}, s{sT0}, {32 * kh}
        v_lshrrev_b32 v{U + 1}, 5, v0
        v_lshlrev_b32 v{U + 1}, 2, v{U + 1}
        v_add_u32 v{U + 1}, s{sT0}, v{U + 1}
        """)
        for q in range(4):
            a(f"""
            v_add_u32 v{U + 2}, {8 * q}, v{U + 1}
            v_mul_u32_u24 v{U + 3}, 820, v{U + 2}
            v_lshrrev_b32 v{U + 3}, 16, v{U + 3}
            v_mul_u32_u24 v{U + 4}, 80, v{U + 3}
            v_sub_u32 v{U + 2}, v{U + 2}, v{U + 4}
            v_lshl_add_u32 v{AD + q}, v{U + 2}, 1, v{U}
            v_mul_u32_u24 v{U + 3}, {1536 * 160}, v{U + 3}
            v_add_u32 v{AD + q}, v{AD + q}, v{U + 3}
            """)
        a("s_waitcnt vmcnt(0) lgkmcnt(0)")
        a(f"v_lshlrev_b32 v{B1}, 16, v{B1}")
        c0 = -2.0 * math.sqrt(2.0 / math.pi) * math.log2(math.e)
        c1 = c0 * 0.044715
        a(f"v_mov_b32 v{B1 + 1}, {f32(c0)}\ns_mov_b32 s{sT2}, {f32(c1)}")
        for r in range(16):
            a(f"v_add_f32 v{keep + r}, v{keep + r}, v{R + r}")
        for r in range(16):
            a(f"v_add_f32 v{keep + r}, v{keep + r}, v{B1}")
        for r in range(16):
            a(f"v_mul_f32 v{R + r}, v{keep + r}, v{keep + r}")
        for r in range(16):
            a(f"v_fma_f32 v{R + r}, v{R + r}, s{sT2}, v{B1 + 1}")
        for r in range(16):
            a(f"v_mul_f32 v{R + r}, v{R + r}, v{keep + r}")
        for r in range(16):
            a(f"v_exp_f32 v{R + r}, v{R + r}")
        for r in range(16):
            a(f"v_add_f32 v{R + r}, 1.0, v{R + r}")
        for r in range(16):
            a(f"v_rcp_f32 v{R + r}, v{R + r}")
        for r in range(16):
            a(f"v_mul_f32 v{keep + r}, v{keep + r}, v{R + r}")
        skip = a.uid("Lm1skip")
        a(f"s_cmp_eq_u32 s{sM1On}, 0\ns_cbranch_scc1 {skip}")
        for q in range(4):
            x = keep + 4 * q
            a(f"v_cvt_pk_bf16_f32 v{x}, v{x}, v{x + 1}\nv_cvt_pk_bf16_f32 v{x + 1}, v{x + 2}, v{x + 3}")
            a(f"buffer_store_dwordx2 v[{x}:{x + 1}], v{AD + q}, s[{sWS}:{sWS + 3}], 0 offen {sc}")
        a.label(skip)

    A_Q, A_K, A_V, A_S, A_P, A_O, A_MF, A_MD = 2, 18, 34, 64, 96, 112, 144, 160
    A_KA, A_VA, A_T = 176, 178, 184

    def a_qloads(self, a):
        sc = self.sc
        T = self.A_T
        a(f"""
        s_lshl_b32 s{sT0}, s{sP}, 11
        s_lshl_b32 s{sT1}, s{sI}, 7
        s_add_u32 s{sT0}, s{sT0}, s{sT1}
        s_lshl_b32 s{sT1}, s{sLw}, 5
        s_add_u32 s{sT0}, s{sT0}, s{sT1}
        v_and_b32 v{T}, 31, v0
        v_add_u32 v{T}, s{sT0}, v{T}
        v_mul_u32_u24 v{T}, 80, v{T}
        v_add_u32 v{T}, {WS_Q}, v{T}
        v_lshrrev_b32 v{T + 1}, 5, v0
        v_lshl_add_u32 v{T + 2}, v{T + 1}, 4, v{T}
        v_mov_b32 v{T + 3}, 0x7ff00000
        v_cmp_gt_u32 vcc, 32, v0
        v_cndmask_b32 v{T + 3}, v{T + 3}, v{T}, vcc
        """)
        for hh in range(2):
            q = self.A_Q + 8 * hh
            a(f"""
            buffer_load_dwordx2 v[{q}:{q + 1}], v{T + 2}, s[{sWS}:{sWS + 3}], 0 offen offset:{40 * hh} {sc}
            buffer_load_dwordx2 v[{q + 2}:{q + 3}], v{T + 2}, s[{sWS}:{sWS + 3}], 0 offen offset:{40 * hh + 8} {sc}
            buffer_load_dwordx2 v[{q + 4}:{q + 5}], v{T + 3}, s[{sWS}:{sWS + 3}], 0 offen offset:{40 * hh + 32} {sc}
            v_mov_b32 v{q + 6}, 0
            v_mov_b32 v{q + 7}, 0
            """)

    def a_consts(self, a):
        T = self.A_T
        KA, VA = self.A_KA, self.A_VA
        a(f"""
        v_and_b32 v{T}, 31, v0
        s_lshl_b32 s{sT0}, s{sLw}, 5
        v_add_u32 v{T + 1}, s{sT0}, v{T}
        v_mul_u32_u24 v{T + 1}, {KVROW}, v{T + 1}
        v_add_u32 v{KA + 1}, {KVBASE}, v{T + 1}
        v_lshrrev_b32 v{T + 2}, 5, v0
        v_lshl_add_u32 v{KA}, v{T + 2}, 4, v{KA + 1}
        v_and_b32 v{T}, 15, v0
        v_lshrrev_b32 v{T + 1}, 2, v{T}
        v_lshl_add_u32 v{T + 1}, v{T + 2}, 2, v{T + 1}
        v_add_u32 v{T + 1}, s{sT0}, v{T + 1}
        v_mul_u32_u24 v{T + 1}, {KVROW}, v{T + 1}
        v_add_u32 v{T + 1}, {KVBASE}, v{T + 1}
        v_and_b32 v{T + 3}, 3, v0
        v_lshlrev_b32 v{T + 4}, 3, v{T + 3}
        v_add_u32 v{T + 4}, 80, v{T + 4}
        v_bfe_u32 v{T + 5}, v0, 4, 1
        v_cmp_eq_u32 vcc, 0, v{T + 3}
        v_mov_b32 v{T + 6}, 160
        v_mov_b32 v{T + 7}, 112
        v_cndmask_b32 v{T + 7}, v{T + 6}, v{T + 7}, vcc
        v_cmp_eq_u32 vcc, 0, v{T + 5}
        v_cndmask_b32 v{T + 7}, v{T + 7}, v{T + 4}, vcc
        v_add_u32 v{VA}, v{T + 1}, v{T + 7}
        v_add_u32 v{T + 4}, 40, v{T + 4}
        v_cmp_eq_u32 vcc, 0, v{T + 3}
        v_mov_b32 v{T + 7}, 152
        v_cndmask_b32 v{T + 7}, v{T + 6}, v{T + 7}, vcc
        v_cmp_eq_u32 vcc, 0, v{T + 5}
        v_cndmask_b32 v{T + 7}, v{T + 7}, v{T + 4}, vcc
        v_add_u32 v{VA + 1}, v{T + 1}, v{T + 7}
        """)
        a(f"""
        v_and_b32 v{T}, 31, v0
        v_lshlrev_b32 v{T + 1}, 2, v{T + 2}
        v_sub_u32 v{T}, v{T}, v{T + 1}
        v_mov_b32 v{T + 3}, {f32(-1e30)}
        """)
        for r in range(16):
            kr = 8 * (r >> 2) + (r & 3)
            a(f"""
            v_cmp_gt_i32 vcc, {kr}, v{T}
            v_cndmask_b32 v{self.A_MF + r}, v{T + 3}, 0, vcc
            v_cndmask_b32 v{self.A_MD + r}, 0, v{T + 3}, vcc
            """)
        for hh in range(2):
            for r in range(16):
                a(f"v_mov_b32 v{self.A_O + 16 * hh + r}, 0")
            k = self.A_K + 8 * hh
            a(f"v_mov_b32 v{k + 6}, 0\nv_mov_b32 v{k + 7}, 0")

    def a_kreads(self, hh):
        k = self.A_K + 8 * hh
        return [f"ds_read_b64 v[{k}:{k + 1}], v{self.A_KA} offset:{40 * hh}",
                f"ds_read_b64 v[{k + 2}:{k + 3}], v{self.A_KA} offset:{40 * hh + 8}",
                f"ds_read_b64 v[{k + 4}:{k + 5}], v{self.A_KA + 1} offset:{40 * hh + 32}"]

    def a_vreads(self, hh):
        x = self.A_V + 8 * hh
        return [f"ds_read_b64_tr_b16 v[{x + 4 * aa + 2 * rd}:{x + 4 * aa + 2 * rd + 1}], v{self.A_VA + hh} offset:{(16 * aa + 8 * rd) * KVROW}"
                for aa in range(2) for rd in range(2)]

    def a_qk(self, hh, mask):
        sreg = self.A_S + 16 * hh
        k, q = self.A_K + 8 * hh, self.A_Q + 8 * hh
        c = "0" if mask is None else f"v[{mask}:{mask + 15}]"
        return [f"v_mfma_f32_32x32x16_bf16 v[{sreg}:{sreg + 15}], v[{k}:{k + 3}], v[{q}:{q + 3}], {c}",
                f"v_mfma_f32_32x32x16_bf16 v[{sreg}:{sreg + 15}], v[{k + 4}:{k + 7}], v[{q + 4}:{q + 7}], v[{sreg}:{sreg + 15}]"]

    def a_pv(self, hh):
        o, p, x = self.A_O + 16 * hh, self.A_P + 8 * hh, self.A_V + 8 * hh
        return [f"v_mfma_f32_32x32x16_bf16 v[{o}:{o + 15}], v[{x + 4 * aa}:{x + 4 * aa + 3}], v[{p + 4 * aa}:{p + 4 * aa + 3}], v[{o}:{o + 15}]"
                for aa in range(2)]

    def a_softmax(self, a, hh):
        sreg, p = self.A_S + 16 * hh, self.A_P + 8 * hh
        for r in range(16):
            a(f"v_exp_f32 v{sreg + r}, v{sreg + r}")
        for r in range(8):
            a(f"v_cvt_pk_bf16_f32 v{p + r}, v{sreg + 2 * r}, v{sreg + 2 * r + 1}")

    def a_tile(self, a, mask):
        for hh in range(2):
            for r in self.a_kreads(hh):
                a(r)
        for hh in range(2):
            for r in self.a_vreads(hh):
                a(r)
        a(f"v_add_u32 v{self.A_KA}, {32 * KVROW}, v{self.A_KA}")
        a(f"v_add_u32 v{self.A_KA + 1}, {32 * KVROW}, v{self.A_KA + 1}")
        a("s_waitcnt lgkmcnt(11)")
        for m in self.a_qk(0, mask):
            a(m)
        a("s_waitcnt lgkmcnt(8)")
        for m in self.a_qk(1, mask):
            a(m)
        a(f"v_add_u32 v{self.A_VA}, {32 * KVROW}, v{self.A_VA}")
        a(f"v_add_u32 v{self.A_VA + 1}, {32 * KVROW}, v{self.A_VA + 1}")
        self.a_softmax(a, 0)
        a("s_waitcnt lgkmcnt(0)")
        for m in self.a_pv(0):
            a(m)
        self.a_softmax(a, 1)
        for m in self.a_pv(1):
            a(m)

    def a_skip(self, a, n):
        a(f"s_mul_i32 s{sT1}, s{n}, {32 * KVROW}")
        for r in (self.A_KA, self.A_KA + 1, self.A_VA, self.A_VA + 1):
            a(f"v_add_u32 v{r}, s{sT1}, v{r}")

    def attention(self, a):
        T = self.A_T
        sc = self.sc
        self.a_consts(a)
        a(f"""
        s_lshl_b32 s{sT0}, s{sI}, 2
        s_add_u32 s{sT0}, s{sT0}, s{sLw}
        s_cmp_ge_u32 s{sT0}, 8
        s_cselect_b32 s{sT0}, 8, s{sT0}
        s_sub_u32 s{sT2}, 8, s{sT0}
        """)
        a("s_waitcnt vmcnt(0)")
        lfar, lmid, ldiag = a.uid("Lfar"), a.uid("Lmid"), a.uid("Ldiag")
        a(f"s_cmp_eq_u32 s{sT2}, 0\ns_cbranch_scc1 {lfar}")
        self.a_skip(a, sT2)
        a(f"s_sub_u32 s{sCnt}, 8, s{sT2}\ns_branch {lmid}_chk")
        a.label(lfar)
        self.a_tile(a, self.A_MF)
        a(f"s_mov_b32 s{sCnt}, 7")
        a.label(lmid + "_chk")
        a(f"s_cmp_eq_u32 s{sCnt}, 0\ns_cbranch_scc1 {ldiag}")
        a.label(lmid)
        self.a_tile(a, None)
        a(f"s_sub_u32 s{sCnt}, s{sCnt}, 1\ns_cmp_lg_u32 s{sCnt}, 0\ns_cbranch_scc1 {lmid}")
        a.label(ldiag)
        self.a_tile(a, self.A_MD)
        lfb, ldone = a.uid("Lfallback"), a.uid("Lnorm")
        self.fallback_labels = (lfb, ldone)
        self.a_rowsum(a)
        a(f"""
        v_mov_b32 v{T + 4}, {f32(2.0 ** -40)}
        v_mov_b32 v{T + 5}, {f32(2.0 ** 40)}
        v_cmp_ge_f32 s[{sT0}:{sT0 + 1}], v{T}, v{T + 4}
        v_cmp_le_f32 s[{sT2}:{sT2 + 1}], v{T}, v{T + 5}
        s_and_b64 s[{sT0}:{sT0 + 1}], s[{sT0}:{sT0 + 1}], s[{sT2}:{sT2 + 1}]
        v_cmp_ge_f32 s[{sT2}:{sT2 + 1}], v{T + 1}, v{T + 4}
        s_and_b64 s[{sT0}:{sT0 + 1}], s[{sT0}:{sT0 + 1}], s[{sT2}:{sT2 + 1}]
        v_cmp_le_f32 s[{sT2}:{sT2 + 1}], v{T + 1}, v{T + 5}
        s_and_b64 s[{sT0}:{sT0 + 1}], s[{sT0}:{sT0 + 1}], s[{sT2}:{sT2 + 1}]
        s_cmp_eq_u64 s[{sT0}:{sT0 + 1}], exec
        s_cbranch_scc0 {lfb}
        """)
        a.label(ldone)
        self.a_store(a)

    def a_rowsum(self, a):
        T = self.A_T
        for hh in range(2):
            o = self.A_O + 16 * hh
            a(f"""
            v_mov_b32 v{T + 2}, v{o + 8}
            v_mov_b32 v{T + hh}, v{o + 8}
            v_nop
            v_permlane32_swap_b32 v{T + 2}, v{T + hh}
            """)

    def a_store(self, a):
        T = self.A_T
        sc = self.sc
        a(f"""
        v_rcp_f32 v{T + 2}, v{T}
        v_rcp_f32 v{T + 4}, v{T + 1}
        s_lshl_b32 s{sT0}, s{sI}, 7
        s_lshl_b32 s{sT1}, s{sLw}, 5
        s_add_u32 s{sT0}, s{sT0}, s{sT1}
        v_and_b32 v{T + 6}, 31, v0
        v_add_u32 v{T + 6}, s{sT0}, v{T + 6}
        v_mul_u32_u24 v{T + 6}, 1280, v{T + 6}
        s_mul_i32 s{sT0}, s{sP}, 80
        s_add_u32 s{sT0}, s{sT0}, {WS_O}
        v_add_u32 v{T + 6}, s{sT0}, v{T + 6}
        v_lshrrev_b32 v{T + 7}, 5, v0
        v_lshl_add_u32 v{T + 7}, v{T + 7}, 3, v{T + 6}
        v_mov_b32 v{T + 8}, 0x7ff00000
        v_cmp_gt_u32 vcc, 32, v0
        v_cndmask_b32 v{T + 8}, v{T + 8}, v{T + 6}, vcc
        """)
        for hh in range(2):
            o = self.A_O + 16 * hh
            rc = T + 2 + 2 * hh
            for g in range(3):
                x = o + 4 * g
                for hf in range(2):
                    a(f"v_pk_mul_f32 v[{x + 2 * hf}:{x + 2 * hf + 1}], v[{x + 2 * hf}:{x + 2 * hf + 1}], v[{rc}:{rc + 1}] op_sel_hi:[1,0]")
                a(f"v_cvt_pk_bf16_f32 v{x}, v{x}, v{x + 1}\nv_cvt_pk_bf16_f32 v{x + 1}, v{x + 2}, v{x + 3}")
                ad = T + 7 if g < 2 else T + 8
                a(f"buffer_store_dwordx2 v[{x}:{x + 1}], v{ad}, s[{sWS}:{sWS + 3}], 0 offen offset:{40 * hh + 16 * g} {sc}")

    def attention_fallback(self, a):
        lfb, ldone = self.fallback_labels
        T = self.A_T
        M = 200
        a.label(lfb)
        self.a_consts(a)
        a(f"""
        s_lshl_b32 s{sT0}, s{sI}, 2
        s_add_u32 s{sT0}, s{sT0}, s{sLw}
        s_cmp_ge_u32 s{sT0}, 8
        s_cselect_b32 s{sT0}, 8, s{sT0}
        s_sub_u32 s{sCnt}, 8, s{sT0}
        v_mov_b32 v{M}, {f32(-3e38)}
        v_mov_b32 v{M + 1}, {f32(-3e38)}
        """)
        self.a_skip(a, sCnt)
        lp, lnf, lnd = a.uid("Lfb"), a.uid("Lfbnf"), a.uid("Lfbnd")
        a.label(lp)
        for hh in range(2):
            for r in self.a_kreads(hh) + self.a_vreads(hh):
                a(r)
        for r in (self.A_KA, self.A_KA + 1, self.A_VA, self.A_VA + 1):
            a(f"v_add_u32 v{r}, {32 * KVROW}, v{r}")
        a("s_waitcnt lgkmcnt(0)")
        for hh in range(2):
            for m in self.a_qk(hh, None):
                a(m)
        a("s_nop 15")
        a(f"s_cmp_lg_u32 s{sCnt}, 0\ns_cbranch_scc1 {lnf}")
        for hh in range(2):
            for r in range(16):
                a(f"v_add_f32 v{self.A_S + 16 * hh + r}, v{self.A_S + 16 * hh + r}, v{self.A_MF + r}")
        a.label(lnf)
        a(f"s_cmp_lg_u32 s{sCnt}, 8\ns_cbranch_scc1 {lnd}")
        for hh in range(2):
            for r in range(16):
                a(f"v_add_f32 v{self.A_S + 16 * hh + r}, v{self.A_S + 16 * hh + r}, v{self.A_MD + r}")
        a.label(lnd)
        for hh in range(2):
            sreg, o = self.A_S + 16 * hh, self.A_O + 16 * hh
            x = M + 2
            a(f"v_max3_f32 v{x}, v{sreg}, v{sreg + 1}, v{M + hh}")
            for r in range(2, 16, 2):
                a(f"v_max3_f32 v{x}, v{sreg + r}, v{sreg + r + 1}, v{x}")
            a(f"""
            v_mov_b32 v{x + 1}, v{x}
            v_mov_b32 v{x + 2}, v{x}
            v_nop
            v_permlane32_swap_b32 v{x + 1}, v{x + 2}
            v_max_f32 v{x}, v{x + 1}, v{x + 2}
            v_sub_f32 v{x + 1}, v{M + hh}, v{x}
            v_exp_f32 v{x + 1}, v{x + 1}
            v_mov_b32 v{M + hh}, v{x}
            """)
            for r in range(16):
                a(f"v_sub_f32 v{sreg + r}, v{sreg + r}, v{x}")
            for r in range(16):
                a(f"v_mul_f32 v{o + r}, v{o + r}, v{x + 1}")
            self.a_softmax(a, hh)
            for m in self.a_pv(hh):
                a(m)
        a(f"s_add_u32 s{sCnt}, s{sCnt}, 1\ns_cmp_le_u32 s{sCnt}, 8\ns_cbranch_scc1 {lp}")
        a("s_nop 15")
        self.a_rowsum(a)
        a(f"s_branch {ldone}")

    F_ACC, F_BUF, F_CA, F_CB, F_CO, F_AA, F_AB, F_AO = 64, 136, 192, 193, 195, 199, 200, 202

    def f_consts(self, a):
        t0, t1, t2, t3, t4 = 206, 207, 208, 209, 210
        a(f"""
        v_and_b32 v{t0}, 15, v0
        v_lshrrev_b32 v{t1}, 2, v{t0}
        v_lshrrev_b32 v{t2}, 4, v0
        v_lshl_add_u32 v{t3}, v{t2}, 2, v{t1}
        s_lshl_b32 s{sT0}, s{sWm}, 6
        v_add_u32 v{t3}, s{sT0}, v{t3}
        v_mul_u32_u24 v{self.F_CA}, 160, v{t3}
        v_and_b32 v{t4}, 3, v0
        v_lshl_add_u32 v{self.F_CA}, v{t4}, 3, v{self.F_CA}
        v_add_u32 v{self.F_CA}, 16384, v{self.F_CA}
        v_lshlrev_b32 v{t3}, 7, v{t3}
        v_and_b32 v{t4}, 1, v0
        v_lshl_add_u32 v{t3}, v{t4}, 3, v{t3}
        v_bfe_u32 v{t4}, v0, 1, 1
        s_lshl_b32 s{sT0}, s{sWn}, 2
        v_or_b32 v{t4}, s{sT0}, v{t4}
        v_bfe_u32 v{t0}, v0, 4, 1
        v_lshlrev_b32 v{t0}, 1, v{t0}
        v_bfe_u32 v{t1}, v0, 3, 1
        v_or_b32 v{t0}, v{t0}, v{t1}
        v_lshlrev_b32 v{t0}, 1, v{t0}
        """)
        for tn in range(2):
            a(f"""
            v_or_b32 v{t1}, {2 * tn}, v{t4}
            v_xor_b32 v{t1}, v{t1}, v{t0}
            v_lshl_add_u32 v{self.F_CB + tn}, v{t1}, 4, v{t3}
            """)
        a(f"""
        v_and_b32 v{t0}, 15, v0
        s_lshl_b32 s{sT0}, s{sWn}, 5
        v_add_u32 v{t1}, s{sT0}, v{t0}
        v_lshlrev_b32 v{t1}, 8, v{t1}
        v_bfe_u32 v{t2}, v0, 4, 1
        v_lshl_add_u32 v{t1}, v{t2}, 3, v{t1}
        v_lshrrev_b32 v{t2}, 5, v0
        s_lshl_b32 s{sT0}, s{sWm}, 3
        v_add_u32 v{t2}, s{sT0}, v{t2}
        """)
        for j in range(2):
            for rd in range(2):
                a(f"""
                v_add_u32 v{t3}, {4 * j + 2 * rd}, v{t2}
                v_xor_b32 v{t3}, v{t3}, v{t0}
                v_lshl_add_u32 v{self.F_CO + 2 * j + rd}, v{t3}, 4, v{t1}
                """)
        for r in range(self.F_ACC, self.F_ACC + 40):
            a(f"v_mov_b32 v{r}, 0")

    def f_reads(self, j, wo):
        base = self.F_BUF + 28 * j
        out = []
        for tn in range(2):
            for rd in range(2):
                d = base + 20 + 4 * tn + 2 * rd
                if wo:
                    out.append(f"ds_read_b64 v[{d}:{d + 1}], v{self.F_AO + 2 * j + rd} offset:{tn * 4096}")
                else:
                    out.append(f"ds_read_b64_tr_b16 v[{d}:{d + 1}], v{self.F_AB + tn} offset:{(32 * j + 16 * rd) * 128}")
        for tm in range(5):
            for rd in range(2):
                d = base + 4 * tm + 2 * rd
                out.append(f"ds_read_b64_tr_b16 v[{d}:{d + 1}], v{self.F_AA} offset:{(32 * j + 16 * rd) * 160 + 32 * tm}")
        return out

    def f_mfmas(self, j):
        base = self.F_BUF + 28 * j
        out = []
        for tm in range(5):
            for tn in range(2):
                acc = self.F_ACC + 4 * (2 * tm + tn)
                out.append(f"v_mfma_f32_16x16x32_bf16 v[{acc}:{acc + 3}], v[{base + 4 * tm}:{base + 4 * tm + 3}], v[{base + 20 + 4 * tn}:{base + 23 + 4 * tn}], v[{acc}:{acc + 3}]")
        return out

    def f_stage(self, a, first, wo):
        a("s_barrier")
        a(f"v_add_u32 v{self.F_AA}, s{sSlot}, v{self.F_CA}")
        if wo:
            for k in range(4):
                a(f"v_add_u32 v{self.F_AO + k}, s{sSlot}, v{self.F_CO + k}")
        else:
            for tn in range(2):
                a(f"v_add_u32 v{self.F_AB + tn}, s{sSlot}, v{self.F_CB + tn}")
        self.slot_next(a)
        r0 = self.f_reads(0, wo)
        if first:
            for r in r0:
                a(r)
        else:
            self.interleave(a, self.f_mfmas(1), r0)
        a("s_waitcnt lgkmcnt(0)")
        self.interleave(a, self.f_mfmas(0), self.f_reads(1, wo))
        a("s_waitcnt lgkmcnt(0)")

    def f_tail(self, a):
        for m in self.f_mfmas(1):
            a(m)

    def f_xloads(self, a, kh):
        X, B2, AD, t = 212, 222, 223, 224
        a(f"""
        s_lshl_b32 s{sT0}, s{sSt}, 6
        s_lshl_b32 s{sT1}, s{sWn}, 5
        s_add_u32 s{sT0}, s{sT0}, s{sT1}
        s_add_u32 s{sT0}, s{sT0}, {16 * kh}
        v_and_b32 v{t}, 15, v0
        v_add_u32 v{t}, s{sT0}, v{t}
        v_lshlrev_b32 v{t + 1}, 1, v{t}
        buffer_load_ushort v{B2}, v{t + 1}, s[{sB2}:{sB2 + 3}], 0 offen
        v_mul_u32_u24 v{AD}, 1280, v{t}
        s_mul_i32 s{sT0}, s{sDt}, 160
        v_add_u32 v{AD}, s{sT0}, v{AD}
        v_lshrrev_b32 v{t + 1}, 4, v0
        v_lshl_add_u32 v{AD}, v{t + 1}, 3, v{AD}
        """)
        for tm in range(5):
            a(f"buffer_load_dwordx2 v[{X + 2 * tm}:{X + 2 * tm + 1}], v{AD}, s[{sX}:{sX + 3}], 0 offen offset:{32 * tm}")

    def f_reduce_write(self, a, kh):
        t = 206
        a(f"""
        v_lshlrev_b32 v{t}, 4, v0
        s_mul_i32 s{sT0}, s{sLw}, 5120
        s_add_u32 s{sT0}, s{sT0}, {SLOT}
        v_add_u32 v{t}, s{sT0}, v{t}
        """)
        for tm in range(5):
            src = self.F_ACC + 4 * (2 * tm + (1 - kh))
            a(f"ds_write_b128 v{t}, v[{src}:{src + 3}] offset:{tm * 1024}")
        a("s_waitcnt lgkmcnt(0)")

    def f_epilogue(self, a, kh):
        X, B2, AD, t, R = 212, 222, 223, 206, 136
        a(f"""
        v_lshlrev_b32 v{t}, 4, v0
        s_xor_b32 s{sT0}, s{sLw}, 2
        s_mul_i32 s{sT0}, s{sT0}, 5120
        s_add_u32 s{sT0}, s{sT0}, {SLOT}
        v_add_u32 v{t}, s{sT0}, v{t}
        """)
        for tm in range(5):
            a(f"ds_read_b128 v[{R + 4 * tm}:{R + 4 * tm + 3}], v{t} offset:{tm * 1024}")
        a("s_waitcnt vmcnt(0) lgkmcnt(0)")
        a(f"v_lshlrev_b32 v{B2}, 16, v{B2}")
        for tm in range(5):
            k = self.F_ACC + 4 * (2 * tm + kh)
            r = R + 4 * tm
            for e in range(4):
                a(f"v_add_f32 v{k + e}, v{k + e}, v{r + e}")
            a(f"""
            v_lshlrev_b32 v{r}, 16, v{X + 2 * tm}
            v_and_b32 v{r + 1}, 0xffff0000, v{X + 2 * tm}
            v_lshlrev_b32 v{r + 2}, 16, v{X + 2 * tm + 1}
            v_and_b32 v{r + 3}, 0xffff0000, v{X + 2 * tm + 1}
            """)
            for e in range(4):
                a(f"v_add_f32 v{k + e}, v{k + e}, v{B2}")
            for e in range(4):
                a(f"v_add_f32 v{k + e}, v{k + e}, v{r + e}")
            a(f"v_cvt_pk_bf16_f32 v{k}, v{k}, v{k + 1}\nv_cvt_pk_bf16_f32 v{k + 1}, v{k + 2}, v{k + 3}")
            a(f"buffer_store_dwordx2 v[{k}:{k + 1}], v{AD}, s[{sOUT}:{sOUT + 3}], 0 offen offset:{32 * tm}")

    def by_scalar(self, a, reg, fn):
        l1, l2 = a.uid("Lsel"), a.uid("Lsele")
        a(f"s_cmp_lg_u32 s{reg}, 0\ns_cbranch_scc1 {l1}")
        fn(0)
        a(f"s_nop 7\ns_branch {l2}")
        a.label(l1)
        fn(1)
        a("s_nop 7")
        a.label(l2)

    def split(self, name, consumer, loader):
        a = Asm()
        self.kidx = getattr(self, 'kidx', 0) + 1
        a._uid = self.kidx * 1000
        self.prologue(a, name)
        a(f"s_cmp_ge_u32 s{sWv}, 4\ns_cbranch_scc1 {name}_loader")
        consumer(a)
        a(f"s_branch {name}_end")
        if getattr(self, "fallback_labels", None):
            self.attention_fallback(a)
            self.fallback_labels = None
        a.label(name + "_loader")
        loader(a)
        a.label(name + "_end")
        a("s_endpgm")
        return a.finish()

    def k_ln(self):
        def c(a):
            self.ln_loads(a)
            self.ln_compute(a)
        return c, (lambda a: None)

    def c_qkv(self, a):
        a(f"s_mov_b32 s{sSlot}, 0")
        self.q_consts(a)

        def run(wn):
            self.q_stage(a, wn, True)
            self.loop(a, 9, lambda: self.q_stage(a, wn, False))
            self.q_tail(a, wn)
        self.by_scalar(a, sWn, run)
        self.q_csum_write(a)
        a("s_barrier")
        self.by_scalar(a, sWm, lambda wm: self.q_epilogue(a, wm))

    def c_mix1(self, a):
        self.m_consts(a)
        self.m_stage(a, True)
        self.loop(a, 15, lambda: self.m_stage(a, False))
        self.m_tail(a)
        self.by_scalar(a, sWm, lambda kh: self.m_reduce_write(a, kh))
        a("s_barrier")
        self.by_scalar(a, sWm, lambda kh: self.m_epilogue(a, kh))

    def c_final(self, a):
        self.f_consts(a)
        self.by_scalar(a, sWm, lambda kh: self.f_xloads(a, kh))
        self.f_stage(a, True, False)
        self.loop(a, 11, lambda: self.f_stage(a, False, False))
        self.loop(a, 5, lambda: self.f_stage(a, False, True))
        self.f_tail(a)
        self.by_scalar(a, sWm, lambda kh: self.f_reduce_write(a, kh))
        a("s_barrier")
        self.by_scalar(a, sWm, lambda kh: self.f_epilogue(a, kh))

    def k_qm(self):
        def c(a):
            self.c_qkv(a)
            self.c_mix1(a)

        def l(a):
            self.loader_consts(a)
            a(f"s_mov_b32 s{sSlot}, 0")
            self.q_init(a)
            for _ in range(3):
                self.q_issue(a)
            self.loop(a, 7, lambda: (self.wait_bar(a, 16), self.q_issue(a)))
            self.m_init(a)
            for _ in range(3):
                self.wait_bar(a, 16)
                self.m_issue(a)
            a("s_barrier")
            self.loop(a, 13, lambda: (self.wait_bar(a, 16), self.m_issue(a)))
            self.wait_bar(a, 16)
            self.wait_bar(a, 8)
            self.wait_bar(a, 0)
            a("s_barrier")
        return c, l

    def k_attn(self):
        def c(a):
            self.a_qloads(a)
            a("s_barrier")
            self.attention(a)

        def l(a):
            self.loader_consts(a)
            self.kv_init(a)
            self.kv_issue(a, 0, 16)
            self.wait_bar(a, 0)
        return c, l

    def k_final(self):
        def c(a):
            a(f"s_mov_b32 s{sSlot}, 0")
            self.c_final(a)

        def l(a):
            self.loader_consts(a)
            a(f"s_mov_b32 s{sSlot}, 0")
            self.f_init(a)
            for _ in range(3):
                self.f_issue(a)
            self.loop(a, 9, lambda: (self.wait_bar(a, 18), self.f_issue(a)))
            self.wo_init(a)
            self.loop(a, 5, lambda: (self.wait_bar(a, 18), self.wo_issue(a)))
            self.wait_bar(a, 18)
            self.wait_bar(a, 9)
            self.wait_bar(a, 0)
            a("s_barrier")
        return c, l


HEADER = """; Sliding-window attention + token-mixer MLP + residual, bf16, S=2048 D=640 (generated by tools/gen.py).
"""


def kernel_text(name, body, vgpr=256):
    return f""".globl {name}
.p2align 8
.type {name},@function
{name}:
{body}"""


def kd_text(name, vgpr=256):
    return f""".p2align 6
.amdhsa_kernel {name}
  .amdhsa_next_free_vgpr {vgpr}
  .amdhsa_next_free_sgpr 102
  .amdhsa_accum_offset {vgpr}
  .amdhsa_group_segment_fixed_size 0
  .amdhsa_kernarg_size 88
  .amdhsa_user_sgpr_count 2
  .amdhsa_user_sgpr_kernarg_segment_ptr 1
  .amdhsa_system_sgpr_workgroup_id_x 1
.end_amdhsa_kernel
"""


def build_multi():
    g = Gen(fused=False)
    ks = [("ln_kernel", g.k_ln), ("qm_kernel", g.k_qm), ("attn_kernel", g.k_attn), ("final_kernel", g.k_final)]
    out = HEADER
    for n, _ in ks:
        out += f"; @launch kernel={n} grid=(256,1,1) block=(512,1,1) lds={LDS_BYTES}\n"
    out += '.amdgcn_target "amdgcn-amd-amdhsa--gfx950"\n.text\n'
    for n, f in ks:
        c, l = f()
        out += kernel_text(n, g.split(n, c, l))
    out += '.section .rodata,"a"\n'
    for n, _ in ks:
        out += kd_text(n)
    return out


if __name__ == "__main__":
    mode = sys.argv[1] if len(sys.argv) > 1 else "multi"
    path = sys.argv[2] if len(sys.argv) > 2 else f"cdna_kernels/{NAME}.s"
    txt = build_multi()
    open(path, "w").write(txt)
    print("wrote", path, len(txt), "bytes")
```

```python
import math
import sys

sys.path.insert(0, "tools")
from asmlib import Asm, v, s

NAME = "parallel_sum__sliding_block__mixer_token_mlp__prompt"

WS_EPOCH = 0
WS_FLAG_LN, WS_FLAG_QKV, WS_FLAG_G, WS_FLAG_O = 0x1000, 0x1400, 0x1800, 0x1C00
WS_STATS = 0x4000
WS_H = 0x10000
WS_Q = 0x290000
WS_KV = 0x510000
WS_GT = 0xA60000
WS_O = 0xC40000
WS_USED = 0x1000000
WS_DIAG = 0x1000000
KVROW = 168

SLOT = 36864
RING = 4 * SLOT
SCR = RING
KVBASE = 2 * SLOT
LDS_BYTES = 163840

sX, sW, sWO, sW1, sW2, sWS, sOUT, sB1, sB2, sDBG = 28, 32, 36, 40, 44, 48, 52, 56, 60, 64
sWv, sLw, sI, sP, sDt1, sFt, sSt, sDt, sWg, sNonce, sM1On = range(68, 79)
sSlot, sCnt, sOffA, sOffB, sSW = range(80, 85)
sT0, sT1, sT2, sT3, sT4, sT5 = range(86, 92)
sEx = 92
sWm, sWn = 94, 95

QSCALE = (20 ** -0.5) * math.log2(math.e)


def f32(x):
    import struct
    return "0x%08x" % struct.unpack("<I", struct.pack("<f", x))[0]


class Gen:
    def __init__(self, fused, diag=False):
        self.fused = fused
        self.diag = diag
        self.sc = "sc1" if fused else ""

    def prologue(self, a, lab):
        a(f"""
        s_cmp_ge_u32 s2, 256
        s_cbranch_scc1 {lab}_end
        s_load_dwordx16 s[4:19], s[0:1], 0
        s_load_dwordx4 s[20:23], s[0:1], 64
        s_load_dwordx2 s[24:25], s[0:1], 80
        v_lshrrev_b32 v1, 6, v0
        v_and_b32 v0, 63, v0
        s_mov_b32 s{sWg}, s2
        v_readfirstlane_b32 s{sWv}, v1
        s_and_b32 s{sT0}, s2, 7
        s_lshr_b32 s{sT1}, s2, 3
        s_and_b32 s{sT2}, s{sT0}, 1
        s_lshr_b32 s{sT3}, s{sT0}, 1
        s_and_b32 s{sT4}, s{sT1}, 7
        s_lshr_b32 s{sT5}, s{sT1}, 3
        s_lshl_b32 s{sI}, s{sT2}, 3
        s_add_u32 s{sI}, s{sI}, s{sT4}
        s_lshl_b32 s{sP}, s{sT3}, 2
        s_add_u32 s{sP}, s{sP}, s{sT5}
        s_lshl_b32 s{sSt}, s{sT3}, 3
        s_add_u32 s{sSt}, s{sSt}, s{sT4}
        s_lshl_b32 s{sDt}, s{sT2}, 2
        s_add_u32 s{sDt}, s{sDt}, s{sT5}
        s_cmp_lt_u32 s{sT1}, 30
        s_cselect_b32 s{sM1On}, 1, 0
        s_cselect_b32 s{sT4}, 0, 30
        s_sub_u32 s{sT1}, s{sT1}, s{sT4}
        s_mul_i32 s{sT4}, s{sT1}, 52
        s_lshr_b32 s{sT4}, s{sT4}, 8
        s_mul_i32 s{sT5}, s{sT4}, 5
        s_sub_u32 s{sT5}, s{sT1}, s{sT5}
        s_mul_i32 s{sDt1}, s{sT2}, 5
        s_add_u32 s{sDt1}, s{sDt1}, s{sT5}
        s_mul_i32 s{sFt}, s{sT3}, 6
        s_add_u32 s{sFt}, s{sFt}, s{sT4}
        s_and_b32 s{sLw}, s{sWv}, 3
        s_lshr_b32 s{sWm}, s{sLw}, 1
        s_and_b32 s{sWn}, s{sLw}, 1
        s_waitcnt lgkmcnt(0)
        """)
        for srd, ptr, size in ((sX, 4, 2048 * 1280), (sW, 6, 640 * 3840), (sWO, 8, 640 * 1280),
                               (sW1, 12, 2048 * 3072), (sB1, 14, 1536 * 2), (sW2, 16, 1536 * 4096),
                               (sB2, 18, 2048 * 2), (sOUT, 20, 2048 * 1280), (sDBG, 22, 256),
                               (sWS, 24, WS_USED * (2 if self.diag else 1))):
            a(f"""
            s_mov_b32 s{srd}, s{ptr}
            s_mov_b32 s{srd + 1}, s{ptr + 1}
            s_mov_b32 s{srd + 2}, {size}
            s_mov_b32 s{srd + 3}, 0x00020000
            """)

    def dma(self, a, srd, voff, soff, add, lds_add, dep=False):
        sc = (self.sc + " ") if (dep and self.sc) else ""
        a(f"""
        s_add_u32 m0, s{sSW}, {lds_add}
        s_add_u32 s{sT0}, s{soff}, {add}
        buffer_load_dwordx4 v{voff}, s[{srd}:{srd + 3}], s{sT0} offen {sc}lds
        """)

    def slot_begin(self, a):
        a(f"""
        s_lshl_b32 s{sSW}, s{sLw}, 10
        s_add_u32 s{sSW}, s{sSW}, s{sSlot}
        """)

    def slot_next(self, a):
        a(f"""
        s_add_u32 s{sSlot}, s{sSlot}, {SLOT}
        s_cmp_eq_u32 s{sSlot}, {RING}
        s_cselect_b32 s{sSlot}, 0, s{sSlot}
        """)

    LV_X, LV_W, LV_H, LV_W1, LV_LIN, LV_W2, LV_O, LV_WO = 2, 3, 4, 5, 6, 7, 8, 9

    def loader_consts(self, a):
        X, W, H, W1, LIN, W2, O, WO = (self.LV_X, self.LV_W, self.LV_H, self.LV_W1, self.LV_LIN,
                                       self.LV_W2, self.LV_O, self.LV_WO)
        t0, t1, t2, t3 = 20, 21, 22, 23
        a(f"""
        v_lshrrev_b32 v{t0}, 3, v0
        v_and_b32 v{t1}, 7, v0
        v_lshrrev_b32 v{t2}, 1, v{t0}
        s_and_b32 s{sT0}, s{sLw}, 1
        s_lshl_b32 s{sT0}, s{sT0}, 2
        v_or_b32 v{t3}, s{sT0}, v{t2}
        v_xor_b32 v{t3}, v{t3}, v{t1}
        v_lshlrev_b32 v{t3}, 4, v{t3}
        v_mul_u32_u24 v{X}, 1280, v{t0}
        v_add_u32 v{X}, v{X}, v{t3}
        v_and_b32 v{t3}, 1, v{t2}
        v_lshlrev_b32 v{t3}, 2, v{t3}
        v_xor_b32 v{t3}, v{t3}, v{t1}
        v_lshlrev_b32 v{t3}, 4, v{t3}
        v_mul_u32_u24 v{H}, 1280, v{t0}
        v_add_u32 v{H}, v{H}, v{t3}
        v_mul_u32_u24 v{W1}, 3072, v{t0}
        v_add_u32 v{W1}, v{W1}, v{t3}
        v_and_b32 v{t3}, 3, v{t2}
        v_lshlrev_b32 v{t3}, 1, v{t3}
        v_xor_b32 v{t3}, v{t3}, v{t1}
        v_lshlrev_b32 v{t3}, 4, v{t3}
        v_lshlrev_b32 v{W2}, 12, v{t0}
        v_add_u32 v{W2}, v{W2}, v{t3}
        v_lshlrev_b32 v{LIN}, 4, v0
        v_lshrrev_b32 v{t0}, 4, v0
        v_and_b32 v{t1}, 15, v0
        v_lshlrev_b32 v{t2}, 2, v{t0}
        v_xor_b32 v{t2}, v{t2}, v{t1}
        v_min_u32 v{t2}, 14, v{t2}
        v_mul_u32_u24 v{t3}, 52, v{t2}
        v_lshrrev_b32 v{t3}, 8, v{t3}
        v_mul_u32_u24 v{W}, 5, v{t3}
        v_sub_u32 v{W}, v{t2}, v{W}
        v_lshlrev_b32 v{W}, 4, v{W}
        v_mul_u32_u24 v{t3}, 1280, v{t3}
        v_add_u32 v{W}, v{W}, v{t3}
        v_mul_u32_u24 v{t3}, 3840, v{t0}
        v_add_u32 v{W}, v{W}, v{t3}
        s_lshl_b32 s{sT0}, s{sLw}, 2
        v_add_u32 v{t2}, s{sT0}, v{t0}
        v_xor_b32 v{t2}, v{t2}, v{t1}
        v_lshlrev_b32 v{t2}, 4, v{t2}
        v_mul_u32_u24 v{O}, 1280, v{t0}
        v_add_u32 v{O}, v{O}, v{t2}
        """)
        for t in range(5):
            a(f"""
            v_add_u32 v{t0}, {64 * t}, v0
            v_mul_u32_u24 v{t1}, 6554, v{t0}
            v_lshrrev_b32 v{t1}, 16, v{t1}
            v_mul_u32_u24 v{t2}, 10, v{t1}
            v_sub_u32 v{t2}, v{t0}, v{t2}
            v_lshlrev_b32 v{t2}, 4, v{t2}
            v_mul_u32_u24 v{t1}, 1280, v{t1}
            v_add_u32 v{WO + t}, v{t1}, v{t2}
            """)

    def q_init(self, a):
        a(f"""
        s_lshl_b32 s{sOffA}, s{sI}, 7
        s_lshl_b32 s{sT0}, s{sLw}, 3
        s_add_u32 s{sOffA}, s{sOffA}, s{sT0}
        s_mul_i32 s{sOffA}, s{sOffA}, 1280
        s_mul_i32 s{sOffB}, s{sLw}, {4 * 3840}
        s_mul_i32 s{sT0}, s{sP}, 80
        s_add_u32 s{sOffB}, s{sOffB}, s{sT0}
        """)

    def q_issue(self, a):
        self.slot_begin(a)
        for t in range(4):
            self.dma(a, sX, self.LV_X, sOffA, t * 32 * 1280, t * 4096)
            self.dma(a, sW, self.LV_W, sOffB, t * 16 * 3840, 16384 + t * 4096)
        a(f"s_add_u32 s{sOffA}, s{sOffA}, 128\ns_add_u32 s{sOffB}, s{sOffB}, {64 * 3840}")
        self.slot_next(a)

    def m_init(self, a):
        a(f"""
        s_mul_i32 s{sOffA}, s{sLw}, {8 * 1280}
        s_lshl_b32 s{sT0}, s{sDt1}, 7
        s_add_u32 s{sOffA}, s{sOffA}, s{sT0}
        s_add_u32 s{sOffA}, s{sOffA}, {WS_H}
        s_mul_i32 s{sOffB}, s{sLw}, {8 * 3072}
        s_lshl_b32 s{sT0}, s{sFt}, 7
        s_add_u32 s{sOffB}, s{sOffB}, s{sT0}
        """)

    def m_issue(self, a):
        self.slot_begin(a)
        for t in range(4):
            self.dma(a, sW1, self.LV_W1, sOffB, t * 32 * 3072, 16384 + t * 4096)
            self.dma(a, sWS, self.LV_H, sOffA, t * 32 * 1280, t * 4096, dep=True)
        a(f"s_add_u32 s{sOffA}, s{sOffA}, {128 * 1280}\ns_add_u32 s{sOffB}, s{sOffB}, {128 * 3072}")
        self.slot_next(a)

    def kv_init(self, a):
        a(f"""
        s_lshl_b32 s{sOffA}, s{sP}, 11
        s_lshl_b32 s{sT0}, s{sI}, 7
        s_add_u32 s{sOffA}, s{sOffA}, s{sT0}
        s_mul_i32 s{sOffA}, s{sOffA}, {KVROW}
        s_add_u32 s{sOffA}, s{sOffA}, {WS_KV - 256 * KVROW}
        s_lshl_b32 s{sT0}, s{sLw}, 10
        s_add_u32 s{sOffA}, s{sOffA}, s{sT0}
        s_add_u32 s{sSW}, s{sT0}, {KVBASE}
        """)

    def kv_issue(self, a, t0, t1):
        for t in range(t0, t1):
            self.dma(a, sWS, self.LV_LIN, sOffA, t * 4096, t * 4096, dep=True)

    def f_init(self, a):
        a(f"""
        s_mul_i32 s{sOffB}, s{sLw}, {8 * 4096}
        s_lshl_b32 s{sT0}, s{sSt}, 7
        s_add_u32 s{sOffB}, s{sOffB}, s{sT0}
        s_mul_i32 s{sOffA}, s{sDt}, {1536 * 160}
        s_lshl_b32 s{sT0}, s{sLw}, 10
        s_add_u32 s{sOffA}, s{sOffA}, s{sT0}
        s_add_u32 s{sOffA}, s{sOffA}, {WS_GT}
        """)

    def f_issue_w2(self, a):
        for t in range(4):
            self.dma(a, sW2, self.LV_W2, sOffB, t * 32 * 4096, t * 4096)
        a(f"s_add_u32 s{sOffB}, s{sOffB}, {128 * 4096}")

    def f_issue_g(self, a):
        for t in range(5):
            self.dma(a, sWS, self.LV_LIN, sOffA, t * 4096, 16384 + t * 4096, dep=True)
        a(f"s_add_u32 s{sOffA}, s{sOffA}, {128 * 160}")

    def f_issue(self, a):
        self.slot_begin(a)
        self.f_issue_w2(a)
        self.f_issue_g(a)
        self.slot_next(a)

    def wo_init(self, a):
        a(f"""
        s_lshl_b32 s{sOffB}, s{sSt}, 6
        s_lshl_b32 s{sT0}, s{sLw}, 2
        s_add_u32 s{sOffB}, s{sOffB}, s{sT0}
        s_mul_i32 s{sOffB}, s{sOffB}, 1280
        s_add_u32 s{sOffB}, s{sOffB}, {WS_O}
        s_mul_i32 s{sOffA}, s{sLw}, {32 * 1280}
        s_mul_i32 s{sT0}, s{sDt}, 160
        s_add_u32 s{sOffA}, s{sOffA}, s{sT0}
        """)

    def wo_issue(self, a):
        self.slot_begin(a)
        for t in range(4):
            self.dma(a, sWS, self.LV_O, sOffB, t * 16 * 1280, t * 4096, dep=True)
        a(f"s_lshl_b32 s{sT1}, s{sLw}, 12\ns_add_u32 s{sSW}, s{sSW}, s{sT1}")
        for t in range(5):
            self.dma(a, sWO, self.LV_WO + t, sOffA, 0, 16384 + t * 1024)
        a(f"s_add_u32 s{sOffA}, s{sOffA}, {128 * 1280}\ns_add_u32 s{sOffB}, s{sOffB}, 256")
        self.slot_next(a)

    sStg = 96
    DV = 240

    def stamp(self, a, k, bump=False):
        if not self.diag:
            return
        a(f"s_memtime s[98:99]\ns_mov_b32 m0, s{self.sStg}\ns_waitcnt lgkmcnt(0)\nv_writelane_b32 v{self.DV + k}, s98, m0")
        if bump:
            a(f"s_add_u32 s{self.sStg}, s{self.sStg}, 1")

    def diag_init(self, a):
        if self.diag:
            a(f"s_mov_b32 s{self.sStg}, 0")
            for k in range(3):
                a(f"v_mov_b32 v{self.DV + k}, 0")

    def diag_dump(self, a, kidx):
        if not self.diag:
            return
        a(f"""
        s_lshl_b32 s{sT0}, s{sWg}, 3
        s_add_u32 s{sT0}, s{sT0}, s{sWv}
        s_mul_i32 s{sT0}, s{sT0}, 768
        s_add_u32 s{sT0}, s{sT0}, {WS_DIAG + kidx * 0x200000}
        v_lshlrev_b32 v1, 2, v0
        v_add_u32 v1, s{sT0}, v1
        """)
        for k in range(3):
            a(f"buffer_store_dword v{self.DV + k}, v1, s[{sWS}:{sWS + 3}], 0 offen offset:{256 * k}")

    def wait_bar(self, a, n):
        self.stamp(a, 0)
        a(f"s_waitcnt vmcnt({n})")
        self.stamp(a, 1)
        a("s_barrier")
        self.stamp(a, 2, bump=True)

    def cbar(self, a):
        self.stamp(a, 0)
        a("s_barrier")
        self.stamp(a, 1, bump=True)

    def loop(self, a, n, body):
        lab = a.uid("Lloop")
        a(f"s_mov_b32 s{sCnt}, {n}")
        a.label(lab)
        body()
        a(f"s_sub_u32 s{sCnt}, s{sCnt}, 1\ns_cmp_lg_u32 s{sCnt}, 0\ns_cbranch_scc1 {lab}")

    def reduce32(self, a, x, t):
        for r in (8, 4, 2, 1):
            a(f"v_add_f32_dpp v{x}, v{x}, v{x} row_ror:{r} row_mask:0xf bank_mask:0xf")
        a(f"""
        v_mov_b32 v{t}, v{x}
        v_mov_b32 v{t + 1}, v{x}
        v_permlane16_swap_b32 v{t}, v{t + 1}
        v_add_f32 v{x}, v{t}, v{t + 1}
        """)

    def ln_loads(self, a):
        raw, off = 2, 60
        a(f"""
        s_lshl_b32 s{sT0}, s{sWg}, 3
        s_lshl_b32 s{sT1}, s{sLw}, 1
        s_add_u32 s{sT0}, s{sT0}, s{sT1}
        v_lshrrev_b32 v{off + 1}, 5, v0
        v_add_u32 v{off + 1}, s{sT0}, v{off + 1}
        v_and_b32 v{off + 2}, 31, v0
        v_lshlrev_b32 v{off + 2}, 3, v{off + 2}
        v_mul_u32_u24 v{off}, 1280, v{off + 1}
        v_add_u32 v{off}, v{off}, v{off + 2}
        """)
        for j in range(5):
            a(f"buffer_load_dwordx2 v[{raw + 2 * j}:{raw + 2 * j + 1}], v{off}, s[{sX}:{sX + 3}], 0 offen offset:{256 * j}")

    def ln_compute(self, a):
        raw, f, off, acc, t, mean, rs = 2, 20, 60, 44, 46, 50, 51
        sc = self.sc

        def unpack():
            for d in range(10):
                a(f"v_lshlrev_b32 v{f + 2 * d}, 16, v{raw + d}\nv_and_b32 v{f + 2 * d + 1}, 0xffff0000, v{raw + d}")

        def stats():
            a(f"v_pk_add_f32 v[{acc}:{acc + 1}], v[{f}:{f + 1}], v[{f + 2}:{f + 3}]")
            for d in range(2, 10):
                a(f"v_pk_add_f32 v[{acc}:{acc + 1}], v[{acc}:{acc + 1}], v[{f + 2 * d}:{f + 2 * d + 1}]")
            a(f"v_add_f32 v{acc}, v{acc}, v{acc + 1}")
            self.reduce32(a, acc, t)
            a(f"v_mul_f32 v{mean}, {f32(1 / 640)}, v{acc}")
            for d in range(10):
                a(f"v_pk_add_f32 v[{f + 2 * d}:{f + 2 * d + 1}], v[{f + 2 * d}:{f + 2 * d + 1}], v[{mean}:{mean + 1}] op_sel_hi:[1,0] neg_lo:[0,1] neg_hi:[0,1]")
            a(f"v_pk_mul_f32 v[{acc}:{acc + 1}], v[{f}:{f + 1}], v[{f}:{f + 1}]")
            for d in range(1, 10):
                a(f"v_pk_fma_f32 v[{acc}:{acc + 1}], v[{f + 2 * d}:{f + 2 * d + 1}], v[{f + 2 * d}:{f + 2 * d + 1}], v[{acc}:{acc + 1}]")
            a(f"v_add_f32 v{acc}, v{acc}, v{acc + 1}")
            self.reduce32(a, acc, t)
            a(f"""
            v_mov_b32 v{t}, {f32(1e-5)}
            v_fmac_f32 v{t}, {f32(1 / 640)}, v{acc}
            v_rsq_f32 v{rs + 1}, v{t}
            """)

        def scale_pack():
            for d in range(10):
                a(f"v_pk_mul_f32 v[{f + 2 * d}:{f + 2 * d + 1}], v[{f + 2 * d}:{f + 2 * d + 1}], v[{rs + 1}:{rs + 2}] op_sel_hi:[1,0]")
            for d in range(10):
                a(f"v_cvt_pk_bf16_f32 v{raw + d}, v{f + 2 * d}, v{f + 2 * d + 1}")

        a("s_waitcnt vmcnt(0)")
        unpack()
        stats()
        a(f"v_mov_b32 v54, v{mean}\nv_mov_b32 v55, v{rs + 1}")
        scale_pack()
        unpack()
        stats()
        scale_pack()
        a(f"v_add_u32 v{off}, {WS_H}, v{off}")
        for j in range(5):
            a(f"buffer_store_dwordx2 v[{raw + 2 * j}:{raw + 2 * j + 1}], v{off}, s[{sWS}:{sWS + 3}], 0 offen offset:{256 * j} {sc}")
        a(f"""
        v_lshlrev_b32 v{off + 1}, 3, v{off + 1}
        v_add_u32 v{off + 1}, {WS_STATS}, v{off + 1}
        v_and_b32 v{off + 2}, 31, v0
        v_cmp_eq_u32 vcc, 0, v{off + 2}
        s_and_saveexec_b64 s[{sEx}:{sEx + 1}], vcc
        buffer_store_dwordx2 v[54:55], v{off + 1}, s[{sWS}:{sWS + 3}], 0 offen {sc}
        s_mov_b64 exec, s[{sEx}:{sEx + 1}]
        """)

    Q_ACC, Q_CS, Q_ONES, Q_BUF, Q_CA, Q_CB, Q_AA, Q_AB = 64, 128, 132, 136, 168, 170, 174, 176

    def q_consts(self, a):
        t0, t1, t2, t3, t4 = 180, 181, 182, 183, 184
        CA, CB = self.Q_CA, self.Q_CB
        a(f"""
        v_and_b32 v{t0}, 15, v0
        v_lshrrev_b32 v{t1}, 2, v{t0}
        v_lshrrev_b32 v{t2}, 5, v0
        v_lshl_add_u32 v{t3}, v{t2}, 3, v{t1}
        v_lshlrev_b32 v{t3}, 8, v{t3}
        v_and_b32 v{t4}, 1, v0
        v_lshl_add_u32 v{t3}, v{t4}, 3, v{t3}
        v_add_u32 v{t3}, 16384, v{t3}
        v_bfe_u32 v{t4}, v0, 4, 1
        v_lshlrev_b32 v{t4}, 1, v{t4}
        v_bfe_u32 v{t0}, v0, 1, 1
        v_or_b32 v{t4}, v{t4}, v{t0}
        s_lshl_b32 s{sT0}, s{sWm}, 3
        v_or_b32 v{t4}, s{sT0}, v{t4}
        v_lshlrev_b32 v{t1}, 2, v{t1}
        """)
        for tm in range(2):
            a(f"""
            v_or_b32 v{t0}, {4 * tm}, v{t4}
            v_xor_b32 v{t0}, v{t0}, v{t1}
            v_lshl_add_u32 v{CA + tm}, v{t0}, 4, v{t3}
            """)
        a(f"""
        v_and_b32 v{t0}, 31, v0
        v_bfe_u32 v{t1}, v0, 1, 3
        v_lshrrev_b32 v{t2}, 5, v0
        v_bfe_u32 v{t3}, v0, 4, 1
        v_lshlrev_b32 v{t3}, 3, v{t3}
        v_bfe_u32 v{t1}, v{t0}, 1, 3
        v_xor_b32 v{t1}, v{t1}, v{t2}
        s_lshl_b32 s{sT0}, s{sWn}, 6
        v_add_u32 v{t0}, s{sT0}, v{t0}
        v_lshlrev_b32 v{t0}, 7, v{t0}
        """)
        for ks in range(4):
            a(f"""
            v_xor_b32 v{t3}, {2 * ks}, v{t1}
            v_lshl_add_u32 v{CB + ks}, v{t3}, 4, v{t0}
            """)
        ON = self.Q_ONES
        a(f"""
        v_and_b32 v{t0}, 15, v0
        v_bfe_u32 v{t1}, v0, 4, 1
        v_cmp_eq_u32 vcc, v{t0}, v{t1}
        v_mov_b32 v{t2}, 0x3f803f80
        v_cndmask_b32 v{ON}, 0, v{t2}, vcc
        v_mov_b32 v{ON + 1}, v{ON}
        v_mov_b32 v{ON + 2}, v{ON}
        v_mov_b32 v{ON + 3}, v{ON}
        """)
        for r in range(self.Q_ACC, self.Q_CS + 4):
            a(f"v_mov_b32 v{r}, 0")

    def q_reads(self, ks, b):
        base = self.Q_BUF + 16 * b
        out = []
        for tm in range(2):
            for rd in range(2):
                out.append(f"ds_read_b64_tr_b16 v[{base + 4 * tm + 2 * rd}:{base + 4 * tm + 2 * rd + 1}], v{self.Q_AA + tm} offset:{(16 * ks + 4 * rd) * 256}")
        for tn in range(2):
            out.append(f"ds_read_b128 v[{base + 8 + 4 * tn}:{base + 11 + 4 * tn}], v{self.Q_AB + ks} offset:{tn * 4096}")
        return out

    def q_mfmas(self, b):
        base = self.Q_BUF + 16 * b
        out = []
        for tm in range(2):
            for tn in range(2):
                acc = self.Q_ACC + 16 * (2 * tm + tn)
                out.append(f"v_mfma_f32_32x32x16_bf16 v[{acc}:{acc + 15}], v[{base + 4 * tm}:{base + 4 * tm + 3}], v[{base + 8 + 4 * tn}:{base + 11 + 4 * tn}], v[{acc}:{acc + 15}]")
        return out

    @staticmethod
    def interleave(a, mf, rd):
        per = -(-len(rd) // max(1, len(mf)))
        k = 0
        for m in mf:
            a(m)
            for r in rd[k:k + per]:
                a(r)
            k += per
        for r in rd[k:]:
            a(r)

    def q_stage(self, a, wn, first):
        def mf(b):
            base = self.Q_BUF + 16 * b + 4 * wn
            cs, on = self.Q_CS, self.Q_ONES
            return self.q_mfmas(b) + [f"v_mfma_f32_16x16x32_bf16 v[{cs}:{cs + 3}], v[{base}:{base + 3}], v[{on}:{on + 3}], v[{cs}:{cs + 3}]"]
        self.cbar(a)
        for tm in range(2):
            a(f"v_add_u32 v{self.Q_AA + tm}, s{sSlot}, v{self.Q_CA + tm}")
        for ks in range(4):
            a(f"v_add_u32 v{self.Q_AB + ks}, s{sSlot}, v{self.Q_CB + ks}")
        self.slot_next(a)
        if first:
            for r in self.q_reads(0, 0):
                a(r)
            for r in self.q_reads(1, 1):
                a(r)
        else:
            r0 = self.q_reads(0, 0)
            self.interleave(a, mf(1), r0)
            for r in self.q_reads(1, 1):
                a(r)
        a("s_waitcnt lgkmcnt(6)")
        self.interleave(a, mf(0)[:1], [])
        self.interleave(a, mf(0)[1:], [])
        for r in self.q_reads(2, 0):
            a(r)
        a("s_waitcnt lgkmcnt(6)")
        self.interleave(a, mf(1), [])
        for r in self.q_reads(3, 1):
            a(r)
        a("s_waitcnt lgkmcnt(6)")
        self.interleave(a, mf(0), [])
        a("s_waitcnt lgkmcnt(0)")

    def q_tail(self, a, wn):
        base = self.Q_BUF + 16 + 4 * wn
        cs, on = self.Q_CS, self.Q_ONES
        for m in self.q_mfmas(1):
            a(m)
        a(f"v_mfma_f32_16x16x32_bf16 v[{cs}:{cs + 3}], v[{base}:{base + 3}], v[{on}:{on + 3}], v[{cs}:{cs + 3}]")

    def q_csum_write(self, a):
        t0, t1 = 180, 181
        cs = self.Q_CS
        a(f"""
        v_and_b32 v{t0}, 1, v0
        v_lshlrev_b32 v{t0}, 6, v{t0}
        v_lshrrev_b32 v{t1}, 4, v0
        v_lshl_add_u32 v{t0}, v{t1}, 4, v{t0}
        s_lshl_b32 s{sT0}, s{sWm}, 8
        s_lshl_b32 s{sT1}, s{sWn}, 7
        s_add_u32 s{sT0}, s{sT0}, s{sT1}
        s_add_u32 s{sT0}, s{sT0}, {SCR}
        v_add_u32 v{t0}, s{sT0}, v{t0}
        v_and_b32 v{t1}, 14, v0
        v_cmp_eq_u32 vcc, 0, v{t1}
        s_and_saveexec_b64 s[{sEx}:{sEx + 1}], vcc
        ds_write_b128 v{t0}, v[{cs}:{cs + 3}]
        s_mov_b64 exec, s[{sEx}:{sEx + 1}]
        s_waitcnt lgkmcnt(0)
        """)

    def q_epilogue(self, a, wm):
        sc = self.sc
        C, ST, AB, TK, VQ, VKV, T = 136, 168, 172, 180, 182, 184, 188
        a(f"""
        v_lshrrev_b32 v{T}, 5, v0
        v_lshlrev_b32 v{T}, 4, v{T}
        v_add_u32 v{T}, {SCR + wm * 256}, v{T}
        """)
        for tm in range(2):
            for q in range(4):
                r = C + 16 * tm + 4 * q
                a(f"ds_read_b128 v[{r}:{r + 3}], v{T} offset:{tm * 128 + q * 32}")
        a(f"""
        s_lshl_b32 s{sT0}, s{sI}, 7
        s_lshl_b32 s{sT1}, s{sWn}, 6
        s_add_u32 s{sT0}, s{sT0}, s{sT1}
        v_and_b32 v{TK}, 31, v0
        v_add_u32 v{TK}, s{sT0}, v{TK}
        v_add_u32 v{TK + 1}, 32, v{TK}
        """)
        for tn in range(2):
            a(f"""
            v_lshlrev_b32 v{T + 1}, 3, v{TK + tn}
            v_add_u32 v{T + 1}, {WS_STATS}, v{T + 1}
            buffer_load_dwordx2 v[{ST + 2 * tn}:{ST + 2 * tn + 1}], v{T + 1}, s[{sWS}:{sWS + 3}], 0 offen {sc}
            """)
        a(f"""
        s_lshl_b32 s{sT0}, s{sP}, 11
        v_lshrrev_b32 v{T + 2}, 5, v0
        v_lshlrev_b32 v{T + 2}, 3, v{T + 2}
        v_mov_b32 v{T + 3}, 0x7ff00000
        """)
        for tn in range(2):
            a(f"""
            v_add_u32 v{T + 1}, s{sT0}, v{TK + tn}
            v_mul_u32_u24 v{VQ + tn}, 80, v{T + 1}
            v_add_u32 v{VQ + tn}, v{VQ + tn}, v{T + 2}
            v_add_u32 v{VQ + tn}, {WS_Q}, v{VQ + tn}
            v_mul_u32_u24 v{VKV + tn}, {KVROW}, v{T + 1}
            v_add_u32 v{VKV + tn}, v{VKV + tn}, v{T + 2}
            v_add_u32 v{VKV + tn}, {WS_KV}, v{VKV + tn}
            """)
        a("s_waitcnt vmcnt(0) lgkmcnt(0)")
        for tn in range(2):
            m_, r_ = ST + 2 * tn, ST + 2 * tn + 1
            o = AB + 4 * tn
            a(f"""
            v_mov_b32 v{o}, v{r_}
            v_mul_f32 v{o + 1}, v{m_}, v{r_}
            v_mul_f32 v{o + 2}, {f32(QSCALE)}, v{r_}
            v_mul_f32 v{o + 3}, {f32(QSCALE)}, v{o + 1}
            """)
        for tn in range(2):
            for tm in range(2):
                acc = self.Q_ACC + 16 * (2 * tm + tn)
                for q in range(4):
                    Q0 = 16 * wm + 8 * tm + 2 * q
                    isq = Q0 < 10
                    o = AB + 4 * tn + (2 if isq else 0)
                    c = C + 16 * tm + 4 * q
                    x = acc + 4 * q
                    if Q0 == 30:
                        a(f"v_mov_b32 v{x}, 0x00003f80\nv_mov_b32 v{x + 1}, 0")
                        a(f"""
                        v_cmp_gt_u32 vcc, 32, v0
                        v_cndmask_b32 v{T + 1}, v{T + 3}, v{VKV + tn}, vcc
                        buffer_store_dwordx2 v[{x}:{x + 1}], v{T + 1}, s[{sWS}:{sWS + 3}], 0 offen offset:160 {sc}
                        """)
                        continue
                    for hf in range(2):
                        a(f"v_pk_mul_f32 v[{x + 2 * hf}:{x + 2 * hf + 1}], v[{x + 2 * hf}:{x + 2 * hf + 1}], v[{o}:{o + 1}] op_sel_hi:[1,0]")
                        a(f"v_pk_fma_f32 v[{x + 2 * hf}:{x + 2 * hf + 1}], v[{c + 2 * hf}:{c + 2 * hf + 1}], v[{o}:{o + 1}], v[{x + 2 * hf}:{x + 2 * hf + 1}] op_sel:[0,1,0] op_sel_hi:[1,1,1] neg_lo:[1,0,0] neg_hi:[1,0,0]")
                    a(f"v_cvt_pk_bf16_f32 v{x}, v{x}, v{x + 1}\nv_cvt_pk_bf16_f32 v{x + 1}, v{x + 2}, v{x + 3}")
                    if isq:
                        a(f"buffer_store_dwordx2 v[{x}:{x + 1}], v{VQ + tn}, s[{sWS}:{sWS + 3}], 0 offen offset:{Q0 * 8} {sc}")
                    else:
                        a(f"buffer_store_dwordx2 v[{x}:{x + 1}], v{VKV + tn}, s[{sWS}:{sWS + 3}], 0 offen offset:{(Q0 - 10) * 8} {sc}")

    M_ACC, M_BUF, M_CA, M_CB, M_AA, M_AB = 64, 136, 184, 186, 187, 189

    def m_consts(self, a):
        t0, t1, t2, t3, t4 = 190, 191, 192, 193, 194
        a(f"""
        v_and_b32 v{t0}, 15, v0
        v_lshrrev_b32 v{t1}, 2, v{t0}
        v_lshrrev_b32 v{t2}, 5, v0
        v_lshl_add_u32 v{t3}, v{t2}, 3, v{t1}
        s_lshl_b32 s{sT0}, s{sWm}, 6
        v_add_u32 v{t3}, s{sT0}, v{t3}
        v_lshlrev_b32 v{t3}, 7, v{t3}
        v_and_b32 v{t4}, 1, v0
        v_lshl_add_u32 v{t3}, v{t4}, 3, v{t3}
        v_bfe_u32 v{t4}, v0, 4, 1
        v_lshlrev_b32 v{t4}, 1, v{t4}
        v_bfe_u32 v{t0}, v0, 1, 1
        v_or_b32 v{t4}, v{t4}, v{t0}
        v_bfe_u32 v{t1}, v0, 3, 1
        v_lshlrev_b32 v{t1}, 2, v{t1}
        """)
        for tm in range(2):
            a(f"""
            v_or_b32 v{t0}, {4 * tm}, v{t4}
            v_xor_b32 v{t0}, v{t0}, v{t1}
            v_lshl_add_u32 v{self.M_CA + tm}, v{t0}, 4, v{t3}
            """)
        a(f"""
        s_lshl_b32 s{sT0}, s{sWn}, 2
        v_or_b32 v{t0}, s{sT0}, v{t4}
        v_xor_b32 v{t0}, v{t0}, v{t1}
        v_lshl_add_u32 v{self.M_CB}, v{t0}, 4, v{t3}
        v_add_u32 v{self.M_CB}, 16384, v{self.M_CB}
        """)
        for r in range(self.M_ACC, self.M_ACC + 32):
            a(f"v_mov_b32 v{r}, 0")

    def m_reads(self, ks):
        base = self.M_BUF + 12 * ks
        out = []
        for tm in range(2):
            for rd in range(2):
                out.append(f"ds_read_b64_tr_b16 v[{base + 4 * tm + 2 * rd}:{base + 4 * tm + 2 * rd + 1}], v{self.M_AA + tm} offset:{(16 * ks + 4 * rd) * 128}")
        for rd in range(2):
            out.append(f"ds_read_b64_tr_b16 v[{base + 8 + 2 * rd}:{base + 9 + 2 * rd}], v{self.M_AB} offset:{(16 * ks + 4 * rd) * 128}")
        return out

    def m_mfmas(self, ks):
        base = self.M_BUF + 12 * ks
        return [f"v_mfma_f32_32x32x16_bf16 v[{self.M_ACC + 16 * tm}:{self.M_ACC + 16 * tm + 15}], v[{base + 4 * tm}:{base + 4 * tm + 3}], v[{base + 8}:{base + 11}], v[{self.M_ACC + 16 * tm}:{self.M_ACC + 16 * tm + 15}]" for tm in range(2)]

    def m_stage(self, a, first):
        self.cbar(a)
        for tm in range(2):
            a(f"v_add_u32 v{self.M_AA + tm}, s{sSlot}, v{self.M_CA + tm}")
        a(f"v_add_u32 v{self.M_AB}, s{sSlot}, v{self.M_CB}")
        self.slot_next(a)
        for r in self.m_reads(0) + self.m_reads(1):
            a(r)
        if not first:
            for m in self.m_mfmas(2) + self.m_mfmas(3):
                a(m)
        a("s_waitcnt lgkmcnt(6)")
        rd = self.m_reads(2)
        self.interleave(a, self.m_mfmas(0), rd)
        a("s_waitcnt lgkmcnt(6)")
        rd = self.m_reads(3)
        self.interleave(a, self.m_mfmas(1), rd)
        a("s_waitcnt lgkmcnt(0)")

    def m_tail(self, a):
        for m in self.m_mfmas(2) + self.m_mfmas(3):
            a(m)

    def m_reduce_write(self, a, kh):
        t = 190
        src = self.M_ACC + 16 * (1 - kh)
        a(f"""
        v_lshlrev_b32 v{t}, 4, v0
        s_lshl_b32 s{sT0}, s{sLw}, 12
        s_add_u32 s{sT0}, s{sT0}, {SCR}
        v_add_u32 v{t}, s{sT0}, v{t}
        """)
        for q in range(4):
            a(f"ds_write_b128 v{t}, v[{src + 4 * q}:{src + 4 * q + 3}] offset:{q * 1024}")
        a("s_waitcnt lgkmcnt(0)")

    def m_epilogue(self, a, kh):
        sc = self.sc
        t, R, B1, AD, U = 190, 136, 152, 156, 160
        keep = self.M_ACC + 16 * kh
        a(f"""
        v_lshlrev_b32 v{t}, 4, v0
        s_xor_b32 s{sT0}, s{sLw}, 2
        s_lshl_b32 s{sT0}, s{sT0}, 12
        s_add_u32 s{sT0}, s{sT0}, {SCR}
        v_add_u32 v{t}, s{sT0}, v{t}
        """)
        for q in range(4):
            a(f"ds_read_b128 v[{R + 4 * q}:{R + 4 * q + 3}], v{t} offset:{q * 1024}")
        a(f"""
        s_lshl_b32 s{sT0}, s{sFt}, 6
        s_lshl_b32 s{sT1}, s{sWn}, 5
        s_add_u32 s{sT0}, s{sT0}, s{sT1}
        v_and_b32 v{U}, 31, v0
        v_add_u32 v{U}, s{sT0}, v{U}
        v_lshlrev_b32 v{U + 1}, 1, v{U}
        buffer_load_ushort v{B1}, v{U + 1}, s[{sB1}:{sB1 + 3}], 0 offen
        v_mul_u32_u24 v{U}, 160, v{U}
        v_add_u32 v{U}, {WS_GT}, v{U}
        s_lshl_b32 s{sT0}, s{sDt1}, 6
        s_add_u32 s{sT0}, s{sT0}, {32 * kh}
        v_lshrrev_b32 v{U + 1}, 5, v0
        v_lshlrev_b32 v{U + 1}, 2, v{U + 1}
        v_add_u32 v{U + 1}, s{sT0}, v{U + 1}
        """)
        for q in range(4):
            a(f"""
            v_add_u32 v{U + 2}, {8 * q}, v{U + 1}
            v_mul_u32_u24 v{U + 3}, 820, v{U + 2}
            v_lshrrev_b32 v{U + 3}, 16, v{U + 3}
            v_mul_u32_u24 v{U + 4}, 80, v{U + 3}
            v_sub_u32 v{U + 2}, v{U + 2}, v{U + 4}
            v_lshl_add_u32 v{AD + q}, v{U + 2}, 1, v{U}
            v_mul_u32_u24 v{U + 3}, {1536 * 160}, v{U + 3}
            v_add_u32 v{AD + q}, v{AD + q}, v{U + 3}
            """)
        a("s_waitcnt vmcnt(0) lgkmcnt(0)")
        a(f"v_lshlrev_b32 v{B1}, 16, v{B1}")
        c0 = -2.0 * math.sqrt(2.0 / math.pi) * math.log2(math.e)
        c1 = c0 * 0.044715
        a(f"v_mov_b32 v{B1 + 1}, {f32(c0)}\ns_mov_b32 s{sT2}, {f32(c1)}")
        for r in range(16):
            a(f"v_add_f32 v{keep + r}, v{keep + r}, v{R + r}")
        for r in range(16):
            a(f"v_add_f32 v{keep + r}, v{keep + r}, v{B1}")
        for r in range(16):
            a(f"v_mul_f32 v{R + r}, v{keep + r}, v{keep + r}")
        for r in range(16):
            a(f"v_fma_f32 v{R + r}, v{R + r}, s{sT2}, v{B1 + 1}")
        for r in range(16):
            a(f"v_mul_f32 v{R + r}, v{R + r}, v{keep + r}")
        for r in range(16):
            a(f"v_exp_f32 v{R + r}, v{R + r}")
        for r in range(16):
            a(f"v_add_f32 v{R + r}, 1.0, v{R + r}")
        for r in range(16):
            a(f"v_rcp_f32 v{R + r}, v{R + r}")
        for r in range(16):
            a(f"v_mul_f32 v{keep + r}, v{keep + r}, v{R + r}")
        skip = a.uid("Lm1skip")
        a(f"s_cmp_eq_u32 s{sM1On}, 0\ns_cbranch_scc1 {skip}")
        for q in range(4):
            x = keep + 4 * q
            a(f"v_cvt_pk_bf16_f32 v{x}, v{x}, v{x + 1}\nv_cvt_pk_bf16_f32 v{x + 1}, v{x + 2}, v{x + 3}")
            a(f"buffer_store_dwordx2 v[{x}:{x + 1}], v{AD + q}, s[{sWS}:{sWS + 3}], 0 offen {sc}")
        a.label(skip)

    A_Q, A_K, A_V, A_S, A_P, A_O, A_MF, A_MD = 2, 18, 34, 64, 96, 112, 144, 160
    A_KA, A_VA, A_T = 176, 178, 184

    def a_qloads(self, a):
        sc = self.sc
        T = self.A_T
        a(f"""
        s_lshl_b32 s{sT0}, s{sP}, 11
        s_lshl_b32 s{sT1}, s{sI}, 7
        s_add_u32 s{sT0}, s{sT0}, s{sT1}
        s_lshl_b32 s{sT1}, s{sLw}, 5
        s_add_u32 s{sT0}, s{sT0}, s{sT1}
        v_and_b32 v{T}, 31, v0
        v_add_u32 v{T}, s{sT0}, v{T}
        v_mul_u32_u24 v{T}, 80, v{T}
        v_add_u32 v{T}, {WS_Q}, v{T}
        v_lshrrev_b32 v{T + 1}, 5, v0
        v_lshl_add_u32 v{T + 2}, v{T + 1}, 4, v{T}
        v_mov_b32 v{T + 3}, 0x7ff00000
        v_cmp_gt_u32 vcc, 32, v0
        v_cndmask_b32 v{T + 3}, v{T + 3}, v{T}, vcc
        """)
        for hh in range(2):
            q = self.A_Q + 8 * hh
            a(f"""
            buffer_load_dwordx2 v[{q}:{q + 1}], v{T + 2}, s[{sWS}:{sWS + 3}], 0 offen offset:{40 * hh} {sc}
            buffer_load_dwordx2 v[{q + 2}:{q + 3}], v{T + 2}, s[{sWS}:{sWS + 3}], 0 offen offset:{40 * hh + 8} {sc}
            buffer_load_dwordx2 v[{q + 4}:{q + 5}], v{T + 3}, s[{sWS}:{sWS + 3}], 0 offen offset:{40 * hh + 32} {sc}
            v_mov_b32 v{q + 6}, 0
            v_mov_b32 v{q + 7}, 0
            """)

    def a_consts(self, a):
        T = self.A_T
        KA, VA = self.A_KA, self.A_VA
        a(f"""
        v_and_b32 v{T}, 31, v0
        s_lshl_b32 s{sT0}, s{sLw}, 5
        v_add_u32 v{T + 1}, s{sT0}, v{T}
        v_mul_u32_u24 v{T + 1}, {KVROW}, v{T + 1}
        v_add_u32 v{KA + 1}, {KVBASE}, v{T + 1}
        v_lshrrev_b32 v{T + 2}, 5, v0
        v_lshl_add_u32 v{KA}, v{T + 2}, 4, v{KA + 1}
        v_and_b32 v{T}, 15, v0
        v_lshrrev_b32 v{T + 1}, 2, v{T}
        v_lshl_add_u32 v{T + 1}, v{T + 2}, 2, v{T + 1}
        v_add_u32 v{T + 1}, s{sT0}, v{T + 1}
        v_mul_u32_u24 v{T + 1}, {KVROW}, v{T + 1}
        v_add_u32 v{T + 1}, {KVBASE}, v{T + 1}
        v_and_b32 v{T + 3}, 3, v0
        v_lshlrev_b32 v{T + 4}, 3, v{T + 3}
        v_add_u32 v{T + 4}, 80, v{T + 4}
        v_bfe_u32 v{T + 5}, v0, 4, 1
        v_cmp_eq_u32 vcc, 0, v{T + 3}
        v_mov_b32 v{T + 6}, 160
        v_mov_b32 v{T + 7}, 112
        v_cndmask_b32 v{T + 7}, v{T + 6}, v{T + 7}, vcc
        v_cmp_eq_u32 vcc, 0, v{T + 5}
        v_cndmask_b32 v{T + 7}, v{T + 7}, v{T + 4}, vcc
        v_add_u32 v{VA}, v{T + 1}, v{T + 7}
        v_add_u32 v{T + 4}, 40, v{T + 4}
        v_cmp_eq_u32 vcc, 0, v{T + 3}
        v_mov_b32 v{T + 7}, 152
        v_cndmask_b32 v{T + 7}, v{T + 6}, v{T + 7}, vcc
        v_cmp_eq_u32 vcc, 0, v{T + 5}
        v_cndmask_b32 v{T + 7}, v{T + 7}, v{T + 4}, vcc
        v_add_u32 v{VA + 1}, v{T + 1}, v{T + 7}
        """)
        a(f"""
        v_and_b32 v{T}, 31, v0
        v_lshlrev_b32 v{T + 1}, 2, v{T + 2}
        v_sub_u32 v{T}, v{T}, v{T + 1}
        v_mov_b32 v{T + 3}, {f32(-1e30)}
        """)
        for r in range(16):
            kr = 8 * (r >> 2) + (r & 3)
            a(f"""
            v_cmp_gt_i32 vcc, {kr}, v{T}
            v_cndmask_b32 v{self.A_MF + r}, v{T + 3}, 0, vcc
            v_cndmask_b32 v{self.A_MD + r}, 0, v{T + 3}, vcc
            """)
        for hh in range(2):
            for r in range(16):
                a(f"v_mov_b32 v{self.A_O + 16 * hh + r}, 0")
            k = self.A_K + 8 * hh
            a(f"v_mov_b32 v{k + 6}, 0\nv_mov_b32 v{k + 7}, 0")

    def a_kreads(self, hh):
        k = self.A_K + 8 * hh
        return [f"ds_read_b64 v[{k}:{k + 1}], v{self.A_KA} offset:{40 * hh}",
                f"ds_read_b64 v[{k + 2}:{k + 3}], v{self.A_KA} offset:{40 * hh + 8}",
                f"ds_read_b64 v[{k + 4}:{k + 5}], v{self.A_KA + 1} offset:{40 * hh + 32}"]

    def a_vreads(self, hh):
        x = self.A_V + 8 * hh
        return [f"ds_read_b64_tr_b16 v[{x + 4 * aa + 2 * rd}:{x + 4 * aa + 2 * rd + 1}], v{self.A_VA + hh} offset:{(16 * aa + 8 * rd) * KVROW}"
                for aa in range(2) for rd in range(2)]

    def a_qk(self, hh, mask):
        sreg = self.A_S + 16 * hh
        k, q = self.A_K + 8 * hh, self.A_Q + 8 * hh
        c = "0" if mask is None else f"v[{mask}:{mask + 15}]"
        return [f"v_mfma_f32_32x32x16_bf16 v[{sreg}:{sreg + 15}], v[{k}:{k + 3}], v[{q}:{q + 3}], {c}",
                f"v_mfma_f32_32x32x16_bf16 v[{sreg}:{sreg + 15}], v[{k + 4}:{k + 7}], v[{q + 4}:{q + 7}], v[{sreg}:{sreg + 15}]"]

    def a_pv(self, hh):
        o, p, x = self.A_O + 16 * hh, self.A_P + 8 * hh, self.A_V + 8 * hh
        return [f"v_mfma_f32_32x32x16_bf16 v[{o}:{o + 15}], v[{x + 4 * aa}:{x + 4 * aa + 3}], v[{p + 4 * aa}:{p + 4 * aa + 3}], v[{o}:{o + 15}]"
                for aa in range(2)]

    def a_softmax(self, a, hh):
        sreg, p = self.A_S + 16 * hh, self.A_P + 8 * hh
        for r in range(16):
            a(f"v_exp_f32 v{sreg + r}, v{sreg + r}")
        for r in range(8):
            a(f"v_cvt_pk_bf16_f32 v{p + r}, v{sreg + 2 * r}, v{sreg + 2 * r + 1}")

    def a_tile(self, a, mask):
        for hh in range(2):
            for r in self.a_kreads(hh):
                a(r)
        for hh in range(2):
            for r in self.a_vreads(hh):
                a(r)
        a(f"v_add_u32 v{self.A_KA}, {32 * KVROW}, v{self.A_KA}")
        a(f"v_add_u32 v{self.A_KA + 1}, {32 * KVROW}, v{self.A_KA + 1}")
        a("s_waitcnt lgkmcnt(11)")
        for m in self.a_qk(0, mask):
            a(m)
        a("s_waitcnt lgkmcnt(8)")
        for m in self.a_qk(1, mask):
            a(m)
        a(f"v_add_u32 v{self.A_VA}, {32 * KVROW}, v{self.A_VA}")
        a(f"v_add_u32 v{self.A_VA + 1}, {32 * KVROW}, v{self.A_VA + 1}")
        self.a_softmax(a, 0)
        a("s_waitcnt lgkmcnt(0)")
        for m in self.a_pv(0):
            a(m)
        self.a_softmax(a, 1)
        for m in self.a_pv(1):
            a(m)

    def a_skip(self, a, n):
        a(f"s_mul_i32 s{sT1}, s{n}, {32 * KVROW}")
        for r in (self.A_KA, self.A_KA + 1, self.A_VA, self.A_VA + 1):
            a(f"v_add_u32 v{r}, s{sT1}, v{r}")

    def attention(self, a):
        T = self.A_T
        sc = self.sc
        self.a_consts(a)
        a(f"""
        s_lshl_b32 s{sT0}, s{sI}, 2
        s_add_u32 s{sT0}, s{sT0}, s{sLw}
        s_cmp_ge_u32 s{sT0}, 8
        s_cselect_b32 s{sT0}, 8, s{sT0}
        s_sub_u32 s{sT2}, 8, s{sT0}
        """)
        a("s_waitcnt vmcnt(0)")
        lfar, lmid, ldiag = a.uid("Lfar"), a.uid("Lmid"), a.uid("Ldiag")
        a(f"s_cmp_eq_u32 s{sT2}, 0\ns_cbranch_scc1 {lfar}")
        self.a_skip(a, sT2)
        a(f"s_sub_u32 s{sCnt}, 8, s{sT2}\ns_branch {lmid}_chk")
        a.label(lfar)
        self.a_tile(a, self.A_MF)
        a(f"s_mov_b32 s{sCnt}, 7")
        a.label(lmid + "_chk")
        a(f"s_cmp_eq_u32 s{sCnt}, 0\ns_cbranch_scc1 {ldiag}")
        a.label(lmid)
        self.a_tile(a, None)
        a(f"s_sub_u32 s{sCnt}, s{sCnt}, 1\ns_cmp_lg_u32 s{sCnt}, 0\ns_cbranch_scc1 {lmid}")
        a.label(ldiag)
        self.a_tile(a, self.A_MD)
        lfb, ldone = a.uid("Lfallback"), a.uid("Lnorm")
        self.fallback_labels = (lfb, ldone)
        self.a_rowsum(a)
        a(f"""
        v_mov_b32 v{T + 4}, {f32(2.0 ** -40)}
        v_mov_b32 v{T + 5}, {f32(2.0 ** 40)}
        v_cmp_ge_f32 s[{sT0}:{sT0 + 1}], v{T}, v{T + 4}
        v_cmp_le_f32 s[{sT2}:{sT2 + 1}], v{T}, v{T + 5}
        s_and_b64 s[{sT0}:{sT0 + 1}], s[{sT0}:{sT0 + 1}], s[{sT2}:{sT2 + 1}]
        v_cmp_ge_f32 s[{sT2}:{sT2 + 1}], v{T + 1}, v{T + 4}
        s_and_b64 s[{sT0}:{sT0 + 1}], s[{sT0}:{sT0 + 1}], s[{sT2}:{sT2 + 1}]
        v_cmp_le_f32 s[{sT2}:{sT2 + 1}], v{T + 1}, v{T + 5}
        s_and_b64 s[{sT0}:{sT0 + 1}], s[{sT0}:{sT0 + 1}], s[{sT2}:{sT2 + 1}]
        s_cmp_eq_u64 s[{sT0}:{sT0 + 1}], exec
        s_cbranch_scc0 {lfb}
        """)
        a.label(ldone)
        self.a_store(a)

    def a_rowsum(self, a):
        T = self.A_T
        for hh in range(2):
            o = self.A_O + 16 * hh
            a(f"""
            v_mov_b32 v{T + 2}, v{o + 8}
            v_mov_b32 v{T + hh}, v{o + 8}
            v_nop
            v_permlane32_swap_b32 v{T + 2}, v{T + hh}
            """)

    def a_store(self, a):
        T = self.A_T
        sc = self.sc
        a(f"""
        v_rcp_f32 v{T + 2}, v{T}
        v_rcp_f32 v{T + 4}, v{T + 1}
        s_lshl_b32 s{sT0}, s{sI}, 7
        s_lshl_b32 s{sT1}, s{sLw}, 5
        s_add_u32 s{sT0}, s{sT0}, s{sT1}
        v_and_b32 v{T + 6}, 31, v0
        v_add_u32 v{T + 6}, s{sT0}, v{T + 6}
        v_mul_u32_u24 v{T + 6}, 1280, v{T + 6}
        s_mul_i32 s{sT0}, s{sP}, 80
        s_add_u32 s{sT0}, s{sT0}, {WS_O}
        v_add_u32 v{T + 6}, s{sT0}, v{T + 6}
        v_lshrrev_b32 v{T + 7}, 5, v0
        v_lshl_add_u32 v{T + 7}, v{T + 7}, 3, v{T + 6}
        v_mov_b32 v{T + 8}, 0x7ff00000
        v_cmp_gt_u32 vcc, 32, v0
        v_cndmask_b32 v{T + 8}, v{T + 8}, v{T + 6}, vcc
        """)
        for hh in range(2):
            o = self.A_O + 16 * hh
            rc = T + 2 + 2 * hh
            for g in range(3):
                x = o + 4 * g
                for hf in range(2):
                    a(f"v_pk_mul_f32 v[{x + 2 * hf}:{x + 2 * hf + 1}], v[{x + 2 * hf}:{x + 2 * hf + 1}], v[{rc}:{rc + 1}] op_sel_hi:[1,0]")
                a(f"v_cvt_pk_bf16_f32 v{x}, v{x}, v{x + 1}\nv_cvt_pk_bf16_f32 v{x + 1}, v{x + 2}, v{x + 3}")
                ad = T + 7 if g < 2 else T + 8
                a(f"buffer_store_dwordx2 v[{x}:{x + 1}], v{ad}, s[{sWS}:{sWS + 3}], 0 offen offset:{40 * hh + 16 * g} {sc}")

    def attention_fallback(self, a):
        lfb, ldone = self.fallback_labels
        T = self.A_T
        M = 200
        a.label(lfb)
        self.a_consts(a)
        a(f"""
        s_lshl_b32 s{sT0}, s{sI}, 2
        s_add_u32 s{sT0}, s{sT0}, s{sLw}
        s_cmp_ge_u32 s{sT0}, 8
        s_cselect_b32 s{sT0}, 8, s{sT0}
        s_sub_u32 s{sCnt}, 8, s{sT0}
        v_mov_b32 v{M}, {f32(-3e38)}
        v_mov_b32 v{M + 1}, {f32(-3e38)}
        """)
        self.a_skip(a, sCnt)
        lp, lnf, lnd = a.uid("Lfb"), a.uid("Lfbnf"), a.uid("Lfbnd")
        a.label(lp)
        for hh in range(2):
            for r in self.a_kreads(hh) + self.a_vreads(hh):
                a(r)
        for r in (self.A_KA, self.A_KA + 1, self.A_VA, self.A_VA + 1):
            a(f"v_add_u32 v{r}, {32 * KVROW}, v{r}")
        a("s_waitcnt lgkmcnt(0)")
        for hh in range(2):
            for m in self.a_qk(hh, None):
                a(m)
        a("s_nop 15")
        a(f"s_cmp_lg_u32 s{sCnt}, 0\ns_cbranch_scc1 {lnf}")
        for hh in range(2):
            for r in range(16):
                a(f"v_add_f32 v{self.A_S + 16 * hh + r}, v{self.A_S + 16 * hh + r}, v{self.A_MF + r}")
        a.label(lnf)
        a(f"s_cmp_lg_u32 s{sCnt}, 8\ns_cbranch_scc1 {lnd}")
        for hh in range(2):
            for r in range(16):
                a(f"v_add_f32 v{self.A_S + 16 * hh + r}, v{self.A_S + 16 * hh + r}, v{self.A_MD + r}")
        a.label(lnd)
        for hh in range(2):
            sreg, o = self.A_S + 16 * hh, self.A_O + 16 * hh
            x = M + 2
            a(f"v_max3_f32 v{x}, v{sreg}, v{sreg + 1}, v{M + hh}")
            for r in range(2, 16, 2):
                a(f"v_max3_f32 v{x}, v{sreg + r}, v{sreg + r + 1}, v{x}")
            a(f"""
            v_mov_b32 v{x + 1}, v{x}
            v_mov_b32 v{x + 2}, v{x}
            v_nop
            v_permlane32_swap_b32 v{x + 1}, v{x + 2}
            v_max_f32 v{x}, v{x + 1}, v{x + 2}
            v_sub_f32 v{x + 1}, v{M + hh}, v{x}
            v_exp_f32 v{x + 1}, v{x + 1}
            v_mov_b32 v{M + hh}, v{x}
            """)
            for r in range(16):
                a(f"v_sub_f32 v{sreg + r}, v{sreg + r}, v{x}")
            for r in range(16):
                a(f"v_mul_f32 v{o + r}, v{o + r}, v{x + 1}")
            self.a_softmax(a, hh)
            for m in self.a_pv(hh):
                a(m)
        a(f"s_add_u32 s{sCnt}, s{sCnt}, 1\ns_cmp_le_u32 s{sCnt}, 8\ns_cbranch_scc1 {lp}")
        a("s_nop 15")
        self.a_rowsum(a)
        a(f"s_branch {ldone}")

    F_ACC, F_BUF, F_CA, F_CB, F_CO, F_AA, F_AB, F_AO = 64, 136, 192, 193, 195, 199, 200, 202

    def f_consts(self, a):
        t0, t1, t2, t3, t4 = 206, 207, 208, 209, 210
        a(f"""
        v_and_b32 v{t0}, 15, v0
        v_lshrrev_b32 v{t1}, 2, v{t0}
        v_lshrrev_b32 v{t2}, 4, v0
        v_lshl_add_u32 v{t3}, v{t2}, 2, v{t1}
        s_lshl_b32 s{sT0}, s{sWm}, 6
        v_add_u32 v{t3}, s{sT0}, v{t3}
        v_mul_u32_u24 v{self.F_CA}, 160, v{t3}
        v_and_b32 v{t4}, 3, v0
        v_lshl_add_u32 v{self.F_CA}, v{t4}, 3, v{self.F_CA}
        v_add_u32 v{self.F_CA}, 16384, v{self.F_CA}
        v_lshlrev_b32 v{t3}, 7, v{t3}
        v_and_b32 v{t4}, 1, v0
        v_lshl_add_u32 v{t3}, v{t4}, 3, v{t3}
        v_bfe_u32 v{t4}, v0, 1, 1
        s_lshl_b32 s{sT0}, s{sWn}, 2
        v_or_b32 v{t4}, s{sT0}, v{t4}
        v_bfe_u32 v{t0}, v0, 4, 1
        v_lshlrev_b32 v{t0}, 1, v{t0}
        v_bfe_u32 v{t1}, v0, 3, 1
        v_or_b32 v{t0}, v{t0}, v{t1}
        v_lshlrev_b32 v{t0}, 1, v{t0}
        """)
        for tn in range(2):
            a(f"""
            v_or_b32 v{t1}, {2 * tn}, v{t4}
            v_xor_b32 v{t1}, v{t1}, v{t0}
            v_lshl_add_u32 v{self.F_CB + tn}, v{t1}, 4, v{t3}
            """)
        a(f"""
        v_and_b32 v{t0}, 15, v0
        s_lshl_b32 s{sT0}, s{sWn}, 5
        v_add_u32 v{t1}, s{sT0}, v{t0}
        v_lshlrev_b32 v{t1}, 8, v{t1}
        v_bfe_u32 v{t2}, v0, 4, 1
        v_lshl_add_u32 v{t1}, v{t2}, 3, v{t1}
        v_lshrrev_b32 v{t2}, 5, v0
        s_lshl_b32 s{sT0}, s{sWm}, 3
        v_add_u32 v{t2}, s{sT0}, v{t2}
        """)
        for j in range(2):
            for rd in range(2):
                a(f"""
                v_add_u32 v{t3}, {4 * j + 2 * rd}, v{t2}
                v_xor_b32 v{t3}, v{t3}, v{t0}
                v_lshl_add_u32 v{self.F_CO + 2 * j + rd}, v{t3}, 4, v{t1}
                """)
        for r in range(self.F_ACC, self.F_ACC + 40):
            a(f"v_mov_b32 v{r}, 0")

    def f_reads(self, j, wo):
        base = self.F_BUF + 28 * j
        out = []
        for tn in range(2):
            for rd in range(2):
                d = base + 20 + 4 * tn + 2 * rd
                if wo:
                    out.append(f"ds_read_b64 v[{d}:{d + 1}], v{self.F_AO + 2 * j + rd} offset:{tn * 4096}")
                else:
                    out.append(f"ds_read_b64_tr_b16 v[{d}:{d + 1}], v{self.F_AB + tn} offset:{(32 * j + 16 * rd) * 128}")
        for tm in range(5):
            for rd in range(2):
                d = base + 4 * tm + 2 * rd
                out.append(f"ds_read_b64_tr_b16 v[{d}:{d + 1}], v{self.F_AA} offset:{(32 * j + 16 * rd) * 160 + 32 * tm}")
        return out

    def f_mfmas(self, j):
        base = self.F_BUF + 28 * j
        out = []
        for tm in range(5):
            for tn in range(2):
                acc = self.F_ACC + 4 * (2 * tm + tn)
                out.append(f"v_mfma_f32_16x16x32_bf16 v[{acc}:{acc + 3}], v[{base + 4 * tm}:{base + 4 * tm + 3}], v[{base + 20 + 4 * tn}:{base + 23 + 4 * tn}], v[{acc}:{acc + 3}]")
        return out

    def f_stage(self, a, first, wo):
        self.cbar(a)
        a(f"v_add_u32 v{self.F_AA}, s{sSlot}, v{self.F_CA}")
        if wo:
            for k in range(4):
                a(f"v_add_u32 v{self.F_AO + k}, s{sSlot}, v{self.F_CO + k}")
        else:
            for tn in range(2):
                a(f"v_add_u32 v{self.F_AB + tn}, s{sSlot}, v{self.F_CB + tn}")
        self.slot_next(a)
        r0 = self.f_reads(0, wo)
        if first:
            for r in r0:
                a(r)
        else:
            self.interleave(a, self.f_mfmas(1), r0)
        a("s_waitcnt lgkmcnt(0)")
        self.interleave(a, self.f_mfmas(0), self.f_reads(1, wo))
        a("s_waitcnt lgkmcnt(0)")

    def f_tail(self, a):
        for m in self.f_mfmas(1):
            a(m)

    def f_xloads(self, a, kh):
        X, B2, AD, t = 212, 222, 223, 224
        a(f"""
        s_lshl_b32 s{sT0}, s{sSt}, 6
        s_lshl_b32 s{sT1}, s{sWn}, 5
        s_add_u32 s{sT0}, s{sT0}, s{sT1}
        s_add_u32 s{sT0}, s{sT0}, {16 * kh}
        v_and_b32 v{t}, 15, v0
        v_add_u32 v{t}, s{sT0}, v{t}
        v_lshlrev_b32 v{t + 1}, 1, v{t}
        buffer_load_ushort v{B2}, v{t + 1}, s[{sB2}:{sB2 + 3}], 0 offen
        v_mul_u32_u24 v{AD}, 1280, v{t}
        s_mul_i32 s{sT0}, s{sDt}, 160
        v_add_u32 v{AD}, s{sT0}, v{AD}
        v_lshrrev_b32 v{t + 1}, 4, v0
        v_lshl_add_u32 v{AD}, v{t + 1}, 3, v{AD}
        """)
        for tm in range(5):
            a(f"buffer_load_dwordx2 v[{X + 2 * tm}:{X + 2 * tm + 1}], v{AD}, s[{sX}:{sX + 3}], 0 offen offset:{32 * tm}")

    def f_reduce_write(self, a, kh):
        t = 206
        a(f"""
        v_lshlrev_b32 v{t}, 4, v0
        s_mul_i32 s{sT0}, s{sLw}, 5120
        s_add_u32 s{sT0}, s{sT0}, {SLOT}
        v_add_u32 v{t}, s{sT0}, v{t}
        """)
        for tm in range(5):
            src = self.F_ACC + 4 * (2 * tm + (1 - kh))
            a(f"ds_write_b128 v{t}, v[{src}:{src + 3}] offset:{tm * 1024}")
        a("s_waitcnt lgkmcnt(0)")

    def f_epilogue(self, a, kh):
        X, B2, AD, t, R = 212, 222, 223, 206, 136
        a(f"""
        v_lshlrev_b32 v{t}, 4, v0
        s_xor_b32 s{sT0}, s{sLw}, 2
        s_mul_i32 s{sT0}, s{sT0}, 5120
        s_add_u32 s{sT0}, s{sT0}, {SLOT}
        v_add_u32 v{t}, s{sT0}, v{t}
        """)
        for tm in range(5):
            a(f"ds_read_b128 v[{R + 4 * tm}:{R + 4 * tm + 3}], v{t} offset:{tm * 1024}")
        a("s_waitcnt vmcnt(0) lgkmcnt(0)")
        a(f"v_lshlrev_b32 v{B2}, 16, v{B2}")
        for tm in range(5):
            k = self.F_ACC + 4 * (2 * tm + kh)
            r = R + 4 * tm
            for e in range(4):
                a(f"v_add_f32 v{k + e}, v{k + e}, v{r + e}")
            a(f"""
            v_lshlrev_b32 v{r}, 16, v{X + 2 * tm}
            v_and_b32 v{r + 1}, 0xffff0000, v{X + 2 * tm}
            v_lshlrev_b32 v{r + 2}, 16, v{X + 2 * tm + 1}
            v_and_b32 v{r + 3}, 0xffff0000, v{X + 2 * tm + 1}
            """)
            for e in range(4):
                a(f"v_add_f32 v{k + e}, v{k + e}, v{B2}")
            for e in range(4):
                a(f"v_add_f32 v{k + e}, v{k + e}, v{r + e}")
            a(f"v_cvt_pk_bf16_f32 v{k}, v{k}, v{k + 1}\nv_cvt_pk_bf16_f32 v{k + 1}, v{k + 2}, v{k + 3}")
            a(f"buffer_store_dwordx2 v[{k}:{k + 1}], v{AD}, s[{sOUT}:{sOUT + 3}], 0 offen offset:{32 * tm}")

    def by_scalar(self, a, reg, fn):
        l1, l2 = a.uid("Lsel"), a.uid("Lsele")
        a(f"s_cmp_lg_u32 s{reg}, 0\ns_cbranch_scc1 {l1}")
        fn(0)
        a(f"s_nop 7\ns_branch {l2}")
        a.label(l1)
        fn(1)
        a("s_nop 7")
        a.label(l2)

    def split(self, name, consumer, loader):
        a = Asm()
        self.kidx = getattr(self, 'kidx', 0) + 1
        a._uid = self.kidx * 1000
        self.prologue(a, name)
        self.diag_init(a)
        a(f"s_cmp_ge_u32 s{sWv}, 4\ns_cbranch_scc1 {name}_loader")
        self.stamp(a, 2, bump=False)
        consumer(a)
        self.stamp(a, 0, bump=True)
        self.diag_dump(a, self.kidx - 1)
        a(f"s_branch {name}_end")
        if getattr(self, "fallback_labels", None):
            self.attention_fallback(a)
            self.fallback_labels = None
        a.label(name + "_loader")
        loader(a)
        self.stamp(a, 0, bump=True)
        self.diag_dump(a, self.kidx - 1)
        a.label(name + "_end")
        a("s_endpgm")
        return a.finish()

    def k_ln(self):
        def c(a):
            self.ln_loads(a)
            self.ln_compute(a)
        return c, (lambda a: None)

    def c_qkv(self, a):
        a(f"s_mov_b32 s{sSlot}, 0")
        self.q_consts(a)

        def run(wn):
            self.q_stage(a, wn, True)
            self.loop(a, 9, lambda: self.q_stage(a, wn, False))
            self.q_tail(a, wn)
        self.by_scalar(a, sWn, run)
        self.q_csum_write(a)
        a("s_barrier")
        self.by_scalar(a, sWm, lambda wm: self.q_epilogue(a, wm))

    def c_mix1(self, a):
        self.m_consts(a)
        self.m_stage(a, True)
        self.loop(a, 15, lambda: self.m_stage(a, False))
        self.m_tail(a)
        self.by_scalar(a, sWm, lambda kh: self.m_reduce_write(a, kh))
        a("s_barrier")
        self.by_scalar(a, sWm, lambda kh: self.m_epilogue(a, kh))

    def c_final(self, a):
        self.f_consts(a)
        self.by_scalar(a, sWm, lambda kh: self.f_xloads(a, kh))
        self.f_stage(a, True, False)
        self.loop(a, 11, lambda: self.f_stage(a, False, False))
        self.loop(a, 5, lambda: self.f_stage(a, False, True))
        self.f_tail(a)
        self.by_scalar(a, sWm, lambda kh: self.f_reduce_write(a, kh))
        a("s_barrier")
        self.by_scalar(a, sWm, lambda kh: self.f_epilogue(a, kh))

    def k_qm(self):
        def c(a):
            self.c_qkv(a)
            self.c_mix1(a)

        def l(a):
            self.loader_consts(a)
            a(f"s_mov_b32 s{sSlot}, 0")
            self.q_init(a)
            for _ in range(3):
                self.q_issue(a)
            self.loop(a, 7, lambda: (self.wait_bar(a, 16), self.q_issue(a)))
            self.m_init(a)
            for _ in range(3):
                self.wait_bar(a, 16)
                self.m_issue(a)
            a("s_barrier")
            self.loop(a, 13, lambda: (self.wait_bar(a, 16), self.m_issue(a)))
            self.wait_bar(a, 16)
            self.wait_bar(a, 8)
            self.wait_bar(a, 0)
            a("s_barrier")
        return c, l

    def k_attn(self):
        def c(a):
            self.a_qloads(a)
            a("s_barrier")
            self.attention(a)

        def l(a):
            self.loader_consts(a)
            self.kv_init(a)
            self.kv_issue(a, 0, 16)
            self.wait_bar(a, 0)
        return c, l

    def k_final(self):
        def c(a):
            a(f"s_mov_b32 s{sSlot}, 0")
            self.c_final(a)

        def l(a):
            self.loader_consts(a)
            a(f"s_mov_b32 s{sSlot}, 0")
            self.f_init(a)
            for _ in range(3):
                self.f_issue(a)
            self.loop(a, 9, lambda: (self.wait_bar(a, 18), self.f_issue(a)))
            self.wo_init(a)
            self.loop(a, 5, lambda: (self.wait_bar(a, 18), self.wo_issue(a)))
            self.wait_bar(a, 18)
            self.wait_bar(a, 9)
            self.wait_bar(a, 0)
            a("s_barrier")
        return c, l
```

```python
import math
import sys

sys.path.insert(0, "tools")
from asmlib import Asm
from gen_base import *
import gen_base as B

OOB = 0x7ff00000
SPIN_MAX = 100000
FL_LN, FL_KV, FL_O, FL_G = 0x1000, 0x1400, 0x1800, 0x8000
SCR_CNT = SCR + 10752
SCR_CS = SCR + 10240
M_RED = 16384
GROW = 144
sPub, sT6 = 79, 85
sKcA, sKcB, sKt, sRq, sRm, sRf, sRw = 9, 10, 11, 12, 13, 14, 15
sArr, sNon2 = 4, 5


class Fused(Gen):
    A_MF, A_MD, A_KA, A_VA = 2, 18, 34, 36
    F_CA, F_CB, F_CO = 38, 39, 41
    M_CA, M_CB = 45, 47
    V_ST, V_B1, V_B2, V_ARR, V_POLL = 48, 52, 53, 54, 56
    V_DUMMY = 228
    Q_ACC, Q_CS, Q_ONES, Q_BUF, Q_CA, Q_CB, Q_AA, Q_AB = 64, 128, 132, 136, 200, 202, 206, 208
    M_ACC, M_BUF, M_AA, M_AB = 64, 136, 206, 208
    A_Q, A_K, A_V, A_S, A_P, A_O, A_T = 64, 80, 96, 112, 144, 160, 192
    F_ACC, F_BUF, F_AA, F_AB, F_AO = 64, 136, 199, 200, 202

    def __init__(self, diag=False, opts=None):
        super().__init__(fused=True, diag=diag)
        self.o = dict(prefetch=1, nt=0, gsleep=4, ldsc1=1, xmap=0, light=0, w1a=1024, rot=1)
        self.o.update(opts or {})

    def stamp(self, a, k, bump=False):
        if not self.o["light"]:
            super().stamp(a, k, bump)

    def mark(self, a):
        if self.diag and self.o["light"]:
            B.Gen.stamp(self, a, 1, True)

    def prologue(self, a, lab):
        super().prologue(a, lab)
        self.rot_consts(a)
        if not self.o["xmap"]:
            return
        a(f"""
        s_and_b32 s{sT0}, s{sWg}, 7
        s_lshr_b32 s{sT1}, s{sWg}, 3
        s_lshl_b32 s{sSt}, s{sT0}, 2
        s_and_b32 s{sT2}, s{sT1}, 3
        s_add_u32 s{sSt}, s{sSt}, s{sT2}
        s_lshr_b32 s{sDt}, s{sT1}, 2
        s_cmp_lt_u32 s{sT1}, 30
        s_cselect_b32 s{sT2}, 0, 30
        s_sub_u32 s{sT1}, s{sT1}, s{sT2}
        s_mul_i32 s{sT2}, s{sT1}, 26
        s_lshr_b32 s{sT2}, s{sT2}, 8
        s_mul_i32 s{sT3}, s{sT2}, 10
        s_sub_u32 s{sDt1}, s{sT1}, s{sT3}
        s_mul_i32 s{sFt}, s{sT0}, 3
        s_add_u32 s{sFt}, s{sFt}, s{sT2}
        """)

    def smod(self, a, r, n, times):
        for _ in range(times):
            a(f"s_cmp_ge_u32 s{r}, {n}\ns_cselect_b32 s{sT5}, {n}, 0\ns_sub_u32 s{r}, s{r}, s{sT5}")

    def rot_consts(self, a):
        if not self.o["rot"]:
            for r in (sRq, sRm, sRf, sRw):
                a(f"s_mov_b32 s{r}, 0")
            return
        a(f"""
        s_lshr_b32 s{sT0}, s{sWg}, 3
        s_and_b32 s{sT1}, s{sT0}, 7
        s_lshr_b32 s{sT2}, s{sT0}, 3
        s_mul_i32 s{sT3}, s{sT2}, 3
        s_add_u32 s{sRq}, s{sT1}, s{sT3}
        s_mul_i32 s{sRf}, s{sT1}, 5
        s_add_u32 s{sRf}, s{sRf}, s{sT3}
        s_lshl_b32 s{sRw}, s{sT2}, 1
        s_add_u32 s{sRw}, s{sRw}, s{sT1}
        s_mul_i32 s{sRm}, s{sFt}, 3
        s_mul_i32 s{sT3}, s{sDt1}, 5
        s_add_u32 s{sRm}, s{sRm}, s{sT3}
        s_and_b32 s{sRm}, s{sRm}, 7
        """)
        self.smod(a, sRq, 10, 1)
        self.smod(a, sRf, 12, 3)
        self.smod(a, sRw, 5, 2)

    def wrap(self, a, kc, n, offs):
        a(f"s_add_u32 s{kc}, s{kc}, 1\ns_cmp_eq_u32 s{kc}, {n}\ns_cselect_b32 s{kc}, 0, s{kc}")
        for k, (reg, step) in enumerate(offs):
            a(f"s_cselect_b32 s{sT1 + k}, {n * step}, 0")
        for k, (reg, step) in enumerate(offs):
            a(f"s_sub_u32 s{reg}, s{reg}, s{sT1 + k}")

    def q_init(self, a):
        super().q_init(a)
        a(f"""
        s_mov_b32 s{sKcA}, s{sRq}
        s_lshl_b32 s{sT0}, s{sRq}, 7
        s_add_u32 s{sOffA}, s{sOffA}, s{sT0}
        s_mul_i32 s{sT0}, s{sRq}, {64 * 3840}
        s_add_u32 s{sOffB}, s{sOffB}, s{sT0}
        """)

    def q_issue(self, a):
        super().q_issue(a)
        self.wrap(a, sKcA, 10, [(sOffA, 128), (sOffB, 64 * 3840)])

    def m_init(self, a):
        super().m_init(a)
        a(f"""
        s_mov_b32 s{sKcA}, s{sRm}
        s_mov_b32 s{sKt}, 0
        s_mul_i32 s{sT0}, s{sRm}, {128 * 1280}
        s_add_u32 s{sOffA}, s{sOffA}, s{sT0}
        s_mul_i32 s{sT0}, s{sRm}, {128 * 3072}
        s_add_u32 s{sOffB}, s{sOffB}, s{sT0}
        """)

    def m_issue(self, a):
        super().m_issue(a)
        self.wrap(a, sKcA, 8, [(sOffA, 128 * 1280), (sOffB, 128 * 3072)])
        a(f"s_add_u32 s{sKt}, s{sKt}, 1\ns_cmp_eq_u32 s{sKt}, 8")
        a(f"""
        s_cselect_b32 s{sT1}, {8 * 128 * 1280}, 0
        s_cselect_b32 s{sT2}, {8 * 128 * 3072}, 0
        s_add_u32 s{sOffA}, s{sOffA}, s{sT1}
        s_add_u32 s{sOffB}, s{sOffB}, s{sT2}
        """)

    def f_init(self, a):
        super().f_init(a)
        a(f"""
        s_mov_b32 s{sKcA}, s{sRf}
        s_mov_b32 s{sKcB}, s{sRf}
        s_mul_i32 s{sT0}, s{sRf}, {128 * 160}
        s_add_u32 s{sOffA}, s{sOffA}, s{sT0}
        s_mul_i32 s{sT0}, s{sRf}, {128 * 4096}
        s_add_u32 s{sOffB}, s{sOffB}, s{sT0}
        """)

    def f_issue_w2(self, a):
        super().f_issue_w2(a)
        self.wrap(a, sKcB, 12, [(sOffB, 128 * 4096)])

    def f_issue_g(self, a):
        super().f_issue_g(a)
        self.wrap(a, sKcA, 12, [(sOffA, 128 * 160)])

    def wo_init(self, a):
        super().wo_init(a)
        a(f"""
        s_mov_b32 s{sKcA}, s{sRw}
        s_mul_i32 s{sT0}, s{sRw}, {128 * 1280}
        s_add_u32 s{sOffA}, s{sOffA}, s{sT0}
        s_lshl_b32 s{sT0}, s{sRw}, 8
        s_add_u32 s{sOffB}, s{sOffB}, s{sT0}
        """)

    def wo_issue(self, a):
        super().wo_issue(a)
        self.wrap(a, sKcA, 5, [(sOffA, 128 * 1280), (sOffB, 256)])

    def only_w0(self, a, fn):
        lab = a.uid("Lw0")
        a(f"s_cmp_lg_u32 s{sLw}, 0\ns_cbranch_scc1 {lab}")
        fn()
        a.label(lab)

    def nonce_load(self, a):
        a(f"s_load_dword s{sNonce}, s[24:25], {WS_EPOCH}")

    def nonce_make(self, a):
        a(f"""
        s_waitcnt lgkmcnt(0)
        s_mul_i32 s{sNonce}, s{sNonce}, 1664525
        s_add_u32 s{sNonce}, s{sNonce}, 1013904223
        """)

    def flag_set(self, a, off):
        a(f"s_atomic_swap s{sNonce}, s[24:25], s{off}")

    def poll_issue(self, a, vaddr, n=1):
        r = self.LV_PR
        if n == 1:
            a(f"buffer_load_dword v{r}, v{vaddr}, s[{sWS}:{sWS + 3}], 0 offen sc1")
        else:
            a(f"buffer_load_dwordx4 v[{r}:{r + 3}], v{vaddr}, s[{sWS}:{sWS + 3}], 0 offen sc1")

    def poll_test(self, a, n):
        r = self.LV_PR
        a(f"v_cmp_eq_u32 s[{sT0}:{sT0 + 1}], s{sNonce}, v{r}")
        for k in range(1, n):
            a(f"v_cmp_eq_u32 s[{sT2}:{sT2 + 1}], s{sNonce}, v{r + k}")
            a(f"s_and_b64 s[{sT0}:{sT0 + 1}], s[{sT0}:{sT0 + 1}], s[{sT2}:{sT2 + 1}]")
        a(f"s_cmp_eq_u64 s[{sT0}:{sT0 + 1}], exec")

    def poll_check(self, a, vaddr, n=1, sleep=8):
        ok, sp = a.uid("Lpok"), a.uid("Lspin")
        self.poll_test(a, n)
        a(f"s_cbranch_scc1 {ok}")
        self.spin(a, vaddr, n, ok, sp, sleep)
        a.label(ok)

    def spin(self, a, vaddr, n, ok, sp, sleep):
        a(f"s_mov_b32 s{sT6}, {SPIN_MAX}")
        a.label(sp)
        a(f"s_sleep {sleep}")
        self.poll_issue(a, vaddr, n)
        a("s_waitcnt vmcnt(0)")
        self.poll_test(a, n)
        a(f"s_cbranch_scc1 {ok}")
        a(f"s_sub_u32 s{sT6}, s{sT6}, 1\ns_cmp_lg_u32 s{sT6}, 0\ns_cbranch_scc1 {sp}")

    LV_PLA, LV_PKV, LV_PG, LV_PO, LV_PLB, LV_PR = 14, 15, 16, 17, 18, 24
    LV_P1, LV_P2, LV_DUMMY = 100, 103, 96

    def loader_poll_addrs(self, a):
        t0, t1, t2, t3 = 20, 21, 22, 23
        a(f"""
        v_lshrrev_b32 v{t0}, 4, v0
        v_mov_b32 v{t1}, s{sI}
        v_cmp_eq_u32 vcc, 3, v{t0}
        v_cndmask_b32 v{t0}, v{t0}, v{t1}, vcc
        v_lshlrev_b32 v{t0}, 6, v{t0}
        v_and_b32 v{t1}, 15, v0
        v_lshl_add_u32 v{t0}, v{t1}, 2, v{t0}
        v_add_u32 v{self.LV_PLA}, {FL_LN}, v{t0}
        v_lshlrev_b32 v{t0}, 4, v0
        v_add_u32 v{self.LV_PLB}, {FL_LN}, v{t0}
        v_min_u32 v{t0}, 2, v0
        v_sub_u32 v{t0}, s{sI}, v{t0}
        v_max_i32 v{t0}, 0, v{t0}
        s_lshl_b32 s{sT0}, s{sP}, 4
        v_add_u32 v{t0}, s{sT0}, v{t0}
        v_lshlrev_b32 v{t0}, 2, v{t0}
        v_add_u32 v{self.LV_PKV}, {FL_KV}, v{t0}
        v_and_b32 v{t0}, 15, v0
        s_lshr_b32 s{sT0}, s{sSt}, 1
        s_lshl_b32 s{sT0}, s{sT0}, 4
        v_add_u32 v{t0}, s{sT0}, v{t0}
        v_lshlrev_b32 v{t0}, 2, v{t0}
        v_add_u32 v{self.LV_PO}, {FL_O}, v{t0}
        v_min_u32 v{t0}, 47, v0
        v_mul_u32_u24 v{t1}, 2731, v{t0}
        v_lshrrev_b32 v{t1}, 16, v{t1}
        v_mul_u32_u24 v{t2}, 24, v{t1}
        v_sub_u32 v{t2}, v{t0}, v{t2}
        s_mul_i32 s{sT0}, s{sDt}, 80
        s_lshr_b32 s{sT0}, s{sT0}, 6
        v_add_u32 v{t1}, s{sT0}, v{t1}
        v_lshlrev_b32 v{t1}, 2, v{t1}
        v_lshl_add_u32 v{t1}, v{t2}, 6, v{t1}
        s_and_b32 s{sT0}, s{sWg}, 7
        s_mul_i32 s{sT0}, s{sT0}, 1536
        s_add_u32 s{sT0}, s{sT0}, {FL_G}
        v_add_u32 v{self.LV_PG}, s{sT0}, v{t1}
        s_cmp_eq_u32 s{sLw}, 0
        s_cselect_b32 s{sT0}, 0, {OOB}
        """)
        for r in (self.LV_PLA, self.LV_PLB, self.LV_PKV, self.LV_PO, self.LV_PG):
            a(f"v_add_u32 v{r}, s{sT0}, v{r}")

    def loader_prefetch_consts(self, a):
        t0, t1, t2 = 20, 21, 22
        for t in range(3):
            a(f"""
            v_add_u32 v{t0}, {64 * t}, v0
            v_mul_u32_u24 v{t1}, 2731, v{t0}
            v_lshrrev_b32 v{t1}, 16, v{t1}
            v_mul_u32_u24 v{t2}, 24, v{t1}
            v_sub_u32 v{t2}, v{t0}, v{t2}
            v_lshlrev_b32 v{t2}, 4, v{t2}
            v_mul_u32_u24 v{t1}, 3072, v{t1}
            v_add_u32 v{self.LV_P1 + t}, v{t1}, v{t2}
            """)
        a(f"""
        v_lshrrev_b32 v{t0}, 5, v0
        v_lshlrev_b32 v{t0}, 12, v{t0}
        v_and_b32 v{t1}, 31, v0
        v_lshl_add_u32 v{self.LV_P2}, v{t1}, 4, v{t0}
        """)

    def pf_range(self, a, srd, start, nbytes):
        if not self.o["prefetch"]:
            return 0
        d = self.LV_DUMMY
        share = nbytes // 256
        per_wave = -(-share // 4096)
        a(f"""
        s_mul_i32 s{sT0}, s{sWg}, {share}
        s_mul_i32 s{sT1}, s{sLw}, {per_wave * 1024}
        s_add_u32 s{sT0}, s{sT0}, s{sT1}
        s_add_u32 s{sT0}, s{sT0}, {start}
        """)
        for k in range(per_wave):
            a(f"buffer_load_dwordx4 v[{d}:{d + 3}], v{self.LV_LIN}, s[{srd}:{srd + 3}], s{sT0} offen offset:{(k % 4) * 1024}")
            if k % 4 == 3:
                a(f"s_add_u32 s{sT0}, s{sT0}, 4096")
        return per_wave

    def pf_w1(self, a):
        if not self.o["prefetch"]:
            return 0
        d = self.LV_DUMMY
        a(f"""
        s_lshr_b32 s{sT0}, s{sWg}, 3
        s_lshl_b32 s{sT0}, s{sT0}, 6
        s_lshl_b32 s{sT1}, s{sLw}, 4
        s_add_u32 s{sT0}, s{sT0}, s{sT1}
        s_mul_i32 s{sT0}, s{sT0}, 3072
        s_and_b32 s{sT1}, s{sWg}, 7
        s_mul_i32 s{sT1}, s{sT1}, 384
        s_add_u32 s{sT0}, s{sT0}, s{sT1}
        """)
        for k in range(6):
            if k == 3:
                a(f"s_add_u32 s{sT0}, s{sT0}, {8 * 3072}")
            a(f"buffer_load_dwordx4 v[{d}:{d + 3}], v{self.LV_P1 + k % 3}, s[{sW1}:{sW1 + 3}], s{sT0} offen nt")
        return 6

    def pf_w2(self, a):
        if not self.o["prefetch"]:
            return 0
        d = self.LV_DUMMY
        a(f"""
        s_lshr_b32 s{sT0}, s{sWg}, 3
        s_mul_i32 s{sT0}, s{sT0}, 48
        s_mul_i32 s{sT1}, s{sLw}, 12
        s_add_u32 s{sT0}, s{sT0}, s{sT1}
        s_lshl_b32 s{sT0}, s{sT0}, 12
        s_and_b32 s{sT1}, s{sWg}, 7
        s_lshl_b32 s{sT1}, s{sT1}, 9
        s_add_u32 s{sT0}, s{sT0}, s{sT1}
        """)
        for k in range(6):
            a(f"buffer_load_dwordx4 v[{d}:{d + 3}], v{self.LV_P2}, s[{sW2}:{sW2 + 3}], s{sT0} offen nt")
            a(f"s_add_u32 s{sT0}, s{sT0}, 8192")
        return 6

    def dma(self, a, srd, voff, soff, add, lds_add, dep=False):
        if self.o.get("fakeh") and voff == self.LV_H:
            a(f"""
            s_add_u32 m0, s{sSW}, {lds_add}
            s_add_u32 s{sT0}, s{soff}, {add - WS_H}
            buffer_load_dwordx4 v{voff}, s[{sX}:{sX + 3}], s{sT0} offen lds
            """)
            return
        pol = ("sc1 " if self.o["ldsc1"] else "") if dep else ("nt " if (srd in (sW1, sW2) and self.o["nt"]) else "")
        a(f"""
        s_add_u32 m0, s{sSW}, {lds_add}
        s_add_u32 s{sT0}, s{soff}, {add}
        buffer_load_dwordx4 v{voff}, s[{srd}:{srd + 3}], s{sT0} offen {pol}lds
        """)

    def lds_spin(self, a, word, target):
        ok, sp = a.uid("Llok"), a.uid("Llspin")
        r = self.LV_PR
        a(f"v_mov_b32 v{r + 1}, {SCR_CNT + 4 * word}\ns_mov_b32 s{sT6}, {SPIN_MAX}")
        a.label(sp)
        a(f"""
        ds_read_b32 v{r}, v{r + 1}
        s_waitcnt lgkmcnt(0)
        v_readfirstlane_b32 s{sT0}, v{r}
        s_cmp_ge_u32 s{sT0}, {target}
        s_cbranch_scc1 {ok}
        s_sleep 1
        s_sub_u32 s{sT6}, s{sT6}, 1
        s_cmp_lg_u32 s{sT6}, 0
        s_cbranch_scc1 {sp}
        """)
        a.label(ok)

    LN_RAW, LN_F, LN_OFF = 64, 76, 100

    def ln_loads(self, a):
        raw, off = self.LN_RAW, self.LN_OFF
        a(f"""
        s_lshl_b32 s{sT0}, s{sWg}, 3
        s_lshl_b32 s{sT1}, s{sLw}, 1
        s_add_u32 s{sT0}, s{sT0}, s{sT1}
        v_lshrrev_b32 v{off + 1}, 5, v0
        v_add_u32 v{off + 1}, s{sT0}, v{off + 1}
        v_and_b32 v{off + 2}, 31, v0
        v_lshlrev_b32 v{off + 2}, 3, v{off + 2}
        v_mul_u32_u24 v{off}, 1280, v{off + 1}
        v_add_u32 v{off}, v{off}, v{off + 2}
        """)
        for j in range(5):
            a(f"buffer_load_dwordx2 v[{raw + 2 * j}:{raw + 2 * j + 1}], v{off}, s[{sX}:{sX + 3}], 0 offen offset:{256 * j}")

    def ln_compute(self, a):
        raw, f, off = self.LN_RAW, self.LN_F, self.LN_OFF
        acc, t, sc, keep = 104, 108, 112, 116
        P = lambda r: f"v[{r}:{r + 1}]"

        def unpack():
            for d in range(10):
                a(f"v_lshlrev_b32 v{f + 2 * d}, 16, v{raw + d}\nv_and_b32 v{f + 2 * d + 1}, 0xffff0000, v{raw + d}")

        def stats():
            a(f"v_pk_add_f32 {P(acc)}, {P(f)}, {P(f + 2)}\nv_pk_mul_f32 {P(acc + 2)}, {P(f)}, {P(f)}")
            a(f"v_pk_fma_f32 {P(acc + 2)}, {P(f + 2)}, {P(f + 2)}, {P(acc + 2)}")
            for d in range(2, 10):
                a(f"v_pk_add_f32 {P(acc)}, {P(acc)}, {P(f + 2 * d)}")
                a(f"v_pk_fma_f32 {P(acc + 2)}, {P(f + 2 * d)}, {P(f + 2 * d)}, {P(acc + 2)}")
            a(f"v_add_f32 v{acc}, v{acc}, v{acc + 1}\nv_add_f32 v{acc + 2}, v{acc + 2}, v{acc + 3}\nv_nop")
            for r in (8, 4, 2, 1):
                a(f"v_add_f32_dpp v{acc}, v{acc}, v{acc} row_ror:{r} row_mask:0xf bank_mask:0xf")
                a(f"v_add_f32_dpp v{acc + 2}, v{acc + 2}, v{acc + 2} row_ror:{r} row_mask:0xf bank_mask:0xf")
                a("v_nop")
            a(f"""
            v_mov_b32 v{t}, v{acc}
            v_mov_b32 v{t + 1}, v{acc}
            v_mov_b32 v{t + 2}, v{acc + 2}
            v_mov_b32 v{t + 3}, v{acc + 2}
            v_permlane16_swap_b32 v{t}, v{t + 1}
            v_permlane16_swap_b32 v{t + 2}, v{t + 3}
            v_add_f32 v{acc}, v{t}, v{t + 1}
            v_add_f32 v{acc + 2}, v{t + 2}, v{t + 3}
            v_mul_f32 v{acc}, {f32(1 / 640)}, v{acc}
            v_mov_b32 v{t}, {f32(1e-5)}
            v_fmac_f32 v{t}, {f32(1 / 640)}, v{acc + 2}
            v_fma_f32 v{t}, -v{acc}, v{acc}, v{t}
            v_max_f32 v{t}, {f32(1e-5)}, v{t}
            v_rsq_f32 v{sc}, v{t}
            v_mul_f32 v{sc + 1}, v{acc}, v{sc}
            """)

        def scale_pack():
            for d in range(10):
                a(f"v_pk_fma_f32 {P(f + 2 * d)}, {P(f + 2 * d)}, {P(sc)}, {P(sc)} op_sel:[0,0,1] op_sel_hi:[1,0,1] neg_lo:[0,0,1] neg_hi:[0,0,1]")
            for d in range(10):
                a(f"v_cvt_pk_bf16_f32 v{raw + d}, v{f + 2 * d}, v{f + 2 * d + 1}")

        a("s_waitcnt vmcnt(0)")
        unpack()
        stats()
        a(f"v_mov_b32 v{keep}, v{acc}\nv_mov_b32 v{keep + 1}, v{sc}")
        scale_pack()
        unpack()
        stats()
        scale_pack()
        a(f"v_add_u32 v{off}, {WS_H}, v{off}")
        for j in range(5):
            a(f"buffer_store_dwordx2 v[{raw + 2 * j}:{raw + 2 * j + 1}], v{off}, s[{sWS}:{sWS + 3}], 0 offen offset:{256 * j} sc1")
        a(f"""
        v_lshlrev_b32 v{off + 1}, 3, v{off + 1}
        v_add_u32 v{off + 1}, {WS_STATS}, v{off + 1}
        v_and_b32 v{off + 2}, 31, v0
        v_mov_b32 v{off + 3}, {OOB}
        v_cmp_eq_u32 vcc, 0, v{off + 2}
        v_cndmask_b32 v{off + 1}, v{off + 3}, v{off + 1}, vcc
        buffer_store_dwordx2 v[{keep}:{keep + 1}], v{off + 1}, s[{sWS}:{sWS + 3}], 0 offen sc1
        """)

    def loader_consts_first(self, a):
        X, W, LIN = self.LV_X, self.LV_W, self.LV_LIN
        t0, t1, t2, t3 = 20, 21, 22, 23
        a(f"""
        v_lshrrev_b32 v{t0}, 3, v0
        v_and_b32 v{t1}, 7, v0
        v_lshrrev_b32 v{t2}, 1, v{t0}
        s_and_b32 s{sT0}, s{sLw}, 1
        s_lshl_b32 s{sT0}, s{sT0}, 2
        v_or_b32 v{t3}, s{sT0}, v{t2}
        v_xor_b32 v{t3}, v{t3}, v{t1}
        v_lshlrev_b32 v{t3}, 4, v{t3}
        v_mul_u32_u24 v{X}, 1280, v{t0}
        v_add_u32 v{X}, v{X}, v{t3}
        v_lshlrev_b32 v{LIN}, 4, v0
        v_lshrrev_b32 v{t0}, 4, v0
        v_and_b32 v{t1}, 15, v0
        v_lshlrev_b32 v{t2}, 2, v{t0}
        v_xor_b32 v{t2}, v{t2}, v{t1}
        v_min_u32 v{t2}, 14, v{t2}
        v_mul_u32_u24 v{t3}, 52, v{t2}
        v_lshrrev_b32 v{t3}, 8, v{t3}
        v_mul_u32_u24 v{W}, 5, v{t3}
        v_sub_u32 v{W}, v{t2}, v{W}
        v_lshlrev_b32 v{W}, 4, v{W}
        v_mul_u32_u24 v{t3}, 1280, v{t3}
        v_add_u32 v{W}, v{W}, v{t3}
        v_mul_u32_u24 v{t3}, 3840, v{t0}
        v_add_u32 v{W}, v{W}, v{t3}
        """)

    def xt_issue(self, a):
        a(f"""
        s_lshl_b32 s{sT1}, s{sSt}, 6
        s_lshr_b32 s{sT2}, s{sLw}, 1
        s_lshl_b32 s{sT3}, s{sT2}, 5
        s_add_u32 s{sT1}, s{sT1}, s{sT3}
        s_mul_i32 s{sT1}, s{sT1}, 1280
        s_mul_i32 s{sT3}, s{sDt}, 160
        s_add_u32 s{sT1}, s{sT1}, s{sT3}
        s_mul_i32 s{sT2}, s{sT2}, 5120
        s_add_u32 s{sT2}, s{sT2}, {SCR}
        s_and_b32 s{sT3}, s{sLw}, 1
        """)

        def path(par):
            for t in ((0, 1, 2) if par == 0 else (3, 4, 4)):
                a(f"""
                s_add_u32 m0, s{sT2}, {t * 1024}
                s_nop 0
                buffer_load_dwordx4 v{self.LV_WO + t}, s[{sX}:{sX + 3}], s{sT1} offen lds
                """)
        self.by_scalar(a, sT3, path)

    def loader(self, a):
        W = lambda n: self.wait_bar(a, n)

        def Wchk(n, chk):
            self.stamp(a, 0)
            a(f"s_waitcnt vmcnt({n})")
            self.only_w0(a, chk)
            self.stamp(a, 1)
            a("s_barrier")
            self.stamp(a, 2, bump=True)
        self.loader_consts_first(a)
        a(f"s_mov_b32 s{sSlot}, 0")
        self.q_init(a)
        self.q_issue(a)
        self.nonce_load(a)
        self.loader_consts(a)
        self.loader_poll_addrs(a)
        nW = self.pf_range(a, sW, 0, 640 * 3840)
        self.q_issue(a); self.q_issue(a); self.q_issue(a)
        self.nonce_make(a)
        W(24 + nW)
        n1 = self.pf_range(a, sW1, 0, self.o["w1a"] * 3072)
        W(16 + n1); self.q_issue(a)
        W(16 + n1)

        def ln_done():
            a(f"s_lshl_b32 s{sT4}, s{sWg}, 2\ns_add_u32 s{sT4}, s{sT4}, {FL_LN}")
            self.flag_set(a, sT4)
            a(f"s_mov_b32 s{sArr}, 1\ns_atomic_add s{sArr}, s[22:23], 0x0 glc")
        self.only_w0(a, ln_done)
        self.q_issue(a)
        W(16 + n1); self.q_issue(a)
        W(16); self.q_issue(a)
        W(16); self.q_issue(a)
        W(16)
        self.poll_issue(a, self.LV_PLB, 4)
        self.q_issue(a)
        Wchk(8, lambda: self.poll_check(a, self.LV_PLB, 4))
        self.m_init(a)
        self.m_issue(a)
        W(16); self.m_issue(a)
        W(16)
        self.m_issue(a)
        n1b = self.pf_range(a, sW1, self.o["w1a"] * 3072, (2048 - self.o["w1a"]) * 3072)
        a("s_barrier")
        a("s_barrier")
        self.kv_copy_out(a)

        def ln_all():
            lab = a.uid("Lep")
            a(f"s_waitcnt lgkmcnt(0)\ns_cmp_lg_u32 s{sArr}, 255\ns_cbranch_scc1 {lab}")
            a(f"s_mov_b32 s{sT4}, {WS_EPOCH}")
            self.flag_set(a, sT4)
            a.label(lab)
        Wchk(22 + n1b, ln_all)
        self.m_issue(a)
        W(22 + n1b); self.m_issue(a)
        W(16)

        def kv_done():
            a(f"""
            s_lshl_b32 s{sT4}, s{sP}, 4
            s_add_u32 s{sT4}, s{sT4}, s{sI}
            s_lshl_b32 s{sT4}, s{sT4}, 2
            s_add_u32 s{sT4}, s{sT4}, {FL_KV}
            """)
            self.flag_set(a, sT4)
        self.only_w0(a, kv_done)
        self.m_issue(a)
        self.loop(a, 7, lambda: (W(16), self.m_issue(a)))
        W(16)
        self.poll_issue(a, self.LV_PKV)
        self.m_issue(a)
        W(17); self.m_issue(a)
        W(17); self.m_issue(a)
        Wchk(16, lambda: self.poll_check(a, self.LV_PKV))
        self.kv_init(a)
        self.kv_issue(a, 0, 9)
        W(17)
        self.kv_issue(a, 9, 16)
        W(16)
        self.f_init(a)
        a(f"s_mov_b32 s{sSlot}, 0")
        a("s_barrier")
        W(0)
        self.g_copy_out(a)
        a(f"""
        s_waitcnt vmcnt(0)
        v_mov_b32 v20, {SCR_CNT}
        v_mov_b32 v21, 1
        s_mov_b32 exec_hi, 0
        s_mov_b32 exec_lo, 1
        ds_add_u32 v20, v21
        s_mov_b64 exec, -1
        """)

        def g_pub():
            self.lds_spin(a, 0, 4)
            skip = a.uid("Lgidle")
            a(f"s_cmp_eq_u32 s{sM1On}, 0\ns_cbranch_scc1 {skip}")
            a(f"""
            s_lshl_b32 s{sT4}, s{sFt}, 6
            s_lshl_b32 s{sT5}, s{sDt1}, 2
            s_add_u32 s{sT4}, s{sT4}, s{sT5}
            s_add_u32 s{sT4}, s{sT4}, {FL_G}
            """)
            for r in range(8):
                self.flag_set(a, sT4)
                if r < 7:
                    a(f"s_add_u32 s{sT4}, s{sT4}, 1536")
            a.label(skip)
        self.only_w0(a, g_pub)
        self.pf_range(a, sW2, 0, 1536 * 4096)
        self.pf_range(a, sWO, 0, 640 * 1280)
        self.slot_begin(a)
        self.f_issue_w2(a)
        a(f"s_add_u32 s{sSW}, s{sSW}, {SLOT}")
        self.f_issue_w2(a)

        def g_sync():
            ok, sp = a.uid("Lgok"), a.uid("Lgspin")
            self.spin(a, self.LV_PG, 1, ok, sp, self.o["gsleep"])
            a.label(ok)
            a(f"v_mov_b32 v20, {SCR_CNT + 4}\nv_mov_b32 v21, 1\nds_write_b32 v20, v21")
        self.only_w0(a, g_sync)
        self.lds_spin(a, 1, 1)
        self.slot_begin(a)
        self.f_issue_g(a)
        a(f"s_add_u32 s{sSW}, s{sSW}, {SLOT}")
        self.f_issue_g(a)
        a(f"s_mov_b32 s{sSlot}, {2 * SLOT}")
        W(5)
        self.o_copy_out(a)
        self.f_issue(a); self.f_issue(a)
        W(21)
        self.f_issue(a)
        self.xt_issue(a)
        W(21)

        def o_done():
            a(f"""
            s_lshl_b32 s{sT4}, s{sI}, 4
            s_add_u32 s{sT4}, s{sT4}, s{sP}
            s_lshl_b32 s{sT4}, s{sT4}, 2
            s_add_u32 s{sT4}, s{sT4}, {FL_O}
            """)
            self.flag_set(a, sT4)
        self.only_w0(a, o_done)
        self.f_issue(a)
        W(21); self.f_issue(a)
        W(21); self.f_issue(a)
        W(18); self.f_issue(a)
        W(18)
        self.poll_issue(a, self.LV_PO)
        self.f_issue(a)
        W(19); self.f_issue(a)
        W(19); self.f_issue(a)
        Wchk(18, lambda: self.poll_check(a, self.LV_PO))
        self.wo_init(a)
        self.wo_issue(a)
        self.loop(a, 4, lambda: (W(18), self.wo_issue(a)))
        W(18); W(9); W(0)
        a("s_barrier")

    def m_consts(self, a):
        t0, t1, t2, t3, t4 = 190, 191, 192, 193, 194
        saved = (self.M_ACC,)
        super().m_consts(a)

    def zero(self, a, r0, n):
        for r in reversed(range(r0, r0 + n)):
            a(f"v_mov_b32 v{r}, 0")

    def a_consts(self, a, zero_o=True):
        super().a_consts(a)

    def q_reads(self, ks, b=None):
        base = self.Q_BUF + 16 * ks
        out = []
        for tm in range(2):
            for rd in range(2):
                out.append(f"ds_read_b64_tr_b16 v[{base + 4 * tm + 2 * rd}:{base + 4 * tm + 2 * rd + 1}], v{self.Q_AA + tm} offset:{(16 * ks + 4 * rd) * 256}")
        for tn in range(2):
            out.append(f"ds_read_b128 v[{base + 8 + 4 * tn}:{base + 11 + 4 * tn}], v{self.Q_AB + ks} offset:{tn * 4096}")
        return out

    def q_group(self, ks, wn):
        base = self.Q_BUF + 16 * ks
        cs, on = self.Q_CS, self.Q_ONES
        return self.q_mfmas(ks) + [f"v_mfma_f32_16x16x32_bf16 v[{cs}:{cs + 3}], v[{base + 4 * wn}:{base + 4 * wn + 3}], v[{on}:{on + 3}], v[{cs}:{cs + 3}]"]

    def q_addr(self):
        return ([f"v_add_u32 v{self.Q_AA + tm}, s{sSlot}, v{self.Q_CA + tm}" for tm in range(2)] +
                [f"v_add_u32 v{self.Q_AB + ks}, s{sSlot}, v{self.Q_CB + ks}" for ks in range(4)])

    def q_stage(self, a, wn, first, hook=None, pre=None):
        if pre:
            pre()
        self.cbar(a)
        if hook:
            hook()
        r01 = self.q_reads(0) + self.q_reads(1)
        if first:
            for r in r01:
                a(r)
        else:
            self.spread(a, self.q_group(3, wn), r01)
        a("s_waitcnt lgkmcnt(6)")
        self.spread(a, self.q_group(0, wn), self.q_reads(2))
        a("s_waitcnt lgkmcnt(6)")
        self.spread(a, self.q_group(1, wn), self.q_reads(3))
        self.slot_next(a)
        a("s_waitcnt lgkmcnt(6)")
        self.spread(a, self.q_group(2, wn), self.q_addr())
        a("s_waitcnt lgkmcnt(0)")

    @staticmethod
    def spread(a, mf, other):
        n = len(mf)
        k = 0
        for i, m in enumerate(mf):
            a(m)
            upto = -(-(len(other) * (i + 1)) // n)
            for r in other[k:upto]:
                a(r)
            k = upto

    def q_epilogue(self, a, wm):
        C, AB, T = 136, 168, 176
        ST = self.V_ST
        a(f"""
        v_lshrrev_b32 v{T}, 5, v0
        v_lshlrev_b32 v{T + 1}, 4, v{T}
        v_add_u32 v{T + 1}, {SCR_CS + wm * 256}, v{T + 1}
        """)
        for tm in range(2):
            for q in range(4):
                r = C + 16 * tm + 4 * q
                a(f"ds_read_b128 v[{r}:{r + 3}], v{T + 1} offset:{tm * 128 + q * 32}")
        a(f"""
        s_lshl_b32 s{sT1}, s{sWn}, 6
        v_and_b32 v{T + 2}, 31, v0
        v_add_u32 v{T + 2}, s{sT1}, v{T + 2}
        v_lshlrev_b32 v{T}, 3, v{T}
        v_mul_u32_u24 v{T + 3}, 80, v{T + 2}
        v_add_u32 v{T + 3}, v{T + 3}, v{T}
        v_add_u32 v{T + 3}, {SCR}, v{T + 3}
        v_mul_u32_u24 v{T + 4}, {KVROW}, v{T + 2}
        v_add_u32 v{T + 4}, v{T + 4}, v{T}
        v_add_u32 v{T + 4}, {SLOT}, v{T + 4}
        """)
        for tn in range(2):
            m_, r_ = ST + 2 * tn, ST + 2 * tn + 1
            o = AB + 4 * tn
            a(f"""
            v_mov_b32 v{o}, v{r_}
            v_mul_f32 v{o + 1}, v{m_}, v{r_}
            v_mul_f32 v{o + 2}, {f32(QSCALE)}, v{r_}
            v_mul_f32 v{o + 3}, {f32(QSCALE)}, v{o + 1}
            """)
        a("s_waitcnt lgkmcnt(0)")
        for tn in range(2):
            for tm in range(2):
                acc = self.Q_ACC + 16 * (2 * tm + tn)
                for q in range(4):
                    Q0 = 16 * wm + 8 * tm + 2 * q
                    isq = Q0 < 10
                    o = AB + 4 * tn + (2 if isq else 0)
                    c = C + 16 * tm + 4 * q
                    x = acc + 4 * q
                    if Q0 == 30:
                        a(f"v_mov_b32 v{x}, 0x00003f80\nv_mov_b32 v{x + 1}, 0")
                        a(f"""
                        s_mov_b32 exec_hi, 0
                        ds_write_b64 v{T + 4}, v[{x}:{x + 1}] offset:{tn * 32 * KVROW + 160}
                        s_mov_b64 exec, -1
                        """)
                        continue
                    for hf in range(2):
                        y = x + 2 * hf
                        a(f"v_pk_mul_f32 v[{y}:{y + 1}], v[{y}:{y + 1}], v[{o}:{o + 1}] op_sel_hi:[1,0]")
                        a(f"v_pk_fma_f32 v[{y}:{y + 1}], v[{c + 2 * hf}:{c + 2 * hf + 1}], v[{o}:{o + 1}], v[{y}:{y + 1}] op_sel:[0,1,0] op_sel_hi:[1,1,1] neg_lo:[1,0,0] neg_hi:[1,0,0]")
                    a(f"v_cvt_pk_bf16_f32 v{x}, v{x}, v{x + 1}\nv_cvt_pk_bf16_f32 v{x + 1}, v{x + 2}, v{x + 3}")
                    if isq:
                        a(f"ds_write_b64 v{T + 3}, v[{x}:{x + 1}] offset:{tn * 32 * 80 + Q0 * 8}")
                    else:
                        a(f"ds_write_b64 v{T + 4}, v[{x}:{x + 1}] offset:{tn * 32 * KVROW + (Q0 - 10) * 8}")
        a("s_waitcnt lgkmcnt(0)")

    def kv_copy_out(self, a):
        R, T = 32, 28
        a(f"""
        v_lshlrev_b32 v{T}, 4, v0
        s_lshl_b32 s{sT0}, s{sLw}, 10
        v_add_u32 v{T}, s{sT0}, v{T}
        v_add_u32 v{T + 1}, {SLOT}, v{T}
        s_lshl_b32 s{sT1}, s{sP}, 11
        s_lshl_b32 s{sT2}, s{sI}, 7
        s_add_u32 s{sT1}, s{sT1}, s{sT2}
        s_mul_i32 s{sT1}, s{sT1}, {KVROW}
        s_add_u32 s{sT1}, s{sT1}, {WS_KV}
        v_add_u32 v{T + 2}, s{sT1}, v{T}
        s_cmp_eq_u32 s{sLw}, 0
        s_cselect_b32 s{sT2}, 0, {OOB}
        v_add_u32 v{T + 3}, s{sT2}, v{T + 2}
        """)
        for k in range(6):
            a(f"ds_read_b128 v[{R + 4 * k}:{R + 4 * k + 3}], v{T + 1} offset:{k * 4096}")
        for k in range(6):
            a(f"s_waitcnt lgkmcnt({5 - k})")
            a(f"s_mov_b32 s{sT0}, {k * 4096}")
            a(f"buffer_store_dwordx4 v[{R + 4 * k}:{R + 4 * k + 3}], v{T + (3 if k == 5 else 2)}, s[{sWS}:{sWS + 3}], s{sT0} offen sc1")

    def q_csum_write(self, a):
        t0, t1 = 176, 177
        cs = self.Q_CS
        a(f"""
        v_and_b32 v{t0}, 1, v0
        v_lshlrev_b32 v{t0}, 6, v{t0}
        v_lshrrev_b32 v{t1}, 4, v0
        v_lshl_add_u32 v{t0}, v{t1}, 4, v{t0}
        s_lshl_b32 s{sT0}, s{sWm}, 8
        s_lshl_b32 s{sT1}, s{sWn}, 7
        s_add_u32 s{sT0}, s{sT0}, s{sT1}
        s_add_u32 s{sT0}, s{sT0}, {SCR_CS}
        v_add_u32 v{t0}, s{sT0}, v{t0}
        v_and_b32 v{t1}, 14, v0
        v_cmp_eq_u32 vcc, 0, v{t1}
        s_and_saveexec_b64 s[{sEx}:{sEx + 1}], vcc
        ds_write_b128 v{t0}, v[{cs}:{cs + 3}]
        s_mov_b64 exec, s[{sEx}:{sEx + 1}]
        s_waitcnt lgkmcnt(0)
        """)

    def c_qkv(self, a):
        T = 212
        for c in self.q_addr():
            a(c)

        def stats():
            ST = self.V_ST
            a(f"""
            s_lshl_b32 s{sT0}, s{sI}, 7
            s_lshl_b32 s{sT1}, s{sWn}, 6
            s_add_u32 s{sT0}, s{sT0}, s{sT1}
            v_and_b32 v{T + 1}, 31, v0
            v_add_u32 v{T + 1}, s{sT0}, v{T + 1}
            v_lshlrev_b32 v{T + 1}, 3, v{T + 1}
            v_add_u32 v{T + 1}, {WS_STATS}, v{T + 1}
            buffer_load_dwordx2 v[{ST}:{ST + 1}], v{T + 1}, s[{sWS}:{sWS + 3}], 0 offen sc1
            buffer_load_dwordx2 v[{ST + 2}:{ST + 3}], v{T + 1}, s[{sWS}:{sWS + 3}], 0 offen offset:256 sc1
            """)

        def run(wn):
            self.q_stage(a, wn, True)
            self.mark(a)
            self.q_stage(a, wn, False)
            self.q_stage(a, wn, False, pre=lambda: a("s_waitcnt vmcnt(0)"))
            self.loop(a, 4, lambda: self.q_stage(a, wn, False))
            self.q_stage(a, wn, False, hook=stats)
            self.loop(a, 2, lambda: self.q_stage(a, wn, False))
            for m in self.q_group(3, wn):
                a(m)
        self.by_scalar(a, sWn, run)
        self.mark(a)
        self.q_csum_write(a)
        a("s_barrier")
        a("s_waitcnt vmcnt(0)")
        self.by_scalar(a, sWm, lambda wm: self.q_epilogue(a, wm))
        a("s_barrier")

    def m_addr(self):
        return ([f"v_add_u32 v{self.M_AA + tm}, s{sSlot}, v{self.M_CA + tm}" for tm in range(2)] +
                [f"v_add_u32 v{self.M_AB}, s{sSlot}, v{self.M_CB}"])

    def m_stage(self, a, first, pre=None, hook=None):
        if pre:
            pre()
        self.cbar(a)
        if hook:
            hook()
        r01 = self.m_reads(0) + self.m_reads(1)
        if first:
            for r in r01:
                a(r)
        else:
            self.spread(a, self.m_mfmas(2) + self.m_mfmas(3), r01)
        a("s_waitcnt lgkmcnt(6)")
        self.spread(a, self.m_mfmas(0), self.m_reads(2))
        a("s_waitcnt lgkmcnt(6)")
        self.spread(a, self.m_mfmas(1), self.m_reads(3))
        self.slot_next(a)
        for c in self.m_addr():
            a(c)
        a("s_waitcnt lgkmcnt(0)")

    def m_reduce_write(self, a, kh):
        t = 190
        src = self.M_ACC + 16 * (1 - kh)
        a(f"""
        v_lshlrev_b32 v{t}, 4, v0
        s_lshl_b32 s{sT0}, s{sLw}, 12
        s_add_u32 s{sT0}, s{sT0}, {M_RED}
        v_add_u32 v{t}, s{sT0}, v{t}
        """)
        for q in range(4):
            a(f"ds_write_b128 v{t}, v[{src + 4 * q}:{src + 4 * q + 3}] offset:{q * 1024}")
        a("s_waitcnt lgkmcnt(0)")

    def m_epilogue(self, a, kh):
        t, R, U = 190, 136, 160
        B1 = self.V_B1
        keep = self.M_ACC + 16 * kh
        a(f"""
        v_lshlrev_b32 v{t}, 4, v0
        s_xor_b32 s{sT0}, s{sLw}, 2
        s_lshl_b32 s{sT0}, s{sT0}, 12
        s_add_u32 s{sT0}, s{sT0}, {M_RED}
        v_add_u32 v{t}, s{sT0}, v{t}
        """)
        for q in range(4):
            a(f"ds_read_b128 v[{R + 4 * q}:{R + 4 * q + 3}], v{t} offset:{q * 1024}")
        a(f"""
        s_lshl_b32 s{sT1}, s{sWn}, 5
        v_and_b32 v{U}, 31, v0
        v_add_u32 v{U}, s{sT1}, v{U}
        v_mul_u32_u24 v{U}, {GROW}, v{U}
        v_lshrrev_b32 v{U + 1}, 5, v0
        v_lshl_add_u32 v{U}, v{U + 1}, 3, v{U}
        v_add_u32 v{U}, {SLOT + 64 * kh}, v{U}
        """)
        c0 = -2.0 * math.sqrt(2.0 / math.pi) * math.log2(math.e)
        c1 = c0 * 0.044715
        a(f"v_lshlrev_b32 v{U + 2}, 16, v{B1}\nv_mov_b32 v{U + 3}, {f32(c0)}\ns_mov_b32 s{sT2}, {f32(c1)}")
        a("s_waitcnt lgkmcnt(0)")
        for r in range(16):
            a(f"v_add_f32 v{keep + r}, v{keep + r}, v{R + r}")
        for r in range(16):
            a(f"v_add_f32 v{keep + r}, v{keep + r}, v{U + 2}")
        for r in range(16):
            a(f"v_mul_f32 v{R + r}, v{keep + r}, v{keep + r}")
        for r in range(16):
            a(f"v_fma_f32 v{R + r}, v{R + r}, s{sT2}, v{U + 3}")
        for r in range(16):
            a(f"v_mul_f32 v{R + r}, v{R + r}, v{keep + r}")
        for r in range(16):
            a(f"v_exp_f32 v{R + r}, v{R + r}")
        for r in range(16):
            a(f"v_add_f32 v{R + r}, 1.0, v{R + r}")
        for r in range(16):
            a(f"v_rcp_f32 v{R + r}, v{R + r}")
        for r in range(16):
            a(f"v_mul_f32 v{keep + r}, v{keep + r}, v{R + r}")
        for q in range(4):
            x = keep + 4 * q
            a(f"v_cvt_pk_bf16_f32 v{x}, v{x}, v{x + 1}\nv_cvt_pk_bf16_f32 v{x + 1}, v{x + 2}, v{x + 3}")
            a(f"ds_write_b64 v{U}, v[{x}:{x + 1}] offset:{16 * q}")
        a("s_waitcnt lgkmcnt(0)")

    def g_copy_out(self, a):
        R, T = 40, 28
        a(f"""
        v_lshrrev_b32 v{T}, 3, v0
        s_lshl_b32 s{sT0}, s{sLw}, 4
        v_add_u32 v{T}, s{sT0}, v{T}
        v_and_b32 v{T + 1}, 7, v0
        v_mul_u32_u24 v{T + 2}, {GROW}, v{T}
        v_lshl_add_u32 v{T + 2}, v{T + 1}, 4, v{T + 2}
        v_add_u32 v{T + 2}, {SLOT}, v{T + 2}
        ds_read_b128 v[{R}:{R + 3}], v{T + 2}
        ds_read_b128 v[{R + 4}:{R + 7}], v{T + 2} offset:{8 * GROW}
        s_lshl_b32 s{sT0}, s{sDt1}, 6
        v_lshl_add_u32 v{T + 1}, v{T + 1}, 3, s{sT0}
        v_mul_u32_u24 v{T + 3}, 820, v{T + 1}
        v_lshrrev_b32 v{T + 3}, 16, v{T + 3}
        v_mul_u32_u24 v{T + 4}, 80, v{T + 3}
        v_sub_u32 v{T + 1}, v{T + 1}, v{T + 4}
        v_mul_u32_u24 v{T + 3}, {1536 * 160}, v{T + 3}
        v_lshl_add_u32 v{T + 3}, v{T + 1}, 1, v{T + 3}
        s_lshl_b32 s{sT0}, s{sFt}, 6
        v_add_u32 v{T}, s{sT0}, v{T}
        v_mul_u32_u24 v{T}, 160, v{T}
        v_add_u32 v{T + 3}, v{T + 3}, v{T}
        s_mov_b32 s{sT1}, {WS_GT}
        s_cmp_eq_u32 s{sM1On}, 0
        s_cselect_b32 s{sT0}, {OOB}, s{sT1}
        v_add_u32 v{T + 3}, s{sT0}, v{T + 3}
        s_waitcnt lgkmcnt(0)
        buffer_store_dwordx4 v[{R}:{R + 3}], v{T + 3}, s[{sWS}:{sWS + 3}], 0 offen sc1
        buffer_store_dwordx4 v[{R + 4}:{R + 7}], v{T + 3}, s[{sWS}:{sWS + 3}], 0 offen offset:{8 * 160} sc1
        """)

    def c_mix1(self, a):
        T = 212
        self.zero(a, self.M_ACC, 32)
        a(f"""
        s_lshl_b32 s{sT0}, s{sFt}, 6
        s_lshl_b32 s{sT1}, s{sWn}, 5
        s_add_u32 s{sT0}, s{sT0}, s{sT1}
        v_and_b32 v{T}, 31, v0
        v_add_u32 v{T}, s{sT0}, v{T}
        v_lshlrev_b32 v{T}, 1, v{T}
        buffer_load_ushort v{self.V_B1}, v{T}, s[{sB1}:{sB1 + 3}], 0 offen
        """)
        for c in self.m_addr():
            a(c)
        self.m_stage(a, True)
        self.m_stage(a, False)
        self.m_stage(a, False)
        self.mark(a)
        self.loop(a, 13, lambda: self.m_stage(a, False))
        for m in self.m_mfmas(2) + self.m_mfmas(3):
            a(m)
        self.mark(a)
        self.by_scalar(a, sWm, lambda kh: self.m_reduce_write(a, kh))
        a("s_barrier")
        a("s_waitcnt vmcnt(0)")
        self.by_scalar(a, sWm, lambda kh: self.m_epilogue(a, kh))
        self.a_zero(a)
        self.cbar(a)

    def a_addr_consts(self, a):
        keep = (self.A_O, self.A_K)
        body = Asm()
        B.Gen.a_consts(self, body)
        for it in body.items:
            if it.mn == "v_mov_b32" and it.ops[0][0] == "v":
                r = int(it.ops[0][1:])
                if self.A_O <= r < self.A_O + 32 or self.A_K <= r < self.A_K + 16:
                    continue
            a.items.append(it)

    def a_zero(self, a):
        self.zero(a, self.A_O, 32)
        for hh in range(2):
            for base in (self.A_K, self.A_Q):
                a(f"v_mov_b32 v{base + 8 * hh + 6}, 0\nv_mov_b32 v{base + 8 * hh + 7}, 0")

    def a_qreads(self, a):
        T = self.A_T
        a(f"""
        s_lshl_b32 s{sT0}, s{sLw}, 5
        v_and_b32 v{T}, 31, v0
        v_add_u32 v{T}, s{sT0}, v{T}
        v_mul_u32_u24 v{T}, 80, v{T}
        v_add_u32 v{T}, {SCR}, v{T}
        v_lshrrev_b32 v{T + 1}, 5, v0
        v_lshl_add_u32 v{T + 1}, v{T + 1}, 4, v{T}
        """)
        for hh in range(2):
            q = self.A_Q + 8 * hh
            a(f"""
            ds_read_b64 v[{q}:{q + 1}], v{T + 1} offset:{40 * hh}
            ds_read_b64 v[{q + 2}:{q + 3}], v{T + 1} offset:{40 * hh + 8}
            ds_read_b64 v[{q + 4}:{q + 5}], v{T} offset:{40 * hh + 32}
            """)

    def a_qmask(self, a):
        for hh in range(2):
            q = self.A_Q + 8 * hh
            a(f"""
            s_mov_b32 exec_lo, 0
            v_mov_b32 v{q + 4}, 0
            v_mov_b32 v{q + 5}, 0
            s_mov_b64 exec, -1
            """)

    def kr(self, hh, dt):
        k = self.A_K + 8 * hh
        o = dt * 32 * KVROW + 40 * hh
        return [f"ds_read_b64 v[{k}:{k + 1}], v{self.A_KA} offset:{o}",
                f"ds_read_b64 v[{k + 2}:{k + 3}], v{self.A_KA} offset:{o + 8}",
                f"ds_read_b64 v[{k + 4}:{k + 5}], v{self.A_KA + 1} offset:{o + 32}"]

    def vr(self, hh, dt):
        x = self.A_V + 8 * hh
        return [f"ds_read_b64_tr_b16 v[{x + 4 * aa + 2 * rd}:{x + 4 * aa + 2 * rd + 1}], v{self.A_VA + hh} offset:{(dt * 32 + 16 * aa + 8 * rd) * KVROW}"
                for aa in range(2) for rd in range(2)]

    def a_body(self, a, nxt):
        for hh in range(2):
            self.a_softmax(a, hh)
            a("s_waitcnt lgkmcnt(7)" if nxt or hh == 0 else "s_waitcnt lgkmcnt(0)")
            mf = self.a_pv(hh)
            rd = []
            if nxt:
                mf += self.a_qk(hh, self.A_MD if nxt == "diag" else None)
                rd = self.vr(hh, 1) + self.kr(hh, 2)
                a(mf[0]); a(mf[1])
                for r in rd[:2]:
                    a(r)
                a(mf[2])
                for r in rd[2:4]:
                    a(r)
                a(mf[3])
                for r in rd[4:]:
                    a(r)
            else:
                a(mf[0]); a(mf[1])
        if nxt:
            for r in (self.A_KA, self.A_KA + 1, self.A_VA, self.A_VA + 1):
                a(f"v_add_u32 v{r}, {32 * KVROW}, v{r}")

    def g_publish(self, a):
        lab = a.uid("Lgp")
        T = 208
        a(f"s_cmp_lg_u32 s{sPub}, 0\ns_cbranch_scc1 {lab}")
        a(f"""
        s_mov_b32 s{sPub}, 1
        s_waitcnt vmcnt(0)
        v_mov_b32 v{T}, {SCR_CNT}
        v_mov_b32 v{T + 1}, 1
        s_mov_b32 exec_hi, 0
        s_mov_b32 exec_lo, 1
        ds_add_u32 v{T}, v{T + 1}
        s_mov_b64 exec, -1
        """)
        a.label(lab)

    def attention(self, a):
        T = self.A_T
        a(f"""
        s_mov_b32 s{sPub}, 0
        s_lshl_b32 s{sT0}, s{sI}, 2
        s_add_u32 s{sT0}, s{sT0}, s{sLw}
        s_cmp_ge_u32 s{sT0}, 8
        s_cselect_b32 s{sT0}, 8, s{sT0}
        s_sub_u32 s{sT2}, 8, s{sT0}
        """)
        self.a_skip(a, sT2)
        self.a_qreads(a)
        for hh in range(2):
            for r in self.kr(hh, 0):
                a(r)
        a("s_waitcnt lgkmcnt(0)")
        self.a_qmask(a)
        lf, ld, lq = a.uid("Lqf"), a.uid("Lqd"), a.uid("Lqe")
        a(f"s_cmp_eq_u32 s{sT2}, 0\ns_cbranch_scc1 {lf}")
        a(f"s_cmp_eq_u32 s{sT2}, 8\ns_cbranch_scc1 {ld}")
        for mask, lab in ((None, None), (self.A_MF, lf), (self.A_MD, ld)):
            if lab:
                a.label(lab)
            for hh in range(2):
                for m in self.a_qk(hh, mask):
                    a(m)
            if mask != self.A_MD:
                a(f"s_branch {lq}")
        a.label(lq)
        for hh in range(2):
            for r in self.vr(hh, 0) + self.kr(hh, 1):
                a(r)
        lmid, ldiag, llast = a.uid("Lmid"), a.uid("Ldiag"), a.uid("Llast")
        a(f"s_cmp_eq_u32 s{sT2}, 8\ns_cbranch_scc1 {llast}")
        a(f"s_sub_u32 s{sCnt}, 7, s{sT2}\ns_cmp_eq_u32 s{sCnt}, 0\ns_cbranch_scc1 {ldiag}")
        a.label(lmid)
        self.a_body(a, "mid")
        a(f"s_sub_u32 s{sCnt}, s{sCnt}, 1\ns_cmp_lg_u32 s{sCnt}, 0\ns_cbranch_scc1 {lmid}")
        a.label(ldiag)
        self.a_body(a, "diag")
        a.label(llast)
        self.a_body(a, None)
        lfb, ldone = a.uid("Lfallback"), a.uid("Lnorm")
        self.fallback_labels = (lfb, ldone)
        self.a_rowsum(a)
        a(f"""
        v_mov_b32 v{T + 4}, {f32(2.0 ** -40)}
        v_mov_b32 v{T + 5}, {f32(2.0 ** 40)}
        v_cmp_ge_f32 s[{sT0}:{sT0 + 1}], v{T}, v{T + 4}
        v_cmp_le_f32 s[{sT2}:{sT2 + 1}], v{T}, v{T + 5}
        s_and_b64 s[{sT0}:{sT0 + 1}], s[{sT0}:{sT0 + 1}], s[{sT2}:{sT2 + 1}]
        v_cmp_ge_f32 s[{sT2}:{sT2 + 1}], v{T + 1}, v{T + 4}
        s_and_b64 s[{sT0}:{sT0 + 1}], s[{sT0}:{sT0 + 1}], s[{sT2}:{sT2 + 1}]
        v_cmp_le_f32 s[{sT2}:{sT2 + 1}], v{T + 1}, v{T + 5}
        s_and_b64 s[{sT0}:{sT0 + 1}], s[{sT0}:{sT0 + 1}], s[{sT2}:{sT2 + 1}]
        s_cmp_eq_u64 s[{sT0}:{sT0 + 1}], exec
        s_cbranch_scc0 {lfb}
        """)
        a.label(ldone)
        self.a_store(a)

    def a_store(self, a):
        T = self.A_T
        a(f"""
        v_rcp_f32 v{T + 2}, v{T}
        v_rcp_f32 v{T + 4}, v{T + 1}
        s_lshl_b32 s{sT1}, s{sLw}, 5
        v_and_b32 v{T + 6}, 31, v0
        v_add_u32 v{T + 6}, s{sT1}, v{T + 6}
        v_mul_u32_u24 v{T + 6}, 80, v{T + 6}
        v_add_u32 v{T + 6}, {SCR}, v{T + 6}
        v_lshrrev_b32 v{T + 7}, 5, v0
        v_lshl_add_u32 v{T + 7}, v{T + 7}, 3, v{T + 6}
        """)
        for hh in range(2):
            o = self.A_O + 16 * hh
            rc = T + 2 + 2 * hh
            for g in range(3):
                x = o + 4 * g
                for hf in range(2):
                    a(f"v_pk_mul_f32 v[{x + 2 * hf}:{x + 2 * hf + 1}], v[{x + 2 * hf}:{x + 2 * hf + 1}], v[{rc}:{rc + 1}] op_sel_hi:[1,0]")
                a(f"v_cvt_pk_bf16_f32 v{x}, v{x}, v{x + 1}\nv_cvt_pk_bf16_f32 v{x + 1}, v{x + 2}, v{x + 3}")
                if g < 2:
                    a(f"ds_write_b64 v{T + 7}, v[{x}:{x + 1}] offset:{40 * hh + 16 * g}")
                else:
                    a(f"s_mov_b32 exec_hi, 0\nds_write_b64 v{T + 6}, v[{x}:{x + 1}] offset:{40 * hh + 32}\ns_mov_b64 exec, -1")
        a("s_waitcnt lgkmcnt(0)")

    def o_copy_out(self, a):
        R, T = 40, 28
        a(f"""
        s_lshl_b32 s{sT0}, s{sI}, 7
        s_mul_i32 s{sT0}, s{sT0}, 1280
        s_mul_i32 s{sT1}, s{sP}, 80
        s_add_u32 s{sT0}, s{sT0}, s{sT1}
        s_add_u32 s{sT0}, s{sT0}, {WS_O}
        s_lshl_b32 s{sT1}, s{sLw}, 6
        v_add_u32 v{T}, s{sT1}, v0
        v_lshlrev_b32 v{T + 1}, 4, v{T}
        v_add_u32 v{T + 1}, {SCR}, v{T + 1}
        """)
        for k in range(3):
            a(f"ds_read_b128 v[{R + 4 * k}:{R + 4 * k + 3}], v{T + 1} offset:{k * 4096}")
        for k in range(3):
            a(f"""
            v_add_u32 v{T + 2}, {256 * k}, v{T}
            v_mul_u32_u24 v{T + 3}, 13108, v{T + 2}
            v_lshrrev_b32 v{T + 3}, 16, v{T + 3}
            v_mul_u32_u24 v{T + 4}, 5, v{T + 3}
            v_sub_u32 v{T + 4}, v{T + 2}, v{T + 4}
            v_mul_u32_u24 v{T + 3}, 1280, v{T + 3}
            v_lshl_add_u32 v{T + 3}, v{T + 4}, 4, v{T + 3}
            v_add_u32 v{T + 5 + k}, s{sT0}, v{T + 3}
            """)
        a(f"""
        v_mov_b32 v{T + 2}, {OOB}
        v_add_u32 v{T + 3}, 512, v{T}
        v_cmp_gt_u32 vcc, 640, v{T + 3}
        v_cndmask_b32 v{T + 7}, v{T + 2}, v{T + 7}, vcc
        s_waitcnt lgkmcnt(0)
        """)
        for k in range(3):
            a(f"buffer_store_dwordx4 v[{R + 4 * k}:{R + 4 * k + 3}], v{T + 5 + k}, s[{sWS}:{sWS + 3}], 0 offen sc1")

    def attention_fallback(self, a):
        lfb, ldone = self.fallback_labels
        M = 208
        a.label(lfb)
        self.a_addr_consts(a)
        self.zero(a, self.A_O, 32)
        a(f"""
        s_lshl_b32 s{sT0}, s{sI}, 2
        s_add_u32 s{sT0}, s{sT0}, s{sLw}
        s_cmp_ge_u32 s{sT0}, 8
        s_cselect_b32 s{sT0}, 8, s{sT0}
        s_sub_u32 s{sCnt}, 8, s{sT0}
        v_mov_b32 v{M}, {f32(-3e38)}
        v_mov_b32 v{M + 1}, {f32(-3e38)}
        """)
        self.a_skip(a, sCnt)
        lp, lnf, lnd = a.uid("Lfb"), a.uid("Lfbnf"), a.uid("Lfbnd")
        a.label(lp)
        for hh in range(2):
            for r in self.kr(hh, 0) + self.vr(hh, 0):
                a(r)
        for r in (self.A_KA, self.A_KA + 1, self.A_VA, self.A_VA + 1):
            a(f"v_add_u32 v{r}, {32 * KVROW}, v{r}")
        a("s_waitcnt lgkmcnt(0)")
        for hh in range(2):
            for m in self.a_qk(hh, None):
                a(m)
        a("s_nop 15")
        a(f"s_cmp_lg_u32 s{sCnt}, 0\ns_cbranch_scc1 {lnf}")
        for hh in range(2):
            for r in range(16):
                a(f"v_add_f32 v{self.A_S + 16 * hh + r}, v{self.A_S + 16 * hh + r}, v{self.A_MF + r}")
        a.label(lnf)
        a(f"s_cmp_lg_u32 s{sCnt}, 8\ns_cbranch_scc1 {lnd}")
        for hh in range(2):
            for r in range(16):
                a(f"v_add_f32 v{self.A_S + 16 * hh + r}, v{self.A_S + 16 * hh + r}, v{self.A_MD + r}")
        a.label(lnd)
        for hh in range(2):
            sreg, o = self.A_S + 16 * hh, self.A_O + 16 * hh
            x = M + 2
            a(f"v_max3_f32 v{x}, v{sreg}, v{sreg + 1}, v{M + hh}")
            for r in range(2, 16, 2):
                a(f"v_max3_f32 v{x}, v{sreg + r}, v{sreg + r + 1}, v{x}")
            a(f"""
            v_mov_b32 v{x + 1}, v{x}
            v_mov_b32 v{x + 2}, v{x}
            v_nop
            v_permlane32_swap_b32 v{x + 1}, v{x + 2}
            v_max_f32 v{x}, v{x + 1}, v{x + 2}
            v_sub_f32 v{x + 1}, v{M + hh}, v{x}
            v_exp_f32 v{x + 1}, v{x + 1}
            v_mov_b32 v{M + hh}, v{x}
            """)
            for r in range(16):
                a(f"v_sub_f32 v{sreg + r}, v{sreg + r}, v{x}")
            for r in range(16):
                a(f"v_mul_f32 v{o + r}, v{o + r}, v{x + 1}")
            self.a_softmax(a, hh)
            for m in self.a_pv(hh):
                a(m)
        a(f"s_add_u32 s{sCnt}, s{sCnt}, 1\ns_cmp_le_u32 s{sCnt}, 8\ns_cbranch_scc1 {lp}")
        a("s_nop 15")
        self.a_rowsum(a)
        a(f"s_branch {ldone}")

    def f_addr(self, wo):
        out = [f"v_add_u32 v{self.F_AA}, s{sSlot}, v{self.F_CA}"]
        if wo:
            out += [f"v_add_u32 v{self.F_AO + k}, s{sSlot}, v{self.F_CO + k}" for k in range(4)]
        else:
            out += [f"v_add_u32 v{self.F_AB + tn}, s{sSlot}, v{self.F_CB + tn}" for tn in range(2)]
        return out

    def f_stage(self, a, first, wo, next_wo, pre=None, hook=None):
        if pre:
            pre()
        self.cbar(a)
        if hook:
            hook()
        r0 = self.f_reads(0, wo)
        if first:
            for r in r0:
                a(r)
        else:
            self.spread(a, self.f_mfmas(1), r0)
        a("s_waitcnt lgkmcnt(0)")
        self.spread(a, self.f_mfmas(0), self.f_reads(1, wo))
        self.slot_next(a)
        a("s_waitcnt lgkmcnt(0)")
        for c in self.f_addr(next_wo):
            a(c)

    def f_epilogue(self, a, kh):
        t, R, X, AD = 206, 136, 160, 172
        B2 = self.V_B2
        a(f"""
        v_lshlrev_b32 v{t}, 4, v0
        s_xor_b32 s{sT0}, s{sLw}, 2
        s_mul_i32 s{sT0}, s{sT0}, 5120
        s_add_u32 s{sT0}, s{sT0}, {SLOT}
        v_add_u32 v{t}, s{sT0}, v{t}
        """)
        for tm in range(5):
            a(f"ds_read_b128 v[{R + 4 * tm}:{R + 4 * tm + 3}], v{t} offset:{tm * 1024}")
        a(f"""
        s_lshl_b32 s{sT1}, s{sWn}, 5
        s_add_u32 s{sT1}, s{sT1}, {16 * kh}
        v_and_b32 v{t + 1}, 15, v0
        v_add_u32 v{t + 1}, s{sT1}, v{t + 1}
        v_mul_u32_u24 v{t + 2}, 160, v{t + 1}
        v_lshrrev_b32 v{t + 3}, 4, v0
        v_lshl_add_u32 v{t + 2}, v{t + 3}, 3, v{t + 2}
        v_add_u32 v{t + 2}, {SCR}, v{t + 2}
        """)
        for tm in range(5):
            a(f"ds_read_b64 v[{X + 2 * tm}:{X + 2 * tm + 1}], v{t + 2} offset:{32 * tm}")
        a(f"""
        s_lshl_b32 s{sT0}, s{sSt}, 6
        v_add_u32 v{t + 1}, s{sT0}, v{t + 1}
        v_mul_u32_u24 v{AD}, 1280, v{t + 1}
        s_mul_i32 s{sT0}, s{sDt}, 160
        v_add_u32 v{AD}, s{sT0}, v{AD}
        v_lshl_add_u32 v{AD}, v{t + 3}, 3, v{AD}
        v_lshlrev_b32 v{AD + 1}, 16, v{B2}
        s_waitcnt lgkmcnt(0)
        """)
        for tm in range(5):
            k = self.F_ACC + 4 * (2 * tm + kh)
            r = R + 4 * tm
            for e in range(4):
                a(f"v_add_f32 v{k + e}, v{k + e}, v{r + e}")
            a(f"""
            v_lshlrev_b32 v{r}, 16, v{X + 2 * tm}
            v_and_b32 v{r + 1}, 0xffff0000, v{X + 2 * tm}
            v_lshlrev_b32 v{r + 2}, 16, v{X + 2 * tm + 1}
            v_and_b32 v{r + 3}, 0xffff0000, v{X + 2 * tm + 1}
            """)
            for e in range(4):
                a(f"v_add_f32 v{k + e}, v{k + e}, v{AD + 1}")
            for e in range(4):
                a(f"v_add_f32 v{k + e}, v{k + e}, v{r + e}")
            a(f"v_cvt_pk_bf16_f32 v{k}, v{k}, v{k + 1}\nv_cvt_pk_bf16_f32 v{k + 1}, v{k + 2}, v{k + 3}")
            a(f"buffer_store_dwordx2 v[{k}:{k + 1}], v{AD}, s[{sOUT}:{sOUT + 3}], 0 offen offset:{32 * tm}")

    def c_final(self, a):
        T = 224
        self.zero(a, self.F_ACC, 40)
        a(f"s_mov_b32 s{sSlot}, 0")
        for c in self.f_addr(False):
            a(c)

        def b2_load():
            a(f"""
            s_lshl_b32 s{sT0}, s{sSt}, 6
            s_lshl_b32 s{sT1}, s{sWn}, 5
            s_add_u32 s{sT0}, s{sT0}, s{sT1}
            s_lshl_b32 s{sT1}, s{sWm}, 4
            s_add_u32 s{sT0}, s{sT0}, s{sT1}
            v_and_b32 v{T}, 15, v0
            v_add_u32 v{T}, s{sT0}, v{T}
            v_lshlrev_b32 v{T}, 1, v{T}
            buffer_load_ushort v{self.V_B2}, v{T}, s[{sB2}:{sB2 + 3}], 0 offen
            """)
        self.f_stage(a, True, False, False, hook=b2_load)
        self.f_stage(a, False, False, False)
        self.f_stage(a, False, False, False)
        self.f_stage(a, False, False, False)
        self.mark(a)
        self.loop(a, 7, lambda: self.f_stage(a, False, False, False))
        self.f_stage(a, False, False, True)
        self.mark(a)
        self.loop(a, 5, lambda: self.f_stage(a, False, True, True))
        self.f_tail(a)
        self.mark(a)
        self.by_scalar(a, sWm, lambda kh: self.f_reduce_write(a, kh))
        a("s_barrier")
        a("s_waitcnt vmcnt(0)")
        self.by_scalar(a, sWm, lambda kh: self.f_epilogue(a, kh))

    def strip_zero(self, fn, lo, hi):
        body = Asm()
        fn(body)
        return [it for it in body.items
                if not (it.mn == "v_mov_b32" and it.ops[0][0] == "v" and it.ops[1] == "0" and lo <= int(it.ops[0][1:]) < hi)]

    def consumer(self, a):
        self.mark(a)
        self.ln_loads(a)
        a(f"""
        v_mov_b32 v1, {SCR_CNT}
        v_mov_b32 v2, 0
        v_mov_b32 v3, 0
        ds_write_b64 v1, v[2:3]
        """)
        a.items += self.strip_zero(lambda b: B.Gen.m_consts(self, b), 64, 128)
        a.items += self.strip_zero(lambda b: B.Gen.f_consts(self, b), 64, 128)
        self.a_addr_consts(a)
        a(f"s_mov_b32 s{sSlot}, 0")
        a.items += self.strip_zero(lambda b: B.Gen.q_consts(self, b), 64, 132)
        self.mark(a)
        self.ln_compute(a)
        self.zero(a, self.Q_ACC, 68)
        a("s_waitcnt lgkmcnt(0)")
        self.mark(a)
        self.c_qkv(a)
        self.mark(a)
        self.c_mix1(a)
        self.mark(a)
        self.mark(a)
        self.attention(a)
        self.mark(a)
        self.c_final(a)
        self.mark(a)

    def build(self):
        name = NAME + "_kernel"
        return B_kernel(name, self.split(name, self.consumer, self.loader))


def B_kernel(name, body):
    return f"""; Sliding-window attention + token-mixer MLP + residual, bf16, S=2048 D=640, one persistent launch.
; @launch grid=(256,1,1) block=(512,1,1) lds={LDS_BYTES}
.amdgcn_target "amdgcn-amd-amdhsa--gfx950"
.text
.globl {name}
.p2align 8
.type {name},@function
{name}:
{body}.section .rodata,"a"
.p2align 6
.amdhsa_kernel {name}
  .amdhsa_next_free_vgpr 256
  .amdhsa_next_free_sgpr 102
  .amdhsa_accum_offset 256
  .amdhsa_group_segment_fixed_size 0
  .amdhsa_kernarg_size 88
  .amdhsa_user_sgpr_count 2
  .amdhsa_user_sgpr_kernarg_segment_ptr 1
  .amdhsa_system_sgpr_workgroup_id_x 1
.end_amdhsa_kernel
"""


if __name__ == "__main__":
    mode = sys.argv[1] if len(sys.argv) > 1 else "run"
    path = sys.argv[2] if len(sys.argv) > 2 else f"cdna_kernels/{NAME}.s"
    opts = {}
    for kv in sys.argv[3:]:
        k, val = kv.split("=")
        opts[k] = int(val)
    txt = Fused(diag=(mode == "diag"), opts=opts).build()
    open(path, "w").write(txt)
    print("wrote", path, len(txt), "bytes")
```

```python
import math
import sys

sys.path.insert(0, "tools")
from asmlib import Asm
from gen_base import *
import gen_base as B

OOB = 0x7ff00000
SPIN_MAX = 100000
FL_LN, FL_KV, FL_O, FL_G = 0x1000, 0x1400, 0x1800, 0x8000
SCR_CNT = SCR + 10752
SCR_CS = SCR + 10240
M_RED = 16384
GROW = 144
sPub, sT6 = 79, 85
sKcA, sKcB, sKt, sRq, sRm, sRf, sRw = 9, 10, 11, 12, 13, 14, 15
sArr, sNon2 = 4, 5


class Fused(Gen):
    A_MF, A_MD, A_KA, A_VA = 2, 18, 34, 36
    F_CA, F_CB, F_CO = 38, 39, 41
    M_CA, M_CB = 45, 47
    V_ST, V_B1, V_B2, V_ARR, V_POLL = 48, 52, 53, 54, 56
    V_DUMMY = 228
    Q_ACC, Q_CS, Q_ONES, Q_BUF, Q_CA, Q_CB, Q_AA, Q_AB = 64, 128, 132, 136, 200, 202, 206, 208
    M_ACC, M_BUF, M_AA, M_AB = 64, 136, 206, 208
    A_Q, A_K, A_V, A_S, A_P, A_O, A_T = 64, 80, 96, 112, 144, 160, 192
    F_ACC, F_BUF, F_AA, F_AB, F_AO = 64, 136, 199, 200, 202

    def __init__(self, diag=False, opts=None):
        super().__init__(fused=True, diag=diag)
        self.o = dict(prefetch=1, nt=0, gsleep=4, ldsc1=1, xmap=0, light=0, w1a=1024, rot=1)
        self.o.update(opts or {})

    def stamp(self, a, k, bump=False):
        if not self.o["light"]:
            super().stamp(a, k, bump)

    def diag_dump(self, a, kidx):
        wg = self.o.get("dbgout")
        if wg is None:
            return super().diag_dump(a, kidx)
        lab = a.uid("Ldbg")
        a(f"""
        s_cmp_lg_u32 s{sWg}, {wg}
        s_cbranch_scc1 {lab}
        s_cmp_lg_u32 s{sWv}, 0
        s_cbranch_scc1 {lab}
        v_readlane_b32 s{sT0}, v{self.DV + 1}, 0
        v_lshlrev_b32 v1, 2, v0
        v_mov_b32 v3, {OOB}
        v_subrev_u32 v2, s{sT0}, v{self.DV + 1}
        v_cmp_gt_u32 vcc, 16, v0
        v_cndmask_b32 v1, v3, v1, vcc
        v_cmp_eq_u32 vcc, 0, v0
        v_cndmask_b32 v1, v1, v3, vcc
        buffer_store_dword v2, v1, s[{sDBG}:{sDBG + 3}], 0 offen
        """)
        a.label(lab)

    def mark(self, a):
        if self.diag and self.o["light"]:
            B.Gen.stamp(self, a, 1, True)

    def prologue(self, a, lab):
        super().prologue(a, lab)
        self.rot_consts(a)
        if not self.o["xmap"]:
            return
        a(f"""
        s_and_b32 s{sT0}, s{sWg}, 7
        s_lshr_b32 s{sT1}, s{sWg}, 3
        s_lshl_b32 s{sSt}, s{sT0}, 2
        s_and_b32 s{sT2}, s{sT1}, 3
        s_add_u32 s{sSt}, s{sSt}, s{sT2}
        s_lshr_b32 s{sDt}, s{sT1}, 2
        s_cmp_lt_u32 s{sT1}, 30
        s_cselect_b32 s{sT2}, 0, 30
        s_sub_u32 s{sT1}, s{sT1}, s{sT2}
        s_mul_i32 s{sT2}, s{sT1}, 26
        s_lshr_b32 s{sT2}, s{sT2}, 8
        s_mul_i32 s{sT3}, s{sT2}, 10
        s_sub_u32 s{sDt1}, s{sT1}, s{sT3}
        s_mul_i32 s{sFt}, s{sT0}, 3
        s_add_u32 s{sFt}, s{sFt}, s{sT2}
        """)

    def smod(self, a, r, n, times):
        for _ in range(times):
            a(f"s_cmp_ge_u32 s{r}, {n}\ns_cselect_b32 s{sT5}, {n}, 0\ns_sub_u32 s{r}, s{r}, s{sT5}")

    def rot_consts(self, a):
        if not self.o["rot"]:
            for r in (sRq, sRm, sRf, sRw):
                a(f"s_mov_b32 s{r}, 0")
            return
        a(f"""
        s_lshr_b32 s{sT0}, s{sWg}, 3
        s_and_b32 s{sT1}, s{sT0}, 7
        s_lshr_b32 s{sT2}, s{sT0}, 3
        s_mul_i32 s{sT3}, s{sT2}, 3
        s_add_u32 s{sRq}, s{sT1}, s{sT3}
        s_mul_i32 s{sRf}, s{sT1}, 5
        s_add_u32 s{sRf}, s{sRf}, s{sT3}
        s_lshl_b32 s{sRw}, s{sT2}, 1
        s_add_u32 s{sRw}, s{sRw}, s{sT1}
        s_mul_i32 s{sRm}, s{sFt}, 3
        s_mul_i32 s{sT3}, s{sDt1}, 5
        s_add_u32 s{sRm}, s{sRm}, s{sT3}
        s_and_b32 s{sRm}, s{sRm}, 7
        """)
        self.smod(a, sRq, 10, 1)
        self.smod(a, sRf, 12, 3)
        self.smod(a, sRw, 5, 2)

    def wrap(self, a, kc, n, offs):
        a(f"s_add_u32 s{kc}, s{kc}, 1\ns_cmp_eq_u32 s{kc}, {n}\ns_cselect_b32 s{kc}, 0, s{kc}")
        for k, (reg, step) in enumerate(offs):
            a(f"s_cselect_b32 s{sT1 + k}, {n * step}, 0")
        for k, (reg, step) in enumerate(offs):
            a(f"s_sub_u32 s{reg}, s{reg}, s{sT1 + k}")

    def q_init(self, a):
        super().q_init(a)
        a(f"""
        s_mov_b32 s{sKcA}, s{sRq}
        s_lshl_b32 s{sT0}, s{sRq}, 7
        s_add_u32 s{sOffA}, s{sOffA}, s{sT0}
        s_mul_i32 s{sT0}, s{sRq}, {64 * 3840}
        s_add_u32 s{sOffB}, s{sOffB}, s{sT0}
        """)

    def q_issue(self, a):
        super().q_issue(a)
        self.wrap(a, sKcA, 10, [(sOffA, 128), (sOffB, 64 * 3840)])

    def m_init(self, a):
        super().m_init(a)
        a(f"""
        s_mov_b32 s{sKcA}, s{sRm}
        s_mov_b32 s{sKt}, 0
        s_mul_i32 s{sT0}, s{sRm}, {128 * 1280}
        s_add_u32 s{sOffA}, s{sOffA}, s{sT0}
        s_mul_i32 s{sT0}, s{sRm}, {128 * 3072}
        s_add_u32 s{sOffB}, s{sOffB}, s{sT0}
        """)

    def m_issue(self, a):
        super().m_issue(a)
        self.wrap(a, sKcA, 8, [(sOffA, 128 * 1280), (sOffB, 128 * 3072)])
        a(f"s_add_u32 s{sKt}, s{sKt}, 1\ns_cmp_eq_u32 s{sKt}, 8")
        a(f"""
        s_cselect_b32 s{sT1}, {8 * 128 * 1280}, 0
        s_cselect_b32 s{sT2}, {8 * 128 * 3072}, 0
        s_add_u32 s{sOffA}, s{sOffA}, s{sT1}
        s_add_u32 s{sOffB}, s{sOffB}, s{sT2}
        """)

    def f_init(self, a):
        super().f_init(a)
        a(f"""
        s_mov_b32 s{sKcA}, s{sRf}
        s_mov_b32 s{sKcB}, s{sRf}
        s_mul_i32 s{sT0}, s{sRf}, {128 * 160}
        s_add_u32 s{sOffA}, s{sOffA}, s{sT0}
        s_mul_i32 s{sT0}, s{sRf}, {128 * 4096}
        s_add_u32 s{sOffB}, s{sOffB}, s{sT0}
        """)

    def f_issue_w2(self, a):
        super().f_issue_w2(a)
        self.wrap(a, sKcB, 12, [(sOffB, 128 * 4096)])

    def f_issue_g(self, a):
        super().f_issue_g(a)
        self.wrap(a, sKcA, 12, [(sOffA, 128 * 160)])

    def wo_init(self, a):
        super().wo_init(a)
        a(f"""
        s_mov_b32 s{sKcA}, s{sRw}
        s_mul_i32 s{sT0}, s{sRw}, {128 * 1280}
        s_add_u32 s{sOffA}, s{sOffA}, s{sT0}
        s_lshl_b32 s{sT0}, s{sRw}, 8
        s_add_u32 s{sOffB}, s{sOffB}, s{sT0}
        """)

    def wo_issue(self, a):
        super().wo_issue(a)
        self.wrap(a, sKcA, 5, [(sOffA, 128 * 1280), (sOffB, 256)])

    def only_w0(self, a, fn):
        lab = a.uid("Lw0")
        a(f"s_cmp_lg_u32 s{sLw}, 0\ns_cbranch_scc1 {lab}")
        fn()
        a.label(lab)

    def nonce_load(self, a):
        a(f"s_load_dword s{sNonce}, s[24:25], {WS_EPOCH}")

    def nonce_make(self, a):
        a(f"""
        s_waitcnt lgkmcnt(0)
        s_mul_i32 s{sNonce}, s{sNonce}, 1664525
        s_add_u32 s{sNonce}, s{sNonce}, 1013904223
        """)

    def flag_set(self, a, off):
        a(f"s_atomic_swap s{sNonce}, s[24:25], s{off}")

    def poll_issue(self, a, vaddr, n=1):
        r = self.LV_PR
        if n == 1:
            a(f"buffer_load_dword v{r}, v{vaddr}, s[{sWS}:{sWS + 3}], 0 offen sc1")
        else:
            a(f"buffer_load_dwordx4 v[{r}:{r + 3}], v{vaddr}, s[{sWS}:{sWS + 3}], 0 offen sc1")

    def poll_test(self, a, n):
        r = self.LV_PR
        a(f"v_cmp_eq_u32 s[{sT0}:{sT0 + 1}], s{sNonce}, v{r}")
        for k in range(1, n):
            a(f"v_cmp_eq_u32 s[{sT2}:{sT2 + 1}], s{sNonce}, v{r + k}")
            a(f"s_and_b64 s[{sT0}:{sT0 + 1}], s[{sT0}:{sT0 + 1}], s[{sT2}:{sT2 + 1}]")
        a(f"s_cmp_eq_u64 s[{sT0}:{sT0 + 1}], exec")

    def poll_check(self, a, vaddr, n=1, sleep=8):
        ok, sp = a.uid("Lpok"), a.uid("Lspin")
        self.poll_test(a, n)
        a(f"s_cbranch_scc1 {ok}")
        self.spin(a, vaddr, n, ok, sp, sleep)
        a.label(ok)

    def spin(self, a, vaddr, n, ok, sp, sleep):
        a(f"s_mov_b32 s{sT6}, {SPIN_MAX}")
        a.label(sp)
        a(f"s_sleep {sleep}")
        self.poll_issue(a, vaddr, n)
        a("s_waitcnt vmcnt(0)")
        self.poll_test(a, n)
        a(f"s_cbranch_scc1 {ok}")
        a(f"s_sub_u32 s{sT6}, s{sT6}, 1\ns_cmp_lg_u32 s{sT6}, 0\ns_cbranch_scc1 {sp}")

    LV_PLA, LV_PKV, LV_PG, LV_PO, LV_PLB, LV_PR = 14, 15, 16, 17, 18, 24
    LV_P1, LV_P2, LV_DUMMY = 100, 103, 96

    def loader_poll_addrs(self, a):
        t0, t1, t2, t3 = 20, 21, 22, 23
        a(f"""
        v_lshrrev_b32 v{t0}, 4, v0
        v_mov_b32 v{t1}, s{sI}
        v_cmp_eq_u32 vcc, 3, v{t0}
        v_cndmask_b32 v{t0}, v{t0}, v{t1}, vcc
        v_lshlrev_b32 v{t0}, 6, v{t0}
        v_and_b32 v{t1}, 15, v0
        v_lshl_add_u32 v{t0}, v{t1}, 2, v{t0}
        v_add_u32 v{self.LV_PLA}, {FL_LN}, v{t0}
        v_lshlrev_b32 v{t0}, 4, v0
        v_add_u32 v{self.LV_PLB}, {FL_LN}, v{t0}
        v_min_u32 v{t0}, 2, v0
        v_sub_u32 v{t0}, s{sI}, v{t0}
        v_max_i32 v{t0}, 0, v{t0}
        s_lshl_b32 s{sT0}, s{sP}, 4
        v_add_u32 v{t0}, s{sT0}, v{t0}
        v_lshlrev_b32 v{t0}, 2, v{t0}
        v_add_u32 v{self.LV_PKV}, {FL_KV}, v{t0}
        v_and_b32 v{t0}, 15, v0
        s_lshr_b32 s{sT0}, s{sSt}, 1
        s_lshl_b32 s{sT0}, s{sT0}, 4
        v_add_u32 v{t0}, s{sT0}, v{t0}
        v_lshlrev_b32 v{t0}, 2, v{t0}
        v_add_u32 v{self.LV_PO}, {FL_O}, v{t0}
        v_min_u32 v{t0}, 47, v0
        v_mul_u32_u24 v{t1}, 2731, v{t0}
        v_lshrrev_b32 v{t1}, 16, v{t1}
        v_mul_u32_u24 v{t2}, 24, v{t1}
        v_sub_u32 v{t2}, v{t0}, v{t2}
        s_mul_i32 s{sT0}, s{sDt}, 80
        s_lshr_b32 s{sT0}, s{sT0}, 6
        v_add_u32 v{t1}, s{sT0}, v{t1}
        v_lshlrev_b32 v{t1}, 2, v{t1}
        v_lshl_add_u32 v{t1}, v{t2}, 6, v{t1}
        s_and_b32 s{sT0}, s{sWg}, 7
        s_mul_i32 s{sT0}, s{sT0}, 1536
        s_add_u32 s{sT0}, s{sT0}, {FL_G}
        v_add_u32 v{self.LV_PG}, s{sT0}, v{t1}
        s_cmp_eq_u32 s{sLw}, 0
        s_cselect_b32 s{sT0}, 0, {OOB}
        """)
        for r in (self.LV_PLA, self.LV_PLB, self.LV_PKV, self.LV_PO, self.LV_PG):
            a(f"v_add_u32 v{r}, s{sT0}, v{r}")

    def loader_prefetch_consts(self, a):
        t0, t1, t2 = 20, 21, 22
        for t in range(3):
            a(f"""
            v_add_u32 v{t0}, {64 * t}, v0
            v_mul_u32_u24 v{t1}, 2731, v{t0}
            v_lshrrev_b32 v{t1}, 16, v{t1}
            v_mul_u32_u24 v{t2}, 24, v{t1}
            v_sub_u32 v{t2}, v{t0}, v{t2}
            v_lshlrev_b32 v{t2}, 4, v{t2}
            v_mul_u32_u24 v{t1}, 3072, v{t1}
            v_add_u32 v{self.LV_P1 + t}, v{t1}, v{t2}
            """)
        a(f"""
        v_lshrrev_b32 v{t0}, 5, v0
        v_lshlrev_b32 v{t0}, 12, v{t0}
        v_and_b32 v{t1}, 31, v0
        v_lshl_add_u32 v{self.LV_P2}, v{t1}, 4, v{t0}
        """)

    def pf_range(self, a, srd, start, nbytes):
        if not self.o["prefetch"]:
            return 0
        d = self.LV_DUMMY
        share = nbytes // 256
        per_wave = -(-share // 4096)
        a(f"""
        s_mul_i32 s{sT0}, s{sWg}, {share}
        s_mul_i32 s{sT1}, s{sLw}, {per_wave * 1024}
        s_add_u32 s{sT0}, s{sT0}, s{sT1}
        s_add_u32 s{sT0}, s{sT0}, {start}
        """)
        for k in range(per_wave):
            a(f"buffer_load_dwordx4 v[{d}:{d + 3}], v{self.LV_LIN}, s[{srd}:{srd + 3}], s{sT0} offen offset:{(k % 4) * 1024}")
            if k % 4 == 3:
                a(f"s_add_u32 s{sT0}, s{sT0}, 4096")
        return per_wave

    def pf_w1(self, a):
        if not self.o["prefetch"]:
            return 0
        d = self.LV_DUMMY
        a(f"""
        s_lshr_b32 s{sT0}, s{sWg}, 3
        s_lshl_b32 s{sT0}, s{sT0}, 6
        s_lshl_b32 s{sT1}, s{sLw}, 4
        s_add_u32 s{sT0}, s{sT0}, s{sT1}
        s_mul_i32 s{sT0}, s{sT0}, 3072
        s_and_b32 s{sT1}, s{sWg}, 7
        s_mul_i32 s{sT1}, s{sT1}, 384
        s_add_u32 s{sT0}, s{sT0}, s{sT1}
        """)
        for k in range(6):
            if k == 3:
                a(f"s_add_u32 s{sT0}, s{sT0}, {8 * 3072}")
            a(f"buffer_load_dwordx4 v[{d}:{d + 3}], v{self.LV_P1 + k % 3}, s[{sW1}:{sW1 + 3}], s{sT0} offen nt")
        return 6

    def pf_w2(self, a):
        if not self.o["prefetch"]:
            return 0
        d = self.LV_DUMMY
        a(f"""
        s_lshr_b32 s{sT0}, s{sWg}, 3
        s_mul_i32 s{sT0}, s{sT0}, 48
        s_mul_i32 s{sT1}, s{sLw}, 12
        s_add_u32 s{sT0}, s{sT0}, s{sT1}
        s_lshl_b32 s{sT0}, s{sT0}, 12
        s_and_b32 s{sT1}, s{sWg}, 7
        s_lshl_b32 s{sT1}, s{sT1}, 9
        s_add_u32 s{sT0}, s{sT0}, s{sT1}
        """)
        for k in range(6):
            a(f"buffer_load_dwordx4 v[{d}:{d + 3}], v{self.LV_P2}, s[{sW2}:{sW2 + 3}], s{sT0} offen nt")
            a(f"s_add_u32 s{sT0}, s{sT0}, 8192")
        return 6

    def dma(self, a, srd, voff, soff, add, lds_add, dep=False):
        if self.o.get("fakeh") and voff == self.LV_H:
            a(f"""
            s_add_u32 m0, s{sSW}, {lds_add}
            s_add_u32 s{sT0}, s{soff}, {add - WS_H}
            buffer_load_dwordx4 v{voff}, s[{sX}:{sX + 3}], s{sT0} offen lds
            """)
            return
        pol = ("sc1 " if self.o["ldsc1"] else "") if dep else ("nt " if (srd in (sW1, sW2) and self.o["nt"]) else "")
        a(f"""
        s_add_u32 m0, s{sSW}, {lds_add}
        s_add_u32 s{sT0}, s{soff}, {add}
        buffer_load_dwordx4 v{voff}, s[{srd}:{srd + 3}], s{sT0} offen {pol}lds
        """)

    def lds_spin(self, a, word, target):
        ok, sp = a.uid("Llok"), a.uid("Llspin")
        r = self.LV_PR
        a(f"v_mov_b32 v{r + 1}, {SCR_CNT + 4 * word}\ns_mov_b32 s{sT6}, {SPIN_MAX}")
        a.label(sp)
        a(f"""
        ds_read_b32 v{r}, v{r + 1}
        s_waitcnt lgkmcnt(0)
        v_readfirstlane_b32 s{sT0}, v{r}
        s_cmp_ge_u32 s{sT0}, {target}
        s_cbranch_scc1 {ok}
        s_sleep 1
        s_sub_u32 s{sT6}, s{sT6}, 1
        s_cmp_lg_u32 s{sT6}, 0
        s_cbranch_scc1 {sp}
        """)
        a.label(ok)

    LN_RAW, LN_F, LN_OFF = 64, 76, 100

    def ln_loads(self, a):
        raw, off = self.LN_RAW, self.LN_OFF
        a(f"""
        s_lshl_b32 s{sT0}, s{sWg}, 3
        s_lshl_b32 s{sT1}, s{sLw}, 1
        s_add_u32 s{sT0}, s{sT0}, s{sT1}
        v_lshrrev_b32 v{off + 1}, 5, v0
        v_add_u32 v{off + 1}, s{sT0}, v{off + 1}
        v_and_b32 v{off + 2}, 31, v0
        v_lshlrev_b32 v{off + 2}, 3, v{off + 2}
        v_mul_u32_u24 v{off}, 1280, v{off + 1}
        v_add_u32 v{off}, v{off}, v{off + 2}
        """)
        for j in range(5):
            a(f"buffer_load_dwordx2 v[{raw + 2 * j}:{raw + 2 * j + 1}], v{off}, s[{sX}:{sX + 3}], 0 offen offset:{256 * j}")

    def ln_compute(self, a):
        raw, f, off = self.LN_RAW, self.LN_F, self.LN_OFF
        acc, t, sc, keep = 104, 108, 112, 116
        P = lambda r: f"v[{r}:{r + 1}]"

        def unpack():
            for d in range(10):
                a(f"v_lshlrev_b32 v{f + 2 * d}, 16, v{raw + d}\nv_and_b32 v{f + 2 * d + 1}, 0xffff0000, v{raw + d}")

        def stats():
            a(f"v_pk_add_f32 {P(acc)}, {P(f)}, {P(f + 2)}\nv_pk_mul_f32 {P(acc + 2)}, {P(f)}, {P(f)}")
            a(f"v_pk_fma_f32 {P(acc + 2)}, {P(f + 2)}, {P(f + 2)}, {P(acc + 2)}")
            for d in range(2, 10):
                a(f"v_pk_add_f32 {P(acc)}, {P(acc)}, {P(f + 2 * d)}")
                a(f"v_pk_fma_f32 {P(acc + 2)}, {P(f + 2 * d)}, {P(f + 2 * d)}, {P(acc + 2)}")
            a(f"v_add_f32 v{acc}, v{acc}, v{acc + 1}\nv_add_f32 v{acc + 2}, v{acc + 2}, v{acc + 3}\nv_nop")
            for r in (8, 4, 2, 1):
                a(f"v_add_f32_dpp v{acc}, v{acc}, v{acc} row_ror:{r} row_mask:0xf bank_mask:0xf")
                a(f"v_add_f32_dpp v{acc + 2}, v{acc + 2}, v{acc + 2} row_ror:{r} row_mask:0xf bank_mask:0xf")
                a("v_nop")
            a(f"""
            v_mov_b32 v{t}, v{acc}
            v_mov_b32 v{t + 1}, v{acc}
            v_mov_b32 v{t + 2}, v{acc + 2}
            v_mov_b32 v{t + 3}, v{acc + 2}
            v_permlane16_swap_b32 v{t}, v{t + 1}
            v_permlane16_swap_b32 v{t + 2}, v{t + 3}
            v_add_f32 v{acc}, v{t}, v{t + 1}
            v_add_f32 v{acc + 2}, v{t + 2}, v{t + 3}
            v_mul_f32 v{acc}, {f32(1 / 640)}, v{acc}
            v_mov_b32 v{t}, {f32(1e-5)}
            v_fmac_f32 v{t}, {f32(1 / 640)}, v{acc + 2}
            v_fma_f32 v{t}, -v{acc}, v{acc}, v{t}
            v_max_f32 v{t}, {f32(1e-5)}, v{t}
            v_rsq_f32 v{sc}, v{t}
            v_mul_f32 v{sc + 1}, v{acc}, v{sc}
            """)

        def scale_pack():
            for d in range(10):
                a(f"v_pk_fma_f32 {P(f + 2 * d)}, {P(f + 2 * d)}, {P(sc)}, {P(sc)} op_sel:[0,0,1] op_sel_hi:[1,0,1] neg_lo:[0,0,1] neg_hi:[0,0,1]")
            for d in range(10):
                a(f"v_cvt_pk_bf16_f32 v{raw + d}, v{f + 2 * d}, v{f + 2 * d + 1}")

        a("s_waitcnt vmcnt(0)")
        unpack()
        stats()
        a(f"v_mov_b32 v{keep}, v{acc}\nv_mov_b32 v{keep + 1}, v{sc}")
        scale_pack()
        unpack()
        stats()
        scale_pack()
        a(f"v_add_u32 v{off}, {WS_H}, v{off}")
        for j in range(5):
            a(f"buffer_store_dwordx2 v[{raw + 2 * j}:{raw + 2 * j + 1}], v{off}, s[{sWS}:{sWS + 3}], 0 offen offset:{256 * j} sc1")
        a(f"""
        v_lshlrev_b32 v{off + 1}, 3, v{off + 1}
        v_add_u32 v{off + 1}, {WS_STATS}, v{off + 1}
        v_and_b32 v{off + 2}, 31, v0
        v_mov_b32 v{off + 3}, {OOB}
        v_cmp_eq_u32 vcc, 0, v{off + 2}
        v_cndmask_b32 v{off + 1}, v{off + 3}, v{off + 1}, vcc
        buffer_store_dwordx2 v[{keep}:{keep + 1}], v{off + 1}, s[{sWS}:{sWS + 3}], 0 offen sc1
        """)

    def loader_consts_first(self, a):
        X, W, LIN = self.LV_X, self.LV_W, self.LV_LIN
        t0, t1, t2, t3 = 20, 21, 22, 23
        a(f"""
        v_lshrrev_b32 v{t0}, 3, v0
        v_and_b32 v{t1}, 7, v0
        v_lshrrev_b32 v{t2}, 1, v{t0}
        s_and_b32 s{sT0}, s{sLw}, 1
        s_lshl_b32 s{sT0}, s{sT0}, 2
        v_or_b32 v{t3}, s{sT0}, v{t2}
        v_xor_b32 v{t3}, v{t3}, v{t1}
        v_lshlrev_b32 v{t3}, 4, v{t3}
        v_mul_u32_u24 v{X}, 1280, v{t0}
        v_add_u32 v{X}, v{X}, v{t3}
        v_lshlrev_b32 v{LIN}, 4, v0
        v_lshrrev_b32 v{t0}, 4, v0
        v_and_b32 v{t1}, 15, v0
        v_lshlrev_b32 v{t2}, 2, v{t0}
        v_xor_b32 v{t2}, v{t2}, v{t1}
        v_min_u32 v{t2}, 14, v{t2}
        v_mul_u32_u24 v{t3}, 52, v{t2}
        v_lshrrev_b32 v{t3}, 8, v{t3}
        v_mul_u32_u24 v{W}, 5, v{t3}
        v_sub_u32 v{W}, v{t2}, v{W}
        v_lshlrev_b32 v{W}, 4, v{W}
        v_mul_u32_u24 v{t3}, 1280, v{t3}
        v_add_u32 v{W}, v{W}, v{t3}
        v_mul_u32_u24 v{t3}, 3840, v{t0}
        v_add_u32 v{W}, v{W}, v{t3}
        """)

    def xt_issue(self, a):
        a(f"""
        s_lshl_b32 s{sT1}, s{sSt}, 6
        s_lshr_b32 s{sT2}, s{sLw}, 1
        s_lshl_b32 s{sT3}, s{sT2}, 5
        s_add_u32 s{sT1}, s{sT1}, s{sT3}
        s_mul_i32 s{sT1}, s{sT1}, 1280
        s_mul_i32 s{sT3}, s{sDt}, 160
        s_add_u32 s{sT1}, s{sT1}, s{sT3}
        s_mul_i32 s{sT2}, s{sT2}, 5120
        s_add_u32 s{sT2}, s{sT2}, {SCR}
        s_and_b32 s{sT3}, s{sLw}, 1
        """)

        def path(par):
            for t in ((0, 1, 2) if par == 0 else (3, 4, 4)):
                a(f"""
                s_add_u32 m0, s{sT2}, {t * 1024}
                s_nop 0
                buffer_load_dwordx4 v{self.LV_WO + t}, s[{sX}:{sX + 3}], s{sT1} offen lds
                """)
        self.by_scalar(a, sT3, path)

    def loader(self, a):
        W = lambda n: self.wait_bar(a, n)

        def Wchk(n, chk):
            self.stamp(a, 0)
            a(f"s_waitcnt vmcnt({n})")
            self.only_w0(a, chk)
            self.stamp(a, 1)
            a("s_barrier")
            self.stamp(a, 2, bump=True)
        self.loader_consts_first(a)
        a(f"s_mov_b32 s{sSlot}, 0")
        self.q_init(a)
        self.q_issue(a)
        self.nonce_load(a)
        self.loader_consts(a)
        self.loader_poll_addrs(a)
        nW = self.pf_range(a, sW, 0, 640 * 3840)
        self.q_issue(a); self.q_issue(a); self.q_issue(a)
        self.nonce_make(a)
        W(24 + nW)
        n1 = self.pf_range(a, sW1, 0, self.o["w1a"] * 3072)
        W(16 + n1); self.q_issue(a)
        W(16 + n1)

        def ln_done():
            a(f"s_lshl_b32 s{sT4}, s{sWg}, 2\ns_add_u32 s{sT4}, s{sT4}, {FL_LN}")
            self.flag_set(a, sT4)
            a(f"s_mov_b32 s{sArr}, 1\ns_atomic_add s{sArr}, s[22:23], 0x0 glc")
        self.only_w0(a, ln_done)
        self.q_issue(a)
        W(16 + n1); self.q_issue(a)
        W(16); self.q_issue(a)
        W(16); self.q_issue(a)
        W(16)
        self.poll_issue(a, self.LV_PLB, 4)
        self.q_issue(a)
        Wchk(8, lambda: self.poll_check(a, self.LV_PLB, 4))
        self.m_init(a)
        self.m_issue(a)
        W(16); self.m_issue(a)
        W(16)
        self.m_issue(a)
        n1b = self.pf_range(a, sW1, self.o["w1a"] * 3072, (2048 - self.o["w1a"]) * 3072)
        a("s_barrier")
        a("s_barrier")
        self.kv_copy_out(a)

        def ln_all():
            lab = a.uid("Lep")
            a(f"s_waitcnt lgkmcnt(0)\ns_cmp_lg_u32 s{sArr}, 255\ns_cbranch_scc1 {lab}")
            a(f"s_mov_b32 s{sT4}, {WS_EPOCH}")
            self.flag_set(a, sT4)
            a.label(lab)
        Wchk(22 + n1b, ln_all)
        self.m_issue(a)
        W(22 + n1b); self.m_issue(a)
        W(16)

        def kv_done():
            a(f"""
            s_lshl_b32 s{sT4}, s{sP}, 4
            s_add_u32 s{sT4}, s{sT4}, s{sI}
            s_lshl_b32 s{sT4}, s{sT4}, 2
            s_add_u32 s{sT4}, s{sT4}, {FL_KV}
            """)
            self.flag_set(a, sT4)
        self.only_w0(a, kv_done)
        self.m_issue(a)
        self.loop(a, 7, lambda: (W(16), self.m_issue(a)))
        W(16)
        self.poll_issue(a, self.LV_PKV)
        self.m_issue(a)
        W(17); self.m_issue(a)
        W(17); self.m_issue(a)
        Wchk(16, lambda: self.poll_check(a, self.LV_PKV))
        self.kv_init(a)
        self.kv_issue(a, 0, 9)
        W(17)
        self.kv_issue(a, 9, 16)
        W(16)
        self.f_init(a)
        a(f"s_mov_b32 s{sSlot}, 0")
        a("s_barrier")
        W(0)
        self.g_copy_out(a)
        a(f"""
        s_waitcnt vmcnt(0)
        v_mov_b32 v20, {SCR_CNT}
        v_mov_b32 v21, 1
        s_mov_b32 exec_hi, 0
        s_mov_b32 exec_lo, 1
        ds_add_u32 v20, v21
        s_mov_b64 exec, -1
        """)

        def g_pub():
            self.lds_spin(a, 0, 4)
            skip = a.uid("Lgidle")
            a(f"s_cmp_eq_u32 s{sM1On}, 0\ns_cbranch_scc1 {skip}")
            a(f"""
            s_lshl_b32 s{sT4}, s{sFt}, 6
            s_lshl_b32 s{sT5}, s{sDt1}, 2
            s_add_u32 s{sT4}, s{sT4}, s{sT5}
            s_add_u32 s{sT4}, s{sT4}, {FL_G}
            """)
            for r in range(8):
                self.flag_set(a, sT4)
                if r < 7:
                    a(f"s_add_u32 s{sT4}, s{sT4}, 1536")
            a.label(skip)
        self.only_w0(a, g_pub)
        self.pf_range(a, sW2, 0, 1536 * 4096)
        self.pf_range(a, sWO, 0, 640 * 1280)
        self.slot_begin(a)
        self.f_issue_w2(a)
        a(f"s_add_u32 s{sSW}, s{sSW}, {SLOT}")
        self.f_issue_w2(a)

        def g_sync():
            ok, sp = a.uid("Lgok"), a.uid("Lgspin")
            self.spin(a, self.LV_PG, 1, ok, sp, self.o["gsleep"])
            a.label(ok)
            a(f"v_mov_b32 v20, {SCR_CNT + 4}\nv_mov_b32 v21, 1\nds_write_b32 v20, v21")
        self.only_w0(a, g_sync)
        self.lds_spin(a, 1, 1)
        self.slot_begin(a)
        self.f_issue_g(a)
        a(f"s_add_u32 s{sSW}, s{sSW}, {SLOT}")
        self.f_issue_g(a)
        a(f"s_mov_b32 s{sSlot}, {2 * SLOT}")
        W(5)
        self.o_copy_out(a)
        self.f_issue(a); self.f_issue(a)
        W(21)
        self.f_issue(a)
        self.xt_issue(a)
        W(21)

        def o_done():
            a(f"""
            s_lshl_b32 s{sT4}, s{sI}, 4
            s_add_u32 s{sT4}, s{sT4}, s{sP}
            s_lshl_b32 s{sT4}, s{sT4}, 2
            s_add_u32 s{sT4}, s{sT4}, {FL_O}
            """)
            self.flag_set(a, sT4)
        self.only_w0(a, o_done)
        self.f_issue(a)
        W(21); self.f_issue(a)
        W(21); self.f_issue(a)
        W(18); self.f_issue(a)
        W(18)
        self.poll_issue(a, self.LV_PO)
        self.f_issue(a)
        W(19); self.f_issue(a)
        W(19); self.f_issue(a)
        Wchk(18, lambda: self.poll_check(a, self.LV_PO))
        self.wo_init(a)
        self.wo_issue(a)
        self.loop(a, 4, lambda: (W(18), self.wo_issue(a)))
        W(18); W(9); W(0)
        a("s_barrier")

    def m_consts(self, a):
        t0, t1, t2, t3, t4 = 190, 191, 192, 193, 194
        saved = (self.M_ACC,)
        super().m_consts(a)

    def zero(self, a, r0, n):
        for r in reversed(range(r0, r0 + n)):
            a(f"v_mov_b32 v{r}, 0")

    def a_consts(self, a, zero_o=True):
        super().a_consts(a)

    def q_reads(self, ks, b=None):
        base = self.Q_BUF + 16 * ks
        out = []
        for tm in range(2):
            for rd in range(2):
                out.append(f"ds_read_b64_tr_b16 v[{base + 4 * tm + 2 * rd}:{base + 4 * tm + 2 * rd + 1}], v{self.Q_AA + tm} offset:{(16 * ks + 4 * rd) * 256}")
        for tn in range(2):
            out.append(f"ds_read_b128 v[{base + 8 + 4 * tn}:{base + 11 + 4 * tn}], v{self.Q_AB + ks} offset:{tn * 4096}")
        return out

    def q_group(self, ks, wn):
        base = self.Q_BUF + 16 * ks
        cs, on = self.Q_CS, self.Q_ONES
        return self.q_mfmas(ks) + [f"v_mfma_f32_16x16x32_bf16 v[{cs}:{cs + 3}], v[{base + 4 * wn}:{base + 4 * wn + 3}], v[{on}:{on + 3}], v[{cs}:{cs + 3}]"]

    def q_addr(self):
        return ([f"v_add_u32 v{self.Q_AA + tm}, s{sSlot}, v{self.Q_CA + tm}" for tm in range(2)] +
                [f"v_add_u32 v{self.Q_AB + ks}, s{sSlot}, v{self.Q_CB + ks}" for ks in range(4)])

    def q_stage(self, a, wn, first, hook=None, pre=None):
        if pre:
            pre()
        self.cbar(a)
        if hook:
            hook()
        r01 = self.q_reads(0) + self.q_reads(1)
        if first:
            for r in r01:
                a(r)
        else:
            self.spread(a, self.q_group(3, wn), r01)
        a("s_waitcnt lgkmcnt(6)")
        self.spread(a, self.q_group(0, wn), self.q_reads(2))
        a("s_waitcnt lgkmcnt(6)")
        self.spread(a, self.q_group(1, wn), self.q_reads(3))
        self.slot_next(a)
        a("s_waitcnt lgkmcnt(6)")
        self.spread(a, self.q_group(2, wn), self.q_addr())
        a("s_waitcnt lgkmcnt(0)")

    @staticmethod
    def spread(a, mf, other):
        n = len(mf)
        k = 0
        for i, m in enumerate(mf):
            a(m)
            upto = -(-(len(other) * (i + 1)) // n)
            for r in other[k:upto]:
                a(r)
            k = upto

    def q_epilogue(self, a, wm):
        C, AB, T = 136, 168, 176
        ST = self.V_ST
        a(f"""
        v_lshrrev_b32 v{T}, 5, v0
        v_lshlrev_b32 v{T + 1}, 4, v{T}
        v_add_u32 v{T + 1}, {SCR_CS + wm * 256}, v{T + 1}
        """)
        for tm in range(2):
            for q in range(4):
                r = C + 16 * tm + 4 * q
                a(f"ds_read_b128 v[{r}:{r + 3}], v{T + 1} offset:{tm * 128 + q * 32}")
        a(f"""
        s_lshl_b32 s{sT1}, s{sWn}, 6
        v_and_b32 v{T + 2}, 31, v0
        v_add_u32 v{T + 2}, s{sT1}, v{T + 2}
        v_lshlrev_b32 v{T}, 3, v{T}
        v_mul_u32_u24 v{T + 3}, 80, v{T + 2}
        v_add_u32 v{T + 3}, v{T + 3}, v{T}
        v_add_u32 v{T + 3}, {SCR}, v{T + 3}
        v_mul_u32_u24 v{T + 4}, {KVROW}, v{T + 2}
        v_add_u32 v{T + 4}, v{T + 4}, v{T}
        v_add_u32 v{T + 4}, {SLOT}, v{T + 4}
        """)
        for tn in range(2):
            m_, r_ = ST + 2 * tn, ST + 2 * tn + 1
            o = AB + 4 * tn
            a(f"""
            v_mov_b32 v{o}, v{r_}
            v_mul_f32 v{o + 1}, v{m_}, v{r_}
            v_mul_f32 v{o + 2}, {f32(QSCALE)}, v{r_}
            v_mul_f32 v{o + 3}, {f32(QSCALE)}, v{o + 1}
            """)
        a("s_waitcnt lgkmcnt(0)")
        for tn in range(2):
            for tm in range(2):
                acc = self.Q_ACC + 16 * (2 * tm + tn)
                for q in range(4):
                    Q0 = 16 * wm + 8 * tm + 2 * q
                    isq = Q0 < 10
                    o = AB + 4 * tn + (2 if isq else 0)
                    c = C + 16 * tm + 4 * q
                    x = acc + 4 * q
                    if Q0 == 30:
                        a(f"v_mov_b32 v{x}, 0x00003f80\nv_mov_b32 v{x + 1}, 0")
                        a(f"""
                        s_mov_b32 exec_hi, 0
                        ds_write_b64 v{T + 4}, v[{x}:{x + 1}] offset:{tn * 32 * KVROW + 160}
                        s_mov_b64 exec, -1
                        """)
                        continue
                    for hf in range(2):
                        y = x + 2 * hf
                        a(f"v_pk_mul_f32 v[{y}:{y + 1}], v[{y}:{y + 1}], v[{o}:{o + 1}] op_sel_hi:[1,0]")
                        a(f"v_pk_fma_f32 v[{y}:{y + 1}], v[{c + 2 * hf}:{c + 2 * hf + 1}], v[{o}:{o + 1}], v[{y}:{y + 1}] op_sel:[0,1,0] op_sel_hi:[1,1,1] neg_lo:[1,0,0] neg_hi:[1,0,0]")
                    a(f"v_cvt_pk_bf16_f32 v{x}, v{x}, v{x + 1}\nv_cvt_pk_bf16_f32 v{x + 1}, v{x + 2}, v{x + 3}")
                    if isq:
                        a(f"ds_write_b64 v{T + 3}, v[{x}:{x + 1}] offset:{tn * 32 * 80 + Q0 * 8}")
                    else:
                        a(f"ds_write_b64 v{T + 4}, v[{x}:{x + 1}] offset:{tn * 32 * KVROW + (Q0 - 10) * 8}")
        a("s_waitcnt lgkmcnt(0)")

    def kv_copy_out(self, a):
        R, T = 32, 28
        a(f"""
        v_lshlrev_b32 v{T}, 4, v0
        s_lshl_b32 s{sT0}, s{sLw}, 10
        v_add_u32 v{T}, s{sT0}, v{T}
        v_add_u32 v{T + 1}, {SLOT}, v{T}
        s_lshl_b32 s{sT1}, s{sP}, 11
        s_lshl_b32 s{sT2}, s{sI}, 7
        s_add_u32 s{sT1}, s{sT1}, s{sT2}
        s_mul_i32 s{sT1}, s{sT1}, {KVROW}
        s_add_u32 s{sT1}, s{sT1}, {WS_KV}
        v_add_u32 v{T + 2}, s{sT1}, v{T}
        s_cmp_eq_u32 s{sLw}, 0
        s_cselect_b32 s{sT2}, 0, {OOB}
        v_add_u32 v{T + 3}, s{sT2}, v{T + 2}
        """)
        for k in range(6):
            a(f"ds_read_b128 v[{R + 4 * k}:{R + 4 * k + 3}], v{T + 1} offset:{k * 4096}")
        for k in range(6):
            a(f"s_waitcnt lgkmcnt({5 - k})")
            a(f"s_mov_b32 s{sT0}, {k * 4096}")
            a(f"buffer_store_dwordx4 v[{R + 4 * k}:{R + 4 * k + 3}], v{T + (3 if k == 5 else 2)}, s[{sWS}:{sWS + 3}], s{sT0} offen sc1")

    def q_csum_write(self, a):
        t0, t1 = 176, 177
        cs = self.Q_CS
        a(f"""
        v_and_b32 v{t0}, 1, v0
        v_lshlrev_b32 v{t0}, 6, v{t0}
        v_lshrrev_b32 v{t1}, 4, v0
        v_lshl_add_u32 v{t0}, v{t1}, 4, v{t0}
        s_lshl_b32 s{sT0}, s{sWm}, 8
        s_lshl_b32 s{sT1}, s{sWn}, 7
        s_add_u32 s{sT0}, s{sT0}, s{sT1}
        s_add_u32 s{sT0}, s{sT0}, {SCR_CS}
        v_add_u32 v{t0}, s{sT0}, v{t0}
        v_and_b32 v{t1}, 14, v0
        v_cmp_eq_u32 vcc, 0, v{t1}
        s_and_saveexec_b64 s[{sEx}:{sEx + 1}], vcc
        ds_write_b128 v{t0}, v[{cs}:{cs + 3}]
        s_mov_b64 exec, s[{sEx}:{sEx + 1}]
        s_waitcnt lgkmcnt(0)
        """)

    def c_qkv(self, a):
        T = 212
        for c in self.q_addr():
            a(c)

        def stats():
            ST = self.V_ST
            a(f"""
            s_lshl_b32 s{sT0}, s{sI}, 7
            s_lshl_b32 s{sT1}, s{sWn}, 6
            s_add_u32 s{sT0}, s{sT0}, s{sT1}
            v_and_b32 v{T + 1}, 31, v0
            v_add_u32 v{T + 1}, s{sT0}, v{T + 1}
            v_lshlrev_b32 v{T + 1}, 3, v{T + 1}
            v_add_u32 v{T + 1}, {WS_STATS}, v{T + 1}
            buffer_load_dwordx2 v[{ST}:{ST + 1}], v{T + 1}, s[{sWS}:{sWS + 3}], 0 offen sc1
            buffer_load_dwordx2 v[{ST + 2}:{ST + 3}], v{T + 1}, s[{sWS}:{sWS + 3}], 0 offen offset:256 sc1
            """)

        def run(wn):
            self.q_stage(a, wn, True)
            self.mark(a)
            self.q_stage(a, wn, False)
            self.q_stage(a, wn, False, pre=lambda: a("s_waitcnt vmcnt(0)"))
            self.loop(a, 4, lambda: self.q_stage(a, wn, False))
            self.q_stage(a, wn, False, hook=stats)
            self.loop(a, 2, lambda: self.q_stage(a, wn, False))
            for m in self.q_group(3, wn):
                a(m)
        self.by_scalar(a, sWn, run)
        self.mark(a)
        self.q_csum_write(a)
        a("s_barrier")
        a("s_waitcnt vmcnt(0)")
        self.by_scalar(a, sWm, lambda wm: self.q_epilogue(a, wm))
        a("s_barrier")

    def m_addr(self):
        return ([f"v_add_u32 v{self.M_AA + tm}, s{sSlot}, v{self.M_CA + tm}" for tm in range(2)] +
                [f"v_add_u32 v{self.M_AB}, s{sSlot}, v{self.M_CB}"])

    def m_stage(self, a, first, pre=None, hook=None):
        if pre:
            pre()
        self.cbar(a)
        if hook:
            hook()
        r01 = self.m_reads(0) + self.m_reads(1)
        if first:
            for r in r01:
                a(r)
        else:
            self.spread(a, self.m_mfmas(2) + self.m_mfmas(3), r01)
        a("s_waitcnt lgkmcnt(6)")
        self.spread(a, self.m_mfmas(0), self.m_reads(2))
        a("s_waitcnt lgkmcnt(6)")
        self.spread(a, self.m_mfmas(1), self.m_reads(3))
        self.slot_next(a)
        for c in self.m_addr():
            a(c)
        a("s_waitcnt lgkmcnt(0)")

    def m_reduce_write(self, a, kh):
        t = 190
        src = self.M_ACC + 16 * (1 - kh)
        a(f"""
        v_lshlrev_b32 v{t}, 4, v0
        s_lshl_b32 s{sT0}, s{sLw}, 12
        s_add_u32 s{sT0}, s{sT0}, {M_RED}
        v_add_u32 v{t}, s{sT0}, v{t}
        """)
        for q in range(4):
            a(f"ds_write_b128 v{t}, v[{src + 4 * q}:{src + 4 * q + 3}] offset:{q * 1024}")
        a("s_waitcnt lgkmcnt(0)")

    def m_epilogue(self, a, kh):
        t, R, U = 190, 136, 160
        B1 = self.V_B1
        keep = self.M_ACC + 16 * kh
        a(f"""
        v_lshlrev_b32 v{t}, 4, v0
        s_xor_b32 s{sT0}, s{sLw}, 2
        s_lshl_b32 s{sT0}, s{sT0}, 12
        s_add_u32 s{sT0}, s{sT0}, {M_RED}
        v_add_u32 v{t}, s{sT0}, v{t}
        """)
        for q in range(4):
            a(f"ds_read_b128 v[{R + 4 * q}:{R + 4 * q + 3}], v{t} offset:{q * 1024}")
        a(f"""
        s_lshl_b32 s{sT1}, s{sWn}, 5
        v_and_b32 v{U}, 31, v0
        v_add_u32 v{U}, s{sT1}, v{U}
        v_mul_u32_u24 v{U}, {GROW}, v{U}
        v_lshrrev_b32 v{U + 1}, 5, v0
        v_lshl_add_u32 v{U}, v{U + 1}, 3, v{U}
        v_add_u32 v{U}, {SLOT + 64 * kh}, v{U}
        """)
        c0 = -2.0 * math.sqrt(2.0 / math.pi) * math.log2(math.e)
        c1 = c0 * 0.044715
        a(f"v_lshlrev_b32 v{U + 2}, 16, v{B1}\nv_mov_b32 v{U + 3}, {f32(c0)}\ns_mov_b32 s{sT2}, {f32(c1)}")
        a("s_waitcnt lgkmcnt(0)")
        for r in range(16):
            a(f"v_add_f32 v{keep + r}, v{keep + r}, v{R + r}")
        for r in range(16):
            a(f"v_add_f32 v{keep + r}, v{keep + r}, v{U + 2}")
        for r in range(16):
            a(f"v_mul_f32 v{R + r}, v{keep + r}, v{keep + r}")
        for r in range(16):
            a(f"v_fma_f32 v{R + r}, v{R + r}, s{sT2}, v{U + 3}")
        for r in range(16):
            a(f"v_mul_f32 v{R + r}, v{R + r}, v{keep + r}")
        for r in range(16):
            a(f"v_exp_f32 v{R + r}, v{R + r}")
        for r in range(16):
            a(f"v_add_f32 v{R + r}, 1.0, v{R + r}")
        for r in range(16):
            a(f"v_rcp_f32 v{R + r}, v{R + r}")
        for r in range(16):
            a(f"v_mul_f32 v{keep + r}, v{keep + r}, v{R + r}")
        for q in range(4):
            x = keep + 4 * q
            a(f"v_cvt_pk_bf16_f32 v{x}, v{x}, v{x + 1}\nv_cvt_pk_bf16_f32 v{x + 1}, v{x + 2}, v{x + 3}")
            a(f"ds_write_b64 v{U}, v[{x}:{x + 1}] offset:{16 * q}")
        a("s_waitcnt lgkmcnt(0)")

    def g_copy_out(self, a):
        R, T = 40, 28
        a(f"""
        v_lshrrev_b32 v{T}, 3, v0
        s_lshl_b32 s{sT0}, s{sLw}, 4
        v_add_u32 v{T}, s{sT0}, v{T}
        v_and_b32 v{T + 1}, 7, v0
        v_mul_u32_u24 v{T + 2}, {GROW}, v{T}
        v_lshl_add_u32 v{T + 2}, v{T + 1}, 4, v{T + 2}
        v_add_u32 v{T + 2}, {SLOT}, v{T + 2}
        ds_read_b128 v[{R}:{R + 3}], v{T + 2}
        ds_read_b128 v[{R + 4}:{R + 7}], v{T + 2} offset:{8 * GROW}
        s_lshl_b32 s{sT0}, s{sDt1}, 6
        v_lshl_add_u32 v{T + 1}, v{T + 1}, 3, s{sT0}
        v_mul_u32_u24 v{T + 3}, 820, v{T + 1}
        v_lshrrev_b32 v{T + 3}, 16, v{T + 3}
        v_mul_u32_u24 v{T + 4}, 80, v{T + 3}
        v_sub_u32 v{T + 1}, v{T + 1}, v{T + 4}
        v_mul_u32_u24 v{T + 3}, {1536 * 160}, v{T + 3}
        v_lshl_add_u32 v{T + 3}, v{T + 1}, 1, v{T + 3}
        s_lshl_b32 s{sT0}, s{sFt}, 6
        v_add_u32 v{T}, s{sT0}, v{T}
        v_mul_u32_u24 v{T}, 160, v{T}
        v_add_u32 v{T + 3}, v{T + 3}, v{T}
        s_mov_b32 s{sT1}, {WS_GT}
        s_cmp_eq_u32 s{sM1On}, 0
        s_cselect_b32 s{sT0}, {OOB}, s{sT1}
        v_add_u32 v{T + 3}, s{sT0}, v{T + 3}
        s_waitcnt lgkmcnt(0)
        buffer_store_dwordx4 v[{R}:{R + 3}], v{T + 3}, s[{sWS}:{sWS + 3}], 0 offen sc1
        buffer_store_dwordx4 v[{R + 4}:{R + 7}], v{T + 3}, s[{sWS}:{sWS + 3}], 0 offen offset:{8 * 160} sc1
        """)

    def c_mix1(self, a):
        T = 212
        self.zero(a, self.M_ACC, 32)
        a(f"""
        s_lshl_b32 s{sT0}, s{sFt}, 6
        s_lshl_b32 s{sT1}, s{sWn}, 5
        s_add_u32 s{sT0}, s{sT0}, s{sT1}
        v_and_b32 v{T}, 31, v0
        v_add_u32 v{T}, s{sT0}, v{T}
        v_lshlrev_b32 v{T}, 1, v{T}
        buffer_load_ushort v{self.V_B1}, v{T}, s[{sB1}:{sB1 + 3}], 0 offen
        """)
        for c in self.m_addr():
            a(c)
        self.m_stage(a, True)
        self.m_stage(a, False)
        self.m_stage(a, False)
        self.mark(a)
        self.loop(a, 13, lambda: self.m_stage(a, False))
        for m in self.m_mfmas(2) + self.m_mfmas(3):
            a(m)
        self.mark(a)
        self.by_scalar(a, sWm, lambda kh: self.m_reduce_write(a, kh))
        a("s_barrier")
        a("s_waitcnt vmcnt(0)")
        self.by_scalar(a, sWm, lambda kh: self.m_epilogue(a, kh))
        self.a_zero(a)
        self.cbar(a)

    def a_addr_consts(self, a):
        keep = (self.A_O, self.A_K)
        body = Asm()
        B.Gen.a_consts(self, body)
        for it in body.items:
            if it.mn == "v_mov_b32" and it.ops[0][0] == "v":
                r = int(it.ops[0][1:])
                if self.A_O <= r < self.A_O + 32 or self.A_K <= r < self.A_K + 16:
                    continue
            a.items.append(it)

    def a_zero(self, a):
        self.zero(a, self.A_O, 32)
        for hh in range(2):
            for base in (self.A_K, self.A_Q):
                a(f"v_mov_b32 v{base + 8 * hh + 6}, 0\nv_mov_b32 v{base + 8 * hh + 7}, 0")

    def a_qreads(self, a):
        T = self.A_T
        a(f"""
        s_lshl_b32 s{sT0}, s{sLw}, 5
        v_and_b32 v{T}, 31, v0
        v_add_u32 v{T}, s{sT0}, v{T}
        v_mul_u32_u24 v{T}, 80, v{T}
        v_add_u32 v{T}, {SCR}, v{T}
        v_lshrrev_b32 v{T + 1}, 5, v0
        v_lshl_add_u32 v{T + 1}, v{T + 1}, 4, v{T}
        """)
        for hh in range(2):
            q = self.A_Q + 8 * hh
            a(f"""
            ds_read_b64 v[{q}:{q + 1}], v{T + 1} offset:{40 * hh}
            ds_read_b64 v[{q + 2}:{q + 3}], v{T + 1} offset:{40 * hh + 8}
            ds_read_b64 v[{q + 4}:{q + 5}], v{T} offset:{40 * hh + 32}
            """)

    def a_qmask(self, a):
        for hh in range(2):
            q = self.A_Q + 8 * hh
            a(f"""
            s_mov_b32 exec_lo, 0
            v_mov_b32 v{q + 4}, 0
            v_mov_b32 v{q + 5}, 0
            s_mov_b64 exec, -1
            """)

    def kr(self, hh, dt):
        k = self.A_K + 8 * hh
        o = dt * 32 * KVROW + 40 * hh
        return [f"ds_read_b64 v[{k}:{k + 1}], v{self.A_KA} offset:{o}",
                f"ds_read_b64 v[{k + 2}:{k + 3}], v{self.A_KA} offset:{o + 8}",
                f"ds_read_b64 v[{k + 4}:{k + 5}], v{self.A_KA + 1} offset:{o + 32}"]

    def vr(self, hh, dt):
        x = self.A_V + 8 * hh
        return [f"ds_read_b64_tr_b16 v[{x + 4 * aa + 2 * rd}:{x + 4 * aa + 2 * rd + 1}], v{self.A_VA + hh} offset:{(dt * 32 + 16 * aa + 8 * rd) * KVROW}"
                for aa in range(2) for rd in range(2)]

    def a_body(self, a, nxt):
        for hh in range(2):
            self.a_softmax(a, hh)
            a("s_waitcnt lgkmcnt(7)" if nxt or hh == 0 else "s_waitcnt lgkmcnt(0)")
            mf = self.a_pv(hh)
            rd = []
            if nxt:
                mf += self.a_qk(hh, self.A_MD if nxt == "diag" else None)
                rd = self.vr(hh, 1) + self.kr(hh, 2)
                a(mf[0]); a(mf[1])
                for r in rd[:2]:
                    a(r)
                a(mf[2])
                for r in rd[2:4]:
                    a(r)
                a(mf[3])
                for r in rd[4:]:
                    a(r)
            else:
                a(mf[0]); a(mf[1])
        if nxt:
            for r in (self.A_KA, self.A_KA + 1, self.A_VA, self.A_VA + 1):
                a(f"v_add_u32 v{r}, {32 * KVROW}, v{r}")

    def g_publish(self, a):
        lab = a.uid("Lgp")
        T = 208
        a(f"s_cmp_lg_u32 s{sPub}, 0\ns_cbranch_scc1 {lab}")
        a(f"""
        s_mov_b32 s{sPub}, 1
        s_waitcnt vmcnt(0)
        v_mov_b32 v{T}, {SCR_CNT}
        v_mov_b32 v{T + 1}, 1
        s_mov_b32 exec_hi, 0
        s_mov_b32 exec_lo, 1
        ds_add_u32 v{T}, v{T + 1}
        s_mov_b64 exec, -1
        """)
        a.label(lab)

    def attention(self, a):
        T = self.A_T
        a(f"""
        s_mov_b32 s{sPub}, 0
        s_lshl_b32 s{sT0}, s{sI}, 2
        s_add_u32 s{sT0}, s{sT0}, s{sLw}
        s_cmp_ge_u32 s{sT0}, 8
        s_cselect_b32 s{sT0}, 8, s{sT0}
        s_sub_u32 s{sT2}, 8, s{sT0}
        """)
        self.a_skip(a, sT2)
        self.a_qreads(a)
        for hh in range(2):
            for r in self.kr(hh, 0):
                a(r)
        a("s_waitcnt lgkmcnt(0)")
        self.a_qmask(a)
        lf, ld, lq = a.uid("Lqf"), a.uid("Lqd"), a.uid("Lqe")
        a(f"s_cmp_eq_u32 s{sT2}, 0\ns_cbranch_scc1 {lf}")
        a(f"s_cmp_eq_u32 s{sT2}, 8\ns_cbranch_scc1 {ld}")
        for mask, lab in ((None, None), (self.A_MF, lf), (self.A_MD, ld)):
            if lab:
                a.label(lab)
            for hh in range(2):
                for m in self.a_qk(hh, mask):
                    a(m)
            if mask != self.A_MD:
                a(f"s_branch {lq}")
        a.label(lq)
        for hh in range(2):
            for r in self.vr(hh, 0) + self.kr(hh, 1):
                a(r)
        lmid, ldiag, llast = a.uid("Lmid"), a.uid("Ldiag"), a.uid("Llast")
        a(f"s_cmp_eq_u32 s{sT2}, 8\ns_cbranch_scc1 {llast}")
        a(f"s_sub_u32 s{sCnt}, 7, s{sT2}\ns_cmp_eq_u32 s{sCnt}, 0\ns_cbranch_scc1 {ldiag}")
        a.label(lmid)
        self.a_body(a, "mid")
        a(f"s_sub_u32 s{sCnt}, s{sCnt}, 1\ns_cmp_lg_u32 s{sCnt}, 0\ns_cbranch_scc1 {lmid}")
        a.label(ldiag)
        self.a_body(a, "diag")
        a.label(llast)
        self.a_body(a, None)
        lfb, ldone = a.uid("Lfallback"), a.uid("Lnorm")
        self.fallback_labels = (lfb, ldone)
        self.a_rowsum(a)
        a(f"""
        v_mov_b32 v{T + 4}, {f32(2.0 ** -40)}
        v_mov_b32 v{T + 5}, {f32(2.0 ** 40)}
        v_cmp_ge_f32 s[{sT0}:{sT0 + 1}], v{T}, v{T + 4}
        v_cmp_le_f32 s[{sT2}:{sT2 + 1}], v{T}, v{T + 5}
        s_and_b64 s[{sT0}:{sT0 + 1}], s[{sT0}:{sT0 + 1}], s[{sT2}:{sT2 + 1}]
        v_cmp_ge_f32 s[{sT2}:{sT2 + 1}], v{T + 1}, v{T + 4}
        s_and_b64 s[{sT0}:{sT0 + 1}], s[{sT0}:{sT0 + 1}], s[{sT2}:{sT2 + 1}]
        v_cmp_le_f32 s[{sT2}:{sT2 + 1}], v{T + 1}, v{T + 5}
        s_and_b64 s[{sT0}:{sT0 + 1}], s[{sT0}:{sT0 + 1}], s[{sT2}:{sT2 + 1}]
        s_cmp_eq_u64 s[{sT0}:{sT0 + 1}], exec
        s_cbranch_scc0 {lfb}
        """)
        a.label(ldone)
        self.a_store(a)

    def a_store(self, a):
        T = self.A_T
        a(f"""
        v_rcp_f32 v{T + 2}, v{T}
        v_rcp_f32 v{T + 4}, v{T + 1}
        s_lshl_b32 s{sT1}, s{sLw}, 5
        v_and_b32 v{T + 6}, 31, v0
        v_add_u32 v{T + 6}, s{sT1}, v{T + 6}
        v_mul_u32_u24 v{T + 6}, 80, v{T + 6}
        v_add_u32 v{T + 6}, {SCR}, v{T + 6}
        v_lshrrev_b32 v{T + 7}, 5, v0
        v_lshl_add_u32 v{T + 7}, v{T + 7}, 3, v{T + 6}
        """)
        for hh in range(2):
            o = self.A_O + 16 * hh
            rc = T + 2 + 2 * hh
            for g in range(3):
                x = o + 4 * g
                for hf in range(2):
                    a(f"v_pk_mul_f32 v[{x + 2 * hf}:{x + 2 * hf + 1}], v[{x + 2 * hf}:{x + 2 * hf + 1}], v[{rc}:{rc + 1}] op_sel_hi:[1,0]")
                a(f"v_cvt_pk_bf16_f32 v{x}, v{x}, v{x + 1}\nv_cvt_pk_bf16_f32 v{x + 1}, v{x + 2}, v{x + 3}")
                if g < 2:
                    a(f"ds_write_b64 v{T + 7}, v[{x}:{x + 1}] offset:{40 * hh + 16 * g}")
                else:
                    a(f"s_mov_b32 exec_hi, 0\nds_write_b64 v{T + 6}, v[{x}:{x + 1}] offset:{40 * hh + 32}\ns_mov_b64 exec, -1")
        a("s_waitcnt lgkmcnt(0)")

    def o_copy_out(self, a):
        R, T = 40, 28
        a(f"""
        s_lshl_b32 s{sT0}, s{sI}, 7
        s_mul_i32 s{sT0}, s{sT0}, 1280
        s_mul_i32 s{sT1}, s{sP}, 80
        s_add_u32 s{sT0}, s{sT0}, s{sT1}
        s_add_u32 s{sT0}, s{sT0}, {WS_O}
        s_lshl_b32 s{sT1}, s{sLw}, 6
        v_add_u32 v{T}, s{sT1}, v0
        v_lshlrev_b32 v{T + 1}, 4, v{T}
        v_add_u32 v{T + 1}, {SCR}, v{T + 1}
        """)
        for k in range(3):
            a(f"ds_read_b128 v[{R + 4 * k}:{R + 4 * k + 3}], v{T + 1} offset:{k * 4096}")
        for k in range(3):
            a(f"""
            v_add_u32 v{T + 2}, {256 * k}, v{T}
            v_mul_u32_u24 v{T + 3}, 13108, v{T + 2}
            v_lshrrev_b32 v{T + 3}, 16, v{T + 3}
            v_mul_u32_u24 v{T + 4}, 5, v{T + 3}
            v_sub_u32 v{T + 4}, v{T + 2}, v{T + 4}
            v_mul_u32_u24 v{T + 3}, 1280, v{T + 3}
            v_lshl_add_u32 v{T + 3}, v{T + 4}, 4, v{T + 3}
            v_add_u32 v{T + 5 + k}, s{sT0}, v{T + 3}
            """)
        a(f"""
        v_mov_b32 v{T + 2}, {OOB}
        v_add_u32 v{T + 3}, 512, v{T}
        v_cmp_gt_u32 vcc, 640, v{T + 3}
        v_cndmask_b32 v{T + 7}, v{T + 2}, v{T + 7}, vcc
        s_waitcnt lgkmcnt(0)
        """)
        for k in range(3):
            a(f"buffer_store_dwordx4 v[{R + 4 * k}:{R + 4 * k + 3}], v{T + 5 + k}, s[{sWS}:{sWS + 3}], 0 offen sc1")

    def attention_fallback(self, a):
        lfb, ldone = self.fallback_labels
        M = 208
        a.label(lfb)
        self.a_addr_consts(a)
        self.zero(a, self.A_O, 32)
        a(f"""
        s_lshl_b32 s{sT0}, s{sI}, 2
        s_add_u32 s{sT0}, s{sT0}, s{sLw}
        s_cmp_ge_u32 s{sT0}, 8
        s_cselect_b32 s{sT0}, 8, s{sT0}
        s_sub_u32 s{sCnt}, 8, s{sT0}
        v_mov_b32 v{M}, {f32(-3e38)}
        v_mov_b32 v{M + 1}, {f32(-3e38)}
        """)
        self.a_skip(a, sCnt)
        lp, lnf, lnd = a.uid("Lfb"), a.uid("Lfbnf"), a.uid("Lfbnd")
        a.label(lp)
        for hh in range(2):
            for r in self.kr(hh, 0) + self.vr(hh, 0):
                a(r)
        for r in (self.A_KA, self.A_KA + 1, self.A_VA, self.A_VA + 1):
            a(f"v_add_u32 v{r}, {32 * KVROW}, v{r}")
        a("s_waitcnt lgkmcnt(0)")
        for hh in range(2):
            for m in self.a_qk(hh, None):
                a(m)
        a("s_nop 15")
        a(f"s_cmp_lg_u32 s{sCnt}, 0\ns_cbranch_scc1 {lnf}")
        for hh in range(2):
            for r in range(16):
                a(f"v_add_f32 v{self.A_S + 16 * hh + r}, v{self.A_S + 16 * hh + r}, v{self.A_MF + r}")
        a.label(lnf)
        a(f"s_cmp_lg_u32 s{sCnt}, 8\ns_cbranch_scc1 {lnd}")
        for hh in range(2):
            for r in range(16):
                a(f"v_add_f32 v{self.A_S + 16 * hh + r}, v{self.A_S + 16 * hh + r}, v{self.A_MD + r}")
        a.label(lnd)
        for hh in range(2):
            sreg, o = self.A_S + 16 * hh, self.A_O + 16 * hh
            x = M + 2
            a(f"v_max3_f32 v{x}, v{sreg}, v{sreg + 1}, v{M + hh}")
            for r in range(2, 16, 2):
                a(f"v_max3_f32 v{x}, v{sreg + r}, v{sreg + r + 1}, v{x}")
            a(f"""
            v_mov_b32 v{x + 1}, v{x}
            v_mov_b32 v{x + 2}, v{x}
            v_nop
            v_permlane32_swap_b32 v{x + 1}, v{x + 2}
            v_max_f32 v{x}, v{x + 1}, v{x + 2}
            v_sub_f32 v{x + 1}, v{M + hh}, v{x}
            v_exp_f32 v{x + 1}, v{x + 1}
            v_mov_b32 v{M + hh}, v{x}
            """)
            for r in range(16):
                a(f"v_sub_f32 v{sreg + r}, v{sreg + r}, v{x}")
            for r in range(16):
                a(f"v_mul_f32 v{o + r}, v{o + r}, v{x + 1}")
            self.a_softmax(a, hh)
            for m in self.a_pv(hh):
                a(m)
        a(f"s_add_u32 s{sCnt}, s{sCnt}, 1\ns_cmp_le_u32 s{sCnt}, 8\ns_cbranch_scc1 {lp}")
        a("s_nop 15")
        self.a_rowsum(a)
        a(f"s_branch {ldone}")

    def f_addr(self, wo):
        out = [f"v_add_u32 v{self.F_AA}, s{sSlot}, v{self.F_CA}"]
        if wo:
            out += [f"v_add_u32 v{self.F_AO + k}, s{sSlot}, v{self.F_CO + k}" for k in range(4)]
        else:
            out += [f"v_add_u32 v{self.F_AB + tn}, s{sSlot}, v{self.F_CB + tn}" for tn in range(2)]
        return out

    def f_stage(self, a, first, wo, next_wo, pre=None, hook=None):
        if pre:
            pre()
        self.cbar(a)
        if hook:
            hook()
        r0 = self.f_reads(0, wo)
        if first:
            for r in r0:
                a(r)
        else:
            self.spread(a, self.f_mfmas(1), r0)
        a("s_waitcnt lgkmcnt(0)")
        self.spread(a, self.f_mfmas(0), self.f_reads(1, wo))
        self.slot_next(a)
        a("s_waitcnt lgkmcnt(0)")
        for c in self.f_addr(next_wo):
            a(c)

    def f_epilogue(self, a, kh):
        t, R, X, AD = 206, 136, 160, 172
        B2 = self.V_B2
        a(f"""
        v_lshlrev_b32 v{t}, 4, v0
        s_xor_b32 s{sT0}, s{sLw}, 2
        s_mul_i32 s{sT0}, s{sT0}, 5120
        s_add_u32 s{sT0}, s{sT0}, {SLOT}
        v_add_u32 v{t}, s{sT0}, v{t}
        """)
        for tm in range(5):
            a(f"ds_read_b128 v[{R + 4 * tm}:{R + 4 * tm + 3}], v{t} offset:{tm * 1024}")
        a(f"""
        s_lshl_b32 s{sT1}, s{sWn}, 5
        s_add_u32 s{sT1}, s{sT1}, {16 * kh}
        v_and_b32 v{t + 1}, 15, v0
        v_add_u32 v{t + 1}, s{sT1}, v{t + 1}
        v_mul_u32_u24 v{t + 2}, 160, v{t + 1}
        v_lshrrev_b32 v{t + 3}, 4, v0
        v_lshl_add_u32 v{t + 2}, v{t + 3}, 3, v{t + 2}
        v_add_u32 v{t + 2}, {SCR}, v{t + 2}
        """)
        for tm in range(5):
            a(f"ds_read_b64 v[{X + 2 * tm}:{X + 2 * tm + 1}], v{t + 2} offset:{32 * tm}")
        a(f"""
        s_lshl_b32 s{sT0}, s{sSt}, 6
        v_add_u32 v{t + 1}, s{sT0}, v{t + 1}
        v_mul_u32_u24 v{AD}, 1280, v{t + 1}
        s_mul_i32 s{sT0}, s{sDt}, 160
        v_add_u32 v{AD}, s{sT0}, v{AD}
        v_lshl_add_u32 v{AD}, v{t + 3}, 3, v{AD}
        v_lshlrev_b32 v{AD + 1}, 16, v{B2}
        s_waitcnt lgkmcnt(0)
        """)
        for tm in range(5):
            k = self.F_ACC + 4 * (2 * tm + kh)
            r = R + 4 * tm
            for e in range(4):
                a(f"v_add_f32 v{k + e}, v{k + e}, v{r + e}")
            a(f"""
            v_lshlrev_b32 v{r}, 16, v{X + 2 * tm}
            v_and_b32 v{r + 1}, 0xffff0000, v{X + 2 * tm}
            v_lshlrev_b32 v{r + 2}, 16, v{X + 2 * tm + 1}
            v_and_b32 v{r + 3}, 0xffff0000, v{X + 2 * tm + 1}
            """)
            for e in range(4):
                a(f"v_add_f32 v{k + e}, v{k + e}, v{AD + 1}")
            for e in range(4):
                a(f"v_add_f32 v{k + e}, v{k + e}, v{r + e}")
            a(f"v_cvt_pk_bf16_f32 v{k}, v{k}, v{k + 1}\nv_cvt_pk_bf16_f32 v{k + 1}, v{k + 2}, v{k + 3}")
            a(f"buffer_store_dwordx2 v[{k}:{k + 1}], v{AD}, s[{sOUT}:{sOUT + 3}], 0 offen offset:{32 * tm}")

    def c_final(self, a):
        T = 224
        self.zero(a, self.F_ACC, 40)
        a(f"s_mov_b32 s{sSlot}, 0")
        for c in self.f_addr(False):
            a(c)

        def b2_load():
            a(f"""
            s_lshl_b32 s{sT0}, s{sSt}, 6
            s_lshl_b32 s{sT1}, s{sWn}, 5
            s_add_u32 s{sT0}, s{sT0}, s{sT1}
            s_lshl_b32 s{sT1}, s{sWm}, 4
            s_add_u32 s{sT0}, s{sT0}, s{sT1}
            v_and_b32 v{T}, 15, v0
            v_add_u32 v{T}, s{sT0}, v{T}
            v_lshlrev_b32 v{T}, 1, v{T}
            buffer_load_ushort v{self.V_B2}, v{T}, s[{sB2}:{sB2 + 3}], 0 offen
            """)
        self.f_stage(a, True, False, False, hook=b2_load)
        self.f_stage(a, False, False, False)
        self.f_stage(a, False, False, False)
        self.f_stage(a, False, False, False)
        self.mark(a)
        self.loop(a, 7, lambda: self.f_stage(a, False, False, False))
        self.f_stage(a, False, False, True)
        self.mark(a)
        self.loop(a, 5, lambda: self.f_stage(a, False, True, True))
        self.f_tail(a)
        self.mark(a)
        self.by_scalar(a, sWm, lambda kh: self.f_reduce_write(a, kh))
        a("s_barrier")
        a("s_waitcnt vmcnt(0)")
        self.by_scalar(a, sWm, lambda kh: self.f_epilogue(a, kh))

    def strip_zero(self, fn, lo, hi):
        body = Asm()
        fn(body)
        return [it for it in body.items
                if not (it.mn == "v_mov_b32" and it.ops[0][0] == "v" and it.ops[1] == "0" and lo <= int(it.ops[0][1:]) < hi)]

    def consumer(self, a):
        self.mark(a)
        self.ln_loads(a)
        a(f"""
        v_mov_b32 v1, {SCR_CNT}
        v_mov_b32 v2, 0
        v_mov_b32 v3, 0
        ds_write_b64 v1, v[2:3]
        """)
        a.items += self.strip_zero(lambda b: B.Gen.m_consts(self, b), 64, 128)
        a.items += self.strip_zero(lambda b: B.Gen.f_consts(self, b), 64, 128)
        self.a_addr_consts(a)
        a(f"s_mov_b32 s{sSlot}, 0")
        a.items += self.strip_zero(lambda b: B.Gen.q_consts(self, b), 64, 132)
        self.mark(a)
        self.ln_compute(a)
        self.zero(a, self.Q_ACC, 68)
        a("s_waitcnt lgkmcnt(0)")
        self.mark(a)
        self.c_qkv(a)
        self.mark(a)
        self.c_mix1(a)
        self.mark(a)
        self.mark(a)
        self.attention(a)
        self.mark(a)
        self.c_final(a)
        self.mark(a)

    def build(self):
        name = NAME + "_kernel"
        return B_kernel(name, self.split(name, self.consumer, self.loader))


def B_kernel(name, body):
    return f"""; Sliding-window attention + token-mixer MLP + residual, bf16, S=2048 D=640, one persistent launch.
; @launch grid=(256,1,1) block=(512,1,1) lds={LDS_BYTES}
.amdgcn_target "amdgcn-amd-amdhsa--gfx950"
.text
.globl {name}
.p2align 8
.type {name},@function
{name}:
{body}.section .rodata,"a"
.p2align 6
.amdhsa_kernel {name}
  .amdhsa_next_free_vgpr 256
  .amdhsa_next_free_sgpr 102
  .amdhsa_accum_offset 256
  .amdhsa_group_segment_fixed_size 0
  .amdhsa_kernarg_size 88
  .amdhsa_user_sgpr_count 2
  .amdhsa_user_sgpr_kernarg_segment_ptr 1
  .amdhsa_system_sgpr_workgroup_id_x 1
.end_amdhsa_kernel
"""


if __name__ == "__main__":
    mode = sys.argv[1] if len(sys.argv) > 1 else "run"
    path = sys.argv[2] if len(sys.argv) > 2 else f"cdna_kernels/{NAME}.s"
    opts = {}
    for kv in sys.argv[3:]:
        k, val = kv.split("=")
        opts[k] = int(val)
    txt = Fused(diag=(mode == "diag"), opts=opts).build()
    open(path, "w").write(txt)
    print("wrote", path, len(txt), "bytes")
```

```python
import math
import sys

sys.path.insert(0, "tools")
from asmlib import Asm
from gen_base import *
import gen_base as B

OOB = 0x7ff00000
SPIN_MAX = 100000
FL_LN, FL_KV, FL_O, FL_G = 0x1000, 0x1400, 0x1800, 0x8000
SCR_CNT = SCR + 10752
SCR_CS = SCR + 10240
M_RED = 16384
GROW = 144
sPub, sT6 = 79, 85
sKcA, sKcB, sKt, sRq, sRm, sRf, sRw = 9, 10, 11, 12, 13, 14, 15
sBaseA, sBaseB = 16, 17
sLnOn, sLnIdx = 18, 19
sArr, sNon2 = 4, 5


class Fused(Gen):
    A_MF, A_MD, A_KA, A_VA = 2, 18, 34, 36
    F_CA, F_CB, F_CO = 38, 39, 41
    M_CA, M_CB = 45, 47
    V_ST, V_B1, V_B2, V_ARR, V_POLL = 48, 52, 53, 54, 56
    V_DUMMY = 228
    Q_ACC, Q_CS, Q_ONES, Q_BUF, Q_CA, Q_CB, Q_AA, Q_AB = 64, 128, 132, 136, 200, 202, 206, 208
    M_ACC, M_BUF, M_AA, M_AB = 64, 136, 196, 198
    A_Q, A_K, A_V, A_S, A_P, A_O, A_T = 64, 80, 96, 112, 144, 208, 192
    F_ACC, F_BUF, F_AA, F_AB, F_AO = 64, 136, 199, 200, 202

    def __init__(self, diag=False, opts=None):
        super().__init__(fused=True, diag=diag)
        self.o = dict(prefetch=0, tlb=0, lead=3, nt=0, gsleep=4, ldsc1=1, xmap=0, light=0, w1a=1024, rot=30, lngood=0, codepf=0)
        self.o.update(opts or {})

    def stamp(self, a, k, bump=False):
        if not self.o["light"]:
            super().stamp(a, k, bump)

    def diag_dump(self, a, kidx):
        wg = self.o.get("dbgout")
        if wg is None:
            return super().diag_dump(a, kidx)
        lab = a.uid("Ldbg")
        a(f"""
        s_cmp_lg_u32 s{sWg}, {wg}
        s_cbranch_scc1 {lab}
        s_cmp_lg_u32 s{sWv}, 0
        s_cbranch_scc1 {lab}
        v_readlane_b32 s{sT0}, v{self.DV + 1}, 0
        v_lshlrev_b32 v1, 2, v0
        v_mov_b32 v3, {OOB}
        v_subrev_u32 v2, s{sT0}, v{self.DV + 1}
        v_cmp_gt_u32 vcc, 16, v0
        v_cndmask_b32 v1, v3, v1, vcc
        v_cmp_eq_u32 vcc, 0, v0
        v_cndmask_b32 v1, v1, v3, vcc
        buffer_store_dword v2, v1, s[{sDBG}:{sDBG + 3}], 0 offen
        """)
        a.label(lab)

    def mark(self, a):
        if self.diag and self.o["light"]:
            if self.o.get("rt"):
                a(f"s_memrealtime s[98:99]\ns_mov_b32 m0, s{self.sStg}\ns_waitcnt lgkmcnt(0)\nv_writelane_b32 v{self.DV + 1}, s98, m0\ns_add_u32 s{self.sStg}, s{self.sStg}, 1")
            else:
                B.Gen.stamp(self, a, 1, True)

    def prologue(self, a, lab):
        super().prologue(a, lab)
        if self.o["lngood"]:
            a(f"""
            s_lshr_b32 s{sT0}, s{sWg}, 6
            s_lshr_b32 s{sT1}, s{sWg}, 1
            s_xor_b32 s{sT1}, s{sT1}, s{sT0}
            s_and_b32 s{sT1}, s{sT1}, 1
            s_xor_b32 s{sLnOn}, s{sT1}, 1
            s_and_b32 s{sT1}, s{sWg}, 7
            s_lshl_b32 s{sLnIdx}, s{sT1}, 4
            s_lshr_b32 s{sT0}, s{sT0}, 1
            s_lshl_b32 s{sT0}, s{sT0}, 3
            s_add_u32 s{sLnIdx}, s{sLnIdx}, s{sT0}
            s_lshr_b32 s{sT0}, s{sWg}, 3
            s_and_b32 s{sT0}, s{sT0}, 7
            s_add_u32 s{sLnIdx}, s{sLnIdx}, s{sT0}
            """)
        else:
            a(f"s_mov_b32 s{sLnOn}, 1\ns_mov_b32 s{sLnIdx}, s{sWg}")
        self.rot_consts(a)
        if not self.o["xmap"]:
            return
        a(f"""
        s_and_b32 s{sT0}, s{sWg}, 7
        s_lshr_b32 s{sT1}, s{sWg}, 3
        s_lshl_b32 s{sSt}, s{sT0}, 2
        s_and_b32 s{sT2}, s{sT1}, 3
        s_add_u32 s{sSt}, s{sSt}, s{sT2}
        s_lshr_b32 s{sDt}, s{sT1}, 2
        s_cmp_lt_u32 s{sT1}, 30
        s_cselect_b32 s{sT2}, 0, 30
        s_sub_u32 s{sT1}, s{sT1}, s{sT2}
        s_mul_i32 s{sT2}, s{sT1}, 26
        s_lshr_b32 s{sT2}, s{sT2}, 8
        s_mul_i32 s{sT3}, s{sT2}, 10
        s_sub_u32 s{sDt1}, s{sT1}, s{sT3}
        s_mul_i32 s{sFt}, s{sT0}, 3
        s_add_u32 s{sFt}, s{sFt}, s{sT2}
        """)

    def smod(self, a, r, n, times):
        for _ in range(times):
            a(f"s_cmp_ge_u32 s{r}, {n}\ns_cselect_b32 s{sT5}, {n}, 0\ns_sub_u32 s{r}, s{r}, s{sT5}")

    def rot_consts(self, a):
        if not self.o["rot"]:
            for r in (sRq, sRm, sRf, sRw):
                a(f"s_mov_b32 s{r}, 0")
            return
        a(f"""
        s_lshr_b32 s{sT0}, s{sWg}, 3
        s_and_b32 s{sT1}, s{sT0}, 7
        s_lshr_b32 s{sT2}, s{sT0}, 3
        s_mul_i32 s{sT3}, s{sT2}, 3
        s_add_u32 s{sRq}, s{sT1}, s{sT3}
        s_mul_i32 s{sRf}, s{sT1}, 5
        s_add_u32 s{sRf}, s{sRf}, s{sT3}
        s_lshl_b32 s{sRw}, s{sT2}, 1
        s_add_u32 s{sRw}, s{sRw}, s{sT1}
        s_mul_i32 s{sRm}, s{sFt}, 3
        s_mul_i32 s{sT3}, s{sDt1}, 5
        s_add_u32 s{sRm}, s{sRm}, s{sT3}
        s_and_b32 s{sRm}, s{sRm}, 7
        """)
        self.smod(a, sRq, 10, 1)
        self.smod(a, sRf, 12, 3)
        self.smod(a, sRw, 5, 2)
        for bit, r in ((1, sRq), (2, sRm), (4, sRf), (8, sRw)):
            if not self.o["rot"] & bit:
                a(f"s_mov_b32 s{r}, 0")

    def wrap(self, a, kc, n, offs):
        a(f"s_add_u32 s{kc}, s{kc}, 1\ns_cmp_eq_u32 s{kc}, {n}\ns_cselect_b32 s{kc}, 0, s{kc}")
        for k, (reg, step) in enumerate(offs):
            a(f"s_cselect_b32 s{sT1 + k}, {n * step}, 0")
        for k, (reg, step) in enumerate(offs):
            a(f"s_sub_u32 s{reg}, s{reg}, s{sT1 + k}")

    def lead_order(self, a, n_chunks, period, jreg, offs):
        a(f"""
        s_and_b32 s{sT1}, s{sKt}, {period - 1}
        s_cmp_eq_u32 s{sT1}, s{jreg}
        s_cselect_b32 s{sT2}, 1, 0
        s_cmp_eq_u32 s{sKt}, {n_chunks - 1}
        s_cselect_b32 s{sT2}, 0, s{sT2}
        s_sub_u32 s{sT1}, s{sKt}, 1
        s_and_b32 s{sT1}, s{sT1}, {period - 1}
        s_cmp_eq_u32 s{sT1}, s{jreg}
        s_cselect_b32 s{sT3}, 1, 0
        s_cmp_eq_u32 s{sKt}, 0
        s_cselect_b32 s{sT3}, 0, s{sT3}
        s_add_u32 s{sT2}, s{sT2}, s{sKt}
        s_sub_u32 s{sT2}, s{sT2}, s{sT3}
        s_add_u32 s{sKt}, s{sKt}, 1
        """)
        for reg, base, step in offs:
            a(f"s_mul_i32 s{sT1}, s{sT2}, {step}\ns_add_u32 s{reg}, s{base}, s{sT1}")

    def q_init(self, a):
        super().q_init(a)
        if self.o["rot"] & 16:
            a(f"""
            s_mov_b32 s{sBaseA}, s{sOffA}
            s_mov_b32 s{sBaseB}, s{sOffB}
            s_mov_b32 s{sKt}, 0
            s_lshr_b32 s{sT0}, s{sWg}, 3
            s_lshr_b32 s{sT1}, s{sT0}, 3
            s_add_u32 s{sT0}, s{sT0}, s{sT1}
            s_and_b32 s{sRq}, s{sT0}, 3
            """)
            return
        a(f"""
        s_mov_b32 s{sKcA}, s{sRq}
        s_lshl_b32 s{sT0}, s{sRq}, 7
        s_add_u32 s{sOffA}, s{sOffA}, s{sT0}
        s_mul_i32 s{sT0}, s{sRq}, {64 * 3840}
        s_add_u32 s{sOffB}, s{sOffB}, s{sT0}
        """)

    def q_issue(self, a):
        if self.o["rot"] & 16:
            self.lead_order(a, 10, 4, sRq, [(sOffA, sBaseA, 128), (sOffB, sBaseB, 64 * 3840)])
            super().q_issue(a)
            return
        super().q_issue(a)
        self.wrap(a, sKcA, 10, [(sOffA, 128), (sOffB, 64 * 3840)])

    def m_init(self, a):
        super().m_init(a)
        a(f"""
        s_mov_b32 s{sKcA}, s{sRm}
        s_mov_b32 s{sKt}, 0
        s_mul_i32 s{sT0}, s{sRm}, {128 * 1280}
        s_add_u32 s{sOffA}, s{sOffA}, s{sT0}
        s_mul_i32 s{sT0}, s{sRm}, {128 * 3072}
        s_add_u32 s{sOffB}, s{sOffB}, s{sT0}
        """)

    def m_issue(self, a):
        super().m_issue(a)
        self.wrap(a, sKcA, 8, [(sOffA, 128 * 1280), (sOffB, 128 * 3072)])
        a(f"s_add_u32 s{sKt}, s{sKt}, 1\ns_cmp_eq_u32 s{sKt}, 8")
        a(f"""
        s_cselect_b32 s{sT1}, {8 * 128 * 1280}, 0
        s_cselect_b32 s{sT2}, {8 * 128 * 3072}, 0
        s_add_u32 s{sOffA}, s{sOffA}, s{sT1}
        s_add_u32 s{sOffB}, s{sOffB}, s{sT2}
        """)

    def f_init(self, a):
        super().f_init(a)
        a(f"""
        s_mov_b32 s{sKcA}, s{sRf}
        s_mov_b32 s{sKcB}, s{sRf}
        s_mul_i32 s{sT0}, s{sRf}, {128 * 160}
        s_add_u32 s{sOffA}, s{sOffA}, s{sT0}
        s_mul_i32 s{sT0}, s{sRf}, {128 * 4096}
        s_add_u32 s{sOffB}, s{sOffB}, s{sT0}
        """)

    def f_issue_w2(self, a):
        super().f_issue_w2(a)
        self.wrap(a, sKcB, 12, [(sOffB, 128 * 4096)])

    def f_issue_g(self, a):
        super().f_issue_g(a)
        self.wrap(a, sKcA, 12, [(sOffA, 128 * 160)])

    def wo_init(self, a):
        super().wo_init(a)
        a(f"""
        s_mov_b32 s{sKcA}, s{sRw}
        s_mul_i32 s{sT0}, s{sRw}, {128 * 1280}
        s_add_u32 s{sOffA}, s{sOffA}, s{sT0}
        s_lshl_b32 s{sT0}, s{sRw}, 8
        s_add_u32 s{sOffB}, s{sOffB}, s{sT0}
        """)

    def wo_issue(self, a):
        super().wo_issue(a)
        self.wrap(a, sKcA, 5, [(sOffA, 128 * 1280), (sOffB, 256)])

    def only_w0(self, a, fn):
        lab = a.uid("Lw0")
        a(f"s_cmp_lg_u32 s{sLw}, 0\ns_cbranch_scc1 {lab}")
        fn()
        a.label(lab)

    def nonce_load(self, a):
        a(f"s_load_dword s{sNonce}, s[24:25], {WS_EPOCH}")

    def nonce_make(self, a):
        a(f"""
        s_waitcnt lgkmcnt(0)
        s_mul_i32 s{sNonce}, s{sNonce}, 1664525
        s_add_u32 s{sNonce}, s{sNonce}, 1013904223
        """)

    def flag_set(self, a, off):
        a(f"s_atomic_swap s{sNonce}, s[24:25], s{off}")

    def poll_issue(self, a, vaddr, n=1):
        r = self.LV_PR
        if n == 1:
            a(f"buffer_load_dword v{r}, v{vaddr}, s[{sWS}:{sWS + 3}], 0 offen sc1")
        else:
            a(f"buffer_load_dwordx4 v[{r}:{r + 3}], v{vaddr}, s[{sWS}:{sWS + 3}], 0 offen sc1")

    def poll_test(self, a, n):
        r = self.LV_PR
        a(f"v_cmp_eq_u32 s[{sT0}:{sT0 + 1}], s{sNonce}, v{r}")
        for k in range(1, n):
            a(f"v_cmp_eq_u32 s[{sT2}:{sT2 + 1}], s{sNonce}, v{r + k}")
            a(f"s_and_b64 s[{sT0}:{sT0 + 1}], s[{sT0}:{sT0 + 1}], s[{sT2}:{sT2 + 1}]")
        a(f"s_cmp_eq_u64 s[{sT0}:{sT0 + 1}], exec")

    def poll_check(self, a, vaddr, n=1, sleep=8):
        ok, sp = a.uid("Lpok"), a.uid("Lspin")
        self.poll_test(a, n)
        a(f"s_cbranch_scc1 {ok}")
        self.spin(a, vaddr, n, ok, sp, sleep)
        a.label(ok)

    def spin(self, a, vaddr, n, ok, sp, sleep):
        a(f"s_mov_b32 s{sT6}, {SPIN_MAX}")
        a.label(sp)
        a(f"s_sleep {sleep}")
        self.poll_issue(a, vaddr, n)
        a("s_waitcnt vmcnt(0)")
        self.poll_test(a, n)
        a(f"s_cbranch_scc1 {ok}")
        a(f"s_sub_u32 s{sT6}, s{sT6}, 1\ns_cmp_lg_u32 s{sT6}, 0\ns_cbranch_scc1 {sp}")

    LV_PLA, LV_PKV, LV_PG, LV_PO, LV_PLB, LV_PR = 14, 15, 16, 17, 18, 24
    LV_P1, LV_P2, LV_DUMMY = 100, 103, 96

    def loader_poll_addrs(self, a):
        t0, t1, t2, t3 = 20, 21, 22, 23
        a(f"""
        v_lshrrev_b32 v{t0}, 4, v0
        v_mov_b32 v{t1}, s{sI}
        v_cmp_eq_u32 vcc, 3, v{t0}
        v_cndmask_b32 v{t0}, v{t0}, v{t1}, vcc
        v_lshlrev_b32 v{t0}, 6, v{t0}
        v_and_b32 v{t1}, 15, v0
        v_lshl_add_u32 v{t0}, v{t1}, 2, v{t0}
        v_add_u32 v{self.LV_PLA}, {FL_LN}, v{t0}
        v_and_b32 v{t0}, {31 if self.o["lngood"] else 63}, v0
        v_lshlrev_b32 v{t0}, 4, v{t0}
        v_add_u32 v{self.LV_PLB}, {FL_LN}, v{t0}
        v_min_u32 v{t0}, 2, v0
        v_sub_u32 v{t0}, s{sI}, v{t0}
        v_max_i32 v{t0}, 0, v{t0}
        s_lshl_b32 s{sT0}, s{sP}, 4
        v_add_u32 v{t0}, s{sT0}, v{t0}
        v_lshlrev_b32 v{t0}, 2, v{t0}
        v_add_u32 v{self.LV_PKV}, {FL_KV}, v{t0}
        v_and_b32 v{t0}, 15, v0
        s_lshr_b32 s{sT0}, s{sSt}, 1
        s_lshl_b32 s{sT0}, s{sT0}, 4
        v_add_u32 v{t0}, s{sT0}, v{t0}
        v_lshlrev_b32 v{t0}, 2, v{t0}
        v_add_u32 v{self.LV_PO}, {FL_O}, v{t0}
        v_min_u32 v{t0}, 47, v0
        v_mul_u32_u24 v{t1}, 2731, v{t0}
        v_lshrrev_b32 v{t1}, 16, v{t1}
        v_mul_u32_u24 v{t2}, 24, v{t1}
        v_sub_u32 v{t2}, v{t0}, v{t2}
        s_mul_i32 s{sT0}, s{sDt}, 80
        s_lshr_b32 s{sT0}, s{sT0}, 6
        v_add_u32 v{t1}, s{sT0}, v{t1}
        v_lshlrev_b32 v{t1}, 2, v{t1}
        v_lshl_add_u32 v{t1}, v{t2}, 6, v{t1}
        s_and_b32 s{sT0}, s{sWg}, 7
        s_mul_i32 s{sT0}, s{sT0}, 1536
        s_add_u32 s{sT0}, s{sT0}, {FL_G}
        v_add_u32 v{self.LV_PG}, s{sT0}, v{t1}
        s_cmp_eq_u32 s{sLw}, 0
        s_cselect_b32 s{sT0}, 0, {OOB}
        """)
        for r in (self.LV_PLA, self.LV_PLB, self.LV_PKV, self.LV_PO, self.LV_PG):
            a(f"v_add_u32 v{r}, s{sT0}, v{r}")

    def loader_prefetch_consts(self, a):
        t0, t1, t2 = 20, 21, 22
        for t in range(3):
            a(f"""
            v_add_u32 v{t0}, {64 * t}, v0
            v_mul_u32_u24 v{t1}, 2731, v{t0}
            v_lshrrev_b32 v{t1}, 16, v{t1}
            v_mul_u32_u24 v{t2}, 24, v{t1}
            v_sub_u32 v{t2}, v{t0}, v{t2}
            v_lshlrev_b32 v{t2}, 4, v{t2}
            v_mul_u32_u24 v{t1}, 3072, v{t1}
            v_add_u32 v{self.LV_P1 + t}, v{t1}, v{t2}
            """)
        a(f"""
        v_lshrrev_b32 v{t0}, 5, v0
        v_lshlrev_b32 v{t0}, 12, v{t0}
        v_and_b32 v{t1}, 31, v0
        v_lshl_add_u32 v{self.LV_P2}, v{t1}, 4, v{t0}
        """)

    def code_prefetch(self, a):
        if not self.o["codepf"]:
            return 0
        d = self.LV_DUMMY
        lab = a.uid("Lpc")
        a(f"s_getpc_b64 s[{sT2}:{sT2 + 1}]")
        a.label(lab)
        a(f"""
        s_lshr_b32 s{sT0}, s{sWg}, 3
        s_lshl_b32 s{sT0}, s{sT0}, 10
        s_lshl_b32 s{sT1}, s{sLw}, 15
        s_add_u32 s{sT0}, s{sT0}, s{sT1}
        v_lshl_add_u32 v20, v0, 4, s{sT0}
        s_sub_u32 s{sT2}, s{sT2}, {lab}-{NAME}_kernel
        s_subb_u32 s{sT2 + 1}, s{sT2 + 1}, 0
        v_min_u32 v20, CODE_BYTES-16, v20
        v_mov_b32 v21, s{sT2 + 1}
        v_add_co_u32 v20, vcc, s{sT2}, v20
        v_addc_co_u32 v21, vcc, 0, v21, vcc
        global_load_dwordx4 v[{d}:{d + 3}], v[20:21], off
        """)
        return 1

    def tlb_touch(self, a):
        if not self.o["tlb"]:
            return 0
        d = self.LV_DUMMY
        a(f"v_lshlrev_b32 v20, 21, v0")
        for srd in (sW1, sW2, sWS, sWO, sOUT):
            a(f"buffer_load_dword v{d}, v20, s[{srd}:{srd + 3}], 0 offen")
        return 5

    def pf_range(self, a, srd, start, nbytes):
        if not self.o["prefetch"]:
            return 0
        d = self.LV_DUMMY
        share = nbytes // 256
        per_wave = -(-share // 4096)
        a(f"""
        s_mul_i32 s{sT0}, s{sWg}, {share}
        s_mul_i32 s{sT1}, s{sLw}, {per_wave * 1024}
        s_add_u32 s{sT0}, s{sT0}, s{sT1}
        s_add_u32 s{sT0}, s{sT0}, {start}
        """)
        for k in range(per_wave):
            a(f"buffer_load_dwordx4 v[{d}:{d + 3}], v{self.LV_LIN}, s[{srd}:{srd + 3}], s{sT0} offen offset:{(k % 4) * 1024}")
            if k % 4 == 3:
                a(f"s_add_u32 s{sT0}, s{sT0}, 4096")
        return per_wave

    def pf_w1(self, a):
        if not self.o["prefetch"]:
            return 0
        d = self.LV_DUMMY
        a(f"""
        s_lshr_b32 s{sT0}, s{sWg}, 3
        s_lshl_b32 s{sT0}, s{sT0}, 6
        s_lshl_b32 s{sT1}, s{sLw}, 4
        s_add_u32 s{sT0}, s{sT0}, s{sT1}
        s_mul_i32 s{sT0}, s{sT0}, 3072
        s_and_b32 s{sT1}, s{sWg}, 7
        s_mul_i32 s{sT1}, s{sT1}, 384
        s_add_u32 s{sT0}, s{sT0}, s{sT1}
        """)
        for k in range(6):
            if k == 3:
                a(f"s_add_u32 s{sT0}, s{sT0}, {8 * 3072}")
            a(f"buffer_load_dwordx4 v[{d}:{d + 3}], v{self.LV_P1 + k % 3}, s[{sW1}:{sW1 + 3}], s{sT0} offen nt")
        return 6

    def pf_w2(self, a):
        if not self.o["prefetch"]:
            return 0
        d = self.LV_DUMMY
        a(f"""
        s_lshr_b32 s{sT0}, s{sWg}, 3
        s_mul_i32 s{sT0}, s{sT0}, 48
        s_mul_i32 s{sT1}, s{sLw}, 12
        s_add_u32 s{sT0}, s{sT0}, s{sT1}
        s_lshl_b32 s{sT0}, s{sT0}, 12
        s_and_b32 s{sT1}, s{sWg}, 7
        s_lshl_b32 s{sT1}, s{sT1}, 9
        s_add_u32 s{sT0}, s{sT0}, s{sT1}
        """)
        for k in range(6):
            a(f"buffer_load_dwordx4 v[{d}:{d + 3}], v{self.LV_P2}, s[{sW2}:{sW2 + 3}], s{sT0} offen nt")
            a(f"s_add_u32 s{sT0}, s{sT0}, 8192")
        return 6

    def dma(self, a, srd, voff, soff, add, lds_add, dep=False):
        if self.o.get("fakeh") and voff == self.LV_H:
            a(f"""
            s_add_u32 m0, s{sSW}, {lds_add}
            s_add_u32 s{sT0}, s{soff}, {add - WS_H}
            buffer_load_dwordx4 v{voff}, s[{sX}:{sX + 3}], s{sT0} offen lds
            """)
            return
        pol = ("sc1 " if self.o["ldsc1"] else "") if dep else ("nt " if (srd in (sW1, sW2) and self.o["nt"]) else "")
        a(f"""
        s_add_u32 m0, s{sSW}, {lds_add}
        s_add_u32 s{sT0}, s{soff}, {add}
        buffer_load_dwordx4 v{voff}, s[{srd}:{srd + 3}], s{sT0} offen {pol}lds
        """)

    def lds_spin(self, a, word, target):
        ok, sp = a.uid("Llok"), a.uid("Llspin")
        r = self.LV_PR
        a(f"v_mov_b32 v{r + 1}, {SCR_CNT + 4 * word}\ns_mov_b32 s{sT6}, {SPIN_MAX}")
        a.label(sp)
        a(f"""
        ds_read_b32 v{r}, v{r + 1}
        s_waitcnt lgkmcnt(0)
        v_readfirstlane_b32 s{sT0}, v{r}
        s_cmp_ge_u32 s{sT0}, {target}
        s_cbranch_scc1 {ok}
        s_sleep 1
        s_sub_u32 s{sT6}, s{sT6}, 1
        s_cmp_lg_u32 s{sT6}, 0
        s_cbranch_scc1 {sp}
        """)
        a.label(ok)

    LN_RAW, LN_F, LN_OFF = 64, 76, 100

    def ln_passes(self):
        return 2 if self.o["lngood"] else 1

    def ln_loads(self, a):
        off = self.LN_OFF
        n = self.ln_passes()
        a(f"""
        s_mul_i32 s{sT0}, s{sLnIdx}, {8 * n}
        s_mul_i32 s{sT1}, s{sLw}, {2 * n}
        s_add_u32 s{sT0}, s{sT0}, s{sT1}
        v_lshrrev_b32 v{off + 1}, 5, v0
        v_add_u32 v{off + 1}, s{sT0}, v{off + 1}
        v_and_b32 v{off + 2}, 31, v0
        v_lshlrev_b32 v{off + 2}, 3, v{off + 2}
        v_mul_u32_u24 v{off}, 1280, v{off + 1}
        v_add_u32 v{off}, v{off}, v{off + 2}
        """)
        for ps in range(n):
            raw = self.LN_RAW + 54 * ps
            for j in range(5):
                a(f"buffer_load_dwordx2 v[{raw + 2 * j}:{raw + 2 * j + 1}], v{off}, s[{sX}:{sX + 3}], 0 offen offset:{2560 * ps + 256 * j}")

    def ln_compute(self, a):
        for ps in range(self.ln_passes()):
            self.ln_pass(a, ps)

    def ln_pass(self, a, ps):
        raw, f, off = self.LN_RAW + 54 * ps, self.LN_F, self.LN_OFF
        acc, t, sc, keep = 104, 108, 112, 116
        P = lambda r: f"v[{r}:{r + 1}]"

        def unpack():
            for d in range(10):
                a(f"v_lshlrev_b32 v{f + 2 * d}, 16, v{raw + d}\nv_and_b32 v{f + 2 * d + 1}, s{sT3}, v{raw + d}")

        def stats():
            a(f"v_pk_add_f32 {P(acc)}, {P(f)}, {P(f + 2)}\nv_pk_mul_f32 {P(acc + 2)}, {P(f)}, {P(f)}")
            a(f"v_pk_fma_f32 {P(acc + 2)}, {P(f + 2)}, {P(f + 2)}, {P(acc + 2)}")
            for d in range(2, 10):
                a(f"v_pk_add_f32 {P(acc)}, {P(acc)}, {P(f + 2 * d)}")
                a(f"v_pk_fma_f32 {P(acc + 2)}, {P(f + 2 * d)}, {P(f + 2 * d)}, {P(acc + 2)}")
            a(f"v_add_f32 v{acc}, v{acc}, v{acc + 1}\nv_add_f32 v{acc + 2}, v{acc + 2}, v{acc + 3}\nv_nop")
            for r in (8, 4, 2, 1):
                a(f"v_add_f32_dpp v{acc}, v{acc}, v{acc} row_ror:{r} row_mask:0xf bank_mask:0xf")
                a(f"v_add_f32_dpp v{acc + 2}, v{acc + 2}, v{acc + 2} row_ror:{r} row_mask:0xf bank_mask:0xf")
                a("v_nop")
            a(f"""
            v_mov_b32 v{t}, v{acc}
            v_mov_b32 v{t + 1}, v{acc}
            v_mov_b32 v{t + 2}, v{acc + 2}
            v_mov_b32 v{t + 3}, v{acc + 2}
            v_permlane16_swap_b32 v{t}, v{t + 1}
            v_permlane16_swap_b32 v{t + 2}, v{t + 3}
            v_add_f32 v{acc}, v{t}, v{t + 1}
            v_add_f32 v{acc + 2}, v{t + 2}, v{t + 3}
            v_mul_f32 v{acc}, {f32(1 / 640)}, v{acc}
            v_mov_b32 v{t}, {f32(1e-5)}
            v_fmac_f32 v{t}, {f32(1 / 640)}, v{acc + 2}
            v_fma_f32 v{t}, -v{acc}, v{acc}, v{t}
            v_max_f32 v{t}, {f32(1e-5)}, v{t}
            v_rsq_f32 v{sc}, v{t}
            v_mul_f32 v{sc + 1}, v{acc}, v{sc}
            """)

        def scale_pack(dst):
            for d in range(10):
                a(f"v_pk_fma_f32 {P(f + 2 * d)}, {P(f + 2 * d)}, {P(sc)}, {P(sc)} op_sel:[0,0,1] op_sel_hi:[1,0,1] neg_lo:[0,0,1] neg_hi:[0,0,1]")
            for d in range(10):
                a(f"v_cvt_pk_bf16_f32 v{dst + d}, v{f + 2 * d}, v{f + 2 * d + 1}")

        a(f"s_mov_b32 s{sT3}, 0xffff0000\ns_waitcnt vmcnt({5 * (self.ln_passes() - 1 - ps)})")
        unpack()
        stats()
        H = self.LN_H + 14 * ps
        a(f"v_mov_b32 v{H + 10}, v{acc}\nv_mov_b32 v{H + 11}, v{sc}")
        scale_pack(raw)
        unpack()
        stats()
        scale_pack(H)
        a(f"""
        v_add_u32 v{H + 12}, {WS_H + 2560 * ps}, v{off}
        v_lshlrev_b32 v{off + 4}, 3, v{off + 1}
        v_add_u32 v{off + 4}, {WS_STATS + 16 * ps}, v{off + 4}
        v_and_b32 v{off + 2}, 31, v0
        v_mov_b32 v{off + 3}, {OOB}
        v_cmp_eq_u32 vcc, 0, v{off + 2}
        v_cndmask_b32 v{H + 13}, v{off + 3}, v{off + 4}, vcc
        """)

    LN_H = 212

    def ln_stores(self, a):
        lab = a.uid("Lnoln")
        a(f"s_cmp_eq_u32 s{sLnOn}, 0\ns_cbranch_scc1 {lab}")
        for ps in range(self.ln_passes()):
            H = self.LN_H + 14 * ps
            for j in range(5):
                a(f"buffer_store_dwordx2 v[{H + 2 * j}:{H + 2 * j + 1}], v{H + 12}, s[{sWS}:{sWS + 3}], 0 offen offset:{256 * j} sc1")
            a(f"buffer_store_dwordx2 v[{H + 10}:{H + 11}], v{H + 13}, s[{sWS}:{sWS + 3}], 0 offen sc1")
        a.label(lab)

    def loader_consts_first(self, a):
        X, W, LIN = self.LV_X, self.LV_W, self.LV_LIN
        t0, t1, t2, t3 = 20, 21, 22, 23
        a(f"""
        v_lshrrev_b32 v{t0}, 3, v0
        v_and_b32 v{t1}, 7, v0
        v_lshrrev_b32 v{t2}, 1, v{t0}
        s_and_b32 s{sT0}, s{sLw}, 1
        s_lshl_b32 s{sT0}, s{sT0}, 2
        v_or_b32 v{t3}, s{sT0}, v{t2}
        v_xor_b32 v{t3}, v{t3}, v{t1}
        v_lshlrev_b32 v{t3}, 4, v{t3}
        v_mul_u32_u24 v{X}, 1280, v{t0}
        v_add_u32 v{X}, v{X}, v{t3}
        v_lshlrev_b32 v{LIN}, 4, v0
        v_lshrrev_b32 v{t0}, 4, v0
        v_and_b32 v{t1}, 15, v0
        v_lshlrev_b32 v{t2}, 2, v{t0}
        v_xor_b32 v{t2}, v{t2}, v{t1}
        v_min_u32 v{t2}, 14, v{t2}
        v_mul_u32_u24 v{t3}, 52, v{t2}
        v_lshrrev_b32 v{t3}, 8, v{t3}
        v_mul_u32_u24 v{W}, 5, v{t3}
        v_sub_u32 v{W}, v{t2}, v{W}
        v_lshlrev_b32 v{W}, 4, v{W}
        v_mul_u32_u24 v{t3}, 1280, v{t3}
        v_add_u32 v{W}, v{W}, v{t3}
        v_mul_u32_u24 v{t3}, 3840, v{t0}
        v_add_u32 v{W}, v{W}, v{t3}
        """)

    def fake_w(self, a):
        if not self.o.get("fakew"):
            return
        W = self.LV_W
        a(f"""
        v_lshrrev_b32 v20, 4, v0
        v_and_b32 v21, 15, v0
        v_lshlrev_b32 v22, 2, v20
        v_xor_b32 v22, v22, v21
        v_lshlrev_b32 v22, 4, v22
        v_mul_u32_u24 v{W}, 3840, v20
        v_add_u32 v{W}, v{W}, v22
        s_min_u32 s{sT0}, s{sP}, 14
        s_mul_i32 s{sT0}, s{sT0}, 256
        s_mul_i32 s{sT1}, s{sP}, 80
        s_sub_u32 s{sT0}, s{sT0}, s{sT1}
        v_add_u32 v{W}, s{sT0}, v{W}
        """)

    def xt_issue(self, a):
        a(f"""
        s_lshl_b32 s{sT1}, s{sSt}, 6
        s_lshr_b32 s{sT2}, s{sLw}, 1
        s_lshl_b32 s{sT3}, s{sT2}, 5
        s_add_u32 s{sT1}, s{sT1}, s{sT3}
        s_mul_i32 s{sT1}, s{sT1}, 1280
        s_mul_i32 s{sT3}, s{sDt}, 160
        s_add_u32 s{sT1}, s{sT1}, s{sT3}
        s_mul_i32 s{sT2}, s{sT2}, 5120
        s_add_u32 s{sT2}, s{sT2}, {SCR}
        s_and_b32 s{sT3}, s{sLw}, 1
        """)

        def path(par):
            for t in ((0, 1, 2) if par == 0 else (3, 4, 4)):
                a(f"""
                s_add_u32 m0, s{sT2}, {t * 1024}
                s_nop 0
                buffer_load_dwordx4 v{self.LV_WO + t}, s[{sX}:{sX + 3}], s{sT1} offen lds
                """)
        self.by_scalar(a, sT3, path)

    def loader(self, a):
        W = lambda n: self.wait_bar(a, n)

        def Wchk(n, chk):
            self.stamp(a, 0)
            a(f"s_waitcnt vmcnt({n})")
            self.only_w0(a, chk)
            self.stamp(a, 1)
            a("s_barrier")
            self.stamp(a, 2, bump=True)
        self.loader_consts_first(a)
        self.fake_w(a)
        a(f"s_mov_b32 s{sSlot}, 0")
        self.q_init(a)
        self.mark(a)
        self.q_issue(a)
        nT = self.tlb_touch(a) + self.code_prefetch(a)
        self.nonce_load(a)
        self.loader_consts(a)
        self.fake_w(a)
        self.loader_poll_addrs(a)
        self.nonce_make(a)
        lead = self.o["lead"]
        self.q_issue(a)
        if lead == 3:
            self.q_issue(a)
        self.mark(a)
        L = 8 * (lead - 1)
        W(L + (0 if lead == 3 else nT)); self.q_issue(a)
        self.mark(a)
        W(L); self.q_issue(a)
        W(L)

        def ln_done():
            skip = a.uid("Llnoff")
            a(f"s_cmp_eq_u32 s{sLnOn}, 0\ns_cbranch_scc1 {skip}")
            a(f"s_lshl_b32 s{sT4}, s{sLnIdx}, 2\ns_add_u32 s{sT4}, s{sT4}, {FL_LN}")
            self.flag_set(a, sT4)
            a.label(skip)
            a(f"s_mov_b32 s{sArr}, 1\ns_atomic_add s{sArr}, s[22:23], 0x0 glc")
        self.only_w0(a, ln_done)
        self.q_issue(a)
        W(L); self.q_issue(a)
        W(L); self.q_issue(a)
        W(L); self.q_issue(a)
        W(L)
        self.poll_issue(a, self.LV_PLB, 4)
        chk = lambda: self.poll_check(a, self.LV_PLB, 4)
        if lead == 2:
            self.q_issue(a)
            W(9)
            self.q_issue(a)
            Wchk(8, chk)
            self.m_init(a)
            self.m_issue(a)
            W(8); self.m_issue(a)
            self.m_issue(a)
        else:
            self.q_issue(a)
            W(17)
            Wchk(8, chk)
            self.m_init(a)
            self.m_issue(a)
            W(8); self.m_issue(a)
            self.m_issue(a)
        self.mark(a)
        a("s_barrier")
        a("s_barrier")
        self.kv_copy_out(a)

        def ln_all():
            lab = a.uid("Lep")
            a(f"s_waitcnt lgkmcnt(0)\ns_cmp_lg_u32 s{sArr}, 255\ns_cbranch_scc1 {lab}")
            a(f"s_mov_b32 s{sT4}, {WS_EPOCH}")
            self.flag_set(a, sT4)
            a.label(lab)
        Wchk(22, ln_all)
        self.m_issue(a)
        W(22); self.m_issue(a)
        W(16)

        def kv_done():
            a(f"""
            s_lshl_b32 s{sT4}, s{sP}, 4
            s_add_u32 s{sT4}, s{sT4}, s{sI}
            s_lshl_b32 s{sT4}, s{sT4}, 2
            s_add_u32 s{sT4}, s{sT4}, {FL_KV}
            """)
            self.flag_set(a, sT4)
        self.only_w0(a, kv_done)
        self.m_issue(a)
        self.loop(a, 7, lambda: (W(16), self.m_issue(a)))
        W(16)
        self.poll_issue(a, self.LV_PKV)
        self.m_issue(a)
        W(17); self.m_issue(a)
        W(17); self.m_issue(a)
        Wchk(16, lambda: self.poll_check(a, self.LV_PKV))
        self.kv_init(a)
        self.kv_issue(a, 0, 9)
        W(17)
        self.kv_issue(a, 9, 16)
        W(16)
        self.f_init(a)
        a(f"s_mov_b32 s{sSlot}, 0")
        a("s_barrier")
        W(0)
        self.mark(a)
        self.g_copy_out(a)
        a(f"""
        s_waitcnt vmcnt(0)
        v_mov_b32 v20, {SCR_CNT}
        v_mov_b32 v21, 1
        s_mov_b32 exec_hi, 0
        s_mov_b32 exec_lo, 1
        ds_add_u32 v20, v21
        s_mov_b64 exec, -1
        """)
        self.mark(a)

        def g_pub():
            self.lds_spin(a, 0, 4)
            skip = a.uid("Lgidle")
            a(f"s_cmp_eq_u32 s{sM1On}, 0\ns_cbranch_scc1 {skip}")
            a(f"""
            s_lshl_b32 s{sT4}, s{sFt}, 6
            s_lshl_b32 s{sT5}, s{sDt1}, 2
            s_add_u32 s{sT4}, s{sT4}, s{sT5}
            s_add_u32 s{sT4}, s{sT4}, {FL_G}
            """)
            for r in range(8):
                self.flag_set(a, sT4)
                if r < 7:
                    a(f"s_add_u32 s{sT4}, s{sT4}, 1536")
            a.label(skip)
        self.only_w0(a, g_pub)
        self.mark(a)
        self.slot_begin(a)
        self.f_issue_w2(a)
        a(f"s_add_u32 s{sSW}, s{sSW}, {SLOT}")
        self.f_issue_w2(a)

        def g_sync():
            ok, sp = a.uid("Lgok"), a.uid("Lgspin")
            self.spin(a, self.LV_PG, 1, ok, sp, self.o["gsleep"])
            a.label(ok)
            a(f"v_mov_b32 v20, {SCR_CNT + 4}\nv_mov_b32 v21, 1\nds_write_b32 v20, v21")
        self.mark(a)
        self.only_w0(a, g_sync)
        self.mark(a)
        self.lds_spin(a, 1, 1)
        self.slot_begin(a)
        self.f_issue_g(a)
        a(f"s_add_u32 s{sSW}, s{sSW}, {SLOT}")
        self.f_issue_g(a)
        a(f"s_mov_b32 s{sSlot}, {2 * SLOT}")
        W(5)
        self.mark(a)
        self.f_issue(a); self.f_issue(a)
        self.o_copy_out(a)
        W(21)
        self.f_issue(a)
        W(21); self.f_issue(a)
        W(18)

        def o_done():
            a(f"""
            s_lshl_b32 s{sT4}, s{sI}, 4
            s_add_u32 s{sT4}, s{sT4}, s{sP}
            s_lshl_b32 s{sT4}, s{sT4}, 2
            s_add_u32 s{sT4}, s{sT4}, {FL_O}
            """)
            self.flag_set(a, sT4)
        self.only_w0(a, o_done)
        self.f_issue(a)
        self.xt_issue(a)
        W(21); self.f_issue(a)
        W(21); self.f_issue(a)
        W(21)
        self.poll_issue(a, self.LV_PO)
        self.f_issue(a)
        W(19); self.f_issue(a)
        W(19); self.f_issue(a)
        Wchk(18, lambda: self.poll_check(a, self.LV_PO))
        self.wo_init(a)
        self.wo_issue(a)
        self.loop(a, 4, lambda: (W(18), self.wo_issue(a)))
        W(18); W(9); W(0)
        a("s_barrier")

    def m_consts(self, a):
        t0, t1, t2, t3, t4 = 190, 191, 192, 193, 194
        saved = (self.M_ACC,)
        super().m_consts(a)

    def zero(self, a, r0, n):
        for r in reversed(range(r0, r0 + n)):
            a(f"v_mov_b32 v{r}, 0")

    def a_consts(self, a, zero_o=True):
        super().a_consts(a)

    def q_reads(self, ks, b=None):
        base = self.Q_BUF + 16 * ks
        out = []
        for tm in range(2):
            for rd in range(2):
                out.append(f"ds_read_b64_tr_b16 v[{base + 4 * tm + 2 * rd}:{base + 4 * tm + 2 * rd + 1}], v{self.Q_AA + tm} offset:{(16 * ks + 4 * rd) * 256}")
        for tn in range(2):
            out.append(f"ds_read_b128 v[{base + 8 + 4 * tn}:{base + 11 + 4 * tn}], v{self.Q_AB + ks} offset:{tn * 4096}")
        return out

    @staticmethod
    def czero(mf):
        return [m.rsplit(",", 1)[0] + ", 0" for m in mf]

    def q_group(self, ks, wn):
        base = self.Q_BUF + 16 * ks
        cs, on = self.Q_CS, self.Q_ONES
        return self.q_mfmas(ks) + [f"v_mfma_f32_16x16x32_bf16 v[{cs}:{cs + 3}], v[{base + 4 * wn}:{base + 4 * wn + 3}], v[{on}:{on + 3}], v[{cs}:{cs + 3}]"]

    def q_addr(self):
        return ([f"v_add_u32 v{self.Q_AA + tm}, s{sSlot}, v{self.Q_CA + tm}" for tm in range(2)] +
                [f"v_add_u32 v{self.Q_AB + ks}, s{sSlot}, v{self.Q_CB + ks}" for ks in range(4)])

    def q_stage(self, a, wn, first, hook=None, pre=None):
        if pre:
            pre()
        self.cbar(a)
        if hook:
            hook()
        r01 = self.q_reads(0) + self.q_reads(1)
        if first:
            for r in r01:
                a(r)
        else:
            self.spread(a, self.q_group(3, wn), r01)
        a("s_waitcnt lgkmcnt(6)")
        g0 = self.q_group(0, wn)
        self.spread(a, self.czero(g0) if first else g0, self.q_reads(2))
        a("s_waitcnt lgkmcnt(6)")
        self.spread(a, self.q_group(1, wn), self.q_reads(3))
        self.slot_next(a)
        a("s_waitcnt lgkmcnt(6)")
        g2 = self.q_group(2, wn)
        self.spread(a, g2[4:] + g2[:4], self.q_addr())
        a("s_waitcnt lgkmcnt(0)")
        if self.o.get("qmarks"):
            self.mark(a)

    @staticmethod
    def spread(a, mf, other):
        n = len(mf)
        k = 0
        for i, m in enumerate(mf):
            a(m)
            upto = -(-(len(other) * (i + 1)) // n)
            for r in other[k:upto]:
                a(r)
            k = upto

    def q_epilogue(self, a, wm):
        C, AB, T = 136, 168, 176
        ST = self.V_ST
        a(f"""
        v_lshrrev_b32 v{T}, 5, v0
        v_lshlrev_b32 v{T + 1}, 4, v{T}
        v_add_u32 v{T + 1}, {SCR_CS + wm * 256}, v{T + 1}
        """)
        for tm in range(2):
            for q in range(4):
                r = C + 16 * tm + 4 * q
                a(f"ds_read_b128 v[{r}:{r + 3}], v{T + 1} offset:{tm * 128 + q * 32}")
        a(f"""
        s_lshl_b32 s{sT1}, s{sWn}, 6
        v_and_b32 v{T + 2}, 31, v0
        v_add_u32 v{T + 2}, s{sT1}, v{T + 2}
        v_lshlrev_b32 v{T}, 3, v{T}
        v_mul_u32_u24 v{T + 3}, 80, v{T + 2}
        v_add_u32 v{T + 3}, v{T + 3}, v{T}
        v_add_u32 v{T + 3}, {SCR}, v{T + 3}
        v_mul_u32_u24 v{T + 4}, {KVROW}, v{T + 2}
        v_add_u32 v{T + 4}, v{T + 4}, v{T}
        v_add_u32 v{T + 4}, {SLOT}, v{T + 4}
        """)
        for tn in range(2):
            m_, r_ = ST + 2 * tn, ST + 2 * tn + 1
            o = AB + 4 * tn
            a(f"""
            v_mov_b32 v{o}, v{r_}
            v_mul_f32 v{o + 1}, v{m_}, v{r_}
            v_mul_f32 v{o + 2}, {f32(QSCALE)}, v{r_}
            v_mul_f32 v{o + 3}, {f32(QSCALE)}, v{o + 1}
            """)
        a("s_waitcnt lgkmcnt(0)")
        for tn in range(2):
            for tm in range(2):
                acc = self.Q_ACC + 16 * (2 * tm + tn)
                quads = []
                for q in range(4):
                    Q0 = 16 * wm + 8 * tm + 2 * q
                    quads.append((Q0, AB + 4 * tn + (2 if Q0 < 10 else 0), C + 16 * tm + 4 * q, acc + 4 * q))
                live = [t for t in quads if t[0] != 30]
                for Q0, o, c, x in live:
                    for y in (x, x + 2):
                        a(f"v_pk_mul_f32 v[{y}:{y + 1}], v[{y}:{y + 1}], v[{o}:{o + 1}] op_sel_hi:[1,0]")
                for Q0, o, c, x in live:
                    for hf in range(2):
                        y = x + 2 * hf
                        a(f"v_pk_fma_f32 v[{y}:{y + 1}], v[{c + 2 * hf}:{c + 2 * hf + 1}], v[{o}:{o + 1}], v[{y}:{y + 1}] op_sel:[0,1,0] op_sel_hi:[1,1,1] neg_lo:[1,0,0] neg_hi:[1,0,0]")
                for Q0, o, c, x in live:
                    a(f"v_cvt_pk_bf16_f32 v{x}, v{x}, v{x + 1}")
                for Q0, o, c, x in live:
                    a(f"v_cvt_pk_bf16_f32 v{x + 1}, v{x + 2}, v{x + 3}")
                for Q0, o, c, x in quads:
                    if Q0 == 30:
                        a(f"v_mov_b32 v{x}, 0x00003f80\nv_mov_b32 v{x + 1}, 0")
                        a(f"""
                        s_mov_b32 exec_hi, 0
                        ds_write_b64 v{T + 4}, v[{x}:{x + 1}] offset:{tn * 32 * KVROW + 160}
                        s_mov_b64 exec, -1
                        """)
                    elif Q0 < 10:
                        a(f"ds_write_b64 v{T + 3}, v[{x}:{x + 1}] offset:{tn * 32 * 80 + Q0 * 8}")
                    else:
                        a(f"ds_write_b64 v{T + 4}, v[{x}:{x + 1}] offset:{tn * 32 * KVROW + (Q0 - 10) * 8}")
        a("s_waitcnt lgkmcnt(0)")

    def kv_copy_out(self, a):
        R, T = 32, 28
        a(f"""
        v_lshlrev_b32 v{T}, 4, v0
        s_lshl_b32 s{sT0}, s{sLw}, 10
        v_add_u32 v{T}, s{sT0}, v{T}
        v_add_u32 v{T + 1}, {SLOT}, v{T}
        s_lshl_b32 s{sT1}, s{sP}, 11
        s_lshl_b32 s{sT2}, s{sI}, 7
        s_add_u32 s{sT1}, s{sT1}, s{sT2}
        s_mul_i32 s{sT1}, s{sT1}, {KVROW}
        s_add_u32 s{sT1}, s{sT1}, {WS_KV}
        v_add_u32 v{T + 2}, s{sT1}, v{T}
        s_cmp_eq_u32 s{sLw}, 0
        s_cselect_b32 s{sT2}, 0, {OOB}
        v_add_u32 v{T + 3}, s{sT2}, v{T + 2}
        """)
        for k in range(6):
            a(f"ds_read_b128 v[{R + 4 * k}:{R + 4 * k + 3}], v{T + 1} offset:{k * 4096}")
        for k in range(6):
            a(f"s_waitcnt lgkmcnt({5 - k})")
            a(f"s_mov_b32 s{sT0}, {k * 4096}")
            a(f"buffer_store_dwordx4 v[{R + 4 * k}:{R + 4 * k + 3}], v{T + (3 if k == 5 else 2)}, s[{sWS}:{sWS + 3}], s{sT0} offen sc1")

    def q_csum_write(self, a):
        t0, t1 = 176, 177
        cs = self.Q_CS
        a(f"""
        v_and_b32 v{t0}, 1, v0
        v_lshlrev_b32 v{t0}, 6, v{t0}
        v_lshrrev_b32 v{t1}, 4, v0
        v_lshl_add_u32 v{t0}, v{t1}, 4, v{t0}
        s_lshl_b32 s{sT0}, s{sWm}, 8
        s_lshl_b32 s{sT1}, s{sWn}, 7
        s_add_u32 s{sT0}, s{sT0}, s{sT1}
        s_add_u32 s{sT0}, s{sT0}, {SCR_CS}
        v_add_u32 v{t0}, s{sT0}, v{t0}
        v_and_b32 v{t1}, 14, v0
        v_cmp_eq_u32 vcc, 0, v{t1}
        s_and_saveexec_b64 s[{sEx}:{sEx + 1}], vcc
        ds_write_b128 v{t0}, v[{cs}:{cs + 3}]
        s_mov_b64 exec, s[{sEx}:{sEx + 1}]
        s_waitcnt lgkmcnt(0)
        """)

    def c_qkv(self, a):
        T = 212
        for c in self.q_addr():
            a(c)

        def stats():
            ST = self.V_ST
            a(f"""
            s_lshl_b32 s{sT0}, s{sI}, 7
            s_lshl_b32 s{sT1}, s{sWn}, 6
            s_add_u32 s{sT0}, s{sT0}, s{sT1}
            v_and_b32 v{T + 1}, 31, v0
            v_add_u32 v{T + 1}, s{sT0}, v{T + 1}
            v_lshlrev_b32 v{T + 1}, 3, v{T + 1}
            v_add_u32 v{T + 1}, {WS_STATS}, v{T + 1}
            buffer_load_dwordx2 v[{ST}:{ST + 1}], v{T + 1}, s[{sWS}:{sWS + 3}], 0 offen sc1
            buffer_load_dwordx2 v[{ST + 2}:{ST + 3}], v{T + 1}, s[{sWS}:{sWS + 3}], 0 offen offset:256 sc1
            """)

        def run(wn):
            self.q_stage(a, wn, True, hook=lambda: self.ln_stores(a))
            self.mark(a)
            self.q_stage(a, wn, False)
            self.q_stage(a, wn, False, pre=lambda: a("s_waitcnt vmcnt(0)"))
            self.loop(a, 5, lambda: self.q_stage(a, wn, False))
            self.q_stage(a, wn, False, hook=stats)
            self.q_stage(a, wn, False)
            for m in self.q_group(3, wn):
                a(m)
        self.by_scalar(a, sWn, run)
        self.mark(a)
        self.q_csum_write(a)
        a("s_barrier")
        a("s_waitcnt vmcnt(0)")
        self.by_scalar(a, sWm, lambda wm: self.q_epilogue(a, wm))
        a("s_barrier")

    def m_addr(self):
        return ([f"v_add_u32 v{self.M_AA + tm}, s{sSlot}, v{self.M_CA + tm}" for tm in range(2)] +
                [f"v_add_u32 v{self.M_AB}, s{sSlot}, v{self.M_CB}"])

    def m_stage(self, a, first, pre=None, hook=None):
        if pre:
            pre()
        self.cbar(a)
        if hook:
            hook()
        r01 = self.m_reads(0) + self.m_reads(1)
        if first:
            for r in r01:
                a(r)
        else:
            self.spread(a, self.m_mfmas(2) + self.m_mfmas(3), r01)
        a("s_waitcnt lgkmcnt(6)")
        self.spread(a, self.czero(self.m_mfmas(0)) if first else self.m_mfmas(0), self.m_reads(2))
        a("s_waitcnt lgkmcnt(6)")
        self.spread(a, self.m_mfmas(1), self.m_reads(3))
        self.slot_next(a)
        for c in self.m_addr():
            a(c)
        a("s_waitcnt lgkmcnt(0)")

    def m_reduce_write(self, a, kh):
        t = 190
        src = self.M_ACC + 16 * (1 - kh)
        a(f"""
        v_lshlrev_b32 v{t}, 4, v0
        s_lshl_b32 s{sT0}, s{sLw}, 12
        s_add_u32 s{sT0}, s{sT0}, {M_RED}
        v_add_u32 v{t}, s{sT0}, v{t}
        """)
        for q in range(4):
            a(f"ds_write_b128 v{t}, v[{src + 4 * q}:{src + 4 * q + 3}] offset:{q * 1024}")
        a("s_waitcnt lgkmcnt(0)")

    def m_epilogue(self, a, kh):
        t, R, U = 190, 136, 160
        B1 = self.V_B1
        keep = self.M_ACC + 16 * kh
        a(f"""
        v_lshlrev_b32 v{t}, 4, v0
        s_xor_b32 s{sT0}, s{sLw}, 2
        s_lshl_b32 s{sT0}, s{sT0}, 12
        s_add_u32 s{sT0}, s{sT0}, {M_RED}
        v_add_u32 v{t}, s{sT0}, v{t}
        """)
        for q in range(4):
            a(f"ds_read_b128 v[{R + 4 * q}:{R + 4 * q + 3}], v{t} offset:{q * 1024}")
        a(f"""
        s_lshl_b32 s{sT1}, s{sWn}, 5
        v_and_b32 v{U}, 31, v0
        v_add_u32 v{U}, s{sT1}, v{U}
        v_mul_u32_u24 v{U}, {GROW}, v{U}
        v_lshrrev_b32 v{U + 1}, 5, v0
        v_lshl_add_u32 v{U}, v{U + 1}, 3, v{U}
        v_add_u32 v{U}, {SLOT + 64 * kh}, v{U}
        """)
        c0 = -2.0 * math.sqrt(2.0 / math.pi) * math.log2(math.e)
        c1 = c0 * 0.044715
        a(f"v_lshlrev_b32 v{U + 2}, 16, v{B1}\nv_mov_b32 v{U + 4}, {f32(c1)}\nv_mov_b32 v{U + 5}, {f32(c0)}\nv_mov_b32 v{U + 6}, 1.0")
        a("s_waitcnt lgkmcnt(0)")
        P = lambda r: f"v[{r}:{r + 1}]"
        for r in range(0, 16, 2):
            a(f"v_pk_add_f32 {P(keep + r)}, {P(keep + r)}, {P(R + r)}")
        for r in range(0, 16, 2):
            a(f"v_pk_add_f32 {P(keep + r)}, {P(keep + r)}, {P(U + 2)} op_sel_hi:[1,0]")
        for r in range(0, 16, 2):
            a(f"v_pk_mul_f32 {P(R + r)}, {P(keep + r)}, {P(keep + r)}")
        for r in range(0, 16, 2):
            a(f"v_pk_fma_f32 {P(R + r)}, {P(R + r)}, {P(U + 4)}, {P(U + 4)} op_sel:[0,0,1] op_sel_hi:[1,0,1]")
        for r in range(0, 16, 2):
            a(f"v_pk_mul_f32 {P(R + r)}, {P(R + r)}, {P(keep + r)}")
        for r in range(16):
            a(f"v_exp_f32 v{R + r}, v{R + r}")
        for r in range(0, 16, 2):
            a(f"v_pk_add_f32 {P(R + r)}, {P(R + r)}, {P(U + 6)} op_sel_hi:[1,0]")
        for r in range(16):
            a(f"v_rcp_f32 v{R + r}, v{R + r}")
        for r in range(0, 16, 2):
            a(f"v_pk_mul_f32 {P(keep + r)}, {P(keep + r)}, {P(R + r)}")
        for q in range(4):
            x = keep + 4 * q
            a(f"v_cvt_pk_bf16_f32 v{x}, v{x}, v{x + 1}\nv_cvt_pk_bf16_f32 v{x + 1}, v{x + 2}, v{x + 3}")
            a(f"ds_write_b64 v{U}, v[{x}:{x + 1}] offset:{16 * q}")
        a("s_waitcnt lgkmcnt(0)")

    def g_copy_out(self, a):
        R, T = 40, 28
        a(f"""
        v_lshrrev_b32 v{T}, 3, v0
        s_lshl_b32 s{sT0}, s{sLw}, 4
        v_add_u32 v{T}, s{sT0}, v{T}
        v_and_b32 v{T + 1}, 7, v0
        v_mul_u32_u24 v{T + 2}, {GROW}, v{T}
        v_lshl_add_u32 v{T + 2}, v{T + 1}, 4, v{T + 2}
        v_add_u32 v{T + 2}, {SLOT}, v{T + 2}
        ds_read_b128 v[{R}:{R + 3}], v{T + 2}
        ds_read_b128 v[{R + 4}:{R + 7}], v{T + 2} offset:{8 * GROW}
        s_lshl_b32 s{sT0}, s{sDt1}, 6
        v_lshl_add_u32 v{T + 1}, v{T + 1}, 3, s{sT0}
        v_mul_u32_u24 v{T + 3}, 820, v{T + 1}
        v_lshrrev_b32 v{T + 3}, 16, v{T + 3}
        v_mul_u32_u24 v{T + 4}, 80, v{T + 3}
        v_sub_u32 v{T + 1}, v{T + 1}, v{T + 4}
        v_mul_u32_u24 v{T + 3}, {1536 * 160}, v{T + 3}
        v_lshl_add_u32 v{T + 3}, v{T + 1}, 1, v{T + 3}
        s_lshl_b32 s{sT0}, s{sFt}, 6
        v_add_u32 v{T}, s{sT0}, v{T}
        v_mul_u32_u24 v{T}, 160, v{T}
        v_add_u32 v{T + 3}, v{T + 3}, v{T}
        s_mov_b32 s{sT1}, {WS_GT}
        s_cmp_eq_u32 s{sM1On}, 0
        s_cselect_b32 s{sT0}, {OOB}, s{sT1}
        v_add_u32 v{T + 3}, s{sT0}, v{T + 3}
        s_waitcnt lgkmcnt(0)
        buffer_store_dwordx4 v[{R}:{R + 3}], v{T + 3}, s[{sWS}:{sWS + 3}], 0 offen sc1
        buffer_store_dwordx4 v[{R + 4}:{R + 7}], v{T + 3}, s[{sWS}:{sWS + 3}], 0 offen offset:{8 * 160} sc1
        """)

    def c_mix1(self, a):
        T = 200
        a(f"""
        s_lshl_b32 s{sT0}, s{sFt}, 6
        s_lshl_b32 s{sT1}, s{sWn}, 5
        s_add_u32 s{sT0}, s{sT0}, s{sT1}
        v_and_b32 v{T}, 31, v0
        v_add_u32 v{T}, s{sT0}, v{T}
        v_lshlrev_b32 v{T}, 1, v{T}
        buffer_load_ushort v{self.V_B1}, v{T}, s[{sB1}:{sB1 + 3}], 0 offen
        """)
        for c in self.m_addr():
            a(c)
        self.m_stage(a, True)
        self.zero(a, self.A_O, 16)
        self.m_stage(a, False)
        self.zero(a, self.A_O + 16, 16)
        self.m_stage(a, False)
        self.mark(a)
        self.loop(a, 13, lambda: self.m_stage(a, False))
        for m in self.m_mfmas(2) + self.m_mfmas(3):
            a(m)
        self.mark(a)
        self.by_scalar(a, sWm, lambda kh: self.m_reduce_write(a, kh))
        a("s_barrier")
        a("s_waitcnt vmcnt(0)")
        self.by_scalar(a, sWm, lambda kh: self.m_epilogue(a, kh))
        self.a_zero(a)
        self.cbar(a)

    def a_addr_consts(self, a):
        keep = (self.A_O, self.A_K)
        body = Asm()
        B.Gen.a_consts(self, body)
        for it in body.items:
            if it.mn == "v_mov_b32" and it.ops[0][0] == "v":
                r = int(it.ops[0][1:])
                if self.A_O <= r < self.A_O + 32 or self.A_K <= r < self.A_K + 16:
                    continue
            a.items.append(it)

    def a_zero(self, a):
        for hh in range(2):
            for base in (self.A_K, self.A_Q):
                a(f"v_mov_b32 v{base + 8 * hh + 6}, 0\nv_mov_b32 v{base + 8 * hh + 7}, 0")

    def a_qreads(self, a):
        T = self.A_T
        a(f"""
        s_lshl_b32 s{sT0}, s{sLw}, 5
        v_and_b32 v{T}, 31, v0
        v_add_u32 v{T}, s{sT0}, v{T}
        v_mul_u32_u24 v{T}, 80, v{T}
        v_add_u32 v{T}, {SCR}, v{T}
        v_lshrrev_b32 v{T + 1}, 5, v0
        v_lshl_add_u32 v{T + 1}, v{T + 1}, 4, v{T}
        """)
        for hh in range(2):
            q = self.A_Q + 8 * hh
            a(f"""
            ds_read_b64 v[{q}:{q + 1}], v{T + 1} offset:{40 * hh}
            ds_read_b64 v[{q + 2}:{q + 3}], v{T + 1} offset:{40 * hh + 8}
            ds_read_b64 v[{q + 4}:{q + 5}], v{T} offset:{40 * hh + 32}
            """)

    def a_qmask(self, a):
        for hh in range(2):
            q = self.A_Q + 8 * hh
            a(f"""
            s_mov_b32 exec_lo, 0
            v_mov_b32 v{q + 4}, 0
            v_mov_b32 v{q + 5}, 0
            s_mov_b64 exec, -1
            """)

    def kr(self, hh, dt):
        k = self.A_K + 8 * hh
        o = dt * 32 * KVROW + 40 * hh
        return [f"ds_read_b64 v[{k}:{k + 1}], v{self.A_KA} offset:{o}",
                f"ds_read_b64 v[{k + 2}:{k + 3}], v{self.A_KA} offset:{o + 8}",
                f"ds_read_b64 v[{k + 4}:{k + 5}], v{self.A_KA + 1} offset:{o + 32}"]

    def vr(self, hh, dt):
        x = self.A_V + 8 * hh
        return [f"ds_read_b64_tr_b16 v[{x + 4 * aa + 2 * rd}:{x + 4 * aa + 2 * rd + 1}], v{self.A_VA + hh} offset:{(dt * 32 + 16 * aa + 8 * rd) * KVROW}"
                for aa in range(2) for rd in range(2)]

    def a_slot(self, a, hv, qk_mask, do_qk, do_pv, dk, dv, rd_k=True, rd_v=True, wait=7):
        ho = 1 - hv
        sreg, p = self.A_S + 16 * hv, self.A_P + 8 * hv
        a(f"s_waitcnt lgkmcnt({wait})")
        qk = self.a_qk(ho, qk_mask) if do_qk else [None, None]
        pv = self.a_pv(ho) if do_pv else [None, None]
        kr = self.kr(ho, dk) if rd_k else []
        vr = self.vr(ho, dv) if rd_v else []
        plan = [(qk[0], kr[:2]), (qk[1], kr[2:]), (pv[0], vr[:2]), (pv[1], vr[2:])]
        for g, (m, rds) in enumerate(plan):
            if m:
                a(m)
            for r in rds:
                a(r)
            for q in range(4):
                a(f"v_exp_f32 v{sreg + 4 * g + q}, v{sreg + 4 * g + q}")
        for r in range(8):
            a(f"v_cvt_pk_bf16_f32 v{p + r}, v{sreg + 2 * r}, v{sreg + 2 * r + 1}")

    def a_iter(self, a, first, mask_a, mask_b, last):
        self.a_slot(a, 0, mask_a, True, not first, 1, 0, rd_k=not last, wait=7 if not last else 7)
        if last:
            self.a_slot(a, 1, None, False, True, 0, 0, rd_k=False, rd_v=False, wait=4)
            a("s_waitcnt lgkmcnt(0)")
            for m in self.a_pv(1):
                a(m)
        else:
            self.a_slot(a, 1, mask_b, True, True, 2, 1)
            for r in (self.A_KA, self.A_KA + 1, self.A_VA, self.A_VA + 1):
                a(f"v_add_u32 v{r}, {32 * KVROW}, v{r}")

    def g_publish(self, a):
        lab = a.uid("Lgp")
        T = 208
        a(f"s_cmp_lg_u32 s{sPub}, 0\ns_cbranch_scc1 {lab}")
        a(f"""
        s_mov_b32 s{sPub}, 1
        s_waitcnt vmcnt(0)
        v_mov_b32 v{T}, {SCR_CNT}
        v_mov_b32 v{T + 1}, 1
        s_mov_b32 exec_hi, 0
        s_mov_b32 exec_lo, 1
        ds_add_u32 v{T}, v{T + 1}
        s_mov_b64 exec, -1
        """)
        a.label(lab)

    def attention(self, a):
        T = self.A_T
        a(f"""
        s_lshl_b32 s{sT0}, s{sI}, 2
        s_add_u32 s{sT0}, s{sT0}, s{sLw}
        s_cmp_ge_u32 s{sT0}, 8
        s_cselect_b32 s{sT0}, 8, s{sT0}
        s_sub_u32 s{sT2}, 8, s{sT0}
        """)
        self.a_skip(a, sT2)
        self.a_qreads(a)
        for hh in range(2):
            for r in self.kr(hh, 0):
                a(r)
        a("s_waitcnt lgkmcnt(0)")
        self.a_qmask(a)
        MF, MD = self.A_MF, self.A_MD
        L = {k: a.uid("La" + k) for k in ("far", "n2", "n1", "mid", "pre", "last", "done")}

        def head(mask):
            for m in self.a_qk(0, mask):
                a(m)
            for r in self.kr(0, 1) + self.vr(0, 0):
                a(r)
        a(f"s_cmp_eq_u32 s{sT2}, 0\ns_cbranch_scc1 {L['far']}")
        a(f"s_cmp_eq_u32 s{sT2}, 7\ns_cbranch_scc1 {L['n2']}")
        a(f"s_cmp_eq_u32 s{sT2}, 8\ns_cbranch_scc1 {L['n1']}")
        head(None)
        self.a_iter(a, True, None, None, False)
        a(f"s_sub_u32 s{sCnt}, 6, s{sT2}\ns_cmp_eq_u32 s{sCnt}, 0\ns_cbranch_scc1 {L['pre']}\ns_branch {L['mid']}")
        a.label(L["n2"])
        head(None)
        self.a_iter(a, True, None, MD, False)
        a(f"s_branch {L['last']}")
        a.label(L["n1"])
        head(MD)
        self.a_iter(a, True, MD, None, True)
        a(f"s_branch {L['done']}")
        a.label(L["far"])
        head(MF)
        self.a_iter(a, True, MF, None, False)
        a(f"s_mov_b32 s{sCnt}, 6")
        a.label(L["mid"])
        self.a_iter(a, False, None, None, False)
        a(f"s_sub_u32 s{sCnt}, s{sCnt}, 1\ns_cmp_lg_u32 s{sCnt}, 0\ns_cbranch_scc1 {L['mid']}")
        a.label(L["pre"])
        self.a_iter(a, False, None, MD, False)
        a.label(L["last"])
        self.a_iter(a, False, MD, None, True)
        a.label(L["done"])
        lfb, ldone = a.uid("Lfallback"), a.uid("Lnorm")
        self.fallback_labels = (lfb, ldone)
        self.a_rowsum(a)
        a(f"""
        v_mov_b32 v{T + 4}, {f32(2.0 ** -40)}
        v_mov_b32 v{T + 5}, {f32(2.0 ** 40)}
        v_cmp_ge_f32 s[{sT0}:{sT0 + 1}], v{T}, v{T + 4}
        v_cmp_le_f32 s[{sT2}:{sT2 + 1}], v{T}, v{T + 5}
        s_and_b64 s[{sT0}:{sT0 + 1}], s[{sT0}:{sT0 + 1}], s[{sT2}:{sT2 + 1}]
        v_cmp_ge_f32 s[{sT2}:{sT2 + 1}], v{T + 1}, v{T + 4}
        s_and_b64 s[{sT0}:{sT0 + 1}], s[{sT0}:{sT0 + 1}], s[{sT2}:{sT2 + 1}]
        v_cmp_le_f32 s[{sT2}:{sT2 + 1}], v{T + 1}, v{T + 5}
        s_and_b64 s[{sT0}:{sT0 + 1}], s[{sT0}:{sT0 + 1}], s[{sT2}:{sT2 + 1}]
        s_cmp_eq_u64 s[{sT0}:{sT0 + 1}], exec
        s_cbranch_scc0 {lfb}
        """)
        a.label(ldone)
        self.a_store(a)

    def a_store(self, a):
        T = self.A_T
        a(f"""
        v_rcp_f32 v{T + 2}, v{T}
        v_rcp_f32 v{T + 4}, v{T + 1}
        s_lshl_b32 s{sT1}, s{sLw}, 5
        v_and_b32 v{T + 6}, 31, v0
        v_add_u32 v{T + 6}, s{sT1}, v{T + 6}
        v_mul_u32_u24 v{T + 6}, 80, v{T + 6}
        v_add_u32 v{T + 6}, {SCR}, v{T + 6}
        v_lshrrev_b32 v{T + 7}, 5, v0
        v_lshl_add_u32 v{T + 7}, v{T + 7}, 3, v{T + 6}
        """)
        for hh in range(2):
            o = self.A_O + 16 * hh
            rc = T + 2 + 2 * hh
            for g in range(3):
                x = o + 4 * g
                for hf in range(2):
                    a(f"v_pk_mul_f32 v[{x + 2 * hf}:{x + 2 * hf + 1}], v[{x + 2 * hf}:{x + 2 * hf + 1}], v[{rc}:{rc + 1}] op_sel_hi:[1,0]")
                a(f"v_cvt_pk_bf16_f32 v{x}, v{x}, v{x + 1}\nv_cvt_pk_bf16_f32 v{x + 1}, v{x + 2}, v{x + 3}")
                if g < 2:
                    a(f"ds_write_b64 v{T + 7}, v[{x}:{x + 1}] offset:{40 * hh + 16 * g}")
                else:
                    a(f"s_mov_b32 exec_hi, 0\nds_write_b64 v{T + 6}, v[{x}:{x + 1}] offset:{40 * hh + 32}\ns_mov_b64 exec, -1")
        a("s_waitcnt lgkmcnt(0)")

    def o_copy_out(self, a):
        R, T = 40, 28
        a(f"""
        s_lshl_b32 s{sT0}, s{sI}, 7
        s_mul_i32 s{sT0}, s{sT0}, 1280
        s_mul_i32 s{sT1}, s{sP}, 80
        s_add_u32 s{sT0}, s{sT0}, s{sT1}
        s_add_u32 s{sT0}, s{sT0}, {WS_O}
        s_lshl_b32 s{sT1}, s{sLw}, 6
        v_add_u32 v{T}, s{sT1}, v0
        v_lshlrev_b32 v{T + 1}, 4, v{T}
        v_add_u32 v{T + 1}, {SCR}, v{T + 1}
        """)
        for k in range(3):
            a(f"ds_read_b128 v[{R + 4 * k}:{R + 4 * k + 3}], v{T + 1} offset:{k * 4096}")
        for k in range(3):
            a(f"""
            v_add_u32 v{T + 2}, {256 * k}, v{T}
            v_mul_u32_u24 v{T + 3}, 13108, v{T + 2}
            v_lshrrev_b32 v{T + 3}, 16, v{T + 3}
            v_mul_u32_u24 v{T + 4}, 5, v{T + 3}
            v_sub_u32 v{T + 4}, v{T + 2}, v{T + 4}
            v_mul_u32_u24 v{T + 3}, 1280, v{T + 3}
            v_lshl_add_u32 v{T + 3}, v{T + 4}, 4, v{T + 3}
            v_add_u32 v{T + 5 + k}, s{sT0}, v{T + 3}
            """)
        a(f"""
        v_mov_b32 v{T + 2}, {OOB}
        v_add_u32 v{T + 3}, 512, v{T}
        v_cmp_gt_u32 vcc, 640, v{T + 3}
        v_cndmask_b32 v{T + 7}, v{T + 2}, v{T + 7}, vcc
        s_waitcnt lgkmcnt(0)
        """)
        for k in range(3):
            a(f"buffer_store_dwordx4 v[{R + 4 * k}:{R + 4 * k + 3}], v{T + 5 + k}, s[{sWS}:{sWS + 3}], 0 offen sc1")

    def attention_fallback(self, a):
        lfb, ldone = self.fallback_labels
        M = 200
        a.label(lfb)
        self.a_addr_consts(a)
        self.zero(a, self.A_O, 32)
        a(f"""
        s_lshl_b32 s{sT0}, s{sI}, 2
        s_add_u32 s{sT0}, s{sT0}, s{sLw}
        s_cmp_ge_u32 s{sT0}, 8
        s_cselect_b32 s{sT0}, 8, s{sT0}
        s_sub_u32 s{sCnt}, 8, s{sT0}
        v_mov_b32 v{M}, {f32(-3e38)}
        v_mov_b32 v{M + 1}, {f32(-3e38)}
        """)
        self.a_skip(a, sCnt)
        lp, lnf, lnd = a.uid("Lfb"), a.uid("Lfbnf"), a.uid("Lfbnd")
        a.label(lp)
        for hh in range(2):
            for r in self.kr(hh, 0) + self.vr(hh, 0):
                a(r)
        for r in (self.A_KA, self.A_KA + 1, self.A_VA, self.A_VA + 1):
            a(f"v_add_u32 v{r}, {32 * KVROW}, v{r}")
        a("s_waitcnt lgkmcnt(0)")
        for hh in range(2):
            for m in self.a_qk(hh, None):
                a(m)
        a("s_nop 15")
        a(f"s_cmp_lg_u32 s{sCnt}, 0\ns_cbranch_scc1 {lnf}")
        for hh in range(2):
            for r in range(16):
                a(f"v_add_f32 v{self.A_S + 16 * hh + r}, v{self.A_S + 16 * hh + r}, v{self.A_MF + r}")
        a.label(lnf)
        a(f"s_cmp_lg_u32 s{sCnt}, 8\ns_cbranch_scc1 {lnd}")
        for hh in range(2):
            for r in range(16):
                a(f"v_add_f32 v{self.A_S + 16 * hh + r}, v{self.A_S + 16 * hh + r}, v{self.A_MD + r}")
        a.label(lnd)
        for hh in range(2):
            sreg, o = self.A_S + 16 * hh, self.A_O + 16 * hh
            x = M + 2
            a(f"v_max3_f32 v{x}, v{sreg}, v{sreg + 1}, v{M + hh}")
            for r in range(2, 16, 2):
                a(f"v_max3_f32 v{x}, v{sreg + r}, v{sreg + r + 1}, v{x}")
            a(f"""
            v_mov_b32 v{x + 1}, v{x}
            v_mov_b32 v{x + 2}, v{x}
            v_nop
            v_permlane32_swap_b32 v{x + 1}, v{x + 2}
            v_max_f32 v{x}, v{x + 1}, v{x + 2}
            v_sub_f32 v{x + 1}, v{M + hh}, v{x}
            v_exp_f32 v{x + 1}, v{x + 1}
            v_mov_b32 v{M + hh}, v{x}
            """)
            for r in range(16):
                a(f"v_sub_f32 v{sreg + r}, v{sreg + r}, v{x}")
            for r in range(16):
                a(f"v_mul_f32 v{o + r}, v{o + r}, v{x + 1}")
            self.a_softmax(a, hh)
            for m in self.a_pv(hh):
                a(m)
        a(f"s_add_u32 s{sCnt}, s{sCnt}, 1\ns_cmp_le_u32 s{sCnt}, 8\ns_cbranch_scc1 {lp}")
        a("s_nop 15")
        self.a_rowsum(a)
        a(f"s_branch {ldone}")

    def f_reads(self, j, wo):
        return [] if self.o.get("nofr") else super().f_reads(j, wo)

    def m_reads(self, ks):
        return [] if self.o.get("nomr") else super().m_reads(ks)

    def f_addr(self, wo):
        out = [f"v_add_u32 v{self.F_AA}, s{sSlot}, v{self.F_CA}"]
        if wo:
            out += [f"v_add_u32 v{self.F_AO + k}, s{sSlot}, v{self.F_CO + k}" for k in range(4)]
        else:
            out += [f"v_add_u32 v{self.F_AB + tn}, s{sSlot}, v{self.F_CB + tn}" for tn in range(2)]
        return out

    def f_stage(self, a, first, wo, next_wo, pre=None, hook=None):
        if pre:
            pre()
        self.cbar(a)
        if hook:
            hook()
        r0 = self.f_reads(0, wo)
        if first:
            for r in r0:
                a(r)
        else:
            self.spread(a, self.f_mfmas(1), r0)
        a("s_waitcnt lgkmcnt(0)")
        self.spread(a, self.czero(self.f_mfmas(0)) if first else self.f_mfmas(0), self.f_reads(1, wo))
        self.slot_next(a)
        a("s_waitcnt lgkmcnt(0)")
        for c in self.f_addr(next_wo):
            a(c)

    def f_epilogue(self, a, kh):
        t, R, X, AD = 206, 136, 160, 172
        B2 = self.V_B2
        a(f"""
        v_lshlrev_b32 v{t}, 4, v0
        s_xor_b32 s{sT0}, s{sLw}, 2
        s_mul_i32 s{sT0}, s{sT0}, 5120
        s_add_u32 s{sT0}, s{sT0}, {SLOT}
        v_add_u32 v{t}, s{sT0}, v{t}
        """)
        for tm in range(5):
            a(f"ds_read_b128 v[{R + 4 * tm}:{R + 4 * tm + 3}], v{t} offset:{tm * 1024}")
        a(f"""
        s_lshl_b32 s{sT1}, s{sWn}, 5
        s_add_u32 s{sT1}, s{sT1}, {16 * kh}
        v_and_b32 v{t + 1}, 15, v0
        v_add_u32 v{t + 1}, s{sT1}, v{t + 1}
        v_mul_u32_u24 v{t + 2}, 160, v{t + 1}
        v_lshrrev_b32 v{t + 3}, 4, v0
        v_lshl_add_u32 v{t + 2}, v{t + 3}, 3, v{t + 2}
        v_add_u32 v{t + 2}, {SCR}, v{t + 2}
        """)
        for tm in range(5):
            a(f"ds_read_b64 v[{X + 2 * tm}:{X + 2 * tm + 1}], v{t + 2} offset:{32 * tm}")
        a(f"""
        s_lshl_b32 s{sT0}, s{sSt}, 6
        v_add_u32 v{t + 1}, s{sT0}, v{t + 1}
        v_mul_u32_u24 v{AD}, 1280, v{t + 1}
        s_mul_i32 s{sT0}, s{sDt}, 160
        v_add_u32 v{AD}, s{sT0}, v{AD}
        v_lshl_add_u32 v{AD}, v{t + 3}, 3, v{AD}
        v_lshlrev_b32 v{AD + 1}, 16, v{B2}
        s_waitcnt lgkmcnt(0)
        """)
        for tm in range(5):
            k = self.F_ACC + 4 * (2 * tm + kh)
            r = R + 4 * tm
            for e in range(4):
                a(f"v_add_f32 v{k + e}, v{k + e}, v{r + e}")
            a(f"""
            v_lshlrev_b32 v{r}, 16, v{X + 2 * tm}
            v_and_b32 v{r + 1}, 0xffff0000, v{X + 2 * tm}
            v_lshlrev_b32 v{r + 2}, 16, v{X + 2 * tm + 1}
            v_and_b32 v{r + 3}, 0xffff0000, v{X + 2 * tm + 1}
            """)
            for e in range(4):
                a(f"v_add_f32 v{k + e}, v{k + e}, v{AD + 1}")
            for e in range(4):
                a(f"v_add_f32 v{k + e}, v{k + e}, v{r + e}")
            a(f"v_cvt_pk_bf16_f32 v{k}, v{k}, v{k + 1}\nv_cvt_pk_bf16_f32 v{k + 1}, v{k + 2}, v{k + 3}")
            a(f"buffer_store_dwordx2 v[{k}:{k + 1}], v{AD}, s[{sOUT}:{sOUT + 3}], 0 offen offset:{32 * tm}")

    def c_final(self, a):
        T = 224
        a(f"s_mov_b32 s{sSlot}, 0")
        for c in self.f_addr(False):
            a(c)

        def b2_load():
            a(f"""
            s_lshl_b32 s{sT0}, s{sSt}, 6
            s_lshl_b32 s{sT1}, s{sWn}, 5
            s_add_u32 s{sT0}, s{sT0}, s{sT1}
            s_lshl_b32 s{sT1}, s{sWm}, 4
            s_add_u32 s{sT0}, s{sT0}, s{sT1}
            v_and_b32 v{T}, 15, v0
            v_add_u32 v{T}, s{sT0}, v{T}
            v_lshlrev_b32 v{T}, 1, v{T}
            buffer_load_ushort v{self.V_B2}, v{T}, s[{sB2}:{sB2 + 3}], 0 offen
            """)
        self.f_stage(a, True, False, False, hook=b2_load)
        self.f_stage(a, False, False, False)
        self.f_stage(a, False, False, False)
        self.f_stage(a, False, False, False)
        self.mark(a)
        self.loop(a, 7, lambda: self.f_stage(a, False, False, False))
        self.f_stage(a, False, False, True)
        self.mark(a)
        self.loop(a, 5, lambda: self.f_stage(a, False, True, True))
        self.f_tail(a)
        self.mark(a)
        self.by_scalar(a, sWm, lambda kh: self.f_reduce_write(a, kh))
        a("s_barrier")
        a("s_waitcnt vmcnt(0)")
        self.by_scalar(a, sWm, lambda kh: self.f_epilogue(a, kh))

    def strip_zero(self, fn, lo, hi):
        body = Asm()
        fn(body)
        return [it for it in body.items
                if not (it.mn == "v_mov_b32" and it.ops[0][0] == "v" and it.ops[1] == "0" and lo <= int(it.ops[0][1:]) < hi)]

    def consumer(self, a):
        self.mark(a)
        lab = a.uid("Lnold")
        a(f"s_cmp_eq_u32 s{sLnOn}, 0\ns_cbranch_scc1 {lab}")
        self.ln_loads(a)
        a.label(lab)
        a(f"""
        v_mov_b32 v1, {SCR_CNT}
        v_mov_b32 v2, 0
        v_mov_b32 v3, 0
        ds_write_b64 v1, v[2:3]
        """)
        a.items += self.strip_zero(lambda b: B.Gen.m_consts(self, b), 64, 128)
        a.items += self.strip_zero(lambda b: B.Gen.f_consts(self, b), 64, 128)
        self.a_addr_consts(a)
        a(f"s_mov_b32 s{sSlot}, 0")
        a.items += self.strip_zero(lambda b: B.Gen.q_consts(self, b), 64, 132)
        self.mark(a)
        lab = a.uid("Lnolc")
        a(f"s_cmp_eq_u32 s{sLnOn}, 0\ns_cbranch_scc1 {lab}")
        self.ln_compute(a)
        a.label(lab)
        a("s_waitcnt lgkmcnt(0)")
        self.mark(a)
        self.c_qkv(a)
        self.mark(a)
        self.c_mix1(a)
        self.mark(a)
        self.mark(a)
        self.attention(a)
        self.mark(a)
        self.c_final(a)
        self.mark(a)

    def build(self):
        name = NAME + "_kernel"
        return B_kernel(name, self.split(name, self.consumer, self.loader))


def B_kernel(name, body):
    return f"""; Sliding-window attention + token-mixer MLP + residual, bf16, S=2048 D=640, one persistent launch.
; @launch grid=(256,1,1) block=(512,1,1) lds={LDS_BYTES}
.amdgcn_target "amdgcn-amd-amdhsa--gfx950"
.text
.globl {name}
.p2align 8
.type {name},@function
{name}:
{body}{name}_code_end:
.set CODE_BYTES, {name}_code_end-{name}
.section .rodata,"a"
.p2align 6
.amdhsa_kernel {name}
  .amdhsa_next_free_vgpr 256
  .amdhsa_next_free_sgpr 102
  .amdhsa_accum_offset 256
  .amdhsa_group_segment_fixed_size 0
  .amdhsa_kernarg_size 88
  .amdhsa_user_sgpr_count 2
  .amdhsa_user_sgpr_kernarg_segment_ptr 1
  .amdhsa_system_sgpr_workgroup_id_x 1
.end_amdhsa_kernel
"""


if __name__ == "__main__":
    mode = sys.argv[1] if len(sys.argv) > 1 else "run"
    path = sys.argv[2] if len(sys.argv) > 2 else f"cdna_kernels/{NAME}.s"
    opts = {}
    for kv in sys.argv[3:]:
        k, val = kv.split("=")
        opts[k] = int(val)
    txt = Fused(diag=(mode == "diag"), opts=opts).build()
    open(path, "w").write(txt)
    print("wrote", path, len(txt), "bytes")
```

```python
import math
import sys

sys.path.insert(0, "tools")
from asmlib import Asm
from gen_base import *
import gen_base as B

OOB = 0x7ff00000
SPIN_MAX = 100000
FL_LN, FL_KV, FL_O, FL_G = 0x1000, 0x1400, 0x1800, 0x8000
SCR_CNT = SCR + 10752
SCR_CS = SCR + 10240
M_RED = 16384
GROW = 144
sPub, sT6 = 79, 85
sKcA, sKcB, sKt, sRq, sRm, sRf, sRw = 9, 10, 11, 12, 13, 14, 15
sBaseA, sBaseB = 16, 17
sLnOn, sLnIdx = 18, 19
sArr, sNon2 = 4, 5


class Fused(Gen):
    A_MF, A_MD, A_KA, A_VA = 2, 18, 34, 36
    F_CA, F_CB, F_CO = 38, 39, 41
    M_CA, M_CB = 45, 47
    V_ST, V_B1, V_B2, V_ARR, V_POLL = 48, 52, 53, 54, 56
    V_DUMMY = 228
    Q_ACC, Q_CS, Q_ONES, Q_BUF, Q_CA, Q_CB, Q_AA, Q_AB = 64, 128, 132, 136, 200, 202, 206, 208
    M_ACC, M_BUF, M_AA, M_AB = 64, 136, 196, 198
    A_Q, A_K, A_V, A_S, A_P, A_O, A_T = 64, 80, 96, 112, 144, 208, 192
    F_ACC, F_BUF, F_AA, F_AB, F_AO = 64, 136, 199, 200, 202

    def __init__(self, diag=False, opts=None):
        super().__init__(fused=True, diag=diag)
        self.o = dict(prefetch=0, tlb=0, lead=3, nt=0, gsleep=4, ldsc1=1, xmap=0, light=0, w1a=1024, rot=30, lngood=0, codepf=0, outpol=0)
        self.o.update(opts or {})

    def stamp(self, a, k, bump=False):
        if not self.o["light"]:
            super().stamp(a, k, bump)

    def diag_dump(self, a, kidx):
        wg = self.o.get("dbgout")
        if wg is None:
            return super().diag_dump(a, kidx)
        lab = a.uid("Ldbg")
        a(f"""
        s_cmp_lg_u32 s{sWg}, {wg}
        s_cbranch_scc1 {lab}
        s_cmp_lg_u32 s{sWv}, 0
        s_cbranch_scc1 {lab}
        v_readlane_b32 s{sT0}, v{self.DV + 1}, 0
        v_lshlrev_b32 v1, 2, v0
        v_mov_b32 v3, {OOB}
        v_subrev_u32 v2, s{sT0}, v{self.DV + 1}
        v_cmp_gt_u32 vcc, 16, v0
        v_cndmask_b32 v1, v3, v1, vcc
        v_cmp_eq_u32 vcc, 0, v0
        v_cndmask_b32 v1, v1, v3, vcc
        buffer_store_dword v2, v1, s[{sDBG}:{sDBG + 3}], 0 offen
        """)
        a.label(lab)

    def mark(self, a):
        if self.diag and self.o["light"]:
            if self.o.get("rt"):
                a(f"s_memrealtime s[98:99]\ns_mov_b32 m0, s{self.sStg}\ns_waitcnt lgkmcnt(0)\nv_writelane_b32 v{self.DV + 1}, s98, m0\ns_add_u32 s{self.sStg}, s{self.sStg}, 1")
            else:
                B.Gen.stamp(self, a, 1, True)

    SRDS = ((sX, 0, 2048 * 1280), (sW, 8, 640 * 3840), (sWO, 16, 640 * 1280), (sW1, 32, 2048 * 3072),
            (sB1, 40, 1536 * 2), (sW2, 48, 1536 * 4096), (sB2, 56, 2048 * 2), (sOUT, 64, 2048 * 1280),
            (sDBG, 72, 256), (sWS, 80, WS_USED))

    def prologue(self, a, lab):
        a(f"s_cmp_ge_u32 s2, 256\ns_cbranch_scc1 {lab}_end")
        for srd, off, size in self.SRDS:
            a(f"s_load_dwordx2 s[{srd}:{srd + 1}], s[0:1], {off}")
        body = Asm()
        B.Gen.prologue(self, body, lab)
        items = body.items
        first = next(k for k, it in enumerate(items) if it.mn == "v_lshrrev_b32")
        last = next(k for k, it in enumerate(items) if it.mn == "s_waitcnt")
        a.items += items[first:last]
        for srd, off, size in self.SRDS:
            if srd == sWS and self.diag:
                size *= 2
            a(f"s_mov_b32 s{srd + 2}, {size}\ns_mov_b32 s{srd + 3}, 0x00020000")
        if self.o["lngood"]:
            a(f"""
            s_lshr_b32 s{sT0}, s{sWg}, 6
            s_lshr_b32 s{sT1}, s{sWg}, 1
            s_xor_b32 s{sT1}, s{sT1}, s{sT0}
            s_and_b32 s{sT1}, s{sT1}, 1
            s_xor_b32 s{sLnOn}, s{sT1}, 1
            s_and_b32 s{sT1}, s{sWg}, 7
            s_lshl_b32 s{sLnIdx}, s{sT1}, 4
            s_lshr_b32 s{sT0}, s{sT0}, 1
            s_lshl_b32 s{sT0}, s{sT0}, 3
            s_add_u32 s{sLnIdx}, s{sLnIdx}, s{sT0}
            s_lshr_b32 s{sT0}, s{sWg}, 3
            s_and_b32 s{sT0}, s{sT0}, 7
            s_add_u32 s{sLnIdx}, s{sLnIdx}, s{sT0}
            """)
        else:
            a(f"s_mov_b32 s{sLnOn}, 1\ns_mov_b32 s{sLnIdx}, s{sWg}")
        self.rot_consts(a)
        if not self.o["xmap"]:
            return
        a(f"""
        s_and_b32 s{sT0}, s{sWg}, 7
        s_lshr_b32 s{sT1}, s{sWg}, 3
        s_lshl_b32 s{sSt}, s{sT0}, 2
        s_and_b32 s{sT2}, s{sT1}, 3
        s_add_u32 s{sSt}, s{sSt}, s{sT2}
        s_lshr_b32 s{sDt}, s{sT1}, 2
        s_cmp_lt_u32 s{sT1}, 30
        s_cselect_b32 s{sT2}, 0, 30
        s_sub_u32 s{sT1}, s{sT1}, s{sT2}
        s_mul_i32 s{sT2}, s{sT1}, 26
        s_lshr_b32 s{sT2}, s{sT2}, 8
        s_mul_i32 s{sT3}, s{sT2}, 10
        s_sub_u32 s{sDt1}, s{sT1}, s{sT3}
        s_mul_i32 s{sFt}, s{sT0}, 3
        s_add_u32 s{sFt}, s{sFt}, s{sT2}
        """)

    def smod(self, a, r, n, times):
        for _ in range(times):
            a(f"s_cmp_ge_u32 s{r}, {n}\ns_cselect_b32 s{sT5}, {n}, 0\ns_sub_u32 s{r}, s{r}, s{sT5}")

    def rot_consts(self, a):
        if not self.o["rot"]:
            for r in (sRq, sRm, sRf, sRw):
                a(f"s_mov_b32 s{r}, 0")
            return
        a(f"""
        s_lshr_b32 s{sT0}, s{sWg}, 3
        s_and_b32 s{sT1}, s{sT0}, 7
        s_lshr_b32 s{sT2}, s{sT0}, 3
        s_mul_i32 s{sT3}, s{sT2}, 3
        s_add_u32 s{sRq}, s{sT1}, s{sT3}
        s_mul_i32 s{sRf}, s{sT1}, 5
        s_add_u32 s{sRf}, s{sRf}, s{sT3}
        s_lshl_b32 s{sRw}, s{sT2}, 1
        s_add_u32 s{sRw}, s{sRw}, s{sT1}
        s_mul_i32 s{sRm}, s{sFt}, 3
        s_mul_i32 s{sT3}, s{sDt1}, 5
        s_add_u32 s{sRm}, s{sRm}, s{sT3}
        s_and_b32 s{sRm}, s{sRm}, 7
        """)
        self.smod(a, sRq, 10, 1)
        self.smod(a, sRf, 12, 3)
        self.smod(a, sRw, 5, 2)
        for bit, r in ((1, sRq), (2, sRm), (4, sRf), (8, sRw)):
            if not self.o["rot"] & bit:
                a(f"s_mov_b32 s{r}, 0")

    def wrap(self, a, kc, n, offs):
        a(f"s_add_u32 s{kc}, s{kc}, 1\ns_cmp_eq_u32 s{kc}, {n}\ns_cselect_b32 s{kc}, 0, s{kc}")
        for k, (reg, step) in enumerate(offs):
            a(f"s_cselect_b32 s{sT1 + k}, {n * step}, 0")
        for k, (reg, step) in enumerate(offs):
            a(f"s_sub_u32 s{reg}, s{reg}, s{sT1 + k}")

    def lead_order(self, a, n_chunks, period, jreg, offs):
        a(f"""
        s_and_b32 s{sT1}, s{sKt}, {period - 1}
        s_cmp_eq_u32 s{sT1}, s{jreg}
        s_cselect_b32 s{sT2}, 1, 0
        s_cmp_eq_u32 s{sKt}, {n_chunks - 1}
        s_cselect_b32 s{sT2}, 0, s{sT2}
        s_sub_u32 s{sT1}, s{sKt}, 1
        s_and_b32 s{sT1}, s{sT1}, {period - 1}
        s_cmp_eq_u32 s{sT1}, s{jreg}
        s_cselect_b32 s{sT3}, 1, 0
        s_cmp_eq_u32 s{sKt}, 0
        s_cselect_b32 s{sT3}, 0, s{sT3}
        s_add_u32 s{sT2}, s{sT2}, s{sKt}
        s_sub_u32 s{sT2}, s{sT2}, s{sT3}
        s_add_u32 s{sKt}, s{sKt}, 1
        """)
        for reg, base, step in offs:
            a(f"s_mul_i32 s{sT1}, s{sT2}, {step}\ns_add_u32 s{reg}, s{base}, s{sT1}")

    def q_init(self, a):
        super().q_init(a)
        if self.o["rot"] & 16:
            a(f"""
            s_mov_b32 s{sBaseA}, s{sOffA}
            s_mov_b32 s{sBaseB}, s{sOffB}
            s_mov_b32 s{sKt}, 0
            s_lshr_b32 s{sT0}, s{sWg}, 3
            s_lshr_b32 s{sT1}, s{sT0}, 3
            s_add_u32 s{sT0}, s{sT0}, s{sT1}
            s_and_b32 s{sRq}, s{sT0}, 3
            """)
            return
        a(f"""
        s_mov_b32 s{sKcA}, s{sRq}
        s_lshl_b32 s{sT0}, s{sRq}, 7
        s_add_u32 s{sOffA}, s{sOffA}, s{sT0}
        s_mul_i32 s{sT0}, s{sRq}, {64 * 3840}
        s_add_u32 s{sOffB}, s{sOffB}, s{sT0}
        """)

    def q_issue(self, a):
        if self.o["rot"] & 16:
            self.lead_order(a, 10, 4, sRq, [(sOffA, sBaseA, 128), (sOffB, sBaseB, 64 * 3840)])
            super().q_issue(a)
            return
        super().q_issue(a)
        self.wrap(a, sKcA, 10, [(sOffA, 128), (sOffB, 64 * 3840)])

    def m_init(self, a):
        super().m_init(a)
        a(f"""
        s_mov_b32 s{sKcA}, s{sRm}
        s_mov_b32 s{sKt}, 0
        s_mul_i32 s{sT0}, s{sRm}, {128 * 1280}
        s_add_u32 s{sOffA}, s{sOffA}, s{sT0}
        s_mul_i32 s{sT0}, s{sRm}, {128 * 3072}
        s_add_u32 s{sOffB}, s{sOffB}, s{sT0}
        """)

    def m_issue(self, a):
        super().m_issue(a)
        self.wrap(a, sKcA, 8, [(sOffA, 128 * 1280), (sOffB, 128 * 3072)])
        a(f"s_add_u32 s{sKt}, s{sKt}, 1\ns_cmp_eq_u32 s{sKt}, 8")
        a(f"""
        s_cselect_b32 s{sT1}, {8 * 128 * 1280}, 0
        s_cselect_b32 s{sT2}, {8 * 128 * 3072}, 0
        s_add_u32 s{sOffA}, s{sOffA}, s{sT1}
        s_add_u32 s{sOffB}, s{sOffB}, s{sT2}
        """)

    def f_init(self, a):
        super().f_init(a)
        a(f"""
        s_mov_b32 s{sKcA}, s{sRf}
        s_mov_b32 s{sKcB}, s{sRf}
        s_mul_i32 s{sT0}, s{sRf}, {128 * 160}
        s_add_u32 s{sOffA}, s{sOffA}, s{sT0}
        s_mul_i32 s{sT0}, s{sRf}, {128 * 4096}
        s_add_u32 s{sOffB}, s{sOffB}, s{sT0}
        """)

    def f_issue_w2(self, a):
        super().f_issue_w2(a)
        self.wrap(a, sKcB, 12, [(sOffB, 128 * 4096)])

    def f_issue_g(self, a):
        super().f_issue_g(a)
        self.wrap(a, sKcA, 12, [(sOffA, 128 * 160)])

    def wo_init(self, a):
        super().wo_init(a)
        a(f"""
        s_mov_b32 s{sKcA}, s{sRw}
        s_mul_i32 s{sT0}, s{sRw}, {128 * 1280}
        s_add_u32 s{sOffA}, s{sOffA}, s{sT0}
        s_lshl_b32 s{sT0}, s{sRw}, 8
        s_add_u32 s{sOffB}, s{sOffB}, s{sT0}
        """)

    def wo_issue(self, a):
        super().wo_issue(a)
        self.wrap(a, sKcA, 5, [(sOffA, 128 * 1280), (sOffB, 256)])

    def only_w0(self, a, fn):
        lab = a.uid("Lw0")
        a(f"s_cmp_lg_u32 s{sLw}, 0\ns_cbranch_scc1 {lab}")
        fn()
        a.label(lab)

    def nonce_load(self, a):
        a(f"s_load_dword s{sNonce}, s[{sWS}:{sWS + 1}], {WS_EPOCH}")

    def nonce_make(self, a):
        a(f"""
        s_waitcnt lgkmcnt(0)
        s_mul_i32 s{sNonce}, s{sNonce}, 1664525
        s_add_u32 s{sNonce}, s{sNonce}, 1013904223
        """)

    def flag_set(self, a, off):
        a(f"s_atomic_swap s{sNonce}, s[{sWS}:{sWS + 1}], s{off}")

    def poll_issue(self, a, vaddr, n=1):
        r = self.LV_PR
        if n == 1:
            a(f"buffer_load_dword v{r}, v{vaddr}, s[{sWS}:{sWS + 3}], 0 offen sc1")
        else:
            a(f"buffer_load_dwordx4 v[{r}:{r + 3}], v{vaddr}, s[{sWS}:{sWS + 3}], 0 offen sc1")

    def poll_test(self, a, n):
        r = self.LV_PR
        a(f"v_cmp_eq_u32 s[{sT0}:{sT0 + 1}], s{sNonce}, v{r}")
        for k in range(1, n):
            a(f"v_cmp_eq_u32 s[{sT2}:{sT2 + 1}], s{sNonce}, v{r + k}")
            a(f"s_and_b64 s[{sT0}:{sT0 + 1}], s[{sT0}:{sT0 + 1}], s[{sT2}:{sT2 + 1}]")
        a(f"s_cmp_eq_u64 s[{sT0}:{sT0 + 1}], exec")

    def poll_check(self, a, vaddr, n=1, sleep=8):
        ok, sp = a.uid("Lpok"), a.uid("Lspin")
        self.poll_test(a, n)
        a(f"s_cbranch_scc1 {ok}")
        self.spin(a, vaddr, n, ok, sp, sleep)
        a.label(ok)

    def spin(self, a, vaddr, n, ok, sp, sleep):
        a(f"s_mov_b32 s{sT6}, {SPIN_MAX}")
        a.label(sp)
        a(f"s_sleep {sleep}")
        self.poll_issue(a, vaddr, n)
        a("s_waitcnt vmcnt(0)")
        self.poll_test(a, n)
        a(f"s_cbranch_scc1 {ok}")
        a(f"s_sub_u32 s{sT6}, s{sT6}, 1\ns_cmp_lg_u32 s{sT6}, 0\ns_cbranch_scc1 {sp}")

    LV_PLA, LV_PKV, LV_PG, LV_PO, LV_PLB, LV_PR = 14, 15, 16, 17, 18, 24
    LV_P1, LV_P2, LV_DUMMY = 100, 103, 96

    def loader_poll_addrs(self, a):
        t0, t1, t2, t3 = 20, 21, 22, 23
        a(f"""
        v_lshrrev_b32 v{t0}, 4, v0
        v_mov_b32 v{t1}, s{sI}
        v_cmp_eq_u32 vcc, 3, v{t0}
        v_cndmask_b32 v{t0}, v{t0}, v{t1}, vcc
        v_lshlrev_b32 v{t0}, 6, v{t0}
        v_and_b32 v{t1}, 15, v0
        v_lshl_add_u32 v{t0}, v{t1}, 2, v{t0}
        v_add_u32 v{self.LV_PLA}, {FL_LN}, v{t0}
        v_and_b32 v{t0}, {31 if self.o["lngood"] else 63}, v0
        v_lshlrev_b32 v{t0}, 4, v{t0}
        v_add_u32 v{self.LV_PLB}, {FL_LN}, v{t0}
        v_min_u32 v{t0}, 2, v0
        v_sub_u32 v{t0}, s{sI}, v{t0}
        v_max_i32 v{t0}, 0, v{t0}
        s_lshl_b32 s{sT0}, s{sP}, 4
        v_add_u32 v{t0}, s{sT0}, v{t0}
        v_lshlrev_b32 v{t0}, 2, v{t0}
        v_add_u32 v{self.LV_PKV}, {FL_KV}, v{t0}
        v_and_b32 v{t0}, 15, v0
        s_lshr_b32 s{sT0}, s{sSt}, 1
        s_lshl_b32 s{sT0}, s{sT0}, 4
        v_add_u32 v{t0}, s{sT0}, v{t0}
        v_lshlrev_b32 v{t0}, 2, v{t0}
        v_add_u32 v{self.LV_PO}, {FL_O}, v{t0}
        v_min_u32 v{t0}, 47, v0
        v_mul_u32_u24 v{t1}, 2731, v{t0}
        v_lshrrev_b32 v{t1}, 16, v{t1}
        v_mul_u32_u24 v{t2}, 24, v{t1}
        v_sub_u32 v{t2}, v{t0}, v{t2}
        s_mul_i32 s{sT0}, s{sDt}, 80
        s_lshr_b32 s{sT0}, s{sT0}, 6
        v_add_u32 v{t1}, s{sT0}, v{t1}
        v_lshlrev_b32 v{t1}, 2, v{t1}
        v_lshl_add_u32 v{t1}, v{t2}, 6, v{t1}
        s_and_b32 s{sT0}, s{sWg}, 7
        s_mul_i32 s{sT0}, s{sT0}, 1536
        s_add_u32 s{sT0}, s{sT0}, {FL_G}
        v_add_u32 v{self.LV_PG}, s{sT0}, v{t1}
        s_cmp_eq_u32 s{sLw}, 0
        s_cselect_b32 s{sT0}, 0, {OOB}
        """)
        for r in (self.LV_PLA, self.LV_PLB, self.LV_PKV, self.LV_PO, self.LV_PG):
            a(f"v_add_u32 v{r}, s{sT0}, v{r}")

    def loader_prefetch_consts(self, a):
        t0, t1, t2 = 20, 21, 22
        for t in range(3):
            a(f"""
            v_add_u32 v{t0}, {64 * t}, v0
            v_mul_u32_u24 v{t1}, 2731, v{t0}
            v_lshrrev_b32 v{t1}, 16, v{t1}
            v_mul_u32_u24 v{t2}, 24, v{t1}
            v_sub_u32 v{t2}, v{t0}, v{t2}
            v_lshlrev_b32 v{t2}, 4, v{t2}
            v_mul_u32_u24 v{t1}, 3072, v{t1}
            v_add_u32 v{self.LV_P1 + t}, v{t1}, v{t2}
            """)
        a(f"""
        v_lshrrev_b32 v{t0}, 5, v0
        v_lshlrev_b32 v{t0}, 12, v{t0}
        v_and_b32 v{t1}, 31, v0
        v_lshl_add_u32 v{self.LV_P2}, v{t1}, 4, v{t0}
        """)

    def code_prefetch(self, a):
        if not self.o["codepf"]:
            return 0
        d = self.LV_DUMMY
        lab = a.uid("Lpc")
        a(f"s_getpc_b64 s[{sT2}:{sT2 + 1}]")
        a.label(lab)
        a(f"""
        s_lshr_b32 s{sT0}, s{sWg}, 3
        s_lshl_b32 s{sT0}, s{sT0}, 10
        s_lshl_b32 s{sT1}, s{sLw}, 15
        s_add_u32 s{sT0}, s{sT0}, s{sT1}
        v_lshl_add_u32 v20, v0, 4, s{sT0}
        s_sub_u32 s{sT2}, s{sT2}, {lab}-{NAME}_kernel
        s_subb_u32 s{sT2 + 1}, s{sT2 + 1}, 0
        v_min_u32 v20, CODE_BYTES-16, v20
        v_mov_b32 v21, s{sT2 + 1}
        v_add_co_u32 v20, vcc, s{sT2}, v20
        v_addc_co_u32 v21, vcc, 0, v21, vcc
        global_load_dwordx4 v[{d}:{d + 3}], v[20:21], off
        """)
        return 1

    def tlb_touch(self, a):
        if not self.o["tlb"]:
            return 0
        d = self.LV_DUMMY
        a(f"v_lshlrev_b32 v20, 21, v0")
        for srd in (sW1, sW2, sWS, sWO, sOUT):
            a(f"buffer_load_dword v{d}, v20, s[{srd}:{srd + 3}], 0 offen")
        return 5

    def pf_range(self, a, srd, start, nbytes):
        if not self.o["prefetch"]:
            return 0
        d = self.LV_DUMMY
        share = nbytes // 256
        per_wave = -(-share // 4096)
        a(f"""
        s_mul_i32 s{sT0}, s{sWg}, {share}
        s_mul_i32 s{sT1}, s{sLw}, {per_wave * 1024}
        s_add_u32 s{sT0}, s{sT0}, s{sT1}
        s_add_u32 s{sT0}, s{sT0}, {start}
        """)
        for k in range(per_wave):
            a(f"buffer_load_dwordx4 v[{d}:{d + 3}], v{self.LV_LIN}, s[{srd}:{srd + 3}], s{sT0} offen offset:{(k % 4) * 1024}")
            if k % 4 == 3:
                a(f"s_add_u32 s{sT0}, s{sT0}, 4096")
        return per_wave

    def pf_w1(self, a):
        if not self.o["prefetch"]:
            return 0
        d = self.LV_DUMMY
        a(f"""
        s_lshr_b32 s{sT0}, s{sWg}, 3
        s_lshl_b32 s{sT0}, s{sT0}, 6
        s_lshl_b32 s{sT1}, s{sLw}, 4
        s_add_u32 s{sT0}, s{sT0}, s{sT1}
        s_mul_i32 s{sT0}, s{sT0}, 3072
        s_and_b32 s{sT1}, s{sWg}, 7
        s_mul_i32 s{sT1}, s{sT1}, 384
        s_add_u32 s{sT0}, s{sT0}, s{sT1}
        """)
        for k in range(6):
            if k == 3:
                a(f"s_add_u32 s{sT0}, s{sT0}, {8 * 3072}")
            a(f"buffer_load_dwordx4 v[{d}:{d + 3}], v{self.LV_P1 + k % 3}, s[{sW1}:{sW1 + 3}], s{sT0} offen nt")
        return 6

    def pf_w2(self, a):
        if not self.o["prefetch"]:
            return 0
        d = self.LV_DUMMY
        a(f"""
        s_lshr_b32 s{sT0}, s{sWg}, 3
        s_mul_i32 s{sT0}, s{sT0}, 48
        s_mul_i32 s{sT1}, s{sLw}, 12
        s_add_u32 s{sT0}, s{sT0}, s{sT1}
        s_lshl_b32 s{sT0}, s{sT0}, 12
        s_and_b32 s{sT1}, s{sWg}, 7
        s_lshl_b32 s{sT1}, s{sT1}, 9
        s_add_u32 s{sT0}, s{sT0}, s{sT1}
        """)
        for k in range(6):
            a(f"buffer_load_dwordx4 v[{d}:{d + 3}], v{self.LV_P2}, s[{sW2}:{sW2 + 3}], s{sT0} offen nt")
            a(f"s_add_u32 s{sT0}, s{sT0}, 8192")
        return 6

    def dma(self, a, srd, voff, soff, add, lds_add, dep=False):
        if self.o.get("fakeh") and voff == self.LV_H:
            a(f"""
            s_add_u32 m0, s{sSW}, {lds_add}
            s_add_u32 s{sT0}, s{soff}, {add - WS_H}
            buffer_load_dwordx4 v{voff}, s[{sX}:{sX + 3}], s{sT0} offen lds
            """)
            return
        pol = ("sc1 " if self.o["ldsc1"] else "") if dep else ("nt " if (srd in (sW1, sW2) and self.o["nt"]) else "")
        a(f"""
        s_add_u32 m0, s{sSW}, {lds_add}
        s_add_u32 s{sT0}, s{soff}, {add}
        buffer_load_dwordx4 v{voff}, s[{srd}:{srd + 3}], s{sT0} offen {pol}lds
        """)

    def lds_spin(self, a, word, target):
        ok, sp = a.uid("Llok"), a.uid("Llspin")
        r = self.LV_PR
        a(f"v_mov_b32 v{r + 1}, {SCR_CNT + 4 * word}\ns_mov_b32 s{sT6}, {SPIN_MAX}")
        a.label(sp)
        a(f"""
        ds_read_b32 v{r}, v{r + 1}
        s_waitcnt lgkmcnt(0)
        v_readfirstlane_b32 s{sT0}, v{r}
        s_cmp_ge_u32 s{sT0}, {target}
        s_cbranch_scc1 {ok}
        s_sleep 1
        s_sub_u32 s{sT6}, s{sT6}, 1
        s_cmp_lg_u32 s{sT6}, 0
        s_cbranch_scc1 {sp}
        """)
        a.label(ok)

    LN_RAW, LN_F, LN_OFF = 64, 76, 100

    def ln_passes(self):
        return 2 if self.o["lngood"] else 1

    def ln_loads(self, a):
        off = self.LN_OFF
        n = self.ln_passes()
        a(f"""
        s_mul_i32 s{sT0}, s{sLnIdx}, {8 * n}
        s_mul_i32 s{sT1}, s{sLw}, {2 * n}
        s_add_u32 s{sT0}, s{sT0}, s{sT1}
        v_lshrrev_b32 v{off + 1}, 5, v0
        v_add_u32 v{off + 1}, s{sT0}, v{off + 1}
        v_and_b32 v{off + 2}, 31, v0
        v_lshlrev_b32 v{off + 2}, 3, v{off + 2}
        v_mul_u32_u24 v{off}, 1280, v{off + 1}
        v_add_u32 v{off}, v{off}, v{off + 2}
        """)
        for ps in range(n):
            raw = self.LN_RAW + 54 * ps
            for j in range(5):
                a(f"buffer_load_dwordx2 v[{raw + 2 * j}:{raw + 2 * j + 1}], v{off}, s[{sX}:{sX + 3}], 0 offen offset:{2560 * ps + 256 * j}")

    def ln_compute(self, a):
        for ps in range(self.ln_passes()):
            self.ln_pass(a, ps)

    def ln_pass(self, a, ps):
        raw, f, off = self.LN_RAW + 54 * ps, self.LN_F, self.LN_OFF
        acc, t, sc, keep = 104, 108, 112, 116
        P = lambda r: f"v[{r}:{r + 1}]"

        def unpack():
            for d in range(10):
                a(f"v_lshlrev_b32 v{f + 2 * d}, 16, v{raw + d}\nv_and_b32 v{f + 2 * d + 1}, s{sT3}, v{raw + d}")

        def stats():
            a(f"v_pk_add_f32 {P(acc)}, {P(f)}, {P(f + 2)}\nv_pk_mul_f32 {P(acc + 2)}, {P(f)}, {P(f)}")
            a(f"v_pk_fma_f32 {P(acc + 2)}, {P(f + 2)}, {P(f + 2)}, {P(acc + 2)}")
            for d in range(2, 10):
                a(f"v_pk_add_f32 {P(acc)}, {P(acc)}, {P(f + 2 * d)}")
                a(f"v_pk_fma_f32 {P(acc + 2)}, {P(f + 2 * d)}, {P(f + 2 * d)}, {P(acc + 2)}")
            a(f"v_add_f32 v{acc}, v{acc}, v{acc + 1}\nv_add_f32 v{acc + 2}, v{acc + 2}, v{acc + 3}\nv_nop")
            for r in (8, 4, 2, 1):
                a(f"v_add_f32_dpp v{acc}, v{acc}, v{acc} row_ror:{r} row_mask:0xf bank_mask:0xf")
                a(f"v_add_f32_dpp v{acc + 2}, v{acc + 2}, v{acc + 2} row_ror:{r} row_mask:0xf bank_mask:0xf")
                a("v_nop")
            a(f"""
            v_mov_b32 v{t}, v{acc}
            v_mov_b32 v{t + 1}, v{acc}
            v_mov_b32 v{t + 2}, v{acc + 2}
            v_mov_b32 v{t + 3}, v{acc + 2}
            v_permlane16_swap_b32 v{t}, v{t + 1}
            v_permlane16_swap_b32 v{t + 2}, v{t + 3}
            v_add_f32 v{acc}, v{t}, v{t + 1}
            v_add_f32 v{acc + 2}, v{t + 2}, v{t + 3}
            v_mul_f32 v{acc}, {f32(1 / 640)}, v{acc}
            v_mov_b32 v{t}, {f32(1e-5)}
            v_fmac_f32 v{t}, {f32(1 / 640)}, v{acc + 2}
            v_fma_f32 v{t}, -v{acc}, v{acc}, v{t}
            v_max_f32 v{t}, {f32(1e-5)}, v{t}
            v_rsq_f32 v{sc}, v{t}
            v_mul_f32 v{sc + 1}, v{acc}, v{sc}
            """)

        def scale_pack(dst):
            for d in range(10):
                a(f"v_pk_fma_f32 {P(f + 2 * d)}, {P(f + 2 * d)}, {P(sc)}, {P(sc)} op_sel:[0,0,1] op_sel_hi:[1,0,1] neg_lo:[0,0,1] neg_hi:[0,0,1]")
            for d in range(10):
                a(f"v_cvt_pk_bf16_f32 v{dst + d}, v{f + 2 * d}, v{f + 2 * d + 1}")

        a(f"s_mov_b32 s{sT3}, 0xffff0000\ns_waitcnt vmcnt({5 * (self.ln_passes() - 1 - ps)})")
        unpack()
        stats()
        H = self.LN_H + 14 * ps
        a(f"v_mov_b32 v{H + 10}, v{acc}\nv_mov_b32 v{H + 11}, v{sc}")
        scale_pack(raw)
        unpack()
        stats()
        scale_pack(H)
        a(f"""
        v_add_u32 v{H + 12}, {WS_H + 2560 * ps}, v{off}
        v_lshlrev_b32 v{off + 4}, 3, v{off + 1}
        v_add_u32 v{off + 4}, {WS_STATS + 16 * ps}, v{off + 4}
        v_and_b32 v{off + 2}, 31, v0
        v_mov_b32 v{off + 3}, {OOB}
        v_cmp_eq_u32 vcc, 0, v{off + 2}
        v_cndmask_b32 v{H + 13}, v{off + 3}, v{off + 4}, vcc
        """)

    LN_H = 212

    def ln_stores(self, a):
        lab = a.uid("Lnoln")
        a(f"s_cmp_eq_u32 s{sLnOn}, 0\ns_cbranch_scc1 {lab}")
        for ps in range(self.ln_passes()):
            H = self.LN_H + 14 * ps
            for j in range(5):
                a(f"buffer_store_dwordx2 v[{H + 2 * j}:{H + 2 * j + 1}], v{H + 12}, s[{sWS}:{sWS + 3}], 0 offen offset:{256 * j} sc1")
            a(f"buffer_store_dwordx2 v[{H + 10}:{H + 11}], v{H + 13}, s[{sWS}:{sWS + 3}], 0 offen sc1")
        a.label(lab)

    def loader_consts_first(self, a):
        X, W, LIN = self.LV_X, self.LV_W, self.LV_LIN
        t0, t1, t2, t3 = 20, 21, 22, 23
        a(f"""
        v_lshrrev_b32 v{t0}, 3, v0
        v_and_b32 v{t1}, 7, v0
        v_lshrrev_b32 v{t2}, 1, v{t0}
        s_and_b32 s{sT0}, s{sLw}, 1
        s_lshl_b32 s{sT0}, s{sT0}, 2
        v_or_b32 v{t3}, s{sT0}, v{t2}
        v_xor_b32 v{t3}, v{t3}, v{t1}
        v_lshlrev_b32 v{t3}, 4, v{t3}
        v_mul_u32_u24 v{X}, 1280, v{t0}
        v_add_u32 v{X}, v{X}, v{t3}
        v_lshlrev_b32 v{LIN}, 4, v0
        v_lshrrev_b32 v{t0}, 4, v0
        v_and_b32 v{t1}, 15, v0
        v_lshlrev_b32 v{t2}, 2, v{t0}
        v_xor_b32 v{t2}, v{t2}, v{t1}
        v_min_u32 v{t2}, 14, v{t2}
        v_mul_u32_u24 v{t3}, 52, v{t2}
        v_lshrrev_b32 v{t3}, 8, v{t3}
        v_mul_u32_u24 v{W}, 5, v{t3}
        v_sub_u32 v{W}, v{t2}, v{W}
        v_lshlrev_b32 v{W}, 4, v{W}
        v_mul_u32_u24 v{t3}, 1280, v{t3}
        v_add_u32 v{W}, v{W}, v{t3}
        v_mul_u32_u24 v{t3}, 3840, v{t0}
        v_add_u32 v{W}, v{W}, v{t3}
        """)

    def fake_w(self, a):
        if not self.o.get("fakew"):
            return
        W = self.LV_W
        a(f"""
        v_lshrrev_b32 v20, 4, v0
        v_and_b32 v21, 15, v0
        v_lshlrev_b32 v22, 2, v20
        v_xor_b32 v22, v22, v21
        v_lshlrev_b32 v22, 4, v22
        v_mul_u32_u24 v{W}, 3840, v20
        v_add_u32 v{W}, v{W}, v22
        s_min_u32 s{sT0}, s{sP}, 14
        s_mul_i32 s{sT0}, s{sT0}, 256
        s_mul_i32 s{sT1}, s{sP}, 80
        s_sub_u32 s{sT0}, s{sT0}, s{sT1}
        v_add_u32 v{W}, s{sT0}, v{W}
        """)

    def xt_issue(self, a):
        a(f"""
        s_lshl_b32 s{sT1}, s{sSt}, 6
        s_lshr_b32 s{sT2}, s{sLw}, 1
        s_lshl_b32 s{sT3}, s{sT2}, 5
        s_add_u32 s{sT1}, s{sT1}, s{sT3}
        s_mul_i32 s{sT1}, s{sT1}, 1280
        s_mul_i32 s{sT3}, s{sDt}, 160
        s_add_u32 s{sT1}, s{sT1}, s{sT3}
        s_mul_i32 s{sT2}, s{sT2}, 5120
        s_add_u32 s{sT2}, s{sT2}, {SCR}
        s_and_b32 s{sT3}, s{sLw}, 1
        """)

        def path(par):
            for t in ((0, 1, 2) if par == 0 else (3, 4, 4)):
                a(f"""
                s_add_u32 m0, s{sT2}, {t * 1024}
                s_nop 0
                buffer_load_dwordx4 v{self.LV_WO + t}, s[{sX}:{sX + 3}], s{sT1} offen lds
                """)
        self.by_scalar(a, sT3, path)

    def loader(self, a):
        W = lambda n: self.wait_bar(a, n)

        def Wchk(n, chk):
            self.stamp(a, 0)
            a(f"s_waitcnt vmcnt({n})")
            self.only_w0(a, chk)
            self.stamp(a, 1)
            a("s_barrier")
            self.stamp(a, 2, bump=True)
        self.loader_consts_first(a)
        self.fake_w(a)
        a(f"s_mov_b32 s{sSlot}, 0")
        self.q_init(a)
        a("s_waitcnt lgkmcnt(0)")
        self.mark(a)
        self.q_issue(a)
        nT = self.tlb_touch(a) + self.code_prefetch(a)
        self.nonce_load(a)
        self.loader_consts(a)
        self.fake_w(a)
        self.loader_poll_addrs(a)
        self.nonce_make(a)
        lead = self.o["lead"]
        self.q_issue(a)
        if lead == 3:
            self.q_issue(a)
        self.mark(a)
        L = 8 * (lead - 1)
        W(L + (0 if lead == 3 else nT)); self.q_issue(a)
        self.mark(a)
        W(L); self.q_issue(a)
        W(L)

        def ln_done():
            skip = a.uid("Llnoff")
            a(f"s_cmp_eq_u32 s{sLnOn}, 0\ns_cbranch_scc1 {skip}")
            a(f"s_lshl_b32 s{sT4}, s{sLnIdx}, 2\ns_add_u32 s{sT4}, s{sT4}, {FL_LN}")
            self.flag_set(a, sT4)
            a.label(skip)
            a(f"s_mov_b32 s{sArr}, 1\ns_atomic_add s{sArr}, s[{sDBG}:{sDBG + 1}], 0x0 glc")
        self.only_w0(a, ln_done)
        self.q_issue(a)
        W(L); self.q_issue(a)
        W(L); self.q_issue(a)
        W(L); self.q_issue(a)
        W(L)
        self.poll_issue(a, self.LV_PLB, 4)
        chk = lambda: self.poll_check(a, self.LV_PLB, 4)
        if lead == 2:
            self.q_issue(a)
            W(9)
            self.q_issue(a)
            Wchk(8, chk)
            self.m_init(a)
            self.m_issue(a)
            W(8); self.m_issue(a)
            self.m_issue(a)
        else:
            self.q_issue(a)
            W(17)
            Wchk(8, chk)
            self.m_init(a)
            self.m_issue(a)
            W(8); self.m_issue(a)
            self.m_issue(a)
        self.mark(a)
        a("s_barrier")
        a("s_barrier")
        self.kv_copy_out(a)

        def ln_all():
            lab = a.uid("Lep")
            a(f"s_waitcnt lgkmcnt(0)\ns_cmp_lg_u32 s{sArr}, 255\ns_cbranch_scc1 {lab}")
            a(f"s_mov_b32 s{sT4}, {WS_EPOCH}")
            self.flag_set(a, sT4)
            a.label(lab)
        Wchk(22, ln_all)
        self.m_issue(a)
        W(22); self.m_issue(a)
        W(16)

        def kv_done():
            a(f"""
            s_lshl_b32 s{sT4}, s{sP}, 4
            s_add_u32 s{sT4}, s{sT4}, s{sI}
            s_lshl_b32 s{sT4}, s{sT4}, 2
            s_add_u32 s{sT4}, s{sT4}, {FL_KV}
            """)
            self.flag_set(a, sT4)
        self.only_w0(a, kv_done)
        self.m_issue(a)
        self.loop(a, 7, lambda: (W(16), self.m_issue(a)))
        W(16)
        self.poll_issue(a, self.LV_PKV)
        self.m_issue(a)
        W(17); self.m_issue(a)
        W(17); self.m_issue(a)
        Wchk(16, lambda: self.poll_check(a, self.LV_PKV))
        self.kv_init(a)
        self.kv_issue(a, 0, 9)
        W(17)
        self.kv_issue(a, 9, 16)
        W(16)
        self.f_init(a)
        a(f"s_mov_b32 s{sSlot}, 0")
        a("s_barrier")
        W(0)
        self.mark(a)
        self.g_copy_out(a)
        a(f"""
        s_waitcnt vmcnt(0)
        v_mov_b32 v20, {SCR_CNT}
        v_mov_b32 v21, 1
        s_mov_b32 exec_hi, 0
        s_mov_b32 exec_lo, 1
        ds_add_u32 v20, v21
        s_mov_b64 exec, -1
        """)
        self.mark(a)

        def g_pub():
            self.lds_spin(a, 0, 4)
            skip = a.uid("Lgidle")
            a(f"s_cmp_eq_u32 s{sM1On}, 0\ns_cbranch_scc1 {skip}")
            a(f"""
            s_lshl_b32 s{sT4}, s{sFt}, 6
            s_lshl_b32 s{sT5}, s{sDt1}, 2
            s_add_u32 s{sT4}, s{sT4}, s{sT5}
            s_add_u32 s{sT4}, s{sT4}, {FL_G}
            """)
            for r in range(8):
                self.flag_set(a, sT4)
                if r < 7:
                    a(f"s_add_u32 s{sT4}, s{sT4}, 1536")
            a.label(skip)
        self.only_w0(a, g_pub)
        self.mark(a)
        self.slot_begin(a)
        self.f_issue_w2(a)
        a(f"s_add_u32 s{sSW}, s{sSW}, {SLOT}")
        self.f_issue_w2(a)

        def g_sync():
            ok, sp = a.uid("Lgok"), a.uid("Lgspin")
            self.spin(a, self.LV_PG, 1, ok, sp, self.o["gsleep"])
            a.label(ok)
            a(f"v_mov_b32 v20, {SCR_CNT + 4}\nv_mov_b32 v21, 1\nds_write_b32 v20, v21")
        self.mark(a)
        self.only_w0(a, g_sync)
        self.mark(a)
        self.lds_spin(a, 1, 1)
        self.slot_begin(a)
        self.f_issue_g(a)
        a(f"s_add_u32 s{sSW}, s{sSW}, {SLOT}")
        self.f_issue_g(a)
        a(f"s_mov_b32 s{sSlot}, {2 * SLOT}")
        W(5)
        self.mark(a)
        self.f_issue(a); self.f_issue(a)
        self.o_copy_out(a)
        W(21)
        self.f_issue(a)
        W(21); self.f_issue(a)
        W(18)

        def o_done():
            a(f"""
            s_lshl_b32 s{sT4}, s{sI}, 4
            s_add_u32 s{sT4}, s{sT4}, s{sP}
            s_lshl_b32 s{sT4}, s{sT4}, 2
            s_add_u32 s{sT4}, s{sT4}, {FL_O}
            """)
            self.flag_set(a, sT4)
        self.only_w0(a, o_done)
        self.f_issue(a)
        self.xt_issue(a)
        W(21); self.f_issue(a)
        W(21); self.f_issue(a)
        W(21)
        self.poll_issue(a, self.LV_PO)
        self.f_issue(a)
        W(19); self.f_issue(a)
        W(19); self.f_issue(a)
        Wchk(18, lambda: self.poll_check(a, self.LV_PO))
        self.wo_init(a)
        self.wo_issue(a)
        self.loop(a, 4, lambda: (W(18), self.wo_issue(a)))
        W(18); W(9); W(0)
        a("s_barrier")

    def m_consts(self, a):
        t0, t1, t2, t3, t4 = 190, 191, 192, 193, 194
        saved = (self.M_ACC,)
        super().m_consts(a)

    def zero(self, a, r0, n):
        for r in reversed(range(r0, r0 + n)):
            a(f"v_mov_b32 v{r}, 0")

    def a_consts(self, a, zero_o=True):
        super().a_consts(a)

    def q_reads(self, ks, b=None):
        base = self.Q_BUF + 16 * ks
        out = []
        for tm in range(2):
            for rd in range(2):
                out.append(f"ds_read_b64_tr_b16 v[{base + 4 * tm + 2 * rd}:{base + 4 * tm + 2 * rd + 1}], v{self.Q_AA + tm} offset:{(16 * ks + 4 * rd) * 256}")
        for tn in range(2):
            out.append(f"ds_read_b128 v[{base + 8 + 4 * tn}:{base + 11 + 4 * tn}], v{self.Q_AB + ks} offset:{tn * 4096}")
        return out

    @staticmethod
    def czero(mf):
        return [m.rsplit(",", 1)[0] + ", 0" for m in mf]

    def q_group(self, ks, wn):
        base = self.Q_BUF + 16 * ks
        cs, on = self.Q_CS, self.Q_ONES
        return self.q_mfmas(ks) + [f"v_mfma_f32_16x16x32_bf16 v[{cs}:{cs + 3}], v[{base + 4 * wn}:{base + 4 * wn + 3}], v[{on}:{on + 3}], v[{cs}:{cs + 3}]"]

    def q_addr(self):
        return ([f"v_add_u32 v{self.Q_AA + tm}, s{sSlot}, v{self.Q_CA + tm}" for tm in range(2)] +
                [f"v_add_u32 v{self.Q_AB + ks}, s{sSlot}, v{self.Q_CB + ks}" for ks in range(4)])

    def q_stage(self, a, wn, first, hook=None, pre=None):
        if pre:
            pre()
        self.cbar(a)
        if hook:
            hook()
        r01 = self.q_reads(0) + self.q_reads(1)
        if first:
            for r in r01:
                a(r)
        else:
            self.spread(a, self.q_group(3, wn), r01)
        a("s_waitcnt lgkmcnt(6)")
        g0 = self.q_group(0, wn)
        self.spread(a, self.czero(g0) if first else g0, self.q_reads(2))
        a("s_waitcnt lgkmcnt(6)")
        self.spread(a, self.q_group(1, wn), self.q_reads(3))
        self.slot_next(a)
        a("s_waitcnt lgkmcnt(6)")
        g2 = self.q_group(2, wn)
        self.spread(a, g2[4:] + g2[:4], self.q_addr())
        a("s_waitcnt lgkmcnt(0)")
        if self.o.get("qmarks"):
            self.mark(a)

    @staticmethod
    def spread(a, mf, other):
        n = len(mf)
        k = 0
        for i, m in enumerate(mf):
            a(m)
            upto = -(-(len(other) * (i + 1)) // n)
            for r in other[k:upto]:
                a(r)
            k = upto

    def q_epilogue(self, a, wm):
        C, AB, T = 136, 168, 176
        ST = self.V_ST
        a(f"""
        v_lshrrev_b32 v{T}, 5, v0
        v_lshlrev_b32 v{T + 1}, 4, v{T}
        v_add_u32 v{T + 1}, {SCR_CS + wm * 256}, v{T + 1}
        """)
        for tm in range(2):
            for q in range(4):
                r = C + 16 * tm + 4 * q
                a(f"ds_read_b128 v[{r}:{r + 3}], v{T + 1} offset:{tm * 128 + q * 32}")
        a(f"""
        s_lshl_b32 s{sT1}, s{sWn}, 6
        v_and_b32 v{T + 2}, 31, v0
        v_add_u32 v{T + 2}, s{sT1}, v{T + 2}
        v_lshlrev_b32 v{T}, 3, v{T}
        v_mul_u32_u24 v{T + 3}, 80, v{T + 2}
        v_add_u32 v{T + 3}, v{T + 3}, v{T}
        v_add_u32 v{T + 3}, {SCR}, v{T + 3}
        v_mul_u32_u24 v{T + 4}, {KVROW}, v{T + 2}
        v_add_u32 v{T + 4}, v{T + 4}, v{T}
        v_add_u32 v{T + 4}, {SLOT}, v{T + 4}
        """)
        for tn in range(2):
            m_, r_ = ST + 2 * tn, ST + 2 * tn + 1
            o = AB + 4 * tn
            a(f"""
            v_mov_b32 v{o}, v{r_}
            v_mul_f32 v{o + 1}, v{m_}, v{r_}
            v_mul_f32 v{o + 2}, {f32(QSCALE)}, v{r_}
            v_mul_f32 v{o + 3}, {f32(QSCALE)}, v{o + 1}
            """)
        a("s_waitcnt lgkmcnt(0)")
        for tn in range(2):
            for tm in range(2):
                acc = self.Q_ACC + 16 * (2 * tm + tn)
                quads = []
                for q in range(4):
                    Q0 = 16 * wm + 8 * tm + 2 * q
                    quads.append((Q0, AB + 4 * tn + (2 if Q0 < 10 else 0), C + 16 * tm + 4 * q, acc + 4 * q))
                live = [t for t in quads if t[0] != 30]
                for Q0, o, c, x in live:
                    for y in (x, x + 2):
                        a(f"v_pk_mul_f32 v[{y}:{y + 1}], v[{y}:{y + 1}], v[{o}:{o + 1}] op_sel_hi:[1,0]")
                for Q0, o, c, x in live:
                    for hf in range(2):
                        y = x + 2 * hf
                        a(f"v_pk_fma_f32 v[{y}:{y + 1}], v[{c + 2 * hf}:{c + 2 * hf + 1}], v[{o}:{o + 1}], v[{y}:{y + 1}] op_sel:[0,1,0] op_sel_hi:[1,1,1] neg_lo:[1,0,0] neg_hi:[1,0,0]")
                for Q0, o, c, x in live:
                    a(f"v_cvt_pk_bf16_f32 v{x}, v{x}, v{x + 1}")
                for Q0, o, c, x in live:
                    a(f"v_cvt_pk_bf16_f32 v{x + 1}, v{x + 2}, v{x + 3}")
                for Q0, o, c, x in quads:
                    if Q0 == 30:
                        a(f"v_mov_b32 v{x}, 0x00003f80\nv_mov_b32 v{x + 1}, 0")
                        a(f"""
                        s_mov_b32 exec_hi, 0
                        ds_write_b64 v{T + 4}, v[{x}:{x + 1}] offset:{tn * 32 * KVROW + 160}
                        s_mov_b64 exec, -1
                        """)
                    elif Q0 < 10:
                        a(f"ds_write_b64 v{T + 3}, v[{x}:{x + 1}] offset:{tn * 32 * 80 + Q0 * 8}")
                    else:
                        a(f"ds_write_b64 v{T + 4}, v[{x}:{x + 1}] offset:{tn * 32 * KVROW + (Q0 - 10) * 8}")
        a("s_waitcnt lgkmcnt(0)")

    def kv_copy_out(self, a):
        R, T = 32, 28
        a(f"""
        v_lshlrev_b32 v{T}, 4, v0
        s_lshl_b32 s{sT0}, s{sLw}, 10
        v_add_u32 v{T}, s{sT0}, v{T}
        v_add_u32 v{T + 1}, {SLOT}, v{T}
        s_lshl_b32 s{sT1}, s{sP}, 11
        s_lshl_b32 s{sT2}, s{sI}, 7
        s_add_u32 s{sT1}, s{sT1}, s{sT2}
        s_mul_i32 s{sT1}, s{sT1}, {KVROW}
        s_add_u32 s{sT1}, s{sT1}, {WS_KV}
        v_add_u32 v{T + 2}, s{sT1}, v{T}
        s_cmp_eq_u32 s{sLw}, 0
        s_cselect_b32 s{sT2}, 0, {OOB}
        v_add_u32 v{T + 3}, s{sT2}, v{T + 2}
        """)
        for k in range(6):
            a(f"ds_read_b128 v[{R + 4 * k}:{R + 4 * k + 3}], v{T + 1} offset:{k * 4096}")
        for k in range(6):
            a(f"s_waitcnt lgkmcnt({5 - k})")
            a(f"s_mov_b32 s{sT0}, {k * 4096}")
            a(f"buffer_store_dwordx4 v[{R + 4 * k}:{R + 4 * k + 3}], v{T + (3 if k == 5 else 2)}, s[{sWS}:{sWS + 3}], s{sT0} offen sc1")

    def q_csum_write(self, a):
        t0, t1 = 176, 177
        cs = self.Q_CS
        a(f"""
        v_and_b32 v{t0}, 1, v0
        v_lshlrev_b32 v{t0}, 6, v{t0}
        v_lshrrev_b32 v{t1}, 4, v0
        v_lshl_add_u32 v{t0}, v{t1}, 4, v{t0}
        s_lshl_b32 s{sT0}, s{sWm}, 8
        s_lshl_b32 s{sT1}, s{sWn}, 7
        s_add_u32 s{sT0}, s{sT0}, s{sT1}
        s_add_u32 s{sT0}, s{sT0}, {SCR_CS}
        v_add_u32 v{t0}, s{sT0}, v{t0}
        v_and_b32 v{t1}, 14, v0
        v_cmp_eq_u32 vcc, 0, v{t1}
        s_and_saveexec_b64 s[{sEx}:{sEx + 1}], vcc
        ds_write_b128 v{t0}, v[{cs}:{cs + 3}]
        s_mov_b64 exec, s[{sEx}:{sEx + 1}]
        s_waitcnt lgkmcnt(0)
        """)

    def c_qkv(self, a):
        T = 212
        for c in self.q_addr():
            a(c)

        def stats():
            ST = self.V_ST
            a(f"""
            s_lshl_b32 s{sT0}, s{sI}, 7
            s_lshl_b32 s{sT1}, s{sWn}, 6
            s_add_u32 s{sT0}, s{sT0}, s{sT1}
            v_and_b32 v{T + 1}, 31, v0
            v_add_u32 v{T + 1}, s{sT0}, v{T + 1}
            v_lshlrev_b32 v{T + 1}, 3, v{T + 1}
            v_add_u32 v{T + 1}, {WS_STATS}, v{T + 1}
            buffer_load_dwordx2 v[{ST}:{ST + 1}], v{T + 1}, s[{sWS}:{sWS + 3}], 0 offen sc1
            buffer_load_dwordx2 v[{ST + 2}:{ST + 3}], v{T + 1}, s[{sWS}:{sWS + 3}], 0 offen offset:256 sc1
            """)

        def run(wn):
            self.q_stage(a, wn, True, hook=lambda: self.ln_stores(a))
            self.mark(a)
            self.q_stage(a, wn, False)
            self.q_stage(a, wn, False, pre=lambda: a("s_waitcnt vmcnt(0)"))
            self.loop(a, 5, lambda: self.q_stage(a, wn, False))
            self.q_stage(a, wn, False, hook=stats)
            self.q_stage(a, wn, False)
            for m in self.q_group(3, wn):
                a(m)
        self.by_scalar(a, sWn, run)
        self.mark(a)
        self.q_csum_write(a)
        a("s_barrier")
        a("s_waitcnt vmcnt(0)")
        self.by_scalar(a, sWm, lambda wm: self.q_epilogue(a, wm))
        a("s_barrier")

    def m_addr(self):
        return ([f"v_add_u32 v{self.M_AA + tm}, s{sSlot}, v{self.M_CA + tm}" for tm in range(2)] +
                [f"v_add_u32 v{self.M_AB}, s{sSlot}, v{self.M_CB}"])

    def m_stage(self, a, first, pre=None, hook=None):
        if pre:
            pre()
        self.cbar(a)
        if hook:
            hook()
        r01 = self.m_reads(0) + self.m_reads(1)
        if first:
            for r in r01:
                a(r)
        else:
            self.spread(a, self.m_mfmas(2) + self.m_mfmas(3), r01)
        a("s_waitcnt lgkmcnt(6)")
        self.spread(a, self.czero(self.m_mfmas(0)) if first else self.m_mfmas(0), self.m_reads(2))
        a("s_waitcnt lgkmcnt(6)")
        self.spread(a, self.m_mfmas(1), self.m_reads(3))
        self.slot_next(a)
        for c in self.m_addr():
            a(c)
        a("s_waitcnt lgkmcnt(0)")

    def m_reduce_write(self, a, kh):
        t = 190
        src = self.M_ACC + 16 * (1 - kh)
        a(f"""
        v_lshlrev_b32 v{t}, 4, v0
        s_lshl_b32 s{sT0}, s{sLw}, 12
        s_add_u32 s{sT0}, s{sT0}, {M_RED}
        v_add_u32 v{t}, s{sT0}, v{t}
        """)
        for q in range(4):
            a(f"ds_write_b128 v{t}, v[{src + 4 * q}:{src + 4 * q + 3}] offset:{q * 1024}")
        a("s_waitcnt lgkmcnt(0)")

    def m_epilogue(self, a, kh):
        t, R, U = 190, 136, 160
        B1 = self.V_B1
        keep = self.M_ACC + 16 * kh
        a(f"""
        v_lshlrev_b32 v{t}, 4, v0
        s_xor_b32 s{sT0}, s{sLw}, 2
        s_lshl_b32 s{sT0}, s{sT0}, 12
        s_add_u32 s{sT0}, s{sT0}, {M_RED}
        v_add_u32 v{t}, s{sT0}, v{t}
        """)
        for q in range(4):
            a(f"ds_read_b128 v[{R + 4 * q}:{R + 4 * q + 3}], v{t} offset:{q * 1024}")
        a(f"""
        s_lshl_b32 s{sT1}, s{sWn}, 5
        v_and_b32 v{U}, 31, v0
        v_add_u32 v{U}, s{sT1}, v{U}
        v_mul_u32_u24 v{U}, {GROW}, v{U}
        v_lshrrev_b32 v{U + 1}, 5, v0
        v_lshl_add_u32 v{U}, v{U + 1}, 3, v{U}
        v_add_u32 v{U}, {SLOT + 64 * kh}, v{U}
        """)
        c0 = -2.0 * math.sqrt(2.0 / math.pi) * math.log2(math.e)
        c1 = c0 * 0.044715
        a(f"v_lshlrev_b32 v{U + 2}, 16, v{B1}\nv_mov_b32 v{U + 4}, {f32(c1)}\nv_mov_b32 v{U + 5}, {f32(c0)}\nv_mov_b32 v{U + 6}, 1.0")
        a("s_waitcnt lgkmcnt(0)")
        P = lambda r: f"v[{r}:{r + 1}]"
        for r in range(0, 16, 2):
            a(f"v_pk_add_f32 {P(keep + r)}, {P(keep + r)}, {P(R + r)}")
        for r in range(0, 16, 2):
            a(f"v_pk_add_f32 {P(keep + r)}, {P(keep + r)}, {P(U + 2)} op_sel_hi:[1,0]")
        for r in range(0, 16, 2):
            a(f"v_pk_mul_f32 {P(R + r)}, {P(keep + r)}, {P(keep + r)}")
        for r in range(0, 16, 2):
            a(f"v_pk_fma_f32 {P(R + r)}, {P(R + r)}, {P(U + 4)}, {P(U + 4)} op_sel:[0,0,1] op_sel_hi:[1,0,1]")
        for r in range(0, 16, 2):
            a(f"v_pk_mul_f32 {P(R + r)}, {P(R + r)}, {P(keep + r)}")
        for r in range(16):
            a(f"v_exp_f32 v{R + r}, v{R + r}")
        for r in range(0, 16, 2):
            a(f"v_pk_add_f32 {P(R + r)}, {P(R + r)}, {P(U + 6)} op_sel_hi:[1,0]")
        for r in range(16):
            a(f"v_rcp_f32 v{R + r}, v{R + r}")
        for r in range(0, 16, 2):
            a(f"v_pk_mul_f32 {P(keep + r)}, {P(keep + r)}, {P(R + r)}")
        for q in range(4):
            x = keep + 4 * q
            a(f"v_cvt_pk_bf16_f32 v{x}, v{x}, v{x + 1}\nv_cvt_pk_bf16_f32 v{x + 1}, v{x + 2}, v{x + 3}")
            a(f"ds_write_b64 v{U}, v[{x}:{x + 1}] offset:{16 * q}")
        a("s_waitcnt lgkmcnt(0)")

    def g_copy_out(self, a):
        R, T = 40, 28
        a(f"""
        v_lshrrev_b32 v{T}, 3, v0
        s_lshl_b32 s{sT0}, s{sLw}, 4
        v_add_u32 v{T}, s{sT0}, v{T}
        v_and_b32 v{T + 1}, 7, v0
        v_mul_u32_u24 v{T + 2}, {GROW}, v{T}
        v_lshl_add_u32 v{T + 2}, v{T + 1}, 4, v{T + 2}
        v_add_u32 v{T + 2}, {SLOT}, v{T + 2}
        ds_read_b128 v[{R}:{R + 3}], v{T + 2}
        ds_read_b128 v[{R + 4}:{R + 7}], v{T + 2} offset:{8 * GROW}
        s_lshl_b32 s{sT0}, s{sDt1}, 6
        v_lshl_add_u32 v{T + 1}, v{T + 1}, 3, s{sT0}
        v_mul_u32_u24 v{T + 3}, 820, v{T + 1}
        v_lshrrev_b32 v{T + 3}, 16, v{T + 3}
        v_mul_u32_u24 v{T + 4}, 80, v{T + 3}
        v_sub_u32 v{T + 1}, v{T + 1}, v{T + 4}
        v_mul_u32_u24 v{T + 3}, {1536 * 160}, v{T + 3}
        v_lshl_add_u32 v{T + 3}, v{T + 1}, 1, v{T + 3}
        s_lshl_b32 s{sT0}, s{sFt}, 6
        v_add_u32 v{T}, s{sT0}, v{T}
        v_mul_u32_u24 v{T}, 160, v{T}
        v_add_u32 v{T + 3}, v{T + 3}, v{T}
        s_mov_b32 s{sT1}, {WS_GT}
        s_cmp_eq_u32 s{sM1On}, 0
        s_cselect_b32 s{sT0}, {OOB}, s{sT1}
        v_add_u32 v{T + 3}, s{sT0}, v{T + 3}
        s_waitcnt lgkmcnt(0)
        buffer_store_dwordx4 v[{R}:{R + 3}], v{T + 3}, s[{sWS}:{sWS + 3}], 0 offen sc1
        buffer_store_dwordx4 v[{R + 4}:{R + 7}], v{T + 3}, s[{sWS}:{sWS + 3}], 0 offen offset:{8 * 160} sc1
        """)

    def c_mix1(self, a):
        T = 200
        a(f"""
        s_lshl_b32 s{sT0}, s{sFt}, 6
        s_lshl_b32 s{sT1}, s{sWn}, 5
        s_add_u32 s{sT0}, s{sT0}, s{sT1}
        v_and_b32 v{T}, 31, v0
        v_add_u32 v{T}, s{sT0}, v{T}
        v_lshlrev_b32 v{T}, 1, v{T}
        buffer_load_ushort v{self.V_B1}, v{T}, s[{sB1}:{sB1 + 3}], 0 offen
        """)
        for c in self.m_addr():
            a(c)
        self.m_stage(a, True)
        self.zero(a, self.A_O, 16)
        self.m_stage(a, False)
        self.zero(a, self.A_O + 16, 16)
        self.m_stage(a, False)
        self.mark(a)
        self.loop(a, 13, lambda: self.m_stage(a, False))
        for m in self.m_mfmas(2) + self.m_mfmas(3):
            a(m)
        self.mark(a)
        self.by_scalar(a, sWm, lambda kh: self.m_reduce_write(a, kh))
        a("s_barrier")
        a("s_waitcnt vmcnt(0)")
        self.by_scalar(a, sWm, lambda kh: self.m_epilogue(a, kh))
        self.a_zero(a)
        self.cbar(a)

    def a_addr_consts(self, a):
        keep = (self.A_O, self.A_K)
        body = Asm()
        B.Gen.a_consts(self, body)
        for it in body.items:
            if it.mn == "v_mov_b32" and it.ops[0][0] == "v":
                r = int(it.ops[0][1:])
                if self.A_O <= r < self.A_O + 32 or self.A_K <= r < self.A_K + 16:
                    continue
            a.items.append(it)

    def a_zero(self, a):
        for hh in range(2):
            for base in (self.A_K, self.A_Q):
                a(f"v_mov_b32 v{base + 8 * hh + 6}, 0\nv_mov_b32 v{base + 8 * hh + 7}, 0")

    def a_qreads(self, a):
        T = self.A_T
        a(f"""
        s_lshl_b32 s{sT0}, s{sLw}, 5
        v_and_b32 v{T}, 31, v0
        v_add_u32 v{T}, s{sT0}, v{T}
        v_mul_u32_u24 v{T}, 80, v{T}
        v_add_u32 v{T}, {SCR}, v{T}
        v_lshrrev_b32 v{T + 1}, 5, v0
        v_lshl_add_u32 v{T + 1}, v{T + 1}, 4, v{T}
        """)
        for hh in range(2):
            q = self.A_Q + 8 * hh
            a(f"""
            ds_read_b64 v[{q}:{q + 1}], v{T + 1} offset:{40 * hh}
            ds_read_b64 v[{q + 2}:{q + 3}], v{T + 1} offset:{40 * hh + 8}
            ds_read_b64 v[{q + 4}:{q + 5}], v{T} offset:{40 * hh + 32}
            """)

    def a_qmask(self, a):
        for hh in range(2):
            q = self.A_Q + 8 * hh
            a(f"""
            s_mov_b32 exec_lo, 0
            v_mov_b32 v{q + 4}, 0
            v_mov_b32 v{q + 5}, 0
            s_mov_b64 exec, -1
            """)

    def kr(self, hh, dt):
        k = self.A_K + 8 * hh
        o = dt * 32 * KVROW + 40 * hh
        return [f"ds_read_b64 v[{k}:{k + 1}], v{self.A_KA} offset:{o}",
                f"ds_read_b64 v[{k + 2}:{k + 3}], v{self.A_KA} offset:{o + 8}",
                f"ds_read_b64 v[{k + 4}:{k + 5}], v{self.A_KA + 1} offset:{o + 32}"]

    def vr(self, hh, dt):
        x = self.A_V + 8 * hh
        return [f"ds_read_b64_tr_b16 v[{x + 4 * aa + 2 * rd}:{x + 4 * aa + 2 * rd + 1}], v{self.A_VA + hh} offset:{(dt * 32 + 16 * aa + 8 * rd) * KVROW}"
                for aa in range(2) for rd in range(2)]

    def a_slot(self, a, hv, qk_mask, do_qk, do_pv, dk, dv, rd_k=True, rd_v=True, wait=7):
        ho = 1 - hv
        sreg, p = self.A_S + 16 * hv, self.A_P + 8 * hv
        a(f"s_waitcnt lgkmcnt({wait})")
        qk = self.a_qk(ho, qk_mask) if do_qk else [None, None]
        pv = self.a_pv(ho) if do_pv else [None, None]
        kr = self.kr(ho, dk) if rd_k else []
        vr = self.vr(ho, dv) if rd_v else []
        plan = [(qk[0], kr[:2]), (qk[1], kr[2:]), (pv[0], vr[:2]), (pv[1], vr[2:])]
        for g, (m, rds) in enumerate(plan):
            if m:
                a(m)
            for r in rds:
                a(r)
            for q in range(4):
                a(f"v_exp_f32 v{sreg + 4 * g + q}, v{sreg + 4 * g + q}")
        for r in range(8):
            a(f"v_cvt_pk_bf16_f32 v{p + r}, v{sreg + 2 * r}, v{sreg + 2 * r + 1}")

    def a_iter(self, a, first, mask_a, mask_b, last):
        self.a_slot(a, 0, mask_a, True, not first, 1, 0, rd_k=not last, wait=7 if not last else 7)
        if last:
            self.a_slot(a, 1, None, False, True, 0, 0, rd_k=False, rd_v=False, wait=4)
            a("s_waitcnt lgkmcnt(0)")
            for m in self.a_pv(1):
                a(m)
        else:
            self.a_slot(a, 1, mask_b, True, True, 2, 1)
            for r in (self.A_KA, self.A_KA + 1, self.A_VA, self.A_VA + 1):
                a(f"v_add_u32 v{r}, {32 * KVROW}, v{r}")

    def g_publish(self, a):
        lab = a.uid("Lgp")
        T = 208
        a(f"s_cmp_lg_u32 s{sPub}, 0\ns_cbranch_scc1 {lab}")
        a(f"""
        s_mov_b32 s{sPub}, 1
        s_waitcnt vmcnt(0)
        v_mov_b32 v{T}, {SCR_CNT}
        v_mov_b32 v{T + 1}, 1
        s_mov_b32 exec_hi, 0
        s_mov_b32 exec_lo, 1
        ds_add_u32 v{T}, v{T + 1}
        s_mov_b64 exec, -1
        """)
        a.label(lab)

    def attention(self, a):
        T = self.A_T
        a(f"""
        s_lshl_b32 s{sT0}, s{sI}, 2
        s_add_u32 s{sT0}, s{sT0}, s{sLw}
        s_cmp_ge_u32 s{sT0}, 8
        s_cselect_b32 s{sT0}, 8, s{sT0}
        s_sub_u32 s{sT2}, 8, s{sT0}
        """)
        self.a_skip(a, sT2)
        self.a_qreads(a)
        for hh in range(2):
            for r in self.kr(hh, 0):
                a(r)
        a("s_waitcnt lgkmcnt(0)")
        self.a_qmask(a)
        MF, MD = self.A_MF, self.A_MD
        L = {k: a.uid("La" + k) for k in ("far", "n2", "n1", "mid", "pre", "last", "done")}

        def head(mask):
            for m in self.a_qk(0, mask):
                a(m)
            for r in self.kr(0, 1) + self.vr(0, 0):
                a(r)
        a(f"s_cmp_eq_u32 s{sT2}, 0\ns_cbranch_scc1 {L['far']}")
        a(f"s_cmp_eq_u32 s{sT2}, 7\ns_cbranch_scc1 {L['n2']}")
        a(f"s_cmp_eq_u32 s{sT2}, 8\ns_cbranch_scc1 {L['n1']}")
        head(None)
        self.a_iter(a, True, None, None, False)
        a(f"s_sub_u32 s{sCnt}, 6, s{sT2}\ns_cmp_eq_u32 s{sCnt}, 0\ns_cbranch_scc1 {L['pre']}\ns_branch {L['mid']}")
        a.label(L["n2"])
        head(None)
        self.a_iter(a, True, None, MD, False)
        a(f"s_branch {L['last']}")
        a.label(L["n1"])
        head(MD)
        self.a_iter(a, True, MD, None, True)
        a(f"s_branch {L['done']}")
        a.label(L["far"])
        head(MF)
        self.a_iter(a, True, MF, None, False)
        a(f"s_mov_b32 s{sCnt}, 6")
        a.label(L["mid"])
        self.a_iter(a, False, None, None, False)
        a(f"s_sub_u32 s{sCnt}, s{sCnt}, 1\ns_cmp_lg_u32 s{sCnt}, 0\ns_cbranch_scc1 {L['mid']}")
        a.label(L["pre"])
        self.a_iter(a, False, None, MD, False)
        a.label(L["last"])
        self.a_iter(a, False, MD, None, True)
        a.label(L["done"])
        lfb, ldone = a.uid("Lfallback"), a.uid("Lnorm")
        self.fallback_labels = (lfb, ldone)
        self.a_rowsum(a)
        a(f"""
        v_mov_b32 v{T + 4}, {f32(2.0 ** -40)}
        v_mov_b32 v{T + 5}, {f32(2.0 ** 40)}
        v_cmp_ge_f32 s[{sT0}:{sT0 + 1}], v{T}, v{T + 4}
        v_cmp_le_f32 s[{sT2}:{sT2 + 1}], v{T}, v{T + 5}
        s_and_b64 s[{sT0}:{sT0 + 1}], s[{sT0}:{sT0 + 1}], s[{sT2}:{sT2 + 1}]
        v_cmp_ge_f32 s[{sT2}:{sT2 + 1}], v{T + 1}, v{T + 4}
        s_and_b64 s[{sT0}:{sT0 + 1}], s[{sT0}:{sT0 + 1}], s[{sT2}:{sT2 + 1}]
        v_cmp_le_f32 s[{sT2}:{sT2 + 1}], v{T + 1}, v{T + 5}
        s_and_b64 s[{sT0}:{sT0 + 1}], s[{sT0}:{sT0 + 1}], s[{sT2}:{sT2 + 1}]
        s_cmp_eq_u64 s[{sT0}:{sT0 + 1}], exec
        s_cbranch_scc0 {lfb}
        """)
        a.label(ldone)
        self.a_store(a)

    def a_store(self, a):
        T = self.A_T
        a(f"""
        v_rcp_f32 v{T + 2}, v{T}
        v_rcp_f32 v{T + 4}, v{T + 1}
        s_lshl_b32 s{sT1}, s{sLw}, 5
        v_and_b32 v{T + 6}, 31, v0
        v_add_u32 v{T + 6}, s{sT1}, v{T + 6}
        v_mul_u32_u24 v{T + 6}, 80, v{T + 6}
        v_add_u32 v{T + 6}, {SCR}, v{T + 6}
        v_lshrrev_b32 v{T + 7}, 5, v0
        v_lshl_add_u32 v{T + 7}, v{T + 7}, 3, v{T + 6}
        """)
        for hh in range(2):
            o = self.A_O + 16 * hh
            rc = T + 2 + 2 * hh
            for g in range(3):
                x = o + 4 * g
                for hf in range(2):
                    a(f"v_pk_mul_f32 v[{x + 2 * hf}:{x + 2 * hf + 1}], v[{x + 2 * hf}:{x + 2 * hf + 1}], v[{rc}:{rc + 1}] op_sel_hi:[1,0]")
                a(f"v_cvt_pk_bf16_f32 v{x}, v{x}, v{x + 1}\nv_cvt_pk_bf16_f32 v{x + 1}, v{x + 2}, v{x + 3}")
                if g < 2:
                    a(f"ds_write_b64 v{T + 7}, v[{x}:{x + 1}] offset:{40 * hh + 16 * g}")
                else:
                    a(f"s_mov_b32 exec_hi, 0\nds_write_b64 v{T + 6}, v[{x}:{x + 1}] offset:{40 * hh + 32}\ns_mov_b64 exec, -1")
        a("s_waitcnt lgkmcnt(0)")

    def o_copy_out(self, a):
        R, T = 40, 28
        a(f"""
        s_lshl_b32 s{sT0}, s{sI}, 7
        s_mul_i32 s{sT0}, s{sT0}, 1280
        s_mul_i32 s{sT1}, s{sP}, 80
        s_add_u32 s{sT0}, s{sT0}, s{sT1}
        s_add_u32 s{sT0}, s{sT0}, {WS_O}
        s_lshl_b32 s{sT1}, s{sLw}, 6
        v_add_u32 v{T}, s{sT1}, v0
        v_lshlrev_b32 v{T + 1}, 4, v{T}
        v_add_u32 v{T + 1}, {SCR}, v{T + 1}
        """)
        for k in range(3):
            a(f"ds_read_b128 v[{R + 4 * k}:{R + 4 * k + 3}], v{T + 1} offset:{k * 4096}")
        for k in range(3):
            a(f"""
            v_add_u32 v{T + 2}, {256 * k}, v{T}
            v_mul_u32_u24 v{T + 3}, 13108, v{T + 2}
            v_lshrrev_b32 v{T + 3}, 16, v{T + 3}
            v_mul_u32_u24 v{T + 4}, 5, v{T + 3}
            v_sub_u32 v{T + 4}, v{T + 2}, v{T + 4}
            v_mul_u32_u24 v{T + 3}, 1280, v{T + 3}
            v_lshl_add_u32 v{T + 3}, v{T + 4}, 4, v{T + 3}
            v_add_u32 v{T + 5 + k}, s{sT0}, v{T + 3}
            """)
        a(f"""
        v_mov_b32 v{T + 2}, {OOB}
        v_add_u32 v{T + 3}, 512, v{T}
        v_cmp_gt_u32 vcc, 640, v{T + 3}
        v_cndmask_b32 v{T + 7}, v{T + 2}, v{T + 7}, vcc
        s_waitcnt lgkmcnt(0)
        """)
        for k in range(3):
            a(f"buffer_store_dwordx4 v[{R + 4 * k}:{R + 4 * k + 3}], v{T + 5 + k}, s[{sWS}:{sWS + 3}], 0 offen sc1")

    def attention_fallback(self, a):
        lfb, ldone = self.fallback_labels
        M = 200
        a.label(lfb)
        self.a_addr_consts(a)
        self.zero(a, self.A_O, 32)
        a(f"""
        s_lshl_b32 s{sT0}, s{sI}, 2
        s_add_u32 s{sT0}, s{sT0}, s{sLw}
        s_cmp_ge_u32 s{sT0}, 8
        s_cselect_b32 s{sT0}, 8, s{sT0}
        s_sub_u32 s{sCnt}, 8, s{sT0}
        v_mov_b32 v{M}, {f32(-3e38)}
        v_mov_b32 v{M + 1}, {f32(-3e38)}
        """)
        self.a_skip(a, sCnt)
        lp, lnf, lnd = a.uid("Lfb"), a.uid("Lfbnf"), a.uid("Lfbnd")
        a.label(lp)
        for hh in range(2):
            for r in self.kr(hh, 0) + self.vr(hh, 0):
                a(r)
        for r in (self.A_KA, self.A_KA + 1, self.A_VA, self.A_VA + 1):
            a(f"v_add_u32 v{r}, {32 * KVROW}, v{r}")
        a("s_waitcnt lgkmcnt(0)")
        for hh in range(2):
            for m in self.a_qk(hh, None):
                a(m)
        a("s_nop 15")
        a(f"s_cmp_lg_u32 s{sCnt}, 0\ns_cbranch_scc1 {lnf}")
        for hh in range(2):
            for r in range(16):
                a(f"v_add_f32 v{self.A_S + 16 * hh + r}, v{self.A_S + 16 * hh + r}, v{self.A_MF + r}")
        a.label(lnf)
        a(f"s_cmp_lg_u32 s{sCnt}, 8\ns_cbranch_scc1 {lnd}")
        for hh in range(2):
            for r in range(16):
                a(f"v_add_f32 v{self.A_S + 16 * hh + r}, v{self.A_S + 16 * hh + r}, v{self.A_MD + r}")
        a.label(lnd)
        for hh in range(2):
            sreg, o = self.A_S + 16 * hh, self.A_O + 16 * hh
            x = M + 2
            a(f"v_max3_f32 v{x}, v{sreg}, v{sreg + 1}, v{M + hh}")
            for r in range(2, 16, 2):
                a(f"v_max3_f32 v{x}, v{sreg + r}, v{sreg + r + 1}, v{x}")
            a(f"""
            v_mov_b32 v{x + 1}, v{x}
            v_mov_b32 v{x + 2}, v{x}
            v_nop
            v_permlane32_swap_b32 v{x + 1}, v{x + 2}
            v_max_f32 v{x}, v{x + 1}, v{x + 2}
            v_sub_f32 v{x + 1}, v{M + hh}, v{x}
            v_exp_f32 v{x + 1}, v{x + 1}
            v_mov_b32 v{M + hh}, v{x}
            """)
            for r in range(16):
                a(f"v_sub_f32 v{sreg + r}, v{sreg + r}, v{x}")
            for r in range(16):
                a(f"v_mul_f32 v{o + r}, v{o + r}, v{x + 1}")
            self.a_softmax(a, hh)
            for m in self.a_pv(hh):
                a(m)
        a(f"s_add_u32 s{sCnt}, s{sCnt}, 1\ns_cmp_le_u32 s{sCnt}, 8\ns_cbranch_scc1 {lp}")
        a("s_nop 15")
        self.a_rowsum(a)
        a(f"s_branch {ldone}")

    def f_reads(self, j, wo):
        return [] if self.o.get("nofr") else super().f_reads(j, wo)

    def m_reads(self, ks):
        return [] if self.o.get("nomr") else super().m_reads(ks)

    def f_addr(self, wo):
        out = [f"v_add_u32 v{self.F_AA}, s{sSlot}, v{self.F_CA}"]
        if wo:
            out += [f"v_add_u32 v{self.F_AO + k}, s{sSlot}, v{self.F_CO + k}" for k in range(4)]
        else:
            out += [f"v_add_u32 v{self.F_AB + tn}, s{sSlot}, v{self.F_CB + tn}" for tn in range(2)]
        return out

    def f_stage(self, a, first, wo, next_wo, pre=None, hook=None):
        if pre:
            pre()
        self.cbar(a)
        if hook:
            hook()
        r0 = self.f_reads(0, wo)
        if first:
            for r in r0:
                a(r)
        else:
            self.spread(a, self.f_mfmas(1), r0)
        a("s_waitcnt lgkmcnt(0)")
        self.spread(a, self.czero(self.f_mfmas(0)) if first else self.f_mfmas(0), self.f_reads(1, wo))
        self.slot_next(a)
        a("s_waitcnt lgkmcnt(0)")
        for c in self.f_addr(next_wo):
            a(c)

    def f_epilogue(self, a, kh):
        t, R, X, AD = 206, 136, 160, 172
        B2 = self.V_B2
        a(f"""
        v_lshlrev_b32 v{t}, 4, v0
        s_xor_b32 s{sT0}, s{sLw}, 2
        s_mul_i32 s{sT0}, s{sT0}, 5120
        s_add_u32 s{sT0}, s{sT0}, {SLOT}
        v_add_u32 v{t}, s{sT0}, v{t}
        """)
        for tm in range(5):
            a(f"ds_read_b128 v[{R + 4 * tm}:{R + 4 * tm + 3}], v{t} offset:{tm * 1024}")
        a(f"""
        s_lshl_b32 s{sT1}, s{sWn}, 5
        s_add_u32 s{sT1}, s{sT1}, {16 * kh}
        v_and_b32 v{t + 1}, 15, v0
        v_add_u32 v{t + 1}, s{sT1}, v{t + 1}
        v_mul_u32_u24 v{t + 2}, 160, v{t + 1}
        v_lshrrev_b32 v{t + 3}, 4, v0
        v_lshl_add_u32 v{t + 2}, v{t + 3}, 3, v{t + 2}
        v_add_u32 v{t + 2}, {SCR}, v{t + 2}
        """)
        for tm in range(5):
            a(f"ds_read_b64 v[{X + 2 * tm}:{X + 2 * tm + 1}], v{t + 2} offset:{32 * tm}")
        a(f"""
        s_lshl_b32 s{sT0}, s{sSt}, 6
        v_add_u32 v{t + 1}, s{sT0}, v{t + 1}
        v_mul_u32_u24 v{AD}, 1280, v{t + 1}
        s_mul_i32 s{sT0}, s{sDt}, 160
        v_add_u32 v{AD}, s{sT0}, v{AD}
        v_lshl_add_u32 v{AD}, v{t + 3}, 3, v{AD}
        v_lshlrev_b32 v{AD + 1}, 16, v{B2}
        s_waitcnt lgkmcnt(0)
        """)
        for tm in range(5):
            k = self.F_ACC + 4 * (2 * tm + kh)
            r = R + 4 * tm
            for e in range(4):
                a(f"v_add_f32 v{k + e}, v{k + e}, v{r + e}")
            a(f"""
            v_lshlrev_b32 v{r}, 16, v{X + 2 * tm}
            v_and_b32 v{r + 1}, 0xffff0000, v{X + 2 * tm}
            v_lshlrev_b32 v{r + 2}, 16, v{X + 2 * tm + 1}
            v_and_b32 v{r + 3}, 0xffff0000, v{X + 2 * tm + 1}
            """)
            for e in range(4):
                a(f"v_add_f32 v{k + e}, v{k + e}, v{AD + 1}")
            for e in range(4):
                a(f"v_add_f32 v{k + e}, v{k + e}, v{r + e}")
            a(f"v_cvt_pk_bf16_f32 v{k}, v{k}, v{k + 1}\nv_cvt_pk_bf16_f32 v{k + 1}, v{k + 2}, v{k + 3}")
            a(f"buffer_store_dwordx2 v[{k}:{k + 1}], v{AD}, s[{sOUT}:{sOUT + 3}], 0 offen offset:{32 * tm} " + ("", "sc1", "nt", "sc1 nt")[self.o["outpol"]])

    def c_final(self, a):
        T = 224
        a(f"s_mov_b32 s{sSlot}, 0")
        for c in self.f_addr(False):
            a(c)

        def b2_load():
            a(f"""
            s_lshl_b32 s{sT0}, s{sSt}, 6
            s_lshl_b32 s{sT1}, s{sWn}, 5
            s_add_u32 s{sT0}, s{sT0}, s{sT1}
            s_lshl_b32 s{sT1}, s{sWm}, 4
            s_add_u32 s{sT0}, s{sT0}, s{sT1}
            v_and_b32 v{T}, 15, v0
            v_add_u32 v{T}, s{sT0}, v{T}
            v_lshlrev_b32 v{T}, 1, v{T}
            buffer_load_ushort v{self.V_B2}, v{T}, s[{sB2}:{sB2 + 3}], 0 offen
            """)
        self.f_stage(a, True, False, False, hook=b2_load)
        self.f_stage(a, False, False, False)
        self.f_stage(a, False, False, False)
        self.f_stage(a, False, False, False)
        self.mark(a)
        self.loop(a, 7, lambda: self.f_stage(a, False, False, False))
        self.f_stage(a, False, False, True)
        self.mark(a)
        self.loop(a, 5, lambda: self.f_stage(a, False, True, True))
        self.f_tail(a)
        self.mark(a)
        self.by_scalar(a, sWm, lambda kh: self.f_reduce_write(a, kh))
        a("s_barrier")
        a("s_waitcnt vmcnt(0)")
        self.by_scalar(a, sWm, lambda kh: self.f_epilogue(a, kh))

    def strip_zero(self, fn, lo, hi):
        body = Asm()
        fn(body)
        return [it for it in body.items
                if not (it.mn == "v_mov_b32" and it.ops[0][0] == "v" and it.ops[1] == "0" and lo <= int(it.ops[0][1:]) < hi)]

    def consumer(self, a):
        a("s_waitcnt lgkmcnt(0)")
        self.mark(a)
        lab = a.uid("Lnold")
        a(f"s_cmp_eq_u32 s{sLnOn}, 0\ns_cbranch_scc1 {lab}")
        self.ln_loads(a)
        a.label(lab)
        a(f"""
        v_mov_b32 v1, {SCR_CNT}
        v_mov_b32 v2, 0
        v_mov_b32 v3, 0
        ds_write_b64 v1, v[2:3]
        """)
        a.items += self.strip_zero(lambda b: B.Gen.m_consts(self, b), 64, 128)
        a.items += self.strip_zero(lambda b: B.Gen.f_consts(self, b), 64, 128)
        self.a_addr_consts(a)
        a(f"s_mov_b32 s{sSlot}, 0")
        a.items += self.strip_zero(lambda b: B.Gen.q_consts(self, b), 64, 132)
        self.mark(a)
        lab = a.uid("Lnolc")
        a(f"s_cmp_eq_u32 s{sLnOn}, 0\ns_cbranch_scc1 {lab}")
        self.ln_compute(a)
        a.label(lab)
        a("s_waitcnt lgkmcnt(0)")
        self.mark(a)
        self.c_qkv(a)
        self.mark(a)
        self.c_mix1(a)
        self.mark(a)
        self.mark(a)
        self.attention(a)
        self.mark(a)
        self.c_final(a)
        self.mark(a)

    def build(self):
        name = NAME + "_kernel"
        return B_kernel(name, self.split(name, self.consumer, self.loader))


def B_kernel(name, body):
    return f"""; Sliding-window attention + token-mixer MLP + residual, bf16, S=2048 D=640, one persistent launch.
; @launch grid=(256,1,1) block=(512,1,1) lds={LDS_BYTES}
.amdgcn_target "amdgcn-amd-amdhsa--gfx950"
.text
.globl {name}
.p2align 8
.type {name},@function
{name}:
{body}{name}_code_end:
.set CODE_BYTES, {name}_code_end-{name}
.section .rodata,"a"
.p2align 6
.amdhsa_kernel {name}
  .amdhsa_next_free_vgpr 256
  .amdhsa_next_free_sgpr 102
  .amdhsa_accum_offset 256
  .amdhsa_group_segment_fixed_size 0
  .amdhsa_kernarg_size 88
  .amdhsa_user_sgpr_count 2
  .amdhsa_user_sgpr_kernarg_segment_ptr 1
  .amdhsa_system_sgpr_workgroup_id_x 1
.end_amdhsa_kernel
"""


if __name__ == "__main__":
    mode = sys.argv[1] if len(sys.argv) > 1 else "run"
    path = sys.argv[2] if len(sys.argv) > 2 else f"cdna_kernels/{NAME}.s"
    opts = {}
    for kv in sys.argv[3:]:
        k, val = kv.split("=")
        opts[k] = int(val)
    txt = Fused(diag=(mode == "diag"), opts=opts).build()
    open(path, "w").write(txt)
    print("wrote", path, len(txt), "bytes")
```

```python
import math
import sys

sys.path.insert(0, "tools")
from asmlib import Asm
from gen_base import *
import gen_base as B

OOB = 0x7ff00000
SPIN_MAX = 100000
FL_LN, FL_KV, FL_O, FL_G = 0x1000, 0x1400, 0x1800, 0x8000
SCR_CNT = SCR + 10752
SCR_CS = SCR + 10240
M_RED = 16384
GROW = 144
sPub, sT6 = 79, 85
sKcA, sKcB, sKt, sRq, sRm, sRf, sRw = 9, 10, 11, 12, 13, 14, 15
sBaseA, sBaseB = 16, 17
sLnOn, sLnIdx = 18, 19
sArr, sNon2 = 4, 5


class Fused(Gen):
    A_MF, A_MD, A_KA, A_VA = 2, 18, 34, 36
    F_CA, F_CB, F_CO = 38, 39, 41
    M_CA, M_CB = 45, 47
    V_ST, V_B1, V_B2, V_ARR, V_POLL = 48, 52, 53, 54, 56
    V_DUMMY = 228
    Q_ACC, Q_CS, Q_ONES, Q_BUF, Q_CA, Q_CB, Q_AA, Q_AB = 64, 128, 132, 136, 200, 202, 206, 208
    M_ACC, M_BUF, M_AA, M_AB = 64, 136, 196, 198
    A_Q, A_K, A_V, A_S, A_P, A_O, A_T = 64, 80, 96, 112, 144, 208, 192
    F_ACC, F_BUF, F_AA, F_AB, F_AO = 64, 136, 199, 200, 202

    def __init__(self, diag=False, opts=None):
        super().__init__(fused=True, diag=diag)
        self.o = dict(prefetch=0, tlb=0, lead=3, nt=0, gsleep=4, ldsc1=1, xmap=0, light=0, w1a=1024, rot=30, lngood=0, codepf=0, outpol=0, pfw1=1, pfw2=1, pfw0=1, gsolo=1, lnfast=1)
        self.o.update(opts or {})

    def stamp(self, a, k, bump=False):
        if not self.o["light"]:
            super().stamp(a, k, bump)

    def diag_dump(self, a, kidx):
        wg = self.o.get("dbgout")
        if wg is None:
            return super().diag_dump(a, kidx)
        lab = a.uid("Ldbg")
        a(f"""
        s_cmp_lg_u32 s{sWg}, {wg}
        s_cbranch_scc1 {lab}
        s_cmp_lg_u32 s{sWv}, 0
        s_cbranch_scc1 {lab}
        v_readlane_b32 s{sT0}, v{self.DV + 1}, 0
        v_lshlrev_b32 v1, 2, v0
        v_mov_b32 v3, {OOB}
        v_subrev_u32 v2, s{sT0}, v{self.DV + 1}
        v_cmp_gt_u32 vcc, 16, v0
        v_cndmask_b32 v1, v3, v1, vcc
        v_cmp_eq_u32 vcc, 0, v0
        v_cndmask_b32 v1, v1, v3, vcc
        buffer_store_dword v2, v1, s[{sDBG}:{sDBG + 3}], 0 offen
        """)
        a.label(lab)

    def mark(self, a):
        if self.diag and self.o["light"]:
            if self.o.get("rt"):
                a(f"s_memrealtime s[98:99]\ns_mov_b32 m0, s{self.sStg}\ns_waitcnt lgkmcnt(0)\nv_writelane_b32 v{self.DV + 1}, s98, m0\ns_add_u32 s{self.sStg}, s{self.sStg}, 1")
            else:
                B.Gen.stamp(self, a, 1, True)

    SRDS = ((sX, 0, 2048 * 1280), (sW, 8, 640 * 3840), (sWO, 16, 640 * 1280), (sW1, 32, 2048 * 3072),
            (sB1, 40, 1536 * 2), (sW2, 48, 1536 * 4096), (sB2, 56, 2048 * 2), (sOUT, 64, 2048 * 1280),
            (sDBG, 72, 256), (sWS, 80, WS_USED))

    def prologue(self, a, lab):
        a(f"s_cmp_ge_u32 s2, 256\ns_cbranch_scc1 {lab}_end")
        for srd, off, size in self.SRDS:
            a(f"s_load_dwordx2 s[{srd}:{srd + 1}], s[0:1], {off}")
        body = Asm()
        B.Gen.prologue(self, body, lab)
        items = body.items
        first = next(k for k, it in enumerate(items) if it.mn == "v_lshrrev_b32")
        last = next(k for k, it in enumerate(items) if it.mn == "s_waitcnt")
        a.items += items[first:last]
        for srd, off, size in self.SRDS:
            if srd == sWS and self.diag:
                size *= 2
            a(f"s_mov_b32 s{srd + 2}, {size}\ns_mov_b32 s{srd + 3}, 0x00020000")
        if self.o["lngood"]:
            a(f"""
            s_lshr_b32 s{sT0}, s{sWg}, 6
            s_lshr_b32 s{sT1}, s{sWg}, 1
            s_xor_b32 s{sT1}, s{sT1}, s{sT0}
            s_and_b32 s{sT1}, s{sT1}, 1
            s_xor_b32 s{sLnOn}, s{sT1}, 1
            s_and_b32 s{sT1}, s{sWg}, 7
            s_lshl_b32 s{sLnIdx}, s{sT1}, 4
            s_lshr_b32 s{sT0}, s{sT0}, 1
            s_lshl_b32 s{sT0}, s{sT0}, 3
            s_add_u32 s{sLnIdx}, s{sLnIdx}, s{sT0}
            s_lshr_b32 s{sT0}, s{sWg}, 3
            s_and_b32 s{sT0}, s{sT0}, 7
            s_add_u32 s{sLnIdx}, s{sLnIdx}, s{sT0}
            """)
        else:
            a(f"s_mov_b32 s{sLnOn}, 1\ns_mov_b32 s{sLnIdx}, s{sWg}")
        self.rot_consts(a)
        if not self.o["xmap"]:
            return
        a(f"""
        s_and_b32 s{sT0}, s{sWg}, 7
        s_lshr_b32 s{sT1}, s{sWg}, 3
        s_lshl_b32 s{sSt}, s{sT0}, 2
        s_and_b32 s{sT2}, s{sT1}, 3
        s_add_u32 s{sSt}, s{sSt}, s{sT2}
        s_lshr_b32 s{sDt}, s{sT1}, 2
        s_cmp_lt_u32 s{sT1}, 30
        s_cselect_b32 s{sT2}, 0, 30
        s_sub_u32 s{sT1}, s{sT1}, s{sT2}
        s_mul_i32 s{sT2}, s{sT1}, 26
        s_lshr_b32 s{sT2}, s{sT2}, 8
        s_mul_i32 s{sT3}, s{sT2}, 10
        s_sub_u32 s{sDt1}, s{sT1}, s{sT3}
        s_mul_i32 s{sFt}, s{sT0}, 3
        s_add_u32 s{sFt}, s{sFt}, s{sT2}
        """)

    def smod(self, a, r, n, times):
        for _ in range(times):
            a(f"s_cmp_ge_u32 s{r}, {n}\ns_cselect_b32 s{sT5}, {n}, 0\ns_sub_u32 s{r}, s{r}, s{sT5}")

    def rot_consts(self, a):
        if not self.o["rot"]:
            for r in (sRq, sRm, sRf, sRw):
                a(f"s_mov_b32 s{r}, 0")
            return
        a(f"""
        s_lshr_b32 s{sT0}, s{sWg}, 3
        s_and_b32 s{sT1}, s{sT0}, 7
        s_lshr_b32 s{sT2}, s{sT0}, 3
        s_mul_i32 s{sT3}, s{sT2}, 3
        s_add_u32 s{sRq}, s{sT1}, s{sT3}
        s_mul_i32 s{sRf}, s{sT1}, 5
        s_add_u32 s{sRf}, s{sRf}, s{sT3}
        s_lshl_b32 s{sRw}, s{sT2}, 1
        s_add_u32 s{sRw}, s{sRw}, s{sT1}
        s_mul_i32 s{sRm}, s{sFt}, 3
        s_mul_i32 s{sT3}, s{sDt1}, 5
        s_add_u32 s{sRm}, s{sRm}, s{sT3}
        s_and_b32 s{sRm}, s{sRm}, 7
        """)
        self.smod(a, sRq, 10, 1)
        self.smod(a, sRf, 12, 3)
        self.smod(a, sRw, 5, 2)
        for bit, r in ((1, sRq), (2, sRm), (4, sRf), (8, sRw)):
            if not self.o["rot"] & bit:
                a(f"s_mov_b32 s{r}, 0")

    def wrap(self, a, kc, n, offs):
        a(f"s_add_u32 s{kc}, s{kc}, 1\ns_cmp_eq_u32 s{kc}, {n}\ns_cselect_b32 s{kc}, 0, s{kc}")
        for k, (reg, step) in enumerate(offs):
            a(f"s_cselect_b32 s{sT1 + k}, {n * step}, 0")
        for k, (reg, step) in enumerate(offs):
            a(f"s_sub_u32 s{reg}, s{reg}, s{sT1 + k}")

    def lead_order(self, a, n_chunks, period, jreg, offs):
        a(f"""
        s_and_b32 s{sT1}, s{sKt}, {period - 1}
        s_cmp_eq_u32 s{sT1}, s{jreg}
        s_cselect_b32 s{sT2}, 1, 0
        s_cmp_eq_u32 s{sKt}, {n_chunks - 1}
        s_cselect_b32 s{sT2}, 0, s{sT2}
        s_sub_u32 s{sT1}, s{sKt}, 1
        s_and_b32 s{sT1}, s{sT1}, {period - 1}
        s_cmp_eq_u32 s{sT1}, s{jreg}
        s_cselect_b32 s{sT3}, 1, 0
        s_cmp_eq_u32 s{sKt}, 0
        s_cselect_b32 s{sT3}, 0, s{sT3}
        s_add_u32 s{sT2}, s{sT2}, s{sKt}
        s_sub_u32 s{sT2}, s{sT2}, s{sT3}
        s_add_u32 s{sKt}, s{sKt}, 1
        """)
        for reg, base, step in offs:
            a(f"s_mul_i32 s{sT1}, s{sT2}, {step}\ns_add_u32 s{reg}, s{base}, s{sT1}")

    def q_init(self, a):
        super().q_init(a)
        if self.o["rot"] & 16:
            a(f"""
            s_mov_b32 s{sBaseA}, s{sOffA}
            s_mov_b32 s{sBaseB}, s{sOffB}
            s_mov_b32 s{sKt}, 0
            s_lshr_b32 s{sT0}, s{sWg}, 3
            s_lshr_b32 s{sT1}, s{sT0}, 3
            s_add_u32 s{sT0}, s{sT0}, s{sT1}
            s_and_b32 s{sRq}, s{sT0}, 3
            """)
            return
        a(f"""
        s_mov_b32 s{sKcA}, s{sRq}
        s_lshl_b32 s{sT0}, s{sRq}, 7
        s_add_u32 s{sOffA}, s{sOffA}, s{sT0}
        s_mul_i32 s{sT0}, s{sRq}, {64 * 3840}
        s_add_u32 s{sOffB}, s{sOffB}, s{sT0}
        """)

    def q_issue(self, a):
        if self.o["rot"] & 16:
            self.lead_order(a, 10, 4, sRq, [(sOffA, sBaseA, 128), (sOffB, sBaseB, 64 * 3840)])
            super().q_issue(a)
            return
        super().q_issue(a)
        self.wrap(a, sKcA, 10, [(sOffA, 128), (sOffB, 64 * 3840)])

    def m_init(self, a):
        super().m_init(a)
        a(f"""
        s_mov_b32 s{sKcA}, s{sRm}
        s_mov_b32 s{sKt}, 0
        s_mul_i32 s{sT0}, s{sRm}, {128 * 1280}
        s_add_u32 s{sOffA}, s{sOffA}, s{sT0}
        s_mul_i32 s{sT0}, s{sRm}, {128 * 3072}
        s_add_u32 s{sOffB}, s{sOffB}, s{sT0}
        """)

    def m_issue(self, a):
        super().m_issue(a)
        self.wrap(a, sKcA, 8, [(sOffA, 128 * 1280), (sOffB, 128 * 3072)])
        a(f"s_add_u32 s{sKt}, s{sKt}, 1\ns_cmp_eq_u32 s{sKt}, 8")
        a(f"""
        s_cselect_b32 s{sT1}, {8 * 128 * 1280}, 0
        s_cselect_b32 s{sT2}, {8 * 128 * 3072}, 0
        s_add_u32 s{sOffA}, s{sOffA}, s{sT1}
        s_add_u32 s{sOffB}, s{sOffB}, s{sT2}
        """)

    def f_init(self, a):
        super().f_init(a)
        a(f"""
        s_mov_b32 s{sKcA}, s{sRf}
        s_mov_b32 s{sKcB}, s{sRf}
        s_mul_i32 s{sT0}, s{sRf}, {128 * 160}
        s_add_u32 s{sOffA}, s{sOffA}, s{sT0}
        s_mul_i32 s{sT0}, s{sRf}, {128 * 4096}
        s_add_u32 s{sOffB}, s{sOffB}, s{sT0}
        """)

    def f_issue_w2(self, a):
        super().f_issue_w2(a)
        self.wrap(a, sKcB, 12, [(sOffB, 128 * 4096)])

    def f_issue_g(self, a):
        super().f_issue_g(a)
        self.wrap(a, sKcA, 12, [(sOffA, 128 * 160)])

    def wo_init(self, a):
        super().wo_init(a)
        a(f"""
        s_mov_b32 s{sKcA}, s{sRw}
        s_mul_i32 s{sT0}, s{sRw}, {128 * 1280}
        s_add_u32 s{sOffA}, s{sOffA}, s{sT0}
        s_lshl_b32 s{sT0}, s{sRw}, 8
        s_add_u32 s{sOffB}, s{sOffB}, s{sT0}
        """)

    def wo_issue(self, a):
        super().wo_issue(a)
        self.wrap(a, sKcA, 5, [(sOffA, 128 * 1280), (sOffB, 256)])

    def only_w0(self, a, fn):
        lab = a.uid("Lw0")
        a(f"s_cmp_lg_u32 s{sLw}, 0\ns_cbranch_scc1 {lab}")
        fn()
        a.label(lab)

    def nonce_load(self, a):
        a(f"s_load_dword s{sNonce}, s[{sWS}:{sWS + 1}], {WS_EPOCH}")

    def nonce_make(self, a):
        a(f"""
        s_waitcnt lgkmcnt(0)
        s_mul_i32 s{sNonce}, s{sNonce}, 1664525
        s_add_u32 s{sNonce}, s{sNonce}, 1013904223
        """)

    def flag_set(self, a, off):
        a(f"s_atomic_swap s{sNonce}, s[{sWS}:{sWS + 1}], s{off}")

    def poll_issue(self, a, vaddr, n=1):
        r = self.LV_PR
        if n == 1:
            a(f"buffer_load_dword v{r}, v{vaddr}, s[{sWS}:{sWS + 3}], 0 offen sc1")
        else:
            a(f"buffer_load_dwordx4 v[{r}:{r + 3}], v{vaddr}, s[{sWS}:{sWS + 3}], 0 offen sc1")

    def poll_test(self, a, n):
        r = self.LV_PR
        a(f"v_cmp_eq_u32 s[{sT0}:{sT0 + 1}], s{sNonce}, v{r}")
        for k in range(1, n):
            a(f"v_cmp_eq_u32 s[{sT2}:{sT2 + 1}], s{sNonce}, v{r + k}")
            a(f"s_and_b64 s[{sT0}:{sT0 + 1}], s[{sT0}:{sT0 + 1}], s[{sT2}:{sT2 + 1}]")
        a(f"s_cmp_eq_u64 s[{sT0}:{sT0 + 1}], exec")

    def poll_check(self, a, vaddr, n=1, sleep=8):
        ok, sp = a.uid("Lpok"), a.uid("Lspin")
        self.poll_test(a, n)
        a(f"s_cbranch_scc1 {ok}")
        self.spin(a, vaddr, n, ok, sp, sleep)
        a.label(ok)

    def spin(self, a, vaddr, n, ok, sp, sleep):
        a(f"s_mov_b32 s{sT6}, {SPIN_MAX}")
        a.label(sp)
        a(f"s_sleep {sleep}")
        self.poll_issue(a, vaddr, n)
        a("s_waitcnt vmcnt(0)")
        self.poll_test(a, n)
        a(f"s_cbranch_scc1 {ok}")
        a(f"s_sub_u32 s{sT6}, s{sT6}, 1\ns_cmp_lg_u32 s{sT6}, 0\ns_cbranch_scc1 {sp}")

    LV_PLA, LV_PKV, LV_PG, LV_PO, LV_PLB, LV_PR = 14, 15, 16, 17, 18, 24
    LV_P1, LV_P2, LV_DUMMY = 100, 103, 96

    def loader_poll_addrs(self, a):
        t0, t1, t2, t3 = 20, 21, 22, 23
        a(f"""
        v_lshrrev_b32 v{t0}, 4, v0
        v_mov_b32 v{t1}, s{sI}
        v_cmp_eq_u32 vcc, 3, v{t0}
        v_cndmask_b32 v{t0}, v{t0}, v{t1}, vcc
        v_lshlrev_b32 v{t0}, 6, v{t0}
        v_and_b32 v{t1}, 15, v0
        v_lshl_add_u32 v{t0}, v{t1}, 2, v{t0}
        v_add_u32 v{self.LV_PLA}, {FL_LN}, v{t0}
        v_and_b32 v{t0}, {31 if self.o["lngood"] else 63}, v0
        v_lshlrev_b32 v{t0}, 4, v{t0}
        v_add_u32 v{self.LV_PLB}, {FL_LN}, v{t0}
        v_min_u32 v{t0}, 2, v0
        v_sub_u32 v{t0}, s{sI}, v{t0}
        v_max_i32 v{t0}, 0, v{t0}
        s_lshl_b32 s{sT0}, s{sP}, 4
        v_add_u32 v{t0}, s{sT0}, v{t0}
        v_lshlrev_b32 v{t0}, 2, v{t0}
        v_add_u32 v{self.LV_PKV}, {FL_KV}, v{t0}
        v_and_b32 v{t0}, 15, v0
        s_lshr_b32 s{sT0}, s{sSt}, 1
        s_lshl_b32 s{sT0}, s{sT0}, 4
        v_add_u32 v{t0}, s{sT0}, v{t0}
        v_lshlrev_b32 v{t0}, 2, v{t0}
        v_add_u32 v{self.LV_PO}, {FL_O}, v{t0}
        v_min_u32 v{t0}, 47, v0
        v_mul_u32_u24 v{t1}, 2731, v{t0}
        v_lshrrev_b32 v{t1}, 16, v{t1}
        v_mul_u32_u24 v{t2}, 24, v{t1}
        v_sub_u32 v{t2}, v{t0}, v{t2}
        s_mul_i32 s{sT0}, s{sDt}, 80
        s_lshr_b32 s{sT0}, s{sT0}, 6
        v_add_u32 v{t1}, s{sT0}, v{t1}
        v_lshlrev_b32 v{t1}, 2, v{t1}
        v_lshl_add_u32 v{t1}, v{t2}, 6, v{t1}
        s_and_b32 s{sT0}, s{sWg}, 7
        s_mul_i32 s{sT0}, s{sT0}, 1536
        s_add_u32 s{sT0}, s{sT0}, {FL_G}
        v_add_u32 v{self.LV_PG}, s{sT0}, v{t1}
        s_cmp_eq_u32 s{sLw}, 0
        s_cselect_b32 s{sT0}, 0, {OOB}
        """)
        for r in (self.LV_PLA, self.LV_PLB, self.LV_PKV, self.LV_PO, self.LV_PG):
            a(f"v_add_u32 v{r}, s{sT0}, v{r}")

    def loader_prefetch_consts(self, a):
        t0, t1, t2 = 20, 21, 22
        for t in range(3):
            a(f"""
            v_add_u32 v{t0}, {64 * t}, v0
            v_mul_u32_u24 v{t1}, 2731, v{t0}
            v_lshrrev_b32 v{t1}, 16, v{t1}
            v_mul_u32_u24 v{t2}, 24, v{t1}
            v_sub_u32 v{t2}, v{t0}, v{t2}
            v_lshlrev_b32 v{t2}, 4, v{t2}
            v_mul_u32_u24 v{t1}, 3072, v{t1}
            v_add_u32 v{self.LV_P1 + t}, v{t1}, v{t2}
            """)
        a(f"""
        v_lshrrev_b32 v{t0}, 5, v0
        v_lshlrev_b32 v{t0}, 12, v{t0}
        v_and_b32 v{t1}, 31, v0
        v_lshl_add_u32 v{self.LV_P2}, v{t1}, 4, v{t0}
        """)

    def code_prefetch(self, a):
        if not self.o["codepf"]:
            return 0
        d = self.LV_DUMMY
        lab = a.uid("Lpc")
        a(f"s_getpc_b64 s[{sT2}:{sT2 + 1}]")
        a.label(lab)
        a(f"""
        s_lshr_b32 s{sT0}, s{sWg}, 3
        s_lshl_b32 s{sT0}, s{sT0}, 10
        s_lshl_b32 s{sT1}, s{sLw}, 15
        s_add_u32 s{sT0}, s{sT0}, s{sT1}
        v_lshl_add_u32 v20, v0, 4, s{sT0}
        s_sub_u32 s{sT2}, s{sT2}, {lab}-{NAME}_kernel
        s_subb_u32 s{sT2 + 1}, s{sT2 + 1}, 0
        v_min_u32 v20, CODE_BYTES-16, v20
        v_mov_b32 v21, s{sT2 + 1}
        v_add_co_u32 v20, vcc, s{sT2}, v20
        v_addc_co_u32 v21, vcc, 0, v21, vcc
        global_load_dwordx4 v[{d}:{d + 3}], v[20:21], off
        """)
        return 1

    def tlb_touch(self, a):
        if not self.o["tlb"]:
            return 0
        d = self.LV_DUMMY
        a(f"v_lshlrev_b32 v20, 21, v0")
        for srd in (sW1, sW2, sWS, sWO, sOUT):
            a(f"buffer_load_dword v{d}, v20, s[{srd}:{srd + 3}], 0 offen")
        return 5

    def pf_range(self, a, srd, start, nbytes):
        d = self.LV_DUMMY
        share = nbytes // 256
        per_wave = -(-share // 4096)
        a(f"""
        s_mul_i32 s{sT0}, s{sWg}, {share}
        s_mul_i32 s{sT1}, s{sLw}, {per_wave * 1024}
        s_add_u32 s{sT0}, s{sT0}, s{sT1}
        s_add_u32 s{sT0}, s{sT0}, {start}
        """)
        for k in range(per_wave):
            a(f"buffer_load_dwordx4 v[{d}:{d + 3}], v{self.LV_LIN}, s[{srd}:{srd + 3}], s{sT0} offen offset:{(k % 4) * 1024}")
            if k % 4 == 3:
                a(f"s_add_u32 s{sT0}, s{sT0}, 4096")
        return per_wave

    def pf_w1(self, a):
        if not self.o["prefetch"]:
            return 0
        d = self.LV_DUMMY
        a(f"""
        s_lshr_b32 s{sT0}, s{sWg}, 3
        s_lshl_b32 s{sT0}, s{sT0}, 6
        s_lshl_b32 s{sT1}, s{sLw}, 4
        s_add_u32 s{sT0}, s{sT0}, s{sT1}
        s_mul_i32 s{sT0}, s{sT0}, 3072
        s_and_b32 s{sT1}, s{sWg}, 7
        s_mul_i32 s{sT1}, s{sT1}, 384
        s_add_u32 s{sT0}, s{sT0}, s{sT1}
        """)
        for k in range(6):
            if k == 3:
                a(f"s_add_u32 s{sT0}, s{sT0}, {8 * 3072}")
            a(f"buffer_load_dwordx4 v[{d}:{d + 3}], v{self.LV_P1 + k % 3}, s[{sW1}:{sW1 + 3}], s{sT0} offen nt")
        return 6

    def pf_w2(self, a):
        if not self.o["prefetch"]:
            return 0
        d = self.LV_DUMMY
        a(f"""
        s_lshr_b32 s{sT0}, s{sWg}, 3
        s_mul_i32 s{sT0}, s{sT0}, 48
        s_mul_i32 s{sT1}, s{sLw}, 12
        s_add_u32 s{sT0}, s{sT0}, s{sT1}
        s_lshl_b32 s{sT0}, s{sT0}, 12
        s_and_b32 s{sT1}, s{sWg}, 7
        s_lshl_b32 s{sT1}, s{sT1}, 9
        s_add_u32 s{sT0}, s{sT0}, s{sT1}
        """)
        for k in range(6):
            a(f"buffer_load_dwordx4 v[{d}:{d + 3}], v{self.LV_P2}, s[{sW2}:{sW2 + 3}], s{sT0} offen nt")
            a(f"s_add_u32 s{sT0}, s{sT0}, 8192")
        return 6

    def dma(self, a, srd, voff, soff, add, lds_add, dep=False):
        if self.o.get("fakeh") and voff == self.LV_H:
            a(f"""
            s_add_u32 m0, s{sSW}, {lds_add}
            s_add_u32 s{sT0}, s{soff}, {add - WS_H}
            buffer_load_dwordx4 v{voff}, s[{sX}:{sX + 3}], s{sT0} offen lds
            """)
            return
        pol = ("sc1 " if self.o["ldsc1"] else "") if dep else ("nt " if (srd in (sW1, sW2) and self.o["nt"]) else "")
        a(f"""
        s_add_u32 m0, s{sSW}, {lds_add}
        s_add_u32 s{sT0}, s{soff}, {add}
        buffer_load_dwordx4 v{voff}, s[{srd}:{srd + 3}], s{sT0} offen {pol}lds
        """)

    def lds_spin(self, a, word, target):
        ok, sp = a.uid("Llok"), a.uid("Llspin")
        r = self.LV_PR
        a(f"v_mov_b32 v{r + 1}, {SCR_CNT + 4 * word}\ns_mov_b32 s{sT6}, {SPIN_MAX}")
        a.label(sp)
        a(f"""
        ds_read_b32 v{r}, v{r + 1}
        s_waitcnt lgkmcnt(0)
        v_readfirstlane_b32 s{sT0}, v{r}
        s_cmp_ge_u32 s{sT0}, {target}
        s_cbranch_scc1 {ok}
        s_sleep 1
        s_sub_u32 s{sT6}, s{sT6}, 1
        s_cmp_lg_u32 s{sT6}, 0
        s_cbranch_scc1 {sp}
        """)
        a.label(ok)

    LN_RAW, LN_F, LN_OFF = 64, 76, 100

    def ln_passes(self):
        return 2 if self.o["lngood"] else 1

    def ln_loads(self, a):
        off = self.LN_OFF
        n = self.ln_passes()
        a(f"""
        s_mul_i32 s{sT0}, s{sLnIdx}, {8 * n}
        s_mul_i32 s{sT1}, s{sLw}, {2 * n}
        s_add_u32 s{sT0}, s{sT0}, s{sT1}
        v_lshrrev_b32 v{off + 1}, 5, v0
        v_add_u32 v{off + 1}, s{sT0}, v{off + 1}
        v_and_b32 v{off + 2}, 31, v0
        v_lshlrev_b32 v{off + 2}, 3, v{off + 2}
        v_mul_u32_u24 v{off}, 1280, v{off + 1}
        v_add_u32 v{off}, v{off}, v{off + 2}
        """)
        for ps in range(n):
            raw = self.LN_RAW + 54 * ps
            for j in range(5):
                a(f"buffer_load_dwordx2 v[{raw + 2 * j}:{raw + 2 * j + 1}], v{off}, s[{sX}:{sX + 3}], 0 offen offset:{2560 * ps + 256 * j}")

    def ln_compute(self, a):
        for ps in range(self.ln_passes()):
            self.ln_pass(a, ps)

    def ln_pass(self, a, ps):
        raw, f, off = self.LN_RAW + 54 * ps, self.LN_F, self.LN_OFF
        acc, t, sc, keep = 104, 108, 112, 116
        P = lambda r: f"v[{r}:{r + 1}]"

        def unpack():
            for d in range(10):
                a(f"v_lshlrev_b32 v{f + 2 * d}, 16, v{raw + d}\nv_and_b32 v{f + 2 * d + 1}, s{sT3}, v{raw + d}")

        def stats():
            a(f"v_pk_add_f32 {P(acc)}, {P(f)}, {P(f + 2)}\nv_pk_mul_f32 {P(acc + 2)}, {P(f)}, {P(f)}")
            a(f"v_pk_fma_f32 {P(acc + 2)}, {P(f + 2)}, {P(f + 2)}, {P(acc + 2)}")
            for d in range(2, 10):
                a(f"v_pk_add_f32 {P(acc)}, {P(acc)}, {P(f + 2 * d)}")
                a(f"v_pk_fma_f32 {P(acc + 2)}, {P(f + 2 * d)}, {P(f + 2 * d)}, {P(acc + 2)}")
            a(f"v_add_f32 v{acc}, v{acc}, v{acc + 1}\nv_add_f32 v{acc + 2}, v{acc + 2}, v{acc + 3}\nv_nop")
            for r in (8, 4, 2, 1):
                a(f"v_add_f32_dpp v{acc}, v{acc}, v{acc} row_ror:{r} row_mask:0xf bank_mask:0xf")
                a(f"v_add_f32_dpp v{acc + 2}, v{acc + 2}, v{acc + 2} row_ror:{r} row_mask:0xf bank_mask:0xf")
                a("v_nop")
            a(f"""
            v_mov_b32 v{t}, v{acc}
            v_mov_b32 v{t + 1}, v{acc}
            v_mov_b32 v{t + 2}, v{acc + 2}
            v_mov_b32 v{t + 3}, v{acc + 2}
            v_permlane16_swap_b32 v{t}, v{t + 1}
            v_permlane16_swap_b32 v{t + 2}, v{t + 3}
            v_add_f32 v{acc}, v{t}, v{t + 1}
            v_add_f32 v{acc + 2}, v{t + 2}, v{t + 3}
            v_mul_f32 v{acc}, {f32(1 / 640)}, v{acc}
            v_mov_b32 v{t}, {f32(1e-5)}
            v_fmac_f32 v{t}, {f32(1 / 640)}, v{acc + 2}
            v_fma_f32 v{t}, -v{acc}, v{acc}, v{t}
            v_max_f32 v{t}, {f32(1e-5)}, v{t}
            v_rsq_f32 v{sc}, v{t}
            v_mul_f32 v{sc + 1}, v{acc}, v{sc}
            """)

        def scale_pack(dst):
            for d in range(10):
                a(f"v_pk_fma_f32 {P(f + 2 * d)}, {P(f + 2 * d)}, {P(sc)}, {P(sc)} op_sel:[0,0,1] op_sel_hi:[1,0,1] neg_lo:[0,0,1] neg_hi:[0,0,1]")
            for d in range(10):
                a(f"v_cvt_pk_bf16_f32 v{dst + d}, v{f + 2 * d}, v{f + 2 * d + 1}")

        a(f"s_mov_b32 s{sT3}, 0xffff0000\ns_waitcnt vmcnt({5 * (self.ln_passes() - 1 - ps)})")
        unpack()
        stats()
        H = self.LN_H + 14 * ps
        a(f"v_mov_b32 v{H + 10}, v{acc}\nv_mov_b32 v{H + 11}, v{sc}")
        scale_pack(raw)
        unpack()
        stats()
        scale_pack(H)
        a(f"""
        v_add_u32 v{H + 12}, {WS_H + 2560 * ps}, v{off}
        v_lshlrev_b32 v{off + 4}, 3, v{off + 1}
        v_add_u32 v{off + 4}, {WS_STATS + 16 * ps}, v{off + 4}
        v_and_b32 v{off + 2}, 31, v0
        v_mov_b32 v{off + 3}, {OOB}
        v_cmp_eq_u32 vcc, 0, v{off + 2}
        v_cndmask_b32 v{H + 13}, v{off + 3}, v{off + 4}, vcc
        """)

    LN_H = 212

    def ln_stores(self, a):
        lab = a.uid("Lnoln")
        a(f"s_cmp_eq_u32 s{sLnOn}, 0\ns_cbranch_scc1 {lab}")
        for ps in range(self.ln_passes()):
            H = self.LN_H + 14 * ps
            for j in range(5):
                a(f"buffer_store_dwordx2 v[{H + 2 * j}:{H + 2 * j + 1}], v{H + 12}, s[{sWS}:{sWS + 3}], 0 offen offset:{256 * j} sc1")
            a(f"buffer_store_dwordx2 v[{H + 10}:{H + 11}], v{H + 13}, s[{sWS}:{sWS + 3}], 0 offen sc1")
        a.label(lab)

    def loader_consts_first(self, a):
        X, W, LIN = self.LV_X, self.LV_W, self.LV_LIN
        t0, t1, t2, t3 = 20, 21, 22, 23
        a(f"""
        v_lshrrev_b32 v{t0}, 3, v0
        v_and_b32 v{t1}, 7, v0
        v_lshrrev_b32 v{t2}, 1, v{t0}
        s_and_b32 s{sT0}, s{sLw}, 1
        s_lshl_b32 s{sT0}, s{sT0}, 2
        v_or_b32 v{t3}, s{sT0}, v{t2}
        v_xor_b32 v{t3}, v{t3}, v{t1}
        v_lshlrev_b32 v{t3}, 4, v{t3}
        v_mul_u32_u24 v{X}, 1280, v{t0}
        v_add_u32 v{X}, v{X}, v{t3}
        v_lshlrev_b32 v{LIN}, 4, v0
        v_lshrrev_b32 v{t0}, 4, v0
        v_and_b32 v{t1}, 15, v0
        v_lshlrev_b32 v{t2}, 2, v{t0}
        v_xor_b32 v{t2}, v{t2}, v{t1}
        v_min_u32 v{t2}, 14, v{t2}
        v_mul_u32_u24 v{t3}, 52, v{t2}
        v_lshrrev_b32 v{t3}, 8, v{t3}
        v_mul_u32_u24 v{W}, 5, v{t3}
        v_sub_u32 v{W}, v{t2}, v{W}
        v_lshlrev_b32 v{W}, 4, v{W}
        v_mul_u32_u24 v{t3}, 1280, v{t3}
        v_add_u32 v{W}, v{W}, v{t3}
        v_mul_u32_u24 v{t3}, 3840, v{t0}
        v_add_u32 v{W}, v{W}, v{t3}
        """)

    def fake_w(self, a):
        if not self.o.get("fakew"):
            return
        W = self.LV_W
        a(f"""
        v_lshrrev_b32 v20, 4, v0
        v_and_b32 v21, 15, v0
        v_lshlrev_b32 v22, 2, v20
        v_xor_b32 v22, v22, v21
        v_lshlrev_b32 v22, 4, v22
        v_mul_u32_u24 v{W}, 3840, v20
        v_add_u32 v{W}, v{W}, v22
        s_min_u32 s{sT0}, s{sP}, 14
        s_mul_i32 s{sT0}, s{sT0}, 256
        s_mul_i32 s{sT1}, s{sP}, 80
        s_sub_u32 s{sT0}, s{sT0}, s{sT1}
        v_add_u32 v{W}, s{sT0}, v{W}
        """)

    def xt_issue(self, a):
        a(f"""
        s_lshl_b32 s{sT1}, s{sSt}, 6
        s_lshr_b32 s{sT2}, s{sLw}, 1
        s_lshl_b32 s{sT3}, s{sT2}, 5
        s_add_u32 s{sT1}, s{sT1}, s{sT3}
        s_mul_i32 s{sT1}, s{sT1}, 1280
        s_mul_i32 s{sT3}, s{sDt}, 160
        s_add_u32 s{sT1}, s{sT1}, s{sT3}
        s_mul_i32 s{sT2}, s{sT2}, 5120
        s_add_u32 s{sT2}, s{sT2}, {SCR}
        s_and_b32 s{sT3}, s{sLw}, 1
        """)

        def path(par):
            for t in ((0, 1, 2) if par == 0 else (3, 4, 4)):
                a(f"""
                s_add_u32 m0, s{sT2}, {t * 1024}
                s_nop 0
                buffer_load_dwordx4 v{self.LV_WO + t}, s[{sX}:{sX + 3}], s{sT1} offen lds
                """)
        self.by_scalar(a, sT3, path)

    def loader(self, a):
        W = lambda n: self.wait_bar(a, n)

        def Wchk(n, chk):
            self.stamp(a, 0)
            a(f"s_waitcnt vmcnt({n})")
            self.only_w0(a, chk)
            self.stamp(a, 1)
            a("s_barrier")
            self.stamp(a, 2, bump=True)
        self.loader_consts_first(a)
        self.fake_w(a)
        a(f"s_mov_b32 s{sSlot}, 0")
        self.q_init(a)
        a("s_waitcnt lgkmcnt(0)")
        self.mark(a)
        self.q_issue(a)
        nT = self.tlb_touch(a) + self.code_prefetch(a)
        self.nonce_load(a)
        self.loader_consts(a)
        self.fake_w(a)
        self.loader_poll_addrs(a)
        self.nonce_make(a)
        lead = self.o["lead"]
        self.q_issue(a)
        if lead == 3:
            self.q_issue(a)
        self.mark(a)
        L = 8 * (lead - 1)
        n0 = self.pf_range(a, sW1, 0, 1024 * 3072) if self.o["pfw0"] else 0
        W(L + n0 + (0 if lead == 3 else nT)); self.q_issue(a)
        self.mark(a)
        W(L + n0); self.q_issue(a)
        W(L + (n0 if lead == 3 else 0))

        def ln_done():
            skip = a.uid("Llnoff")
            a(f"s_cmp_eq_u32 s{sLnOn}, 0\ns_cbranch_scc1 {skip}")
            a(f"s_lshl_b32 s{sT4}, s{sLnIdx}, 2\ns_add_u32 s{sT4}, s{sT4}, {FL_LN}")
            self.flag_set(a, sT4)
            a.label(skip)
            a(f"s_mov_b32 s{sArr}, 1\ns_atomic_add s{sArr}, s[{sDBG}:{sDBG + 1}], 0x0 glc")
        self.only_w0(a, ln_done)
        self.q_issue(a)
        W(L); self.q_issue(a)
        W(L); self.q_issue(a)
        W(L); self.q_issue(a)
        W(L)
        self.poll_issue(a, self.LV_PLB, 4)
        chk = lambda: self.poll_check(a, self.LV_PLB, 4)
        if lead == 2:
            self.q_issue(a)
            W(9)
            self.q_issue(a)
            Wchk(8, chk)
            self.m_init(a)
            self.m_issue(a)
            W(8); self.m_issue(a)
            self.m_issue(a)
        else:
            self.q_issue(a)
            W(17)
            Wchk(8, chk)
            self.m_init(a)
            self.m_issue(a)
            W(8); self.m_issue(a)
            self.m_issue(a)
        self.mark(a)
        n1b = self.pf_range(a, sW1, 1024 * 3072, 1024 * 3072) if self.o["pfw1"] else 0
        if self.o.get("touch"):
            n1b += self.pf_range(a, sWS, WS_GT, 8 * 1536 * 160)
            n1b += self.pf_range(a, sWS, WS_O, 2048 * 1280)
        a("s_barrier")
        a("s_barrier")
        self.kv_copy_out(a)

        def ln_all():
            lab = a.uid("Lep")
            a(f"s_waitcnt lgkmcnt(0)\ns_cmp_lg_u32 s{sArr}, 255\ns_cbranch_scc1 {lab}")
            a(f"s_mov_b32 s{sT4}, {WS_EPOCH}")
            self.flag_set(a, sT4)
            a.label(lab)
        Wchk(22 + n1b, ln_all)
        self.m_issue(a)
        W(22 + n1b); self.m_issue(a)
        W(16)

        def kv_done():
            a(f"""
            s_lshl_b32 s{sT4}, s{sP}, 4
            s_add_u32 s{sT4}, s{sT4}, s{sI}
            s_lshl_b32 s{sT4}, s{sT4}, 2
            s_add_u32 s{sT4}, s{sT4}, {FL_KV}
            """)
            self.flag_set(a, sT4)
        self.only_w0(a, kv_done)
        self.m_issue(a)
        self.loop(a, 7, lambda: (W(16), self.m_issue(a)))
        W(16)
        self.poll_issue(a, self.LV_PKV)
        self.m_issue(a)
        W(17); self.m_issue(a)
        W(17); self.m_issue(a)
        Wchk(16, lambda: self.poll_check(a, self.LV_PKV))
        self.kv_init(a)
        self.kv_issue(a, 0, 9)
        W(17)
        self.kv_issue(a, 9, 16)
        W(16)
        self.f_init(a)
        a(f"s_mov_b32 s{sSlot}, 0")
        a("s_barrier")
        W(0)
        self.mark(a)
        solo = self.o["gsolo"]
        if not solo:
            self.g_copy_out(a)
            a(f"""
            s_waitcnt vmcnt(0)
            v_mov_b32 v20, {SCR_CNT}
            v_mov_b32 v21, 1
            s_mov_b32 exec_hi, 0
            s_mov_b32 exec_lo, 1
            ds_add_u32 v20, v21
            s_mov_b64 exec, -1
            """)
        self.mark(a)

        def g_pub():
            if solo:
                self.g_copy_out_solo(a)
                a(f"v_mov_b32 v20, {SCR_CNT}\nv_mov_b32 v21, 4\nds_write_b32 v20, v21\ns_waitcnt vmcnt(0)")
            else:
                self.lds_spin(a, 0, 4)
            skip = a.uid("Lgidle")
            a(f"s_cmp_eq_u32 s{sM1On}, 0\ns_cbranch_scc1 {skip}")
            a(f"""
            s_lshl_b32 s{sT4}, s{sFt}, 6
            s_lshl_b32 s{sT5}, s{sDt1}, 2
            s_add_u32 s{sT4}, s{sT4}, s{sT5}
            s_add_u32 s{sT4}, s{sT4}, {FL_G}
            """)
            for r in range(8):
                self.flag_set(a, sT4)
                if r < 7:
                    a(f"s_add_u32 s{sT4}, s{sT4}, 1536")
            a.label(skip)
        self.only_w0(a, g_pub)
        self.lds_spin(a, 0, 4)
        self.mark(a)
        if self.o["pfw2"]:
            self.pf_range(a, sW2, 0, 1536 * 4096)
            self.pf_range(a, sWO, 0, 640 * 1280)
        self.slot_begin(a)
        self.f_issue_w2(a)
        a(f"s_add_u32 s{sSW}, s{sSW}, {SLOT}")
        self.f_issue_w2(a)

        def g_sync():
            ok, sp = a.uid("Lgok"), a.uid("Lgspin")
            self.spin(a, self.LV_PG, 1, ok, sp, self.o["gsleep"])
            a.label(ok)
            a(f"v_mov_b32 v20, {SCR_CNT + 4}\nv_mov_b32 v21, 1\nds_write_b32 v20, v21")
        self.mark(a)
        self.only_w0(a, g_sync)
        self.mark(a)
        self.lds_spin(a, 1, 1)
        self.slot_begin(a)
        self.f_issue_g(a)
        a(f"s_add_u32 s{sSW}, s{sSW}, {SLOT}")
        self.f_issue_g(a)
        a(f"s_mov_b32 s{sSlot}, {2 * SLOT}")
        W(5)
        self.mark(a)
        self.f_issue(a); self.f_issue(a)
        self.o_copy_out(a)
        W(21)
        self.f_issue(a)
        W(21); self.f_issue(a)
        W(18)

        def o_done():
            a(f"""
            s_lshl_b32 s{sT4}, s{sI}, 4
            s_add_u32 s{sT4}, s{sT4}, s{sP}
            s_lshl_b32 s{sT4}, s{sT4}, 2
            s_add_u32 s{sT4}, s{sT4}, {FL_O}
            """)
            self.flag_set(a, sT4)
        self.only_w0(a, o_done)
        self.f_issue(a)
        self.xt_issue(a)
        W(21); self.f_issue(a)
        W(21); self.f_issue(a)
        W(21)
        self.poll_issue(a, self.LV_PO)
        self.f_issue(a)
        W(19); self.f_issue(a)
        W(19); self.f_issue(a)
        Wchk(18, lambda: self.poll_check(a, self.LV_PO))
        self.wo_init(a)
        self.wo_issue(a)
        self.loop(a, 4, lambda: (W(18), self.wo_issue(a)))
        W(18); W(9); W(0)
        a("s_barrier")

    def m_consts(self, a):
        t0, t1, t2, t3, t4 = 190, 191, 192, 193, 194
        saved = (self.M_ACC,)
        super().m_consts(a)

    def zero(self, a, r0, n):
        for r in reversed(range(r0, r0 + n)):
            a(f"v_mov_b32 v{r}, 0")

    def a_consts(self, a, zero_o=True):
        super().a_consts(a)

    def q_reads(self, ks, b=None):
        base = self.Q_BUF + 16 * ks
        out = []
        for tm in range(2):
            for rd in range(2):
                out.append(f"ds_read_b64_tr_b16 v[{base + 4 * tm + 2 * rd}:{base + 4 * tm + 2 * rd + 1}], v{self.Q_AA + tm} offset:{(16 * ks + 4 * rd) * 256}")
        for tn in range(2):
            out.append(f"ds_read_b128 v[{base + 8 + 4 * tn}:{base + 11 + 4 * tn}], v{self.Q_AB + ks} offset:{tn * 4096}")
        return out

    @staticmethod
    def czero(mf):
        return [m.rsplit(",", 1)[0] + ", 0" for m in mf]

    def q_group(self, ks, wn):
        base = self.Q_BUF + 16 * ks
        cs, on = self.Q_CS, self.Q_ONES
        return self.q_mfmas(ks) + [f"v_mfma_f32_16x16x32_bf16 v[{cs}:{cs + 3}], v[{base + 4 * wn}:{base + 4 * wn + 3}], v[{on}:{on + 3}], v[{cs}:{cs + 3}]"]

    def q_addr(self):
        return ([f"v_add_u32 v{self.Q_AA + tm}, s{sSlot}, v{self.Q_CA + tm}" for tm in range(2)] +
                [f"v_add_u32 v{self.Q_AB + ks}, s{sSlot}, v{self.Q_CB + ks}" for ks in range(4)])

    def q_stage(self, a, wn, first, hook=None, pre=None):
        if pre:
            pre()
        self.cbar(a)
        if hook:
            hook()
        r01 = self.q_reads(0) + self.q_reads(1)
        if first:
            for r in r01:
                a(r)
        else:
            self.spread(a, self.q_group(3, wn), r01)
        a("s_waitcnt lgkmcnt(6)")
        g0 = self.q_group(0, wn)
        self.spread(a, self.czero(g0) if first else g0, self.q_reads(2))
        a("s_waitcnt lgkmcnt(6)")
        self.spread(a, self.q_group(1, wn), self.q_reads(3))
        self.slot_next(a)
        a("s_waitcnt lgkmcnt(6)")
        g2 = self.q_group(2, wn)
        self.spread(a, g2[4:] + g2[:4], self.q_addr())
        a("s_waitcnt lgkmcnt(0)")
        if self.o.get("qmarks"):
            self.mark(a)

    @staticmethod
    def spread(a, mf, other):
        n = len(mf)
        k = 0
        for i, m in enumerate(mf):
            a(m)
            upto = -(-(len(other) * (i + 1)) // n)
            for r in other[k:upto]:
                a(r)
            k = upto

    def q_epilogue(self, a, wm):
        C, AB, T = 136, 168, 176
        ST = self.V_ST
        a(f"""
        v_lshrrev_b32 v{T}, 5, v0
        v_lshlrev_b32 v{T + 1}, 4, v{T}
        v_add_u32 v{T + 1}, {SCR_CS + wm * 256}, v{T + 1}
        """)
        for tm in range(2):
            for q in range(4):
                r = C + 16 * tm + 4 * q
                a(f"ds_read_b128 v[{r}:{r + 3}], v{T + 1} offset:{tm * 128 + q * 32}")
        a(f"""
        s_lshl_b32 s{sT1}, s{sWn}, 6
        v_and_b32 v{T + 2}, 31, v0
        v_add_u32 v{T + 2}, s{sT1}, v{T + 2}
        v_lshlrev_b32 v{T}, 3, v{T}
        v_mul_u32_u24 v{T + 3}, 80, v{T + 2}
        v_add_u32 v{T + 3}, v{T + 3}, v{T}
        v_add_u32 v{T + 3}, {SCR}, v{T + 3}
        v_mul_u32_u24 v{T + 4}, {KVROW}, v{T + 2}
        v_add_u32 v{T + 4}, v{T + 4}, v{T}
        v_add_u32 v{T + 4}, {SLOT}, v{T + 4}
        """)
        for tn in range(2):
            m_, r_ = ST + 2 * tn, ST + 2 * tn + 1
            o = AB + 4 * tn
            a(f"""
            v_mov_b32 v{o}, v{r_}
            v_mul_f32 v{o + 1}, v{m_}, v{r_}
            v_mul_f32 v{o + 2}, {f32(QSCALE)}, v{r_}
            v_mul_f32 v{o + 3}, {f32(QSCALE)}, v{o + 1}
            """)
        a("s_waitcnt lgkmcnt(0)")
        for tn in range(2):
            for tm in range(2):
                acc = self.Q_ACC + 16 * (2 * tm + tn)
                quads = []
                for q in range(4):
                    Q0 = 16 * wm + 8 * tm + 2 * q
                    quads.append((Q0, AB + 4 * tn + (2 if Q0 < 10 else 0), C + 16 * tm + 4 * q, acc + 4 * q))
                live = [t for t in quads if t[0] != 30]
                for Q0, o, c, x in live:
                    for y in (x, x + 2):
                        a(f"v_pk_mul_f32 v[{y}:{y + 1}], v[{y}:{y + 1}], v[{o}:{o + 1}] op_sel_hi:[1,0]")
                for Q0, o, c, x in live:
                    for hf in range(2):
                        y = x + 2 * hf
                        a(f"v_pk_fma_f32 v[{y}:{y + 1}], v[{c + 2 * hf}:{c + 2 * hf + 1}], v[{o}:{o + 1}], v[{y}:{y + 1}] op_sel:[0,1,0] op_sel_hi:[1,1,1] neg_lo:[1,0,0] neg_hi:[1,0,0]")
                for Q0, o, c, x in live:
                    a(f"v_cvt_pk_bf16_f32 v{x}, v{x}, v{x + 1}")
                for Q0, o, c, x in live:
                    a(f"v_cvt_pk_bf16_f32 v{x + 1}, v{x + 2}, v{x + 3}")
                for Q0, o, c, x in quads:
                    if Q0 == 30:
                        a(f"v_mov_b32 v{x}, 0x00003f80\nv_mov_b32 v{x + 1}, 0")
                        a(f"""
                        s_mov_b32 exec_hi, 0
                        ds_write_b64 v{T + 4}, v[{x}:{x + 1}] offset:{tn * 32 * KVROW + 160}
                        s_mov_b64 exec, -1
                        """)
                    elif Q0 < 10:
                        a(f"ds_write_b64 v{T + 3}, v[{x}:{x + 1}] offset:{tn * 32 * 80 + Q0 * 8}")
                    else:
                        a(f"ds_write_b64 v{T + 4}, v[{x}:{x + 1}] offset:{tn * 32 * KVROW + (Q0 - 10) * 8}")
        a("s_waitcnt lgkmcnt(0)")

    def kv_copy_out(self, a):
        R, T = 32, 28
        a(f"""
        v_lshlrev_b32 v{T}, 4, v0
        s_lshl_b32 s{sT0}, s{sLw}, 10
        v_add_u32 v{T}, s{sT0}, v{T}
        v_add_u32 v{T + 1}, {SLOT}, v{T}
        s_lshl_b32 s{sT1}, s{sP}, 11
        s_lshl_b32 s{sT2}, s{sI}, 7
        s_add_u32 s{sT1}, s{sT1}, s{sT2}
        s_mul_i32 s{sT1}, s{sT1}, {KVROW}
        s_add_u32 s{sT1}, s{sT1}, {WS_KV}
        v_add_u32 v{T + 2}, s{sT1}, v{T}
        s_cmp_eq_u32 s{sLw}, 0
        s_cselect_b32 s{sT2}, 0, {OOB}
        v_add_u32 v{T + 3}, s{sT2}, v{T + 2}
        """)
        for k in range(6):
            a(f"ds_read_b128 v[{R + 4 * k}:{R + 4 * k + 3}], v{T + 1} offset:{k * 4096}")
        for k in range(6):
            a(f"s_waitcnt lgkmcnt({5 - k})")
            a(f"s_mov_b32 s{sT0}, {k * 4096}")
            a(f"buffer_store_dwordx4 v[{R + 4 * k}:{R + 4 * k + 3}], v{T + (3 if k == 5 else 2)}, s[{sWS}:{sWS + 3}], s{sT0} offen sc1")

    def q_csum_write(self, a):
        t0, t1 = 176, 177
        cs = self.Q_CS
        a(f"""
        v_and_b32 v{t0}, 1, v0
        v_lshlrev_b32 v{t0}, 6, v{t0}
        v_lshrrev_b32 v{t1}, 4, v0
        v_lshl_add_u32 v{t0}, v{t1}, 4, v{t0}
        s_lshl_b32 s{sT0}, s{sWm}, 8
        s_lshl_b32 s{sT1}, s{sWn}, 7
        s_add_u32 s{sT0}, s{sT0}, s{sT1}
        s_add_u32 s{sT0}, s{sT0}, {SCR_CS}
        v_add_u32 v{t0}, s{sT0}, v{t0}
        v_and_b32 v{t1}, 14, v0
        v_cmp_eq_u32 vcc, 0, v{t1}
        s_and_saveexec_b64 s[{sEx}:{sEx + 1}], vcc
        ds_write_b128 v{t0}, v[{cs}:{cs + 3}]
        s_mov_b64 exec, s[{sEx}:{sEx + 1}]
        s_waitcnt lgkmcnt(0)
        """)

    def c_qkv(self, a):
        T = 212
        for c in self.q_addr():
            a(c)

        def stats():
            ST = self.V_ST
            a(f"""
            s_lshl_b32 s{sT0}, s{sI}, 7
            s_lshl_b32 s{sT1}, s{sWn}, 6
            s_add_u32 s{sT0}, s{sT0}, s{sT1}
            v_and_b32 v{T + 1}, 31, v0
            v_add_u32 v{T + 1}, s{sT0}, v{T + 1}
            v_lshlrev_b32 v{T + 1}, 3, v{T + 1}
            v_add_u32 v{T + 1}, {WS_STATS}, v{T + 1}
            buffer_load_dwordx2 v[{ST}:{ST + 1}], v{T + 1}, s[{sWS}:{sWS + 3}], 0 offen sc1
            buffer_load_dwordx2 v[{ST + 2}:{ST + 3}], v{T + 1}, s[{sWS}:{sWS + 3}], 0 offen offset:256 sc1
            """)

        def run(wn):
            self.q_stage(a, wn, True, hook=lambda: self.ln_stores(a))
            self.mark(a)
            self.q_stage(a, wn, False)
            self.q_stage(a, wn, False, pre=lambda: a("s_waitcnt vmcnt(0)"))
            self.loop(a, 5, lambda: self.q_stage(a, wn, False))
            self.q_stage(a, wn, False, hook=stats)
            self.q_stage(a, wn, False)
            for m in self.q_group(3, wn):
                a(m)
        self.by_scalar(a, sWn, run)
        self.mark(a)
        self.q_csum_write(a)
        a("s_barrier")
        a("s_waitcnt vmcnt(0)")
        self.by_scalar(a, sWm, lambda wm: self.q_epilogue(a, wm))
        a("s_barrier")

    def m_addr(self):
        return ([f"v_add_u32 v{self.M_AA + tm}, s{sSlot}, v{self.M_CA + tm}" for tm in range(2)] +
                [f"v_add_u32 v{self.M_AB}, s{sSlot}, v{self.M_CB}"])

    def m_stage(self, a, first, pre=None, hook=None):
        if pre:
            pre()
        self.cbar(a)
        if hook:
            hook()
        r01 = self.m_reads(0) + self.m_reads(1)
        if first:
            for r in r01:
                a(r)
        else:
            self.spread(a, self.m_mfmas(2) + self.m_mfmas(3), r01)
        a("s_waitcnt lgkmcnt(6)")
        self.spread(a, self.czero(self.m_mfmas(0)) if first else self.m_mfmas(0), self.m_reads(2))
        a("s_waitcnt lgkmcnt(6)")
        self.spread(a, self.m_mfmas(1), self.m_reads(3))
        self.slot_next(a)
        for c in self.m_addr():
            a(c)
        a("s_waitcnt lgkmcnt(0)")

    def m_reduce_write(self, a, kh):
        t = 190
        src = self.M_ACC + 16 * (1 - kh)
        a(f"""
        v_lshlrev_b32 v{t}, 4, v0
        s_lshl_b32 s{sT0}, s{sLw}, 12
        s_add_u32 s{sT0}, s{sT0}, {M_RED}
        v_add_u32 v{t}, s{sT0}, v{t}
        """)
        for q in range(4):
            a(f"ds_write_b128 v{t}, v[{src + 4 * q}:{src + 4 * q + 3}] offset:{q * 1024}")
        a("s_waitcnt lgkmcnt(0)")

    def m_epilogue(self, a, kh):
        t, R, U = 190, 136, 160
        B1 = self.V_B1
        keep = self.M_ACC + 16 * kh
        a(f"""
        v_lshlrev_b32 v{t}, 4, v0
        s_xor_b32 s{sT0}, s{sLw}, 2
        s_lshl_b32 s{sT0}, s{sT0}, 12
        s_add_u32 s{sT0}, s{sT0}, {M_RED}
        v_add_u32 v{t}, s{sT0}, v{t}
        """)
        for q in range(4):
            a(f"ds_read_b128 v[{R + 4 * q}:{R + 4 * q + 3}], v{t} offset:{q * 1024}")
        a(f"""
        s_lshl_b32 s{sT1}, s{sWn}, 5
        v_and_b32 v{U}, 31, v0
        v_add_u32 v{U}, s{sT1}, v{U}
        v_mul_u32_u24 v{U}, {GROW}, v{U}
        v_lshrrev_b32 v{U + 1}, 5, v0
        v_lshl_add_u32 v{U}, v{U + 1}, 3, v{U}
        v_add_u32 v{U}, {SLOT + 64 * kh}, v{U}
        """)
        c0 = -2.0 * math.sqrt(2.0 / math.pi) * math.log2(math.e)
        c1 = c0 * 0.044715
        a(f"v_lshlrev_b32 v{U + 2}, 16, v{B1}\nv_mov_b32 v{U + 4}, {f32(c1)}\nv_mov_b32 v{U + 5}, {f32(c0)}\nv_mov_b32 v{U + 6}, 1.0")
        a("s_waitcnt lgkmcnt(0)")
        P = lambda r: f"v[{r}:{r + 1}]"
        for r in range(0, 16, 2):
            a(f"v_pk_add_f32 {P(keep + r)}, {P(keep + r)}, {P(R + r)}")
        for r in range(0, 16, 2):
            a(f"v_pk_add_f32 {P(keep + r)}, {P(keep + r)}, {P(U + 2)} op_sel_hi:[1,0]")
        for r in range(0, 16, 2):
            a(f"v_pk_mul_f32 {P(R + r)}, {P(keep + r)}, {P(keep + r)}")
        for r in range(0, 16, 2):
            a(f"v_pk_fma_f32 {P(R + r)}, {P(R + r)}, {P(U + 4)}, {P(U + 4)} op_sel:[0,0,1] op_sel_hi:[1,0,1]")
        for r in range(0, 16, 2):
            a(f"v_pk_mul_f32 {P(R + r)}, {P(R + r)}, {P(keep + r)}")
        for r in range(16):
            a(f"v_exp_f32 v{R + r}, v{R + r}")
        for r in range(0, 16, 2):
            a(f"v_pk_add_f32 {P(R + r)}, {P(R + r)}, {P(U + 6)} op_sel_hi:[1,0]")
        for r in range(16):
            a(f"v_rcp_f32 v{R + r}, v{R + r}")
        for r in range(0, 16, 2):
            a(f"v_pk_mul_f32 {P(keep + r)}, {P(keep + r)}, {P(R + r)}")
        for q in range(4):
            x = keep + 4 * q
            a(f"v_cvt_pk_bf16_f32 v{x}, v{x}, v{x + 1}\nv_cvt_pk_bf16_f32 v{x + 1}, v{x + 2}, v{x + 3}")
            a(f"ds_write_b64 v{U}, v[{x}:{x + 1}] offset:{16 * q}")
        a("s_waitcnt lgkmcnt(0)")

    def g_copy_out_solo(self, a):
        R, T = 32, 28
        a(f"""
        v_lshrrev_b32 v{T}, 3, v0
        v_and_b32 v{T + 1}, 7, v0
        v_mul_u32_u24 v{T + 2}, {GROW}, v{T}
        v_lshl_add_u32 v{T + 2}, v{T + 1}, 4, v{T + 2}
        v_add_u32 v{T + 2}, {SLOT}, v{T + 2}
        """)
        for k in range(8):
            a(f"ds_read_b128 v[{R + 4 * k}:{R + 4 * k + 3}], v{T + 2} offset:{8 * GROW * k}")
        a(f"""
        s_lshl_b32 s{sT0}, s{sDt1}, 6
        v_lshl_add_u32 v{T + 1}, v{T + 1}, 3, s{sT0}
        v_mul_u32_u24 v{T + 3}, 820, v{T + 1}
        v_lshrrev_b32 v{T + 3}, 16, v{T + 3}
        v_mul_u32_u24 v{T + 2}, 80, v{T + 3}
        v_sub_u32 v{T + 1}, v{T + 1}, v{T + 2}
        v_mul_u32_u24 v{T + 3}, {1536 * 160}, v{T + 3}
        v_lshl_add_u32 v{T + 3}, v{T + 1}, 1, v{T + 3}
        s_lshl_b32 s{sT0}, s{sFt}, 6
        v_add_u32 v{T}, s{sT0}, v{T}
        v_mul_u32_u24 v{T}, 160, v{T}
        v_add_u32 v{T + 3}, v{T + 3}, v{T}
        s_mov_b32 s{sT1}, {WS_GT}
        s_cmp_eq_u32 s{sM1On}, 0
        s_cselect_b32 s{sT0}, {OOB}, s{sT1}
        """)
        for k in range(8):
            a(f"s_waitcnt lgkmcnt({7 - k})")
            a(f"buffer_store_dwordx4 v[{R + 4 * k}:{R + 4 * k + 3}], v{T + 3}, s[{sWS}:{sWS + 3}], s{sT0} offen sc1")
            if k < 7:
                a(f"s_add_u32 s{sT0}, s{sT0}, {8 * 160}")

    def g_copy_out(self, a):
        R, T = 40, 28
        a(f"""
        v_lshrrev_b32 v{T}, 3, v0
        s_lshl_b32 s{sT0}, s{sLw}, 4
        v_add_u32 v{T}, s{sT0}, v{T}
        v_and_b32 v{T + 1}, 7, v0
        v_mul_u32_u24 v{T + 2}, {GROW}, v{T}
        v_lshl_add_u32 v{T + 2}, v{T + 1}, 4, v{T + 2}
        v_add_u32 v{T + 2}, {SLOT}, v{T + 2}
        ds_read_b128 v[{R}:{R + 3}], v{T + 2}
        ds_read_b128 v[{R + 4}:{R + 7}], v{T + 2} offset:{8 * GROW}
        s_lshl_b32 s{sT0}, s{sDt1}, 6
        v_lshl_add_u32 v{T + 1}, v{T + 1}, 3, s{sT0}
        v_mul_u32_u24 v{T + 3}, 820, v{T + 1}
        v_lshrrev_b32 v{T + 3}, 16, v{T + 3}
        v_mul_u32_u24 v{T + 4}, 80, v{T + 3}
        v_sub_u32 v{T + 1}, v{T + 1}, v{T + 4}
        v_mul_u32_u24 v{T + 3}, {1536 * 160}, v{T + 3}
        v_lshl_add_u32 v{T + 3}, v{T + 1}, 1, v{T + 3}
        s_lshl_b32 s{sT0}, s{sFt}, 6
        v_add_u32 v{T}, s{sT0}, v{T}
        v_mul_u32_u24 v{T}, 160, v{T}
        v_add_u32 v{T + 3}, v{T + 3}, v{T}
        s_mov_b32 s{sT1}, {WS_GT}
        s_cmp_eq_u32 s{sM1On}, 0
        s_cselect_b32 s{sT0}, {OOB}, s{sT1}
        v_add_u32 v{T + 3}, s{sT0}, v{T + 3}
        s_waitcnt lgkmcnt(0)
        buffer_store_dwordx4 v[{R}:{R + 3}], v{T + 3}, s[{sWS}:{sWS + 3}], 0 offen sc1
        buffer_store_dwordx4 v[{R + 4}:{R + 7}], v{T + 3}, s[{sWS}:{sWS + 3}], 0 offen offset:{8 * 160} sc1
        """)

    def c_mix1(self, a):
        T = 200
        a(f"""
        s_lshl_b32 s{sT0}, s{sFt}, 6
        s_lshl_b32 s{sT1}, s{sWn}, 5
        s_add_u32 s{sT0}, s{sT0}, s{sT1}
        v_and_b32 v{T}, 31, v0
        v_add_u32 v{T}, s{sT0}, v{T}
        v_lshlrev_b32 v{T}, 1, v{T}
        buffer_load_ushort v{self.V_B1}, v{T}, s[{sB1}:{sB1 + 3}], 0 offen
        """)
        for c in self.m_addr():
            a(c)
        self.m_stage(a, True)
        self.zero(a, self.A_O, 16)
        self.m_stage(a, False)
        self.zero(a, self.A_O + 16, 16)
        self.m_stage(a, False)
        self.mark(a)
        self.loop(a, 13, lambda: self.m_stage(a, False))
        for m in self.m_mfmas(2) + self.m_mfmas(3):
            a(m)
        self.mark(a)
        self.by_scalar(a, sWm, lambda kh: self.m_reduce_write(a, kh))
        a("s_barrier")
        a("s_waitcnt vmcnt(0)")
        self.by_scalar(a, sWm, lambda kh: self.m_epilogue(a, kh))
        self.a_zero(a)
        self.cbar(a)

    def a_addr_consts(self, a):
        keep = (self.A_O, self.A_K)
        body = Asm()
        B.Gen.a_consts(self, body)
        for it in body.items:
            if it.mn == "v_mov_b32" and it.ops[0][0] == "v":
                r = int(it.ops[0][1:])
                if self.A_O <= r < self.A_O + 32 or self.A_K <= r < self.A_K + 16:
                    continue
            a.items.append(it)

    def a_zero(self, a):
        for hh in range(2):
            for base in (self.A_K, self.A_Q):
                a(f"v_mov_b32 v{base + 8 * hh + 6}, 0\nv_mov_b32 v{base + 8 * hh + 7}, 0")

    def a_qreads(self, a):
        T = self.A_T
        a(f"""
        s_lshl_b32 s{sT0}, s{sLw}, 5
        v_and_b32 v{T}, 31, v0
        v_add_u32 v{T}, s{sT0}, v{T}
        v_mul_u32_u24 v{T}, 80, v{T}
        v_add_u32 v{T}, {SCR}, v{T}
        v_lshrrev_b32 v{T + 1}, 5, v0
        v_lshl_add_u32 v{T + 1}, v{T + 1}, 4, v{T}
        """)
        for hh in range(2):
            q = self.A_Q + 8 * hh
            a(f"""
            ds_read_b64 v[{q}:{q + 1}], v{T + 1} offset:{40 * hh}
            ds_read_b64 v[{q + 2}:{q + 3}], v{T + 1} offset:{40 * hh + 8}
            ds_read_b64 v[{q + 4}:{q + 5}], v{T} offset:{40 * hh + 32}
            """)

    def a_qmask(self, a):
        for hh in range(2):
            q = self.A_Q + 8 * hh
            a(f"""
            s_mov_b32 exec_lo, 0
            v_mov_b32 v{q + 4}, 0
            v_mov_b32 v{q + 5}, 0
            s_mov_b64 exec, -1
            """)

    def kr(self, hh, dt):
        k = self.A_K + 8 * hh
        o = dt * 32 * KVROW + 40 * hh
        return [f"ds_read_b64 v[{k}:{k + 1}], v{self.A_KA} offset:{o}",
                f"ds_read_b64 v[{k + 2}:{k + 3}], v{self.A_KA} offset:{o + 8}",
                f"ds_read_b64 v[{k + 4}:{k + 5}], v{self.A_KA + 1} offset:{o + 32}"]

    def vr(self, hh, dt):
        x = self.A_V + 8 * hh
        return [f"ds_read_b64_tr_b16 v[{x + 4 * aa + 2 * rd}:{x + 4 * aa + 2 * rd + 1}], v{self.A_VA + hh} offset:{(dt * 32 + 16 * aa + 8 * rd) * KVROW}"
                for aa in range(2) for rd in range(2)]

    def a_slot(self, a, hv, qk_mask, do_qk, do_pv, dk, dv, rd_k=True, rd_v=True, wait=7):
        ho = 1 - hv
        sreg, p = self.A_S + 16 * hv, self.A_P + 8 * hv
        a(f"s_waitcnt lgkmcnt({wait})")
        qk = self.a_qk(ho, qk_mask) if do_qk else [None, None]
        pv = self.a_pv(ho) if do_pv else [None, None]
        kr = self.kr(ho, dk) if rd_k else []
        vr = self.vr(ho, dv) if rd_v else []
        plan = [(qk[0], kr[:2]), (qk[1], kr[2:]), (pv[0], vr[:2]), (pv[1], vr[2:])]
        for g, (m, rds) in enumerate(plan):
            if m:
                a(m)
            for r in rds:
                a(r)
            for q in range(4):
                a(f"v_exp_f32 v{sreg + 4 * g + q}, v{sreg + 4 * g + q}")
        for r in range(8):
            a(f"v_cvt_pk_bf16_f32 v{p + r}, v{sreg + 2 * r}, v{sreg + 2 * r + 1}")

    def a_iter(self, a, first, mask_a, mask_b, last):
        self.a_slot(a, 0, mask_a, True, not first, 1, 0, rd_k=not last, wait=7 if not last else 7)
        if last:
            self.a_slot(a, 1, None, False, True, 0, 0, rd_k=False, rd_v=False, wait=4)
            a("s_waitcnt lgkmcnt(0)")
            for m in self.a_pv(1):
                a(m)
        else:
            self.a_slot(a, 1, mask_b, True, True, 2, 1)
            for r in (self.A_KA, self.A_KA + 1, self.A_VA, self.A_VA + 1):
                a(f"v_add_u32 v{r}, {32 * KVROW}, v{r}")

    def g_publish(self, a):
        lab = a.uid("Lgp")
        T = 208
        a(f"s_cmp_lg_u32 s{sPub}, 0\ns_cbranch_scc1 {lab}")
        a(f"""
        s_mov_b32 s{sPub}, 1
        s_waitcnt vmcnt(0)
        v_mov_b32 v{T}, {SCR_CNT}
        v_mov_b32 v{T + 1}, 1
        s_mov_b32 exec_hi, 0
        s_mov_b32 exec_lo, 1
        ds_add_u32 v{T}, v{T + 1}
        s_mov_b64 exec, -1
        """)
        a.label(lab)

    def attention(self, a):
        T = self.A_T
        a(f"""
        s_lshl_b32 s{sT0}, s{sI}, 2
        s_add_u32 s{sT0}, s{sT0}, s{sLw}
        s_cmp_ge_u32 s{sT0}, 8
        s_cselect_b32 s{sT0}, 8, s{sT0}
        s_sub_u32 s{sT2}, 8, s{sT0}
        """)
        self.a_skip(a, sT2)
        self.a_qreads(a)
        for hh in range(2):
            for r in self.kr(hh, 0):
                a(r)
        a("s_waitcnt lgkmcnt(0)")
        self.a_qmask(a)
        MF, MD = self.A_MF, self.A_MD
        L = {k: a.uid("La" + k) for k in ("far", "n2", "n1", "mid", "pre", "last", "done")}

        def head(mask):
            for m in self.a_qk(0, mask):
                a(m)
            for r in self.kr(0, 1) + self.vr(0, 0):
                a(r)
        a(f"s_cmp_eq_u32 s{sT2}, 0\ns_cbranch_scc1 {L['far']}")
        a(f"s_cmp_eq_u32 s{sT2}, 7\ns_cbranch_scc1 {L['n2']}")
        a(f"s_cmp_eq_u32 s{sT2}, 8\ns_cbranch_scc1 {L['n1']}")
        head(None)
        self.a_iter(a, True, None, None, False)
        a(f"s_sub_u32 s{sCnt}, 6, s{sT2}\ns_cmp_eq_u32 s{sCnt}, 0\ns_cbranch_scc1 {L['pre']}\ns_branch {L['mid']}")
        a.label(L["n2"])
        head(None)
        self.a_iter(a, True, None, MD, False)
        a(f"s_branch {L['last']}")
        a.label(L["n1"])
        head(MD)
        self.a_iter(a, True, MD, None, True)
        a(f"s_branch {L['done']}")
        a.label(L["far"])
        head(MF)
        self.a_iter(a, True, MF, None, False)
        a(f"s_mov_b32 s{sCnt}, 6")
        a.label(L["mid"])
        self.a_iter(a, False, None, None, False)
        a(f"s_sub_u32 s{sCnt}, s{sCnt}, 1\ns_cmp_lg_u32 s{sCnt}, 0\ns_cbranch_scc1 {L['mid']}")
        a.label(L["pre"])
        self.a_iter(a, False, None, MD, False)
        a.label(L["last"])
        self.a_iter(a, False, MD, None, True)
        a.label(L["done"])
        lfb, ldone = a.uid("Lfallback"), a.uid("Lnorm")
        self.fallback_labels = (lfb, ldone)
        self.a_rowsum(a)
        a(f"""
        v_mov_b32 v{T + 4}, {f32(2.0 ** -40)}
        v_mov_b32 v{T + 5}, {f32(2.0 ** 40)}
        v_cmp_ge_f32 s[{sT0}:{sT0 + 1}], v{T}, v{T + 4}
        v_cmp_le_f32 s[{sT2}:{sT2 + 1}], v{T}, v{T + 5}
        s_and_b64 s[{sT0}:{sT0 + 1}], s[{sT0}:{sT0 + 1}], s[{sT2}:{sT2 + 1}]
        v_cmp_ge_f32 s[{sT2}:{sT2 + 1}], v{T + 1}, v{T + 4}
        s_and_b64 s[{sT0}:{sT0 + 1}], s[{sT0}:{sT0 + 1}], s[{sT2}:{sT2 + 1}]
        v_cmp_le_f32 s[{sT2}:{sT2 + 1}], v{T + 1}, v{T + 5}
        s_and_b64 s[{sT0}:{sT0 + 1}], s[{sT0}:{sT0 + 1}], s[{sT2}:{sT2 + 1}]
        s_cmp_eq_u64 s[{sT0}:{sT0 + 1}], exec
        s_cbranch_scc0 {lfb}
        """)
        a.label(ldone)
        self.a_store(a)

    def a_store(self, a):
        T = self.A_T
        a(f"""
        v_rcp_f32 v{T + 2}, v{T}
        v_rcp_f32 v{T + 4}, v{T + 1}
        s_lshl_b32 s{sT1}, s{sLw}, 5
        v_and_b32 v{T + 6}, 31, v0
        v_add_u32 v{T + 6}, s{sT1}, v{T + 6}
        v_mul_u32_u24 v{T + 6}, 80, v{T + 6}
        v_add_u32 v{T + 6}, {SCR}, v{T + 6}
        v_lshrrev_b32 v{T + 7}, 5, v0
        v_lshl_add_u32 v{T + 7}, v{T + 7}, 3, v{T + 6}
        """)
        for hh in range(2):
            o = self.A_O + 16 * hh
            rc = T + 2 + 2 * hh
            for g in range(3):
                x = o + 4 * g
                for hf in range(2):
                    a(f"v_pk_mul_f32 v[{x + 2 * hf}:{x + 2 * hf + 1}], v[{x + 2 * hf}:{x + 2 * hf + 1}], v[{rc}:{rc + 1}] op_sel_hi:[1,0]")
                a(f"v_cvt_pk_bf16_f32 v{x}, v{x}, v{x + 1}\nv_cvt_pk_bf16_f32 v{x + 1}, v{x + 2}, v{x + 3}")
                if g < 2:
                    a(f"ds_write_b64 v{T + 7}, v[{x}:{x + 1}] offset:{40 * hh + 16 * g}")
                else:
                    a(f"s_mov_b32 exec_hi, 0\nds_write_b64 v{T + 6}, v[{x}:{x + 1}] offset:{40 * hh + 32}\ns_mov_b64 exec, -1")
        a("s_waitcnt lgkmcnt(0)")

    def o_copy_out(self, a):
        R, T = 40, 28
        a(f"""
        s_lshl_b32 s{sT0}, s{sI}, 7
        s_mul_i32 s{sT0}, s{sT0}, 1280
        s_mul_i32 s{sT1}, s{sP}, 80
        s_add_u32 s{sT0}, s{sT0}, s{sT1}
        s_add_u32 s{sT0}, s{sT0}, {WS_O}
        s_lshl_b32 s{sT1}, s{sLw}, 6
        v_add_u32 v{T}, s{sT1}, v0
        v_lshlrev_b32 v{T + 1}, 4, v{T}
        v_add_u32 v{T + 1}, {SCR}, v{T + 1}
        """)
        for k in range(3):
            a(f"ds_read_b128 v[{R + 4 * k}:{R + 4 * k + 3}], v{T + 1} offset:{k * 4096}")
        for k in range(3):
            a(f"""
            v_add_u32 v{T + 2}, {256 * k}, v{T}
            v_mul_u32_u24 v{T + 3}, 13108, v{T + 2}
            v_lshrrev_b32 v{T + 3}, 16, v{T + 3}
            v_mul_u32_u24 v{T + 4}, 5, v{T + 3}
            v_sub_u32 v{T + 4}, v{T + 2}, v{T + 4}
            v_mul_u32_u24 v{T + 3}, 1280, v{T + 3}
            v_lshl_add_u32 v{T + 3}, v{T + 4}, 4, v{T + 3}
            v_add_u32 v{T + 5 + k}, s{sT0}, v{T + 3}
            """)
        a(f"""
        v_mov_b32 v{T + 2}, {OOB}
        v_add_u32 v{T + 3}, 512, v{T}
        v_cmp_gt_u32 vcc, 640, v{T + 3}
        v_cndmask_b32 v{T + 7}, v{T + 2}, v{T + 7}, vcc
        s_waitcnt lgkmcnt(0)
        """)
        for k in range(3):
            a(f"buffer_store_dwordx4 v[{R + 4 * k}:{R + 4 * k + 3}], v{T + 5 + k}, s[{sWS}:{sWS + 3}], 0 offen sc1")

    def attention_fallback(self, a):
        lfb, ldone = self.fallback_labels
        M = 200
        a.label(lfb)
        self.a_addr_consts(a)
        self.zero(a, self.A_O, 32)
        a(f"""
        s_lshl_b32 s{sT0}, s{sI}, 2
        s_add_u32 s{sT0}, s{sT0}, s{sLw}
        s_cmp_ge_u32 s{sT0}, 8
        s_cselect_b32 s{sT0}, 8, s{sT0}
        s_sub_u32 s{sCnt}, 8, s{sT0}
        v_mov_b32 v{M}, {f32(-3e38)}
        v_mov_b32 v{M + 1}, {f32(-3e38)}
        """)
        self.a_skip(a, sCnt)
        lp, lnf, lnd = a.uid("Lfb"), a.uid("Lfbnf"), a.uid("Lfbnd")
        a.label(lp)
        for hh in range(2):
            for r in self.kr(hh, 0) + self.vr(hh, 0):
                a(r)
        for r in (self.A_KA, self.A_KA + 1, self.A_VA, self.A_VA + 1):
            a(f"v_add_u32 v{r}, {32 * KVROW}, v{r}")
        a("s_waitcnt lgkmcnt(0)")
        for hh in range(2):
            for m in self.a_qk(hh, None):
                a(m)
        a("s_nop 15")
        a(f"s_cmp_lg_u32 s{sCnt}, 0\ns_cbranch_scc1 {lnf}")
        for hh in range(2):
            for r in range(16):
                a(f"v_add_f32 v{self.A_S + 16 * hh + r}, v{self.A_S + 16 * hh + r}, v{self.A_MF + r}")
        a.label(lnf)
        a(f"s_cmp_lg_u32 s{sCnt}, 8\ns_cbranch_scc1 {lnd}")
        for hh in range(2):
            for r in range(16):
                a(f"v_add_f32 v{self.A_S + 16 * hh + r}, v{self.A_S + 16 * hh + r}, v{self.A_MD + r}")
        a.label(lnd)
        for hh in range(2):
            sreg, o = self.A_S + 16 * hh, self.A_O + 16 * hh
            x = M + 2
            a(f"v_max3_f32 v{x}, v{sreg}, v{sreg + 1}, v{M + hh}")
            for r in range(2, 16, 2):
                a(f"v_max3_f32 v{x}, v{sreg + r}, v{sreg + r + 1}, v{x}")
            a(f"""
            v_mov_b32 v{x + 1}, v{x}
            v_mov_b32 v{x + 2}, v{x}
            v_nop
            v_permlane32_swap_b32 v{x + 1}, v{x + 2}
            v_max_f32 v{x}, v{x + 1}, v{x + 2}
            v_sub_f32 v{x + 1}, v{M + hh}, v{x}
            v_exp_f32 v{x + 1}, v{x + 1}
            v_mov_b32 v{M + hh}, v{x}
            """)
            for r in range(16):
                a(f"v_sub_f32 v{sreg + r}, v{sreg + r}, v{x}")
            for r in range(16):
                a(f"v_mul_f32 v{o + r}, v{o + r}, v{x + 1}")
            self.a_softmax(a, hh)
            for m in self.a_pv(hh):
                a(m)
        a(f"s_add_u32 s{sCnt}, s{sCnt}, 1\ns_cmp_le_u32 s{sCnt}, 8\ns_cbranch_scc1 {lp}")
        a("s_nop 15")
        self.a_rowsum(a)
        a(f"s_branch {ldone}")

    def f_reads(self, j, wo):
        return [] if self.o.get("nofr") else super().f_reads(j, wo)

    def m_reads(self, ks):
        return [] if self.o.get("nomr") else super().m_reads(ks)

    def f_addr(self, wo):
        out = [f"v_add_u32 v{self.F_AA}, s{sSlot}, v{self.F_CA}"]
        if wo:
            out += [f"v_add_u32 v{self.F_AO + k}, s{sSlot}, v{self.F_CO + k}" for k in range(4)]
        else:
            out += [f"v_add_u32 v{self.F_AB + tn}, s{sSlot}, v{self.F_CB + tn}" for tn in range(2)]
        return out

    def f_stage(self, a, first, wo, next_wo, pre=None, hook=None):
        if pre:
            pre()
        self.cbar(a)
        if hook:
            hook()
        r0 = self.f_reads(0, wo)
        if first:
            for r in r0:
                a(r)
        else:
            self.spread(a, self.f_mfmas(1), r0)
        a("s_waitcnt lgkmcnt(0)")
        self.spread(a, self.czero(self.f_mfmas(0)) if first else self.f_mfmas(0), self.f_reads(1, wo))
        self.slot_next(a)
        a("s_waitcnt lgkmcnt(0)")
        for c in self.f_addr(next_wo):
            a(c)

    def f_epilogue(self, a, kh):
        t, R, X, AD = 206, 136, 160, 172
        B2 = self.V_B2
        a(f"""
        v_lshlrev_b32 v{t}, 4, v0
        s_xor_b32 s{sT0}, s{sLw}, 2
        s_mul_i32 s{sT0}, s{sT0}, 5120
        s_add_u32 s{sT0}, s{sT0}, {SLOT}
        v_add_u32 v{t}, s{sT0}, v{t}
        """)
        for tm in range(5):
            a(f"ds_read_b128 v[{R + 4 * tm}:{R + 4 * tm + 3}], v{t} offset:{tm * 1024}")
        a(f"""
        s_lshl_b32 s{sT1}, s{sWn}, 5
        s_add_u32 s{sT1}, s{sT1}, {16 * kh}
        v_and_b32 v{t + 1}, 15, v0
        v_add_u32 v{t + 1}, s{sT1}, v{t + 1}
        v_mul_u32_u24 v{t + 2}, 160, v{t + 1}
        v_lshrrev_b32 v{t + 3}, 4, v0
        v_lshl_add_u32 v{t + 2}, v{t + 3}, 3, v{t + 2}
        v_add_u32 v{t + 2}, {SCR}, v{t + 2}
        """)
        for tm in range(5):
            a(f"ds_read_b64 v[{X + 2 * tm}:{X + 2 * tm + 1}], v{t + 2} offset:{32 * tm}")
        a(f"""
        s_lshl_b32 s{sT0}, s{sSt}, 6
        v_add_u32 v{t + 1}, s{sT0}, v{t + 1}
        v_mul_u32_u24 v{AD}, 1280, v{t + 1}
        s_mul_i32 s{sT0}, s{sDt}, 160
        v_add_u32 v{AD}, s{sT0}, v{AD}
        v_lshl_add_u32 v{AD}, v{t + 3}, 3, v{AD}
        v_lshlrev_b32 v{AD + 1}, 16, v{B2}
        s_waitcnt lgkmcnt(0)
        """)
        for tm in range(5):
            k = self.F_ACC + 4 * (2 * tm + kh)
            r = R + 4 * tm
            for e in range(4):
                a(f"v_add_f32 v{k + e}, v{k + e}, v{r + e}")
            a(f"""
            v_lshlrev_b32 v{r}, 16, v{X + 2 * tm}
            v_and_b32 v{r + 1}, 0xffff0000, v{X + 2 * tm}
            v_lshlrev_b32 v{r + 2}, 16, v{X + 2 * tm + 1}
            v_and_b32 v{r + 3}, 0xffff0000, v{X + 2 * tm + 1}
            """)
            for e in range(4):
                a(f"v_add_f32 v{k + e}, v{k + e}, v{AD + 1}")
            for e in range(4):
                a(f"v_add_f32 v{k + e}, v{k + e}, v{r + e}")
            a(f"v_cvt_pk_bf16_f32 v{k}, v{k}, v{k + 1}\nv_cvt_pk_bf16_f32 v{k + 1}, v{k + 2}, v{k + 3}")
            a(f"buffer_store_dwordx2 v[{k}:{k + 1}], v{AD}, s[{sOUT}:{sOUT + 3}], 0 offen offset:{32 * tm} " + ("", "sc1", "nt", "sc1 nt")[self.o["outpol"]])

    def c_final(self, a):
        T = 224
        a(f"s_mov_b32 s{sSlot}, 0")
        for c in self.f_addr(False):
            a(c)

        def b2_load():
            a(f"""
            s_lshl_b32 s{sT0}, s{sSt}, 6
            s_lshl_b32 s{sT1}, s{sWn}, 5
            s_add_u32 s{sT0}, s{sT0}, s{sT1}
            s_lshl_b32 s{sT1}, s{sWm}, 4
            s_add_u32 s{sT0}, s{sT0}, s{sT1}
            v_and_b32 v{T}, 15, v0
            v_add_u32 v{T}, s{sT0}, v{T}
            v_lshlrev_b32 v{T}, 1, v{T}
            buffer_load_ushort v{self.V_B2}, v{T}, s[{sB2}:{sB2 + 3}], 0 offen
            """)
        self.f_stage(a, True, False, False, hook=b2_load)
        self.f_stage(a, False, False, False)
        self.f_stage(a, False, False, False)
        self.f_stage(a, False, False, False)
        self.mark(a)
        self.loop(a, 7, lambda: self.f_stage(a, False, False, False))
        self.f_stage(a, False, False, True)
        self.mark(a)
        self.loop(a, 5, lambda: self.f_stage(a, False, True, True))
        self.f_tail(a)
        self.mark(a)
        self.by_scalar(a, sWm, lambda kh: self.f_reduce_write(a, kh))
        a("s_barrier")
        a("s_waitcnt vmcnt(0)")
        self.by_scalar(a, sWm, lambda kh: self.f_epilogue(a, kh))

    def strip_zero(self, fn, lo, hi):
        body = Asm()
        fn(body)
        return [it for it in body.items
                if not (it.mn == "v_mov_b32" and it.ops[0][0] == "v" and it.ops[1] == "0" and lo <= int(it.ops[0][1:]) < hi)]

    def consumer(self, a):
        a("s_waitcnt lgkmcnt(0)")
        self.mark(a)
        lab = a.uid("Lnold")
        a(f"s_cmp_eq_u32 s{sLnOn}, 0\ns_cbranch_scc1 {lab}")
        self.ln_loads(a)
        a.label(lab)
        a(f"""
        v_mov_b32 v1, {SCR_CNT}
        v_mov_b32 v2, 0
        v_mov_b32 v3, 0
        ds_write_b64 v1, v[2:3]
        """)
        a.items += self.strip_zero(lambda b: B.Gen.m_consts(self, b), 64, 128)
        a.items += self.strip_zero(lambda b: B.Gen.f_consts(self, b), 64, 128)
        self.a_addr_consts(a)
        a(f"s_mov_b32 s{sSlot}, 0")
        a.items += self.strip_zero(lambda b: B.Gen.q_consts(self, b), 64, 132)
        self.mark(a)
        lab = a.uid("Lnolc")
        a(f"s_cmp_eq_u32 s{sLnOn}, 0\ns_cbranch_scc1 {lab}")
        self.ln_compute(a)
        a.label(lab)
        a("s_waitcnt lgkmcnt(0)")
        self.mark(a)
        self.c_qkv(a)
        self.mark(a)
        self.c_mix1(a)
        self.mark(a)
        self.mark(a)
        self.attention(a)
        self.mark(a)
        self.c_final(a)
        self.mark(a)

    def build(self):
        name = NAME + "_kernel"
        return B_kernel(name, self.split(name, self.consumer, self.loader))


def B_kernel(name, body):
    return f"""; Sliding-window attention + token-mixer MLP + residual, bf16, S=2048 D=640, one persistent launch.
; @launch grid=(256,1,1) block=(512,1,1) lds={LDS_BYTES}
.amdgcn_target "amdgcn-amd-amdhsa--gfx950"
.text
.globl {name}
.p2align 8
.type {name},@function
{name}:
{body}{name}_code_end:
.set CODE_BYTES, {name}_code_end-{name}
.section .rodata,"a"
.p2align 6
.amdhsa_kernel {name}
  .amdhsa_next_free_vgpr 256
  .amdhsa_next_free_sgpr 102
  .amdhsa_accum_offset 256
  .amdhsa_group_segment_fixed_size 0
  .amdhsa_kernarg_size 88
  .amdhsa_user_sgpr_count 2
  .amdhsa_user_sgpr_kernarg_segment_ptr 1
  .amdhsa_system_sgpr_workgroup_id_x 1
.end_amdhsa_kernel
"""


if __name__ == "__main__":
    mode = sys.argv[1] if len(sys.argv) > 1 else "run"
    path = sys.argv[2] if len(sys.argv) > 2 else f"cdna_kernels/{NAME}.s"
    opts = {}
    for kv in sys.argv[3:]:
        k, val = kv.split("=")
        opts[k] = int(val)
    txt = Fused(diag=(mode == "diag"), opts=opts).build()
    open(path, "w").write(txt)
    print("wrote", path, len(txt), "bytes")
```

```python
import math
import sys

sys.path.insert(0, "tools")
from asmlib import Asm
from gen_base import *
import gen_base as B

OOB = 0x7ff00000
SPIN_MAX = 100000
FL_LN, FL_KV, FL_O, FL_G = 0x1000, 0x1400, 0x1800, 0x8000
SCR_CNT = SCR + 10752
SCR_CS = SCR + 10240
M_RED = 16384
GROW = 144
sPub, sT6 = 79, 85
sKcA, sKcB, sKt, sRq, sRm, sRf, sRw = 9, 10, 11, 12, 13, 14, 15
sBaseA, sBaseB = 16, 17
sLnOn, sLnIdx = 18, 19
sArr, sNon2 = 4, 5


class Fused(Gen):
    A_MF, A_MD, A_KA, A_VA = 2, 18, 34, 36
    F_CA, F_CB, F_CO = 38, 39, 41
    M_CA, M_CB = 45, 47
    V_ST, V_B1, V_B2, V_ARR, V_POLL = 48, 52, 53, 54, 56
    V_DUMMY = 228
    Q_ACC, Q_CS, Q_ONES, Q_BUF, Q_CA, Q_CB, Q_AA, Q_AB = 64, 128, 132, 136, 200, 202, 206, 208
    M_ACC, M_BUF, M_AA, M_AB = 64, 136, 196, 198
    A_Q, A_K, A_V, A_S, A_P, A_O, A_T = 64, 80, 96, 112, 144, 208, 192
    F_ACC, F_BUF, F_AA, F_AB, F_AO = 64, 136, 199, 200, 202

    def __init__(self, diag=False, opts=None):
        super().__init__(fused=True, diag=diag)
        self.o = dict(prefetch=0, tlb=0, lead=3, nt=0, gsleep=4, ldsc1=1, xmap=0, light=0, w1a=1024, rot=22, lngood=0, codepf=0, outpol=0, pfw1=1, pfw2=1, pfw0=1, gsolo=1, lsleep=1, prio=0)
        self.o.update(opts or {})

    def stamp(self, a, k, bump=False):
        if not self.o["light"]:
            super().stamp(a, k, bump)

    def diag_dump(self, a, kidx):
        wg = self.o.get("dbgout")
        if wg is None:
            return super().diag_dump(a, kidx)
        lab = a.uid("Ldbg")
        a(f"""
        s_cmp_lg_u32 s{sWg}, {wg}
        s_cbranch_scc1 {lab}
        s_cmp_lg_u32 s{sWv}, 0
        s_cbranch_scc1 {lab}
        v_readlane_b32 s{sT0}, v{self.DV + 1}, 0
        v_lshlrev_b32 v1, 2, v0
        v_mov_b32 v3, {OOB}
        v_subrev_u32 v2, s{sT0}, v{self.DV + 1}
        v_cmp_gt_u32 vcc, 16, v0
        v_cndmask_b32 v1, v3, v1, vcc
        v_cmp_eq_u32 vcc, 0, v0
        v_cndmask_b32 v1, v1, v3, vcc
        buffer_store_dword v2, v1, s[{sDBG}:{sDBG + 3}], 0 offen
        """)
        a.label(lab)

    def mark(self, a):
        if self.diag and self.o["light"]:
            if self.o.get("rt"):
                a(f"s_memrealtime s[98:99]\ns_mov_b32 m0, s{self.sStg}\ns_waitcnt lgkmcnt(0)\nv_writelane_b32 v{self.DV + 1}, s98, m0\ns_add_u32 s{self.sStg}, s{self.sStg}, 1")
            else:
                B.Gen.stamp(self, a, 1, True)

    SRDS = ((sX, 0, 2048 * 1280), (sW, 8, 640 * 3840), (sWO, 16, 640 * 1280), (sW1, 32, 2048 * 3072),
            (sB1, 40, 1536 * 2), (sW2, 48, 1536 * 4096), (sB2, 56, 2048 * 2), (sOUT, 64, 2048 * 1280),
            (sDBG, 72, 256), (sWS, 80, WS_USED))

    def prologue(self, a, lab):
        a(f"s_cmp_ge_u32 s2, 256\ns_cbranch_scc1 {lab}_end")
        for srd, off, size in self.SRDS:
            a(f"s_load_dwordx2 s[{srd}:{srd + 1}], s[0:1], {off}")
        body = Asm()
        B.Gen.prologue(self, body, lab)
        items = body.items
        first = next(k for k, it in enumerate(items) if it.mn == "v_lshrrev_b32")
        last = next(k for k, it in enumerate(items) if it.mn == "s_waitcnt")
        a.items += items[first:last]
        for srd, off, size in self.SRDS:
            if srd == sWS and self.diag:
                size *= 2
            a(f"s_mov_b32 s{srd + 2}, {size}\ns_mov_b32 s{srd + 3}, 0x00020000")
        if self.o["lngood"]:
            a(f"""
            s_lshr_b32 s{sT0}, s{sWg}, 6
            s_lshr_b32 s{sT1}, s{sWg}, 1
            s_xor_b32 s{sT1}, s{sT1}, s{sT0}
            s_and_b32 s{sT1}, s{sT1}, 1
            s_xor_b32 s{sLnOn}, s{sT1}, 1
            s_and_b32 s{sT1}, s{sWg}, 7
            s_lshl_b32 s{sLnIdx}, s{sT1}, 4
            s_lshr_b32 s{sT0}, s{sT0}, 1
            s_lshl_b32 s{sT0}, s{sT0}, 3
            s_add_u32 s{sLnIdx}, s{sLnIdx}, s{sT0}
            s_lshr_b32 s{sT0}, s{sWg}, 3
            s_and_b32 s{sT0}, s{sT0}, 7
            s_add_u32 s{sLnIdx}, s{sLnIdx}, s{sT0}
            """)
        else:
            a(f"s_mov_b32 s{sLnOn}, 1\ns_mov_b32 s{sLnIdx}, s{sWg}")
        self.rot_consts(a)
        if not self.o["xmap"]:
            return
        a(f"""
        s_and_b32 s{sT0}, s{sWg}, 7
        s_lshr_b32 s{sT1}, s{sWg}, 3
        s_lshl_b32 s{sSt}, s{sT0}, 2
        s_and_b32 s{sT2}, s{sT1}, 3
        s_add_u32 s{sSt}, s{sSt}, s{sT2}
        s_lshr_b32 s{sDt}, s{sT1}, 2
        s_cmp_lt_u32 s{sT1}, 30
        s_cselect_b32 s{sT2}, 0, 30
        s_sub_u32 s{sT1}, s{sT1}, s{sT2}
        s_mul_i32 s{sT2}, s{sT1}, 26
        s_lshr_b32 s{sT2}, s{sT2}, 8
        s_mul_i32 s{sT3}, s{sT2}, 10
        s_sub_u32 s{sDt1}, s{sT1}, s{sT3}
        s_mul_i32 s{sFt}, s{sT0}, 3
        s_add_u32 s{sFt}, s{sFt}, s{sT2}
        """)

    def smod(self, a, r, n, times):
        for _ in range(times):
            a(f"s_cmp_ge_u32 s{r}, {n}\ns_cselect_b32 s{sT5}, {n}, 0\ns_sub_u32 s{r}, s{r}, s{sT5}")

    def rot_consts(self, a):
        if not self.o["rot"]:
            for r in (sRq, sRm, sRf, sRw):
                a(f"s_mov_b32 s{r}, 0")
            return
        a(f"""
        s_lshr_b32 s{sT0}, s{sWg}, 3
        s_and_b32 s{sT1}, s{sT0}, 7
        s_lshr_b32 s{sT2}, s{sT0}, 3
        s_mul_i32 s{sT3}, s{sT2}, 3
        s_add_u32 s{sRq}, s{sT1}, s{sT3}
        s_mul_i32 s{sRf}, s{sT1}, 5
        s_add_u32 s{sRf}, s{sRf}, s{sT3}
        s_lshl_b32 s{sRw}, s{sT2}, 1
        s_add_u32 s{sRw}, s{sRw}, s{sT1}
        s_mul_i32 s{sRm}, s{sFt}, 3
        s_mul_i32 s{sT3}, s{sDt1}, 5
        s_add_u32 s{sRm}, s{sRm}, s{sT3}
        s_and_b32 s{sRm}, s{sRm}, 7
        """)
        self.smod(a, sRq, 10, 1)
        self.smod(a, sRf, 12, 3)
        self.smod(a, sRw, 5, 2)
        for bit, r in ((1, sRq), (2, sRm), (4, sRf), (8, sRw)):
            if not self.o["rot"] & bit:
                a(f"s_mov_b32 s{r}, 0")

    def wrap(self, a, kc, n, offs):
        a(f"s_add_u32 s{kc}, s{kc}, 1\ns_cmp_eq_u32 s{kc}, {n}\ns_cselect_b32 s{kc}, 0, s{kc}")
        for k, (reg, step) in enumerate(offs):
            a(f"s_cselect_b32 s{sT1 + k}, {n * step}, 0")
        for k, (reg, step) in enumerate(offs):
            a(f"s_sub_u32 s{reg}, s{reg}, s{sT1 + k}")

    def lead_order(self, a, n_chunks, period, jreg, offs):
        a(f"""
        s_and_b32 s{sT1}, s{sKt}, {period - 1}
        s_cmp_eq_u32 s{sT1}, s{jreg}
        s_cselect_b32 s{sT2}, 1, 0
        s_cmp_eq_u32 s{sKt}, {n_chunks - 1}
        s_cselect_b32 s{sT2}, 0, s{sT2}
        s_sub_u32 s{sT1}, s{sKt}, 1
        s_and_b32 s{sT1}, s{sT1}, {period - 1}
        s_cmp_eq_u32 s{sT1}, s{jreg}
        s_cselect_b32 s{sT3}, 1, 0
        s_cmp_eq_u32 s{sKt}, 0
        s_cselect_b32 s{sT3}, 0, s{sT3}
        s_add_u32 s{sT2}, s{sT2}, s{sKt}
        s_sub_u32 s{sT2}, s{sT2}, s{sT3}
        s_add_u32 s{sKt}, s{sKt}, 1
        """)
        for reg, base, step in offs:
            a(f"s_mul_i32 s{sT1}, s{sT2}, {step}\ns_add_u32 s{reg}, s{base}, s{sT1}")

    def q_init(self, a):
        super().q_init(a)
        if self.o["rot"] & 16:
            a(f"""
            s_mov_b32 s{sBaseA}, s{sOffA}
            s_mov_b32 s{sBaseB}, s{sOffB}
            s_mov_b32 s{sKt}, 0
            s_lshr_b32 s{sT0}, s{sWg}, 3
            s_lshr_b32 s{sT1}, s{sT0}, 3
            s_add_u32 s{sT0}, s{sT0}, s{sT1}
            s_and_b32 s{sRq}, s{sT0}, 3
            """)
            return
        a(f"""
        s_mov_b32 s{sKcA}, s{sRq}
        s_lshl_b32 s{sT0}, s{sRq}, 7
        s_add_u32 s{sOffA}, s{sOffA}, s{sT0}
        s_mul_i32 s{sT0}, s{sRq}, {64 * 3840}
        s_add_u32 s{sOffB}, s{sOffB}, s{sT0}
        """)

    def q_issue(self, a):
        if self.o["rot"] & 16:
            self.lead_order(a, 10, 4, sRq, [(sOffA, sBaseA, 128), (sOffB, sBaseB, 64 * 3840)])
            super().q_issue(a)
            return
        super().q_issue(a)
        self.wrap(a, sKcA, 10, [(sOffA, 128), (sOffB, 64 * 3840)])

    def m_init(self, a):
        super().m_init(a)
        a(f"""
        s_mov_b32 s{sKcA}, s{sRm}
        s_mov_b32 s{sKt}, 0
        s_mul_i32 s{sT0}, s{sRm}, {128 * 1280}
        s_add_u32 s{sOffA}, s{sOffA}, s{sT0}
        s_mul_i32 s{sT0}, s{sRm}, {128 * 3072}
        s_add_u32 s{sOffB}, s{sOffB}, s{sT0}
        """)

    def m_issue(self, a):
        super().m_issue(a)
        self.wrap(a, sKcA, 8, [(sOffA, 128 * 1280), (sOffB, 128 * 3072)])
        a(f"s_add_u32 s{sKt}, s{sKt}, 1\ns_cmp_eq_u32 s{sKt}, 8")
        a(f"""
        s_cselect_b32 s{sT1}, {8 * 128 * 1280}, 0
        s_cselect_b32 s{sT2}, {8 * 128 * 3072}, 0
        s_add_u32 s{sOffA}, s{sOffA}, s{sT1}
        s_add_u32 s{sOffB}, s{sOffB}, s{sT2}
        """)

    def f_init(self, a):
        super().f_init(a)
        a(f"""
        s_mov_b32 s{sKcA}, s{sRf}
        s_mov_b32 s{sKcB}, s{sRf}
        s_mul_i32 s{sT0}, s{sRf}, {128 * 160}
        s_add_u32 s{sOffA}, s{sOffA}, s{sT0}
        s_mul_i32 s{sT0}, s{sRf}, {128 * 4096}
        s_add_u32 s{sOffB}, s{sOffB}, s{sT0}
        """)

    def f_issue_w2(self, a):
        super().f_issue_w2(a)
        self.wrap(a, sKcB, 12, [(sOffB, 128 * 4096)])

    def f_issue_g(self, a):
        super().f_issue_g(a)
        self.wrap(a, sKcA, 12, [(sOffA, 128 * 160)])

    def wo_init(self, a):
        super().wo_init(a)
        a(f"""
        s_mov_b32 s{sKcA}, s{sRw}
        s_mul_i32 s{sT0}, s{sRw}, {128 * 1280}
        s_add_u32 s{sOffA}, s{sOffA}, s{sT0}
        s_lshl_b32 s{sT0}, s{sRw}, 8
        s_add_u32 s{sOffB}, s{sOffB}, s{sT0}
        """)

    def wo_issue(self, a):
        super().wo_issue(a)
        self.wrap(a, sKcA, 5, [(sOffA, 128 * 1280), (sOffB, 256)])

    def only_w0(self, a, fn):
        lab = a.uid("Lw0")
        a(f"s_cmp_lg_u32 s{sLw}, 0\ns_cbranch_scc1 {lab}")
        fn()
        a.label(lab)

    def nonce_load(self, a):
        a(f"s_load_dword s{sNonce}, s[{sWS}:{sWS + 1}], {WS_EPOCH}")

    def nonce_make(self, a):
        a(f"""
        s_waitcnt lgkmcnt(0)
        s_mul_i32 s{sNonce}, s{sNonce}, 1664525
        s_add_u32 s{sNonce}, s{sNonce}, 1013904223
        """)

    def flag_set(self, a, off):
        a(f"s_atomic_swap s{sNonce}, s[{sWS}:{sWS + 1}], s{off}")

    def poll_issue(self, a, vaddr, n=1):
        r = self.LV_PR
        if n == 1:
            a(f"buffer_load_dword v{r}, v{vaddr}, s[{sWS}:{sWS + 3}], 0 offen sc1")
        else:
            a(f"buffer_load_dwordx4 v[{r}:{r + 3}], v{vaddr}, s[{sWS}:{sWS + 3}], 0 offen sc1")

    def poll_test(self, a, n):
        r = self.LV_PR
        a(f"v_cmp_eq_u32 s[{sT0}:{sT0 + 1}], s{sNonce}, v{r}")
        for k in range(1, n):
            a(f"v_cmp_eq_u32 s[{sT2}:{sT2 + 1}], s{sNonce}, v{r + k}")
            a(f"s_and_b64 s[{sT0}:{sT0 + 1}], s[{sT0}:{sT0 + 1}], s[{sT2}:{sT2 + 1}]")
        a(f"s_cmp_eq_u64 s[{sT0}:{sT0 + 1}], exec")

    def poll_check(self, a, vaddr, n=1, sleep=8):
        ok, sp = a.uid("Lpok"), a.uid("Lspin")
        self.poll_test(a, n)
        a(f"s_cbranch_scc1 {ok}")
        self.spin(a, vaddr, n, ok, sp, sleep)
        a.label(ok)

    def spin(self, a, vaddr, n, ok, sp, sleep):
        a(f"s_mov_b32 s{sT6}, {SPIN_MAX}")
        a.label(sp)
        a(f"s_sleep {sleep}")
        self.poll_issue(a, vaddr, n)
        a("s_waitcnt vmcnt(0)")
        self.poll_test(a, n)
        a(f"s_cbranch_scc1 {ok}")
        a(f"s_sub_u32 s{sT6}, s{sT6}, 1\ns_cmp_lg_u32 s{sT6}, 0\ns_cbranch_scc1 {sp}")

    LV_PLA, LV_PKV, LV_PG, LV_PO, LV_PLB, LV_PR = 14, 15, 16, 17, 18, 24
    LV_P1, LV_P2, LV_DUMMY = 100, 103, 96

    def loader_poll_addrs(self, a):
        t0, t1, t2, t3 = 20, 21, 22, 23
        a(f"""
        v_lshrrev_b32 v{t0}, 4, v0
        v_mov_b32 v{t1}, s{sI}
        v_cmp_eq_u32 vcc, 3, v{t0}
        v_cndmask_b32 v{t0}, v{t0}, v{t1}, vcc
        v_lshlrev_b32 v{t0}, 6, v{t0}
        v_and_b32 v{t1}, 15, v0
        v_lshl_add_u32 v{t0}, v{t1}, 2, v{t0}
        v_add_u32 v{self.LV_PLA}, {FL_LN}, v{t0}
        v_and_b32 v{t0}, {31 if self.o["lngood"] else 63}, v0
        v_lshlrev_b32 v{t0}, 4, v{t0}
        v_add_u32 v{self.LV_PLB}, {FL_LN}, v{t0}
        v_min_u32 v{t0}, 2, v0
        v_sub_u32 v{t0}, s{sI}, v{t0}
        v_max_i32 v{t0}, 0, v{t0}
        s_lshl_b32 s{sT0}, s{sP}, 4
        v_add_u32 v{t0}, s{sT0}, v{t0}
        v_lshlrev_b32 v{t0}, 2, v{t0}
        v_add_u32 v{self.LV_PKV}, {FL_KV}, v{t0}
        v_and_b32 v{t0}, 15, v0
        s_lshr_b32 s{sT0}, s{sSt}, 1
        s_lshl_b32 s{sT0}, s{sT0}, 4
        v_add_u32 v{t0}, s{sT0}, v{t0}
        v_lshlrev_b32 v{t0}, 2, v{t0}
        v_add_u32 v{self.LV_PO}, {FL_O}, v{t0}
        v_min_u32 v{t0}, 47, v0
        v_mul_u32_u24 v{t1}, 2731, v{t0}
        v_lshrrev_b32 v{t1}, 16, v{t1}
        v_mul_u32_u24 v{t2}, 24, v{t1}
        v_sub_u32 v{t2}, v{t0}, v{t2}
        s_mul_i32 s{sT0}, s{sDt}, 80
        s_lshr_b32 s{sT0}, s{sT0}, 6
        v_add_u32 v{t1}, s{sT0}, v{t1}
        v_lshlrev_b32 v{t1}, 2, v{t1}
        v_lshl_add_u32 v{t1}, v{t2}, 6, v{t1}
        s_and_b32 s{sT0}, s{sWg}, 7
        s_mul_i32 s{sT0}, s{sT0}, 1536
        s_add_u32 s{sT0}, s{sT0}, {FL_G}
        v_add_u32 v{self.LV_PG}, s{sT0}, v{t1}
        s_cmp_eq_u32 s{sLw}, 0
        s_cselect_b32 s{sT0}, 0, {OOB}
        """)
        for r in (self.LV_PLA, self.LV_PLB, self.LV_PKV, self.LV_PO, self.LV_PG):
            a(f"v_add_u32 v{r}, s{sT0}, v{r}")

    def loader_prefetch_consts(self, a):
        t0, t1, t2 = 20, 21, 22
        for t in range(3):
            a(f"""
            v_add_u32 v{t0}, {64 * t}, v0
            v_mul_u32_u24 v{t1}, 2731, v{t0}
            v_lshrrev_b32 v{t1}, 16, v{t1}
            v_mul_u32_u24 v{t2}, 24, v{t1}
            v_sub_u32 v{t2}, v{t0}, v{t2}
            v_lshlrev_b32 v{t2}, 4, v{t2}
            v_mul_u32_u24 v{t1}, 3072, v{t1}
            v_add_u32 v{self.LV_P1 + t}, v{t1}, v{t2}
            """)
        a(f"""
        v_lshrrev_b32 v{t0}, 5, v0
        v_lshlrev_b32 v{t0}, 12, v{t0}
        v_and_b32 v{t1}, 31, v0
        v_lshl_add_u32 v{self.LV_P2}, v{t1}, 4, v{t0}
        """)

    def code_prefetch(self, a):
        if not self.o["codepf"]:
            return 0
        d = self.LV_DUMMY
        lab = a.uid("Lpc")
        a(f"s_getpc_b64 s[{sT2}:{sT2 + 1}]")
        a.label(lab)
        a(f"""
        s_lshr_b32 s{sT0}, s{sWg}, 3
        s_lshl_b32 s{sT0}, s{sT0}, 10
        s_lshl_b32 s{sT1}, s{sLw}, 15
        s_add_u32 s{sT0}, s{sT0}, s{sT1}
        v_lshl_add_u32 v20, v0, 4, s{sT0}
        s_sub_u32 s{sT2}, s{sT2}, {lab}-{NAME}_kernel
        s_subb_u32 s{sT2 + 1}, s{sT2 + 1}, 0
        v_min_u32 v20, CODE_BYTES-16, v20
        v_mov_b32 v21, s{sT2 + 1}
        v_add_co_u32 v20, vcc, s{sT2}, v20
        v_addc_co_u32 v21, vcc, 0, v21, vcc
        global_load_dwordx4 v[{d}:{d + 3}], v[20:21], off
        """)
        return 1

    def tlb_touch(self, a):
        if not self.o["tlb"]:
            return 0
        d = self.LV_DUMMY
        a(f"v_lshlrev_b32 v20, 21, v0")
        for srd in (sW1, sW2, sWS, sWO, sOUT):
            a(f"buffer_load_dword v{d}, v20, s[{srd}:{srd + 3}], 0 offen")
        return 5

    def pf_range(self, a, srd, start, nbytes):
        d = self.LV_DUMMY
        share = nbytes // 256
        per_wave = -(-share // 4096)
        a(f"""
        s_mul_i32 s{sT0}, s{sWg}, {share}
        s_mul_i32 s{sT1}, s{sLw}, {per_wave * 1024}
        s_add_u32 s{sT0}, s{sT0}, s{sT1}
        s_add_u32 s{sT0}, s{sT0}, {start}
        """)
        for k in range(per_wave):
            a(f"buffer_load_dwordx4 v[{d}:{d + 3}], v{self.LV_LIN}, s[{srd}:{srd + 3}], s{sT0} offen offset:{(k % 4) * 1024}")
            if k % 4 == 3:
                a(f"s_add_u32 s{sT0}, s{sT0}, 4096")
        return per_wave

    def pf_w1(self, a):
        if not self.o["prefetch"]:
            return 0
        d = self.LV_DUMMY
        a(f"""
        s_lshr_b32 s{sT0}, s{sWg}, 3
        s_lshl_b32 s{sT0}, s{sT0}, 6
        s_lshl_b32 s{sT1}, s{sLw}, 4
        s_add_u32 s{sT0}, s{sT0}, s{sT1}
        s_mul_i32 s{sT0}, s{sT0}, 3072
        s_and_b32 s{sT1}, s{sWg}, 7
        s_mul_i32 s{sT1}, s{sT1}, 384
        s_add_u32 s{sT0}, s{sT0}, s{sT1}
        """)
        for k in range(6):
            if k == 3:
                a(f"s_add_u32 s{sT0}, s{sT0}, {8 * 3072}")
            a(f"buffer_load_dwordx4 v[{d}:{d + 3}], v{self.LV_P1 + k % 3}, s[{sW1}:{sW1 + 3}], s{sT0} offen nt")
        return 6

    def pf_w2(self, a):
        if not self.o["prefetch"]:
            return 0
        d = self.LV_DUMMY
        a(f"""
        s_lshr_b32 s{sT0}, s{sWg}, 3
        s_mul_i32 s{sT0}, s{sT0}, 48
        s_mul_i32 s{sT1}, s{sLw}, 12
        s_add_u32 s{sT0}, s{sT0}, s{sT1}
        s_lshl_b32 s{sT0}, s{sT0}, 12
        s_and_b32 s{sT1}, s{sWg}, 7
        s_lshl_b32 s{sT1}, s{sT1}, 9
        s_add_u32 s{sT0}, s{sT0}, s{sT1}
        """)
        for k in range(6):
            a(f"buffer_load_dwordx4 v[{d}:{d + 3}], v{self.LV_P2}, s[{sW2}:{sW2 + 3}], s{sT0} offen nt")
            a(f"s_add_u32 s{sT0}, s{sT0}, 8192")
        return 6

    def dma(self, a, srd, voff, soff, add, lds_add, dep=False):
        if self.o.get("fakeh") and voff == self.LV_H:
            a(f"""
            s_add_u32 m0, s{sSW}, {lds_add}
            s_add_u32 s{sT0}, s{soff}, {add - WS_H}
            buffer_load_dwordx4 v{voff}, s[{sX}:{sX + 3}], s{sT0} offen lds
            """)
            return
        pol = ("sc1 " if self.o["ldsc1"] else "") if dep else ("nt " if (srd in (sW1, sW2) and self.o["nt"]) else "")
        a(f"""
        s_add_u32 m0, s{sSW}, {lds_add}
        s_add_u32 s{sT0}, s{soff}, {add}
        buffer_load_dwordx4 v{voff}, s[{srd}:{srd + 3}], s{sT0} offen {pol}lds
        """)

    def lds_spin(self, a, word, target):
        ok, sp = a.uid("Llok"), a.uid("Llspin")
        r = self.LV_PR
        a(f"v_mov_b32 v{r + 1}, {SCR_CNT + 4 * word}\ns_mov_b32 s{sT6}, {SPIN_MAX}")
        a.label(sp)
        a(f"""
        ds_read_b32 v{r}, v{r + 1}
        s_waitcnt lgkmcnt(0)
        v_readfirstlane_b32 s{sT0}, v{r}
        s_cmp_ge_u32 s{sT0}, {target}
        s_cbranch_scc1 {ok}
        s_sleep {self.o["lsleep"]}
        s_sub_u32 s{sT6}, s{sT6}, 1
        s_cmp_lg_u32 s{sT6}, 0
        s_cbranch_scc1 {sp}
        """)
        a.label(ok)

    LN_RAW, LN_F, LN_OFF = 64, 76, 100

    def ln_passes(self):
        return 2 if self.o["lngood"] else 1

    def ln_loads(self, a):
        off = self.LN_OFF
        n = self.ln_passes()
        a(f"""
        s_mul_i32 s{sT0}, s{sLnIdx}, {8 * n}
        s_mul_i32 s{sT1}, s{sLw}, {2 * n}
        s_add_u32 s{sT0}, s{sT0}, s{sT1}
        v_lshrrev_b32 v{off + 1}, 5, v0
        v_add_u32 v{off + 1}, s{sT0}, v{off + 1}
        v_and_b32 v{off + 2}, 31, v0
        v_lshlrev_b32 v{off + 2}, 3, v{off + 2}
        v_mul_u32_u24 v{off}, 1280, v{off + 1}
        v_add_u32 v{off}, v{off}, v{off + 2}
        """)
        for ps in range(n):
            raw = self.LN_RAW + 54 * ps
            for j in range(5):
                a(f"buffer_load_dwordx2 v[{raw + 2 * j}:{raw + 2 * j + 1}], v{off}, s[{sX}:{sX + 3}], 0 offen offset:{2560 * ps + 256 * j}")

    def ln_compute(self, a):
        for ps in range(self.ln_passes()):
            self.ln_pass(a, ps)

    def ln_pass(self, a, ps):
        raw, f, off = self.LN_RAW + 54 * ps, self.LN_F, self.LN_OFF
        acc, t, sc, keep = 104, 108, 112, 116
        P = lambda r: f"v[{r}:{r + 1}]"

        def unpack():
            for d in range(10):
                a(f"v_lshlrev_b32 v{f + 2 * d}, 16, v{raw + d}\nv_and_b32 v{f + 2 * d + 1}, s{sT3}, v{raw + d}")

        def stats():
            a(f"v_pk_add_f32 {P(acc)}, {P(f)}, {P(f + 2)}\nv_pk_mul_f32 {P(acc + 2)}, {P(f)}, {P(f)}")
            a(f"v_pk_fma_f32 {P(acc + 2)}, {P(f + 2)}, {P(f + 2)}, {P(acc + 2)}")
            for d in range(2, 10):
                a(f"v_pk_add_f32 {P(acc)}, {P(acc)}, {P(f + 2 * d)}")
                a(f"v_pk_fma_f32 {P(acc + 2)}, {P(f + 2 * d)}, {P(f + 2 * d)}, {P(acc + 2)}")
            a(f"v_add_f32 v{acc}, v{acc}, v{acc + 1}\nv_add_f32 v{acc + 2}, v{acc + 2}, v{acc + 3}\nv_nop")
            for r in (8, 4, 2, 1):
                a(f"v_add_f32_dpp v{acc}, v{acc}, v{acc} row_ror:{r} row_mask:0xf bank_mask:0xf")
                a(f"v_add_f32_dpp v{acc + 2}, v{acc + 2}, v{acc + 2} row_ror:{r} row_mask:0xf bank_mask:0xf")
                a("v_nop")
            a(f"""
            v_mov_b32 v{t}, v{acc}
            v_mov_b32 v{t + 1}, v{acc}
            v_mov_b32 v{t + 2}, v{acc + 2}
            v_mov_b32 v{t + 3}, v{acc + 2}
            v_permlane16_swap_b32 v{t}, v{t + 1}
            v_permlane16_swap_b32 v{t + 2}, v{t + 3}
            v_add_f32 v{acc}, v{t}, v{t + 1}
            v_add_f32 v{acc + 2}, v{t + 2}, v{t + 3}
            v_mul_f32 v{acc}, {f32(1 / 640)}, v{acc}
            v_mov_b32 v{t}, {f32(1e-5)}
            v_fmac_f32 v{t}, {f32(1 / 640)}, v{acc + 2}
            v_fma_f32 v{t}, -v{acc}, v{acc}, v{t}
            v_max_f32 v{t}, {f32(1e-5)}, v{t}
            v_rsq_f32 v{sc}, v{t}
            v_mul_f32 v{sc + 1}, v{acc}, v{sc}
            """)

        def scale_pack(dst):
            for d in range(10):
                a(f"v_pk_fma_f32 {P(f + 2 * d)}, {P(f + 2 * d)}, {P(sc)}, {P(sc)} op_sel:[0,0,1] op_sel_hi:[1,0,1] neg_lo:[0,0,1] neg_hi:[0,0,1]")
            for d in range(10):
                a(f"v_cvt_pk_bf16_f32 v{dst + d}, v{f + 2 * d}, v{f + 2 * d + 1}")

        a(f"s_mov_b32 s{sT3}, 0xffff0000\ns_waitcnt vmcnt({5 * (self.ln_passes() - 1 - ps)})")
        unpack()
        stats()
        H = self.LN_H + 14 * ps
        a(f"v_mov_b32 v{H + 10}, v{acc}\nv_mov_b32 v{H + 11}, v{sc}")
        scale_pack(raw)
        unpack()
        stats()
        scale_pack(H)
        a(f"""
        v_add_u32 v{H + 12}, {WS_H + 2560 * ps}, v{off}
        v_lshlrev_b32 v{off + 4}, 3, v{off + 1}
        v_add_u32 v{off + 4}, {WS_STATS + 16 * ps}, v{off + 4}
        v_and_b32 v{off + 2}, 31, v0
        v_mov_b32 v{off + 3}, {OOB}
        v_cmp_eq_u32 vcc, 0, v{off + 2}
        v_cndmask_b32 v{H + 13}, v{off + 3}, v{off + 4}, vcc
        """)

    LN_H = 212

    def ln_stores(self, a):
        lab = a.uid("Lnoln")
        a(f"s_cmp_eq_u32 s{sLnOn}, 0\ns_cbranch_scc1 {lab}")
        for ps in range(self.ln_passes()):
            H = self.LN_H + 14 * ps
            for j in range(5):
                a(f"buffer_store_dwordx2 v[{H + 2 * j}:{H + 2 * j + 1}], v{H + 12}, s[{sWS}:{sWS + 3}], 0 offen offset:{256 * j} sc1")
            a(f"buffer_store_dwordx2 v[{H + 10}:{H + 11}], v{H + 13}, s[{sWS}:{sWS + 3}], 0 offen sc1")
        a.label(lab)

    def loader_consts_first(self, a):
        X, W, LIN = self.LV_X, self.LV_W, self.LV_LIN
        t0, t1, t2, t3 = 20, 21, 22, 23
        a(f"""
        v_lshrrev_b32 v{t0}, 3, v0
        v_and_b32 v{t1}, 7, v0
        v_lshrrev_b32 v{t2}, 1, v{t0}
        s_and_b32 s{sT0}, s{sLw}, 1
        s_lshl_b32 s{sT0}, s{sT0}, 2
        v_or_b32 v{t3}, s{sT0}, v{t2}
        v_xor_b32 v{t3}, v{t3}, v{t1}
        v_lshlrev_b32 v{t3}, 4, v{t3}
        v_mul_u32_u24 v{X}, 1280, v{t0}
        v_add_u32 v{X}, v{X}, v{t3}
        v_lshlrev_b32 v{LIN}, 4, v0
        v_lshrrev_b32 v{t0}, 4, v0
        v_and_b32 v{t1}, 15, v0
        v_lshlrev_b32 v{t2}, 2, v{t0}
        v_xor_b32 v{t2}, v{t2}, v{t1}
        v_min_u32 v{t2}, 14, v{t2}
        v_mul_u32_u24 v{t3}, 52, v{t2}
        v_lshrrev_b32 v{t3}, 8, v{t3}
        v_mul_u32_u24 v{W}, 5, v{t3}
        v_sub_u32 v{W}, v{t2}, v{W}
        v_lshlrev_b32 v{W}, 4, v{W}
        v_mul_u32_u24 v{t3}, 1280, v{t3}
        v_add_u32 v{W}, v{W}, v{t3}
        v_mul_u32_u24 v{t3}, 3840, v{t0}
        v_add_u32 v{W}, v{W}, v{t3}
        """)

    def fake_w(self, a):
        if not self.o.get("fakew"):
            return
        W = self.LV_W
        a(f"""
        v_lshrrev_b32 v20, 4, v0
        v_and_b32 v21, 15, v0
        v_lshlrev_b32 v22, 2, v20
        v_xor_b32 v22, v22, v21
        v_lshlrev_b32 v22, 4, v22
        v_mul_u32_u24 v{W}, 3840, v20
        v_add_u32 v{W}, v{W}, v22
        s_min_u32 s{sT0}, s{sP}, 14
        s_mul_i32 s{sT0}, s{sT0}, 256
        s_mul_i32 s{sT1}, s{sP}, 80
        s_sub_u32 s{sT0}, s{sT0}, s{sT1}
        v_add_u32 v{W}, s{sT0}, v{W}
        """)

    def xt_issue(self, a):
        a(f"""
        s_lshl_b32 s{sT1}, s{sSt}, 6
        s_lshr_b32 s{sT2}, s{sLw}, 1
        s_lshl_b32 s{sT3}, s{sT2}, 5
        s_add_u32 s{sT1}, s{sT1}, s{sT3}
        s_mul_i32 s{sT1}, s{sT1}, 1280
        s_mul_i32 s{sT3}, s{sDt}, 160
        s_add_u32 s{sT1}, s{sT1}, s{sT3}
        s_mul_i32 s{sT2}, s{sT2}, 5120
        s_add_u32 s{sT2}, s{sT2}, {SCR}
        s_and_b32 s{sT3}, s{sLw}, 1
        """)

        def path(par):
            for t in ((0, 1, 2) if par == 0 else (3, 4, 4)):
                a(f"""
                s_add_u32 m0, s{sT2}, {t * 1024}
                s_nop 0
                buffer_load_dwordx4 v{self.LV_WO + t}, s[{sX}:{sX + 3}], s{sT1} offen lds
                """)
        self.by_scalar(a, sT3, path)

    def loader(self, a):
        W = lambda n: self.wait_bar(a, n)

        def Wchk(n, chk):
            self.stamp(a, 0)
            a(f"s_waitcnt vmcnt({n})")
            self.only_w0(a, chk)
            self.stamp(a, 1)
            a("s_barrier")
            self.stamp(a, 2, bump=True)
        self.loader_consts_first(a)
        self.fake_w(a)
        a(f"s_mov_b32 s{sSlot}, 0")
        self.q_init(a)
        a("s_waitcnt lgkmcnt(0)")
        self.mark(a)
        self.q_issue(a)
        nT = self.tlb_touch(a) + self.code_prefetch(a)
        self.nonce_load(a)
        self.loader_consts(a)
        self.fake_w(a)
        self.loader_poll_addrs(a)
        self.nonce_make(a)
        lead = self.o["lead"]
        self.q_issue(a)
        if lead == 3:
            self.q_issue(a)
        self.mark(a)
        L = 8 * (lead - 1)
        n0 = self.pf_range(a, sW1, 0, 1024 * 3072) if self.o["pfw0"] else 0
        W(L + n0 + (0 if lead == 3 else nT)); self.q_issue(a)
        self.mark(a)
        W(L + n0); self.q_issue(a)
        W(L + (n0 if lead == 3 else 0))

        def ln_done():
            skip = a.uid("Llnoff")
            a(f"s_cmp_eq_u32 s{sLnOn}, 0\ns_cbranch_scc1 {skip}")
            a(f"s_lshl_b32 s{sT4}, s{sLnIdx}, 2\ns_add_u32 s{sT4}, s{sT4}, {FL_LN}")
            self.flag_set(a, sT4)
            a.label(skip)
            a(f"s_mov_b32 s{sArr}, 1\ns_atomic_add s{sArr}, s[{sDBG}:{sDBG + 1}], 0x0 glc")
        self.only_w0(a, ln_done)
        self.q_issue(a)
        W(L); self.q_issue(a)
        W(L); self.q_issue(a)
        W(L); self.q_issue(a)
        W(L)
        self.poll_issue(a, self.LV_PLB, 4)
        chk = lambda: self.poll_check(a, self.LV_PLB, 4)
        if lead == 2:
            self.q_issue(a)
            W(9)
            self.q_issue(a)
            Wchk(8, chk)
            self.m_init(a)
            self.m_issue(a)
            W(8); self.m_issue(a)
            self.m_issue(a)
        else:
            self.q_issue(a)
            W(17)
            Wchk(8, chk)
            self.m_init(a)
            self.m_issue(a)
            W(8); self.m_issue(a)
            self.m_issue(a)
        self.mark(a)
        n1b = self.pf_range(a, sW1, 1024 * 3072, 1024 * 3072) if self.o["pfw1"] else 0
        if self.o.get("touch"):
            n1b += self.pf_range(a, sWS, WS_GT, 8 * 1536 * 160)
            n1b += self.pf_range(a, sWS, WS_O, 2048 * 1280)
        a("s_barrier")
        a("s_barrier")
        self.kv_copy_out(a)

        def ln_all():
            lab = a.uid("Lep")
            a(f"s_waitcnt lgkmcnt(0)\ns_cmp_lg_u32 s{sArr}, 255\ns_cbranch_scc1 {lab}")
            a(f"s_mov_b32 s{sT4}, {WS_EPOCH}")
            self.flag_set(a, sT4)
            a.label(lab)
        Wchk(22 + n1b, ln_all)
        self.m_issue(a)
        W(22 + n1b); self.m_issue(a)
        W(16)

        def kv_done():
            a(f"""
            s_lshl_b32 s{sT4}, s{sP}, 4
            s_add_u32 s{sT4}, s{sT4}, s{sI}
            s_lshl_b32 s{sT4}, s{sT4}, 2
            s_add_u32 s{sT4}, s{sT4}, {FL_KV}
            """)
            self.flag_set(a, sT4)
        self.only_w0(a, kv_done)
        self.m_issue(a)
        self.loop(a, 7, lambda: (W(16), self.m_issue(a)))
        W(16)
        self.poll_issue(a, self.LV_PKV)
        self.m_issue(a)
        W(17); self.m_issue(a)
        W(17); self.m_issue(a)
        Wchk(16, lambda: self.poll_check(a, self.LV_PKV))
        self.kv_init(a)
        self.kv_issue(a, 0, 9)
        W(17)
        self.kv_issue(a, 9, 16)
        W(16)
        self.f_init(a)
        a(f"s_mov_b32 s{sSlot}, 0")
        a("s_barrier")
        W(0)
        self.mark(a)
        solo = self.o["gsolo"]
        if not solo:
            self.g_copy_out(a)
            a(f"""
            s_waitcnt vmcnt(0)
            v_mov_b32 v20, {SCR_CNT}
            v_mov_b32 v21, 1
            s_mov_b32 exec_hi, 0
            s_mov_b32 exec_lo, 1
            ds_add_u32 v20, v21
            s_mov_b64 exec, -1
            """)
        self.mark(a)

        def g_pub():
            if solo:
                self.g_copy_out_solo(a)
                a(f"v_mov_b32 v20, {SCR_CNT}\nv_mov_b32 v21, 4\nds_write_b32 v20, v21\ns_waitcnt vmcnt(0)")
            else:
                self.lds_spin(a, 0, 4)
            skip = a.uid("Lgidle")
            a(f"s_cmp_eq_u32 s{sM1On}, 0\ns_cbranch_scc1 {skip}")
            a(f"""
            s_lshl_b32 s{sT4}, s{sFt}, 6
            s_lshl_b32 s{sT5}, s{sDt1}, 2
            s_add_u32 s{sT4}, s{sT4}, s{sT5}
            s_add_u32 s{sT4}, s{sT4}, {FL_G}
            """)
            for r in range(8):
                self.flag_set(a, sT4)
                if r < 7:
                    a(f"s_add_u32 s{sT4}, s{sT4}, 1536")
            a.label(skip)
        self.only_w0(a, g_pub)
        self.lds_spin(a, 0, 4)
        self.mark(a)
        if self.o["pfw2"]:
            self.pf_range(a, sW2, 0, 1536 * 4096)
            self.pf_range(a, sWO, 0, 640 * 1280)
        self.slot_begin(a)
        self.f_issue_w2(a)
        a(f"s_add_u32 s{sSW}, s{sSW}, {SLOT}")
        self.f_issue_w2(a)

        def g_sync():
            ok, sp = a.uid("Lgok"), a.uid("Lgspin")
            self.spin(a, self.LV_PG, 1, ok, sp, self.o["gsleep"])
            a.label(ok)
            a(f"v_mov_b32 v20, {SCR_CNT + 4}\nv_mov_b32 v21, 1\nds_write_b32 v20, v21")
        self.mark(a)
        self.only_w0(a, g_sync)
        self.mark(a)
        self.lds_spin(a, 1, 1)
        self.slot_begin(a)
        self.f_issue_g(a)
        a(f"s_add_u32 s{sSW}, s{sSW}, {SLOT}")
        self.f_issue_g(a)
        a(f"s_mov_b32 s{sSlot}, {2 * SLOT}")
        W(5)
        self.mark(a)
        self.f_issue(a); self.f_issue(a)
        self.o_copy_out(a)
        W(21)
        self.f_issue(a)
        W(21); self.f_issue(a)
        W(18)

        def o_done():
            a(f"""
            s_lshl_b32 s{sT4}, s{sI}, 4
            s_add_u32 s{sT4}, s{sT4}, s{sP}
            s_lshl_b32 s{sT4}, s{sT4}, 2
            s_add_u32 s{sT4}, s{sT4}, {FL_O}
            """)
            self.flag_set(a, sT4)
        self.only_w0(a, o_done)
        self.f_issue(a)
        self.xt_issue(a)
        W(21); self.f_issue(a)
        W(21); self.f_issue(a)
        W(21)
        self.poll_issue(a, self.LV_PO)
        self.f_issue(a)
        W(19); self.f_issue(a)
        W(19); self.f_issue(a)
        Wchk(18, lambda: self.poll_check(a, self.LV_PO))
        self.wo_init(a)
        self.wo_issue(a)
        self.loop(a, 4, lambda: (W(18), self.wo_issue(a)))
        W(18); W(9); W(0)
        a("s_barrier")

    def m_consts(self, a):
        t0, t1, t2, t3, t4 = 190, 191, 192, 193, 194
        saved = (self.M_ACC,)
        super().m_consts(a)

    def zero(self, a, r0, n):
        for r in reversed(range(r0, r0 + n)):
            a(f"v_mov_b32 v{r}, 0")

    def a_consts(self, a, zero_o=True):
        super().a_consts(a)

    def q_reads(self, ks, b=None):
        base = self.Q_BUF + 16 * ks
        out = []
        for tm in range(2):
            for rd in range(2):
                out.append(f"ds_read_b64_tr_b16 v[{base + 4 * tm + 2 * rd}:{base + 4 * tm + 2 * rd + 1}], v{self.Q_AA + tm} offset:{(16 * ks + 4 * rd) * 256}")
        for tn in range(2):
            out.append(f"ds_read_b128 v[{base + 8 + 4 * tn}:{base + 11 + 4 * tn}], v{self.Q_AB + ks} offset:{tn * 4096}")
        return out

    @staticmethod
    def czero(mf):
        return [m.rsplit(",", 1)[0] + ", 0" for m in mf]

    def q_group(self, ks, wn):
        base = self.Q_BUF + 16 * ks
        cs, on = self.Q_CS, self.Q_ONES
        return self.q_mfmas(ks) + [f"v_mfma_f32_16x16x32_bf16 v[{cs}:{cs + 3}], v[{base + 4 * wn}:{base + 4 * wn + 3}], v[{on}:{on + 3}], v[{cs}:{cs + 3}]"]

    def q_addr(self):
        return ([f"v_add_u32 v{self.Q_AA + tm}, s{sSlot}, v{self.Q_CA + tm}" for tm in range(2)] +
                [f"v_add_u32 v{self.Q_AB + ks}, s{sSlot}, v{self.Q_CB + ks}" for ks in range(4)])

    def q_stage(self, a, wn, first, hook=None, pre=None):
        if pre:
            pre()
        self.cbar(a)
        if hook:
            hook()
        r01 = self.q_reads(0) + self.q_reads(1)
        if first:
            for r in r01:
                a(r)
        else:
            self.spread(a, self.q_group(3, wn), r01)
        a("s_waitcnt lgkmcnt(6)")
        g0 = self.q_group(0, wn)
        self.spread(a, self.czero(g0) if first else g0, self.q_reads(2))
        a("s_waitcnt lgkmcnt(6)")
        self.spread(a, self.q_group(1, wn), self.q_reads(3))
        self.slot_next(a)
        a("s_waitcnt lgkmcnt(6)")
        g2 = self.q_group(2, wn)
        self.spread(a, g2[4:] + g2[:4], self.q_addr())
        a("s_waitcnt lgkmcnt(0)")
        if self.o.get("qmarks"):
            self.mark(a)

    @staticmethod
    def spread(a, mf, other):
        n = len(mf)
        k = 0
        for i, m in enumerate(mf):
            a(m)
            upto = -(-(len(other) * (i + 1)) // n)
            for r in other[k:upto]:
                a(r)
            k = upto

    QE_C, QE_AB, QE_T = 136, 168, 176

    def q_epilogue_pre(self, a):
        AB, T = self.QE_AB, self.QE_T + 2
        ST = self.V_ST
        a(f"""
        v_lshrrev_b32 v{T}, 5, v0
        v_lshlrev_b32 v{T + 1}, 4, v{T}
        s_lshl_b32 s{sT0}, s{sWm}, 8
        s_add_u32 s{sT0}, s{sT0}, {SCR_CS}
        v_add_u32 v{T + 1}, s{sT0}, v{T + 1}
        s_lshl_b32 s{sT1}, s{sWn}, 6
        v_and_b32 v{T + 2}, 31, v0
        v_add_u32 v{T + 2}, s{sT1}, v{T + 2}
        v_lshlrev_b32 v{T}, 3, v{T}
        v_mul_u32_u24 v{T + 3}, 80, v{T + 2}
        v_add_u32 v{T + 3}, v{T + 3}, v{T}
        v_add_u32 v{T + 3}, {SCR}, v{T + 3}
        v_mul_u32_u24 v{T + 4}, {KVROW}, v{T + 2}
        v_add_u32 v{T + 4}, v{T + 4}, v{T}
        v_add_u32 v{T + 4}, {SLOT}, v{T + 4}
        s_waitcnt vmcnt(0)
        """)
        for tn in range(2):
            m_, r_ = ST + 2 * tn, ST + 2 * tn + 1
            o = AB + 4 * tn
            a(f"""
            v_mov_b32 v{o}, v{r_}
            v_mul_f32 v{o + 1}, v{m_}, v{r_}
            v_mul_f32 v{o + 2}, {f32(QSCALE)}, v{r_}
            v_mul_f32 v{o + 3}, {f32(QSCALE)}, v{o + 1}
            """)

    def q_epilogue(self, a, wm):
        C, AB, T = self.QE_C, self.QE_AB, self.QE_T + 2
        for tm in range(2):
            for q in range(4):
                r = C + 16 * tm + 4 * q
                a(f"ds_read_b128 v[{r}:{r + 3}], v{T + 1} offset:{tm * 128 + q * 32}")
        for tn in range(2):
            for tm in range(2):
                acc = self.Q_ACC + 16 * (2 * tm + tn)
                for q in range(4):
                    Q0 = 16 * wm + 8 * tm + 2 * q
                    if Q0 == 30:
                        continue
                    o = AB + 4 * tn + (2 if Q0 < 10 else 0)
                    for y in (acc + 4 * q, acc + 4 * q + 2):
                        a(f"v_pk_mul_f32 v[{y}:{y + 1}], v[{y}:{y + 1}], v[{o}:{o + 1}] op_sel_hi:[1,0]")
        a("s_waitcnt lgkmcnt(0)")
        for tn in range(2):
            for tm in range(2):
                acc = self.Q_ACC + 16 * (2 * tm + tn)
                quads = []
                for q in range(4):
                    Q0 = 16 * wm + 8 * tm + 2 * q
                    quads.append((Q0, AB + 4 * tn + (2 if Q0 < 10 else 0), C + 16 * tm + 4 * q, acc + 4 * q))
                live = [t for t in quads if t[0] != 30]
                for Q0, o, c, x in live:
                    for hf in range(2):
                        y = x + 2 * hf
                        a(f"v_pk_fma_f32 v[{y}:{y + 1}], v[{c + 2 * hf}:{c + 2 * hf + 1}], v[{o}:{o + 1}], v[{y}:{y + 1}] op_sel:[0,1,0] op_sel_hi:[1,1,1] neg_lo:[1,0,0] neg_hi:[1,0,0]")
                for Q0, o, c, x in live:
                    a(f"v_cvt_pk_bf16_f32 v{x}, v{x}, v{x + 1}")
                for Q0, o, c, x in live:
                    a(f"v_cvt_pk_bf16_f32 v{x + 1}, v{x + 2}, v{x + 3}")
                for Q0, o, c, x in quads:
                    if Q0 == 30:
                        a(f"v_mov_b32 v{x}, 0x00003f80\nv_mov_b32 v{x + 1}, 0")
                        a(f"""
                        s_mov_b32 exec_hi, 0
                        ds_write_b64 v{T + 4}, v[{x}:{x + 1}] offset:{tn * 32 * KVROW + 160}
                        s_mov_b64 exec, -1
                        """)
                    elif Q0 < 10:
                        a(f"ds_write_b64 v{T + 3}, v[{x}:{x + 1}] offset:{tn * 32 * 80 + Q0 * 8}")
                    else:
                        a(f"ds_write_b64 v{T + 4}, v[{x}:{x + 1}] offset:{tn * 32 * KVROW + (Q0 - 10) * 8}")
        a("s_waitcnt lgkmcnt(0)")

    def kv_copy_out(self, a):
        R, T = 32, 28
        a(f"""
        v_lshlrev_b32 v{T}, 4, v0
        s_lshl_b32 s{sT0}, s{sLw}, 10
        v_add_u32 v{T}, s{sT0}, v{T}
        v_add_u32 v{T + 1}, {SLOT}, v{T}
        s_lshl_b32 s{sT1}, s{sP}, 11
        s_lshl_b32 s{sT2}, s{sI}, 7
        s_add_u32 s{sT1}, s{sT1}, s{sT2}
        s_mul_i32 s{sT1}, s{sT1}, {KVROW}
        s_add_u32 s{sT1}, s{sT1}, {WS_KV}
        v_add_u32 v{T + 2}, s{sT1}, v{T}
        s_cmp_eq_u32 s{sLw}, 0
        s_cselect_b32 s{sT2}, 0, {OOB}
        v_add_u32 v{T + 3}, s{sT2}, v{T + 2}
        """)
        for k in range(6):
            a(f"ds_read_b128 v[{R + 4 * k}:{R + 4 * k + 3}], v{T + 1} offset:{k * 4096}")
        for k in range(6):
            a(f"s_waitcnt lgkmcnt({5 - k})")
            a(f"s_mov_b32 s{sT0}, {k * 4096}")
            a(f"buffer_store_dwordx4 v[{R + 4 * k}:{R + 4 * k + 3}], v{T + (3 if k == 5 else 2)}, s[{sWS}:{sWS + 3}], s{sT0} offen sc1")

    def q_csum_write(self, a):
        t0, t1 = 176, 177
        cs = self.Q_CS
        a(f"""
        v_and_b32 v{t0}, 1, v0
        v_lshlrev_b32 v{t0}, 6, v{t0}
        v_lshrrev_b32 v{t1}, 4, v0
        v_lshl_add_u32 v{t0}, v{t1}, 4, v{t0}
        s_lshl_b32 s{sT0}, s{sWm}, 8
        s_lshl_b32 s{sT1}, s{sWn}, 7
        s_add_u32 s{sT0}, s{sT0}, s{sT1}
        s_add_u32 s{sT0}, s{sT0}, {SCR_CS}
        v_add_u32 v{t0}, s{sT0}, v{t0}
        v_and_b32 v{t1}, 14, v0
        v_cmp_eq_u32 vcc, 0, v{t1}
        s_and_saveexec_b64 s[{sEx}:{sEx + 1}], vcc
        ds_write_b128 v{t0}, v[{cs}:{cs + 3}]
        s_mov_b64 exec, s[{sEx}:{sEx + 1}]
        s_waitcnt lgkmcnt(0)
        """)

    def c_qkv(self, a):
        T = 212
        for c in self.q_addr():
            a(c)

        def stats():
            ST = self.V_ST
            a(f"""
            s_lshl_b32 s{sT0}, s{sI}, 7
            s_lshl_b32 s{sT1}, s{sWn}, 6
            s_add_u32 s{sT0}, s{sT0}, s{sT1}
            v_and_b32 v{T + 1}, 31, v0
            v_add_u32 v{T + 1}, s{sT0}, v{T + 1}
            v_lshlrev_b32 v{T + 1}, 3, v{T + 1}
            v_add_u32 v{T + 1}, {WS_STATS}, v{T + 1}
            buffer_load_dwordx2 v[{ST}:{ST + 1}], v{T + 1}, s[{sWS}:{sWS + 3}], 0 offen sc1
            buffer_load_dwordx2 v[{ST + 2}:{ST + 3}], v{T + 1}, s[{sWS}:{sWS + 3}], 0 offen offset:256 sc1
            """)

        def run(wn):
            self.q_stage(a, wn, True, hook=lambda: self.ln_stores(a))
            self.mark(a)
            self.q_stage(a, wn, False)
            self.q_stage(a, wn, False, pre=lambda: a("s_waitcnt vmcnt(0)"))
            self.loop(a, 5, lambda: self.q_stage(a, wn, False))
            self.q_stage(a, wn, False, hook=stats)
            self.q_stage(a, wn, False)
            g3 = self.q_group(3, wn)
            for m in g3[4:] + g3[:4]:
                a(m)
        self.by_scalar(a, sWn, run)
        self.mark(a)
        self.q_epilogue_pre(a)
        self.q_csum_write(a)
        a("s_barrier")
        self.by_scalar(a, sWm, lambda wm: self.q_epilogue(a, wm))
        a("s_barrier")

    def m_addr(self):
        return ([f"v_add_u32 v{self.M_AA + tm}, s{sSlot}, v{self.M_CA + tm}" for tm in range(2)] +
                [f"v_add_u32 v{self.M_AB}, s{sSlot}, v{self.M_CB}"])

    def m_stage(self, a, first, pre=None, hook=None):
        if pre:
            pre()
        self.cbar(a)
        if hook:
            hook()
        r01 = self.m_reads(0) + self.m_reads(1)
        if first:
            for r in r01:
                a(r)
        else:
            self.spread(a, self.m_mfmas(2) + self.m_mfmas(3), r01)
        a("s_waitcnt lgkmcnt(6)")
        self.spread(a, self.czero(self.m_mfmas(0)) if first else self.m_mfmas(0), self.m_reads(2))
        a("s_waitcnt lgkmcnt(6)")
        self.spread(a, self.m_mfmas(1), self.m_reads(3))
        self.slot_next(a)
        for c in self.m_addr():
            a(c)
        a("s_waitcnt lgkmcnt(0)")

    def m_reduce_write(self, a, kh):
        t = 190
        src = self.M_ACC + 16 * (1 - kh)
        a(f"""
        v_lshlrev_b32 v{t}, 4, v0
        s_lshl_b32 s{sT0}, s{sLw}, 12
        s_add_u32 s{sT0}, s{sT0}, {M_RED}
        v_add_u32 v{t}, s{sT0}, v{t}
        """)
        for q in range(4):
            a(f"ds_write_b128 v{t}, v[{src + 4 * q}:{src + 4 * q + 3}] offset:{q * 1024}")
        a("s_waitcnt lgkmcnt(0)")

    ME_U = 200

    def m_epilogue_pre(self, a):
        U, B1 = self.ME_U, self.V_B1
        c0 = -2.0 * math.sqrt(2.0 / math.pi) * math.log2(math.e)
        c1 = c0 * 0.044715
        a(f"""
        s_lshl_b32 s{sT1}, s{sWn}, 5
        v_and_b32 v{U}, 31, v0
        v_add_u32 v{U}, s{sT1}, v{U}
        v_mul_u32_u24 v{U}, {GROW}, v{U}
        v_lshrrev_b32 v{U + 1}, 5, v0
        v_lshl_add_u32 v{U}, v{U + 1}, 3, v{U}
        s_lshl_b32 s{sT1}, s{sWm}, 6
        s_add_u32 s{sT1}, s{sT1}, {SLOT}
        v_add_u32 v{U}, s{sT1}, v{U}
        v_lshlrev_b32 v{U + 1}, 4, v0
        s_xor_b32 s{sT0}, s{sLw}, 2
        s_lshl_b32 s{sT0}, s{sT0}, 12
        s_add_u32 s{sT0}, s{sT0}, {M_RED}
        v_add_u32 v{U + 1}, s{sT0}, v{U + 1}
        v_mov_b32 v{U + 4}, {f32(c1)}
        v_mov_b32 v{U + 5}, {f32(c0)}
        v_mov_b32 v{U + 6}, 1.0
        s_waitcnt vmcnt(0)
        v_lshlrev_b32 v{U + 2}, 16, v{B1}
        """)

    def m_epilogue(self, a, kh):
        R, U = 136, self.ME_U
        keep = self.M_ACC + 16 * kh
        for q in range(4):
            a(f"ds_read_b128 v[{R + 4 * q}:{R + 4 * q + 3}], v{U + 1} offset:{q * 1024}")
        for r in range(0, 16, 2):
            a(f"v_pk_add_f32 v[{keep + r}:{keep + r + 1}], v[{keep + r}:{keep + r + 1}], v[{U + 2}:{U + 3}] op_sel_hi:[1,0]")
        a("s_waitcnt lgkmcnt(0)")
        P = lambda r: f"v[{r}:{r + 1}]"
        for r in range(0, 16, 2):
            a(f"v_pk_add_f32 {P(keep + r)}, {P(keep + r)}, {P(R + r)}")
        for r in range(0, 16, 2):
            a(f"v_pk_mul_f32 {P(R + r)}, {P(keep + r)}, {P(keep + r)}")
        for r in range(0, 16, 2):
            a(f"v_pk_fma_f32 {P(R + r)}, {P(R + r)}, {P(U + 4)}, {P(U + 4)} op_sel:[0,0,1] op_sel_hi:[1,0,1]")
        for r in range(0, 16, 2):
            a(f"v_pk_mul_f32 {P(R + r)}, {P(R + r)}, {P(keep + r)}")
        for r in range(16):
            a(f"v_exp_f32 v{R + r}, v{R + r}")
        for r in range(0, 16, 2):
            a(f"v_pk_add_f32 {P(R + r)}, {P(R + r)}, {P(U + 6)} op_sel_hi:[1,0]")
        for r in range(16):
            a(f"v_rcp_f32 v{R + r}, v{R + r}")
        for r in range(0, 16, 2):
            a(f"v_pk_mul_f32 {P(keep + r)}, {P(keep + r)}, {P(R + r)}")
        for q in range(4):
            x = keep + 4 * q
            a(f"v_cvt_pk_bf16_f32 v{x}, v{x}, v{x + 1}\nv_cvt_pk_bf16_f32 v{x + 1}, v{x + 2}, v{x + 3}")
            a(f"ds_write_b64 v{U}, v[{x}:{x + 1}] offset:{16 * q}")
        a("s_waitcnt lgkmcnt(0)")

    def g_copy_out_solo(self, a):
        R, T = 32, 28
        a(f"""
        v_lshrrev_b32 v{T}, 3, v0
        v_and_b32 v{T + 1}, 7, v0
        v_mul_u32_u24 v{T + 2}, {GROW}, v{T}
        v_lshl_add_u32 v{T + 2}, v{T + 1}, 4, v{T + 2}
        v_add_u32 v{T + 2}, {SLOT}, v{T + 2}
        """)
        for k in range(8):
            a(f"ds_read_b128 v[{R + 4 * k}:{R + 4 * k + 3}], v{T + 2} offset:{8 * GROW * k}")
        a(f"""
        s_lshl_b32 s{sT0}, s{sDt1}, 6
        v_lshl_add_u32 v{T + 1}, v{T + 1}, 3, s{sT0}
        v_mul_u32_u24 v{T + 3}, 820, v{T + 1}
        v_lshrrev_b32 v{T + 3}, 16, v{T + 3}
        v_mul_u32_u24 v{T + 2}, 80, v{T + 3}
        v_sub_u32 v{T + 1}, v{T + 1}, v{T + 2}
        v_mul_u32_u24 v{T + 3}, {1536 * 160}, v{T + 3}
        v_lshl_add_u32 v{T + 3}, v{T + 1}, 1, v{T + 3}
        s_lshl_b32 s{sT0}, s{sFt}, 6
        v_add_u32 v{T}, s{sT0}, v{T}
        v_mul_u32_u24 v{T}, 160, v{T}
        v_add_u32 v{T + 3}, v{T + 3}, v{T}
        s_mov_b32 s{sT1}, {WS_GT}
        s_cmp_eq_u32 s{sM1On}, 0
        s_cselect_b32 s{sT0}, {OOB}, s{sT1}
        """)
        for k in range(8):
            a(f"s_waitcnt lgkmcnt({7 - k})")
            a(f"buffer_store_dwordx4 v[{R + 4 * k}:{R + 4 * k + 3}], v{T + 3}, s[{sWS}:{sWS + 3}], s{sT0} offen sc1")
            if k < 7:
                a(f"s_add_u32 s{sT0}, s{sT0}, {8 * 160}")

    def g_copy_out(self, a):
        R, T = 40, 28
        a(f"""
        v_lshrrev_b32 v{T}, 3, v0
        s_lshl_b32 s{sT0}, s{sLw}, 4
        v_add_u32 v{T}, s{sT0}, v{T}
        v_and_b32 v{T + 1}, 7, v0
        v_mul_u32_u24 v{T + 2}, {GROW}, v{T}
        v_lshl_add_u32 v{T + 2}, v{T + 1}, 4, v{T + 2}
        v_add_u32 v{T + 2}, {SLOT}, v{T + 2}
        ds_read_b128 v[{R}:{R + 3}], v{T + 2}
        ds_read_b128 v[{R + 4}:{R + 7}], v{T + 2} offset:{8 * GROW}
        s_lshl_b32 s{sT0}, s{sDt1}, 6
        v_lshl_add_u32 v{T + 1}, v{T + 1}, 3, s{sT0}
        v_mul_u32_u24 v{T + 3}, 820, v{T + 1}
        v_lshrrev_b32 v{T + 3}, 16, v{T + 3}
        v_mul_u32_u24 v{T + 4}, 80, v{T + 3}
        v_sub_u32 v{T + 1}, v{T + 1}, v{T + 4}
        v_mul_u32_u24 v{T + 3}, {1536 * 160}, v{T + 3}
        v_lshl_add_u32 v{T + 3}, v{T + 1}, 1, v{T + 3}
        s_lshl_b32 s{sT0}, s{sFt}, 6
        v_add_u32 v{T}, s{sT0}, v{T}
        v_mul_u32_u24 v{T}, 160, v{T}
        v_add_u32 v{T + 3}, v{T + 3}, v{T}
        s_mov_b32 s{sT1}, {WS_GT}
        s_cmp_eq_u32 s{sM1On}, 0
        s_cselect_b32 s{sT0}, {OOB}, s{sT1}
        v_add_u32 v{T + 3}, s{sT0}, v{T + 3}
        s_waitcnt lgkmcnt(0)
        buffer_store_dwordx4 v[{R}:{R + 3}], v{T + 3}, s[{sWS}:{sWS + 3}], 0 offen sc1
        buffer_store_dwordx4 v[{R + 4}:{R + 7}], v{T + 3}, s[{sWS}:{sWS + 3}], 0 offen offset:{8 * 160} sc1
        """)

    def c_mix1(self, a):
        T = 200
        a(f"""
        s_lshl_b32 s{sT0}, s{sFt}, 6
        s_lshl_b32 s{sT1}, s{sWn}, 5
        s_add_u32 s{sT0}, s{sT0}, s{sT1}
        v_and_b32 v{T}, 31, v0
        v_add_u32 v{T}, s{sT0}, v{T}
        v_lshlrev_b32 v{T}, 1, v{T}
        buffer_load_ushort v{self.V_B1}, v{T}, s[{sB1}:{sB1 + 3}], 0 offen
        """)
        for c in self.m_addr():
            a(c)
        self.m_stage(a, True)
        self.zero(a, self.A_O, 16)
        self.m_stage(a, False)
        self.zero(a, self.A_O + 16, 16)
        self.m_stage(a, False)
        self.mark(a)
        self.loop(a, 13, lambda: self.m_stage(a, False))
        for m in self.m_mfmas(2) + self.m_mfmas(3):
            a(m)
        self.mark(a)
        self.m_epilogue_pre(a)
        self.by_scalar(a, sWm, lambda kh: self.m_reduce_write(a, kh))
        a("s_barrier")
        self.by_scalar(a, sWm, lambda kh: self.m_epilogue(a, kh))
        self.a_zero(a)
        self.cbar(a)

    def a_addr_consts(self, a):
        keep = (self.A_O, self.A_K)
        body = Asm()
        B.Gen.a_consts(self, body)
        for it in body.items:
            if it.mn == "v_mov_b32" and it.ops[0][0] == "v":
                r = int(it.ops[0][1:])
                if self.A_O <= r < self.A_O + 32 or self.A_K <= r < self.A_K + 16:
                    continue
            a.items.append(it)

    def a_zero(self, a):
        for hh in range(2):
            for base in (self.A_K, self.A_Q):
                a(f"v_mov_b32 v{base + 8 * hh + 6}, 0\nv_mov_b32 v{base + 8 * hh + 7}, 0")

    def a_qreads(self, a):
        T = self.A_T
        a(f"""
        s_lshl_b32 s{sT0}, s{sLw}, 5
        v_and_b32 v{T}, 31, v0
        v_add_u32 v{T}, s{sT0}, v{T}
        v_mul_u32_u24 v{T}, 80, v{T}
        v_add_u32 v{T}, {SCR}, v{T}
        v_lshrrev_b32 v{T + 1}, 5, v0
        v_lshl_add_u32 v{T + 1}, v{T + 1}, 4, v{T}
        """)
        for hh in range(2):
            q = self.A_Q + 8 * hh
            a(f"""
            ds_read_b64 v[{q}:{q + 1}], v{T + 1} offset:{40 * hh}
            ds_read_b64 v[{q + 2}:{q + 3}], v{T + 1} offset:{40 * hh + 8}
            ds_read_b64 v[{q + 4}:{q + 5}], v{T} offset:{40 * hh + 32}
            """)

    def a_qmask(self, a):
        for hh in range(2):
            q = self.A_Q + 8 * hh
            a(f"""
            s_mov_b32 exec_lo, 0
            v_mov_b32 v{q + 4}, 0
            v_mov_b32 v{q + 5}, 0
            s_mov_b64 exec, -1
            """)

    def kr(self, hh, dt):
        k = self.A_K + 8 * hh
        o = dt * 32 * KVROW + 40 * hh
        return [f"ds_read_b64 v[{k}:{k + 1}], v{self.A_KA} offset:{o}",
                f"ds_read_b64 v[{k + 2}:{k + 3}], v{self.A_KA} offset:{o + 8}",
                f"ds_read_b64 v[{k + 4}:{k + 5}], v{self.A_KA + 1} offset:{o + 32}"]

    def vr(self, hh, dt):
        x = self.A_V + 8 * hh
        return [f"ds_read_b64_tr_b16 v[{x + 4 * aa + 2 * rd}:{x + 4 * aa + 2 * rd + 1}], v{self.A_VA + hh} offset:{(dt * 32 + 16 * aa + 8 * rd) * KVROW}"
                for aa in range(2) for rd in range(2)]

    def a_slot(self, a, hv, qk_mask, do_qk, do_pv, dk, dv, rd_k=True, rd_v=True, wait=7):
        ho = 1 - hv
        sreg, p = self.A_S + 16 * hv, self.A_P + 8 * hv
        a(f"s_waitcnt lgkmcnt({wait})")
        qk = self.a_qk(ho, qk_mask) if do_qk else [None, None]
        pv = self.a_pv(ho) if do_pv else [None, None]
        kr = self.kr(ho, dk) if rd_k else []
        vr = self.vr(ho, dv) if rd_v else []
        plan = [(qk[0], kr[:2]), (qk[1], kr[2:]), (pv[0], vr[:2]), (pv[1], vr[2:])]
        for g, (m, rds) in enumerate(plan):
            if m:
                a(m)
            for r in rds:
                a(r)
            for q in range(4):
                a(f"v_exp_f32 v{sreg + 4 * g + q}, v{sreg + 4 * g + q}")
        for r in range(8):
            a(f"v_cvt_pk_bf16_f32 v{p + r}, v{sreg + 2 * r}, v{sreg + 2 * r + 1}")

    def a_iter(self, a, first, mask_a, mask_b, last):
        self.a_slot(a, 0, mask_a, True, not first, 1, 0, rd_k=not last, wait=7 if not last else 7)
        if last:
            self.a_slot(a, 1, None, False, True, 0, 0, rd_k=False, rd_v=False, wait=4)
            a("s_waitcnt lgkmcnt(0)")
            for m in self.a_pv(1):
                a(m)
        else:
            self.a_slot(a, 1, mask_b, True, True, 2, 1)
            for r in (self.A_KA, self.A_KA + 1, self.A_VA, self.A_VA + 1):
                a(f"v_add_u32 v{r}, {32 * KVROW}, v{r}")

    def g_publish(self, a):
        lab = a.uid("Lgp")
        T = 208
        a(f"s_cmp_lg_u32 s{sPub}, 0\ns_cbranch_scc1 {lab}")
        a(f"""
        s_mov_b32 s{sPub}, 1
        s_waitcnt vmcnt(0)
        v_mov_b32 v{T}, {SCR_CNT}
        v_mov_b32 v{T + 1}, 1
        s_mov_b32 exec_hi, 0
        s_mov_b32 exec_lo, 1
        ds_add_u32 v{T}, v{T + 1}
        s_mov_b64 exec, -1
        """)
        a.label(lab)

    def attention(self, a):
        T = self.A_T
        a(f"""
        s_lshl_b32 s{sT0}, s{sI}, 2
        s_add_u32 s{sT0}, s{sT0}, s{sLw}
        s_cmp_ge_u32 s{sT0}, 8
        s_cselect_b32 s{sT0}, 8, s{sT0}
        s_sub_u32 s{sT2}, 8, s{sT0}
        """)
        self.a_skip(a, sT2)
        self.a_qreads(a)
        for hh in range(2):
            for r in self.kr(hh, 0):
                a(r)
        a("s_waitcnt lgkmcnt(0)")
        self.a_qmask(a)
        MF, MD = self.A_MF, self.A_MD
        L = {k: a.uid("La" + k) for k in ("far", "n2", "n1", "mid", "pre", "last", "done")}

        def head(mask):
            for m in self.a_qk(0, mask):
                a(m)
            for r in self.kr(0, 1) + self.vr(0, 0):
                a(r)
        a(f"s_cmp_eq_u32 s{sT2}, 0\ns_cbranch_scc1 {L['far']}")
        a(f"s_cmp_eq_u32 s{sT2}, 7\ns_cbranch_scc1 {L['n2']}")
        a(f"s_cmp_eq_u32 s{sT2}, 8\ns_cbranch_scc1 {L['n1']}")
        head(None)
        self.a_iter(a, True, None, None, False)
        a(f"s_sub_u32 s{sCnt}, 6, s{sT2}\ns_cmp_eq_u32 s{sCnt}, 0\ns_cbranch_scc1 {L['pre']}\ns_branch {L['mid']}")
        a.label(L["n2"])
        head(None)
        self.a_iter(a, True, None, MD, False)
        a(f"s_branch {L['last']}")
        a.label(L["n1"])
        head(MD)
        self.a_iter(a, True, MD, None, True)
        a(f"s_branch {L['done']}")
        a.label(L["far"])
        head(MF)
        self.a_iter(a, True, MF, None, False)
        a(f"s_mov_b32 s{sCnt}, 6")
        a.label(L["mid"])
        self.a_iter(a, False, None, None, False)
        a(f"s_sub_u32 s{sCnt}, s{sCnt}, 1\ns_cmp_lg_u32 s{sCnt}, 0\ns_cbranch_scc1 {L['mid']}")
        a.label(L["pre"])
        self.a_iter(a, False, None, MD, False)
        a.label(L["last"])
        self.a_iter(a, False, MD, None, True)
        a.label(L["done"])
        lfb, ldone = a.uid("Lfallback"), a.uid("Lnorm")
        self.fallback_labels = (lfb, ldone)
        self.a_rowsum(a)
        a(f"""
        v_mov_b32 v{T + 4}, {f32(2.0 ** -40)}
        v_mov_b32 v{T + 5}, {f32(2.0 ** 40)}
        v_cmp_ge_f32 s[{sT0}:{sT0 + 1}], v{T}, v{T + 4}
        v_cmp_le_f32 s[{sT2}:{sT2 + 1}], v{T}, v{T + 5}
        s_and_b64 s[{sT0}:{sT0 + 1}], s[{sT0}:{sT0 + 1}], s[{sT2}:{sT2 + 1}]
        v_cmp_ge_f32 s[{sT2}:{sT2 + 1}], v{T + 1}, v{T + 4}
        s_and_b64 s[{sT0}:{sT0 + 1}], s[{sT0}:{sT0 + 1}], s[{sT2}:{sT2 + 1}]
        v_cmp_le_f32 s[{sT2}:{sT2 + 1}], v{T + 1}, v{T + 5}
        s_and_b64 s[{sT0}:{sT0 + 1}], s[{sT0}:{sT0 + 1}], s[{sT2}:{sT2 + 1}]
        s_cmp_eq_u64 s[{sT0}:{sT0 + 1}], exec
        s_cbranch_scc0 {lfb}
        """)
        a.label(ldone)
        self.a_store(a)

    def a_store(self, a):
        T = self.A_T
        a(f"""
        v_rcp_f32 v{T + 2}, v{T}
        v_rcp_f32 v{T + 4}, v{T + 1}
        s_lshl_b32 s{sT1}, s{sLw}, 5
        v_and_b32 v{T + 6}, 31, v0
        v_add_u32 v{T + 6}, s{sT1}, v{T + 6}
        v_mul_u32_u24 v{T + 6}, 80, v{T + 6}
        v_add_u32 v{T + 6}, {SCR}, v{T + 6}
        v_lshrrev_b32 v{T + 7}, 5, v0
        v_lshl_add_u32 v{T + 7}, v{T + 7}, 3, v{T + 6}
        """)
        for hh in range(2):
            o = self.A_O + 16 * hh
            rc = T + 2 + 2 * hh
            for g in range(3):
                x = o + 4 * g
                for hf in range(2):
                    a(f"v_pk_mul_f32 v[{x + 2 * hf}:{x + 2 * hf + 1}], v[{x + 2 * hf}:{x + 2 * hf + 1}], v[{rc}:{rc + 1}] op_sel_hi:[1,0]")
                a(f"v_cvt_pk_bf16_f32 v{x}, v{x}, v{x + 1}\nv_cvt_pk_bf16_f32 v{x + 1}, v{x + 2}, v{x + 3}")
                if g < 2:
                    a(f"ds_write_b64 v{T + 7}, v[{x}:{x + 1}] offset:{40 * hh + 16 * g}")
                else:
                    a(f"s_mov_b32 exec_hi, 0\nds_write_b64 v{T + 6}, v[{x}:{x + 1}] offset:{40 * hh + 32}\ns_mov_b64 exec, -1")
        a("s_waitcnt lgkmcnt(0)")

    def o_copy_out(self, a):
        R, T = 40, 28
        a(f"""
        s_lshl_b32 s{sT0}, s{sI}, 7
        s_mul_i32 s{sT0}, s{sT0}, 1280
        s_mul_i32 s{sT1}, s{sP}, 80
        s_add_u32 s{sT0}, s{sT0}, s{sT1}
        s_add_u32 s{sT0}, s{sT0}, {WS_O}
        s_lshl_b32 s{sT1}, s{sLw}, 6
        v_add_u32 v{T}, s{sT1}, v0
        v_lshlrev_b32 v{T + 1}, 4, v{T}
        v_add_u32 v{T + 1}, {SCR}, v{T + 1}
        """)
        for k in range(3):
            a(f"ds_read_b128 v[{R + 4 * k}:{R + 4 * k + 3}], v{T + 1} offset:{k * 4096}")
        for k in range(3):
            a(f"""
            v_add_u32 v{T + 2}, {256 * k}, v{T}
            v_mul_u32_u24 v{T + 3}, 13108, v{T + 2}
            v_lshrrev_b32 v{T + 3}, 16, v{T + 3}
            v_mul_u32_u24 v{T + 4}, 5, v{T + 3}
            v_sub_u32 v{T + 4}, v{T + 2}, v{T + 4}
            v_mul_u32_u24 v{T + 3}, 1280, v{T + 3}
            v_lshl_add_u32 v{T + 3}, v{T + 4}, 4, v{T + 3}
            v_add_u32 v{T + 5 + k}, s{sT0}, v{T + 3}
            """)
        a(f"""
        v_mov_b32 v{T + 2}, {OOB}
        v_add_u32 v{T + 3}, 512, v{T}
        v_cmp_gt_u32 vcc, 640, v{T + 3}
        v_cndmask_b32 v{T + 7}, v{T + 2}, v{T + 7}, vcc
        s_waitcnt lgkmcnt(0)
        """)
        for k in range(3):
            a(f"buffer_store_dwordx4 v[{R + 4 * k}:{R + 4 * k + 3}], v{T + 5 + k}, s[{sWS}:{sWS + 3}], 0 offen sc1")

    def attention_fallback(self, a):
        lfb, ldone = self.fallback_labels
        M = 200
        a.label(lfb)
        self.a_addr_consts(a)
        self.zero(a, self.A_O, 32)
        a(f"""
        s_lshl_b32 s{sT0}, s{sI}, 2
        s_add_u32 s{sT0}, s{sT0}, s{sLw}
        s_cmp_ge_u32 s{sT0}, 8
        s_cselect_b32 s{sT0}, 8, s{sT0}
        s_sub_u32 s{sCnt}, 8, s{sT0}
        v_mov_b32 v{M}, {f32(-3e38)}
        v_mov_b32 v{M + 1}, {f32(-3e38)}
        """)
        self.a_skip(a, sCnt)
        lp, lnf, lnd = a.uid("Lfb"), a.uid("Lfbnf"), a.uid("Lfbnd")
        a.label(lp)
        for hh in range(2):
            for r in self.kr(hh, 0) + self.vr(hh, 0):
                a(r)
        for r in (self.A_KA, self.A_KA + 1, self.A_VA, self.A_VA + 1):
            a(f"v_add_u32 v{r}, {32 * KVROW}, v{r}")
        a("s_waitcnt lgkmcnt(0)")
        for hh in range(2):
            for m in self.a_qk(hh, None):
                a(m)
        a("s_nop 15")
        a(f"s_cmp_lg_u32 s{sCnt}, 0\ns_cbranch_scc1 {lnf}")
        for hh in range(2):
            for r in range(16):
                a(f"v_add_f32 v{self.A_S + 16 * hh + r}, v{self.A_S + 16 * hh + r}, v{self.A_MF + r}")
        a.label(lnf)
        a(f"s_cmp_lg_u32 s{sCnt}, 8\ns_cbranch_scc1 {lnd}")
        for hh in range(2):
            for r in range(16):
                a(f"v_add_f32 v{self.A_S + 16 * hh + r}, v{self.A_S + 16 * hh + r}, v{self.A_MD + r}")
        a.label(lnd)
        for hh in range(2):
            sreg, o = self.A_S + 16 * hh, self.A_O + 16 * hh
            x = M + 2
            a(f"v_max3_f32 v{x}, v{sreg}, v{sreg + 1}, v{M + hh}")
            for r in range(2, 16, 2):
                a(f"v_max3_f32 v{x}, v{sreg + r}, v{sreg + r + 1}, v{x}")
            a(f"""
            v_mov_b32 v{x + 1}, v{x}
            v_mov_b32 v{x + 2}, v{x}
            v_nop
            v_permlane32_swap_b32 v{x + 1}, v{x + 2}
            v_max_f32 v{x}, v{x + 1}, v{x + 2}
            v_sub_f32 v{x + 1}, v{M + hh}, v{x}
            v_exp_f32 v{x + 1}, v{x + 1}
            v_mov_b32 v{M + hh}, v{x}
            """)
            for r in range(16):
                a(f"v_sub_f32 v{sreg + r}, v{sreg + r}, v{x}")
            for r in range(16):
                a(f"v_mul_f32 v{o + r}, v{o + r}, v{x + 1}")
            self.a_softmax(a, hh)
            for m in self.a_pv(hh):
                a(m)
        a(f"s_add_u32 s{sCnt}, s{sCnt}, 1\ns_cmp_le_u32 s{sCnt}, 8\ns_cbranch_scc1 {lp}")
        a("s_nop 15")
        self.a_rowsum(a)
        a(f"s_branch {ldone}")

    def f_reads(self, j, wo):
        return [] if self.o.get("nofr") else super().f_reads(j, wo)

    def m_reads(self, ks):
        return [] if self.o.get("nomr") else super().m_reads(ks)

    def f_addr(self, wo):
        out = [f"v_add_u32 v{self.F_AA}, s{sSlot}, v{self.F_CA}"]
        if wo:
            out += [f"v_add_u32 v{self.F_AO + k}, s{sSlot}, v{self.F_CO + k}" for k in range(4)]
        else:
            out += [f"v_add_u32 v{self.F_AB + tn}, s{sSlot}, v{self.F_CB + tn}" for tn in range(2)]
        return out

    def f_stage(self, a, first, wo, next_wo, pre=None, hook=None):
        if pre:
            pre()
        self.cbar(a)
        if hook:
            hook()
        r0 = self.f_reads(0, wo)
        if first:
            for r in r0:
                a(r)
        else:
            self.spread(a, self.f_mfmas(1), r0)
        a("s_waitcnt lgkmcnt(0)")
        self.spread(a, self.czero(self.f_mfmas(0)) if first else self.f_mfmas(0), self.f_reads(1, wo))
        self.slot_next(a)
        a("s_waitcnt lgkmcnt(0)")
        for c in self.f_addr(next_wo):
            a(c)

    FE_X, FE_T = 208, 56

    def f_epilogue_pre(self, a):
        X, t, raw = self.FE_X, self.FE_T, 228
        B2 = self.V_B2
        a(f"""
        s_lshl_b32 s{sT1}, s{sWn}, 5
        s_lshl_b32 s{sT2}, s{sWm}, 4
        s_add_u32 s{sT1}, s{sT1}, s{sT2}
        v_and_b32 v{t}, 15, v0
        v_add_u32 v{t}, s{sT1}, v{t}
        v_mul_u32_u24 v{t + 1}, 160, v{t}
        v_lshrrev_b32 v1, 4, v0
        v_lshl_add_u32 v{t + 1}, v1, 3, v{t + 1}
        v_add_u32 v{t + 1}, {SCR}, v{t + 1}
        """)
        for tm in range(5):
            a(f"ds_read_b64 v[{raw + 2 * tm}:{raw + 2 * tm + 1}], v{t + 1} offset:{32 * tm}")
        a(f"""
        s_lshl_b32 s{sT0}, s{sSt}, 6
        v_add_u32 v{t}, s{sT0}, v{t}
        v_mul_u32_u24 v{t}, 1280, v{t}
        s_mul_i32 s{sT0}, s{sDt}, 160
        v_add_u32 v{t}, s{sT0}, v{t}
        v_lshl_add_u32 v{t}, v1, 3, v{t}
        v_lshlrev_b32 v{t + 1}, 4, v0
        s_xor_b32 s{sT0}, s{sLw}, 2
        s_mul_i32 s{sT0}, s{sT0}, 5120
        s_add_u32 s{sT0}, s{sT0}, {SLOT}
        v_add_u32 v{t + 1}, s{sT0}, v{t + 1}
        s_mov_b32 s{sT3}, 0xffff0000
        s_waitcnt vmcnt(0) lgkmcnt(0)
        v_lshlrev_b32 v238, 16, v{B2}
        """)
        for tm in range(5):
            x = X + 4 * tm
            a(f"""
            v_lshlrev_b32 v{x}, 16, v{raw + 2 * tm}
            v_and_b32 v{x + 1}, s{sT3}, v{raw + 2 * tm}
            v_lshlrev_b32 v{x + 2}, 16, v{raw + 2 * tm + 1}
            v_and_b32 v{x + 3}, s{sT3}, v{raw + 2 * tm + 1}
            """)
        for y in range(X, X + 20, 2):
            a(f"v_pk_add_f32 v[{y}:{y + 1}], v[{y}:{y + 1}], v[238:239] op_sel_hi:[1,0]")

    def f_epilogue(self, a, kh):
        R, X, t = 136, self.FE_X, self.FE_T
        for tm in range(5):
            a(f"ds_read_b128 v[{R + 4 * tm}:{R + 4 * tm + 3}], v{t + 1} offset:{tm * 1024}")
        for tm in range(5):
            k = self.F_ACC + 4 * (2 * tm + kh)
            for y in (0, 2):
                a(f"v_pk_add_f32 v[{k + y}:{k + y + 1}], v[{k + y}:{k + y + 1}], v[{X + 4 * tm + y}:{X + 4 * tm + y + 1}]")
        for tm in range(5):
            k, r = self.F_ACC + 4 * (2 * tm + kh), R + 4 * tm
            a(f"s_waitcnt lgkmcnt({4 - tm})")
            for y in (0, 2):
                a(f"v_pk_add_f32 v[{k + y}:{k + y + 1}], v[{k + y}:{k + y + 1}], v[{r + y}:{r + y + 1}]")
            a(f"v_cvt_pk_bf16_f32 v{k}, v{k}, v{k + 1}\nv_cvt_pk_bf16_f32 v{k + 1}, v{k + 2}, v{k + 3}")
            a(f"buffer_store_dwordx2 v[{k}:{k + 1}], v{t}, s[{sOUT}:{sOUT + 3}], 0 offen offset:{32 * tm} " + ("", "sc1", "nt", "sc1 nt")[self.o["outpol"]])

    def c_final(self, a):
        T = 224
        a(f"s_mov_b32 s{sSlot}, 0")
        for c in self.f_addr(False):
            a(c)

        def b2_load():
            a(f"""
            s_lshl_b32 s{sT0}, s{sSt}, 6
            s_lshl_b32 s{sT1}, s{sWn}, 5
            s_add_u32 s{sT0}, s{sT0}, s{sT1}
            s_lshl_b32 s{sT1}, s{sWm}, 4
            s_add_u32 s{sT0}, s{sT0}, s{sT1}
            v_and_b32 v{T}, 15, v0
            v_add_u32 v{T}, s{sT0}, v{T}
            v_lshlrev_b32 v{T}, 1, v{T}
            buffer_load_ushort v{self.V_B2}, v{T}, s[{sB2}:{sB2 + 3}], 0 offen
            """)
        self.f_stage(a, True, False, False, hook=b2_load)
        self.f_stage(a, False, False, False)
        self.f_stage(a, False, False, False)
        self.f_stage(a, False, False, False)
        self.mark(a)
        self.loop(a, 7, lambda: self.f_stage(a, False, False, False))
        self.f_stage(a, False, False, True)
        self.mark(a)
        self.loop(a, 2, lambda: self.f_stage(a, False, True, True))
        self.f_epilogue_pre(a)
        self.loop(a, 3, lambda: self.f_stage(a, False, True, True))
        self.f_tail(a)
        self.mark(a)
        self.by_scalar(a, sWm, lambda kh: self.f_reduce_write(a, kh))
        a("s_barrier")
        self.by_scalar(a, sWm, lambda kh: self.f_epilogue(a, kh))

    def strip_zero(self, fn, lo, hi):
        body = Asm()
        fn(body)
        return [it for it in body.items
                if not (it.mn == "v_mov_b32" and it.ops[0][0] == "v" and it.ops[1] == "0" and lo <= int(it.ops[0][1:]) < hi)]

    def consumer(self, a):
        if self.o["prio"]:
            a(f"s_setprio {self.o['prio']}")
        a("s_waitcnt lgkmcnt(0)")
        self.mark(a)
        for ps in range(self.ln_passes()):
            a(f"v_mov_b32 v{self.LN_H + 14 * ps + 12}, {OOB}\nv_mov_b32 v{self.LN_H + 14 * ps + 13}, {OOB}")
        lab = a.uid("Lnold")
        a(f"s_cmp_eq_u32 s{sLnOn}, 0\ns_cbranch_scc1 {lab}")
        self.ln_loads(a)
        a.label(lab)
        a(f"""
        v_mov_b32 v1, {SCR_CNT}
        v_mov_b32 v2, 0
        v_mov_b32 v3, 0
        ds_write_b64 v1, v[2:3]
        """)
        a.items += self.strip_zero(lambda b: B.Gen.m_consts(self, b), 64, 128)
        a.items += self.strip_zero(lambda b: B.Gen.f_consts(self, b), 64, 128)
        self.a_addr_consts(a)
        a(f"s_mov_b32 s{sSlot}, 0")
        a.items += self.strip_zero(lambda b: B.Gen.q_consts(self, b), 64, 132)
        self.mark(a)
        lab = a.uid("Lnolc")
        a(f"s_cmp_eq_u32 s{sLnOn}, 0\ns_cbranch_scc1 {lab}")
        self.ln_compute(a)
        a.label(lab)
        a("s_waitcnt lgkmcnt(0)")
        self.mark(a)
        self.c_qkv(a)
        self.mark(a)
        self.c_mix1(a)
        self.mark(a)
        self.mark(a)
        self.attention(a)
        self.mark(a)
        self.c_final(a)
        self.mark(a)

    def build(self):
        name = NAME + "_kernel"
        return B_kernel(name, self.split(name, self.consumer, self.loader))


def B_kernel(name, body):
    return f"""; Sliding-window attention + token-mixer MLP + residual, bf16, S=2048 D=640, one persistent launch.
; @launch grid=(256,1,1) block=(512,1,1) lds={LDS_BYTES}
.amdgcn_target "amdgcn-amd-amdhsa--gfx950"
.text
.globl {name}
.p2align 8
.type {name},@function
{name}:
{body}{name}_code_end:
.set CODE_BYTES, {name}_code_end-{name}
.section .rodata,"a"
.p2align 6
.amdhsa_kernel {name}
  .amdhsa_next_free_vgpr 256
  .amdhsa_next_free_sgpr 102
  .amdhsa_accum_offset 256
  .amdhsa_group_segment_fixed_size 0
  .amdhsa_kernarg_size 88
  .amdhsa_user_sgpr_count 2
  .amdhsa_user_sgpr_kernarg_segment_ptr 1
  .amdhsa_system_sgpr_workgroup_id_x 1
.end_amdhsa_kernel
"""


if __name__ == "__main__":
    mode = sys.argv[1] if len(sys.argv) > 1 else "run"
    path = sys.argv[2] if len(sys.argv) > 2 else f"cdna_kernels/{NAME}.s"
    opts = {}
    for kv in sys.argv[3:]:
        k, val = kv.split("=")
        opts[k] = int(val)
    txt = Fused(diag=(mode == "diag"), opts=opts).build()
    open(path, "w").write(txt)
    print("wrote", path, len(txt), "bytes")
```

```python
import math
import sys

sys.path.insert(0, "tools")
from asmlib import Asm
from gen_base import *
import gen_base as B

OOB = 0x7ff00000
SPIN_MAX = 100000
FL_LN, FL_KV, FL_O, FL_G = 0x1000, 0x1400, 0x1800, 0x8000
SCR_CNT = SCR + 10752
SCR_CS = SCR + 10240
M_RED = 16384
KROW, VROW = 88, 88
WS_KP = WS_Q
WS_VP = WS_KP + 8 * 16 * 2 * 128 * KROW
KB, VB = KVBASE, KVBASE + SLOT
GROW = 144
sPub, sT6 = 79, 85
sKcA, sKcB, sKt, sRq, sRm, sRf, sRw = 9, 10, 11, 12, 13, 14, 15
sBaseA, sBaseB = 16, 17
sLnOn, sLnIdx = 18, 19
sArr, sNon2 = 4, 5


class Fused(Gen):
    A_MF, A_MD, A_KA, A_VA = 2, 18, 34, 36
    F_CA, F_CB, F_CO = 38, 39, 41
    M_CA, M_CB = 45, 47
    V_ST, V_B1, V_B2, V_ARR, V_POLL = 48, 52, 53, 54, 56
    V_DUMMY = 228
    Q_ACC, Q_CS, Q_ONES, Q_BUF, Q_CA, Q_CB, Q_AA, Q_AB = 64, 128, 132, 136, 200, 202, 206, 208
    M_ACC, M_BUF, M_AA, M_AB = 64, 136, 196, 198
    A_Q, A_K, A_V, A_S, A_P, A_O, A_T = 64, 80, 96, 112, 144, 208, 192
    F_ACC, F_BUF, F_AA, F_AB, F_AO = 64, 136, 199, 200, 202

    def __init__(self, diag=False, opts=None):
        super().__init__(fused=True, diag=diag)
        self.o = dict(prefetch=0, tlb=0, lead=3, nt=0, gsleep=4, ldsc1=1, xmap=0, light=0, w1a=1024, rot=22, lngood=0, codepf=0, outpol=0, pfw1=1, pfw2=1, pfw0=1, gsolo=1, lsleep=1, prio=0, s0cut=8, pfW=1, qdist=1)
        self.o.update(opts or {})

    def stamp(self, a, k, bump=False):
        if not self.o["light"]:
            super().stamp(a, k, bump)

    def diag_dump(self, a, kidx):
        wg = self.o.get("dbgout")
        if wg is None:
            return super().diag_dump(a, kidx)
        lab = a.uid("Ldbg")
        a(f"""
        s_cmp_lg_u32 s{sWg}, {wg}
        s_cbranch_scc1 {lab}
        s_cmp_lg_u32 s{sWv}, 0
        s_cbranch_scc1 {lab}
        v_readlane_b32 s{sT0}, v{self.DV + 1}, 0
        v_lshlrev_b32 v1, 2, v0
        v_mov_b32 v3, {OOB}
        v_subrev_u32 v2, s{sT0}, v{self.DV + 1}
        v_cmp_gt_u32 vcc, 16, v0
        v_cndmask_b32 v1, v3, v1, vcc
        v_cmp_eq_u32 vcc, 0, v0
        v_cndmask_b32 v1, v1, v3, vcc
        buffer_store_dword v2, v1, s[{sDBG}:{sDBG + 3}], 0 offen
        """)
        a.label(lab)

    def mark(self, a):
        if self.diag and self.o["light"]:
            if self.o.get("rt"):
                a(f"s_memrealtime s[98:99]\ns_mov_b32 m0, s{self.sStg}\ns_waitcnt lgkmcnt(0)\nv_writelane_b32 v{self.DV + 1}, s98, m0\ns_add_u32 s{self.sStg}, s{self.sStg}, 1")
            else:
                B.Gen.stamp(self, a, 1, True)

    SRDS = ((sX, 0, 2048 * 1280), (sW, 8, 640 * 3840), (sWO, 16, 640 * 1280), (sW1, 32, 2048 * 3072),
            (sB1, 40, 1536 * 2), (sW2, 48, 1536 * 4096), (sB2, 56, 2048 * 2), (sOUT, 64, 2048 * 1280),
            (sDBG, 72, 256), (sWS, 80, WS_USED))

    def prologue(self, a, lab):
        a(f"s_cmp_ge_u32 s2, 256\ns_cbranch_scc1 {lab}_end")
        for srd, off, size in self.SRDS:
            a(f"s_load_dwordx2 s[{srd}:{srd + 1}], s[0:1], {off}")
        body = Asm()
        B.Gen.prologue(self, body, lab)
        items = body.items
        first = next(k for k, it in enumerate(items) if it.mn == "v_lshrrev_b32")
        last = next(k for k, it in enumerate(items) if it.mn == "s_waitcnt")
        a.items += items[first:last]
        for srd, off, size in self.SRDS:
            if srd == sWS and self.diag:
                size *= 2
            a(f"s_mov_b32 s{srd + 2}, {size}\ns_mov_b32 s{srd + 3}, 0x00020000")
        if self.o["lngood"]:
            a(f"""
            s_lshr_b32 s{sT0}, s{sWg}, 6
            s_lshr_b32 s{sT1}, s{sWg}, 1
            s_xor_b32 s{sT1}, s{sT1}, s{sT0}
            s_and_b32 s{sT1}, s{sT1}, 1
            s_xor_b32 s{sLnOn}, s{sT1}, 1
            s_and_b32 s{sT1}, s{sWg}, 7
            s_lshl_b32 s{sLnIdx}, s{sT1}, 4
            s_lshr_b32 s{sT0}, s{sT0}, 1
            s_lshl_b32 s{sT0}, s{sT0}, 3
            s_add_u32 s{sLnIdx}, s{sLnIdx}, s{sT0}
            s_lshr_b32 s{sT0}, s{sWg}, 3
            s_and_b32 s{sT0}, s{sT0}, 7
            s_add_u32 s{sLnIdx}, s{sLnIdx}, s{sT0}
            """)
        else:
            a(f"s_mov_b32 s{sLnOn}, 1\ns_mov_b32 s{sLnIdx}, s{sWg}")
        self.rot_consts(a)
        if not self.o["xmap"]:
            return
        a(f"""
        s_and_b32 s{sT0}, s{sWg}, 7
        s_lshr_b32 s{sT1}, s{sWg}, 3
        s_lshl_b32 s{sSt}, s{sT0}, 2
        s_and_b32 s{sT2}, s{sT1}, 3
        s_add_u32 s{sSt}, s{sSt}, s{sT2}
        s_lshr_b32 s{sDt}, s{sT1}, 2
        s_cmp_lt_u32 s{sT1}, 30
        s_cselect_b32 s{sT2}, 0, 30
        s_sub_u32 s{sT1}, s{sT1}, s{sT2}
        s_mul_i32 s{sT2}, s{sT1}, 26
        s_lshr_b32 s{sT2}, s{sT2}, 8
        s_mul_i32 s{sT3}, s{sT2}, 10
        s_sub_u32 s{sDt1}, s{sT1}, s{sT3}
        s_mul_i32 s{sFt}, s{sT0}, 3
        s_add_u32 s{sFt}, s{sFt}, s{sT2}
        """)

    def smod(self, a, r, n, times):
        for _ in range(times):
            a(f"s_cmp_ge_u32 s{r}, {n}\ns_cselect_b32 s{sT5}, {n}, 0\ns_sub_u32 s{r}, s{r}, s{sT5}")

    def rot_consts(self, a):
        if not self.o["rot"]:
            for r in (sRq, sRm, sRf, sRw):
                a(f"s_mov_b32 s{r}, 0")
            return
        a(f"""
        s_lshr_b32 s{sT0}, s{sWg}, 3
        s_and_b32 s{sT1}, s{sT0}, 7
        s_lshr_b32 s{sT2}, s{sT0}, 3
        s_mul_i32 s{sT3}, s{sT2}, 3
        s_add_u32 s{sRq}, s{sT1}, s{sT3}
        s_mul_i32 s{sRf}, s{sT1}, 5
        s_add_u32 s{sRf}, s{sRf}, s{sT3}
        s_lshl_b32 s{sRw}, s{sT2}, 1
        s_add_u32 s{sRw}, s{sRw}, s{sT1}
        s_mul_i32 s{sRm}, s{sFt}, 3
        s_mul_i32 s{sT3}, s{sDt1}, 5
        s_add_u32 s{sRm}, s{sRm}, s{sT3}
        s_and_b32 s{sRm}, s{sRm}, 7
        """)
        self.smod(a, sRq, 10, 1)
        self.smod(a, sRf, 12, 3)
        self.smod(a, sRw, 5, 2)
        for bit, r in ((1, sRq), (2, sRm), (4, sRf), (8, sRw)):
            if not self.o["rot"] & bit:
                a(f"s_mov_b32 s{r}, 0")

    def wrap(self, a, kc, n, offs):
        a(f"s_add_u32 s{kc}, s{kc}, 1\ns_cmp_eq_u32 s{kc}, {n}\ns_cselect_b32 s{kc}, 0, s{kc}")
        for k, (reg, step) in enumerate(offs):
            a(f"s_cselect_b32 s{sT1 + k}, {n * step}, 0")
        for k, (reg, step) in enumerate(offs):
            a(f"s_sub_u32 s{reg}, s{reg}, s{sT1 + k}")

    def lead_order(self, a, n_chunks, period, jreg, offs):
        d = self.o["qdist"]
        a(f"""
        s_and_b32 s{sT1}, s{sKt}, {period - 1}
        s_cmp_eq_u32 s{sT1}, s{jreg}
        s_cselect_b32 s{sT2}, {d}, 0
        s_cmp_ge_u32 s{sKt}, {n_chunks - d}
        s_cselect_b32 s{sT2}, 0, s{sT2}
        s_sub_u32 s{sT1}, s{sKt}, {d}
        s_and_b32 s{sT1}, s{sT1}, {period - 1}
        s_cmp_eq_u32 s{sT1}, s{jreg}
        s_cselect_b32 s{sT3}, {d}, 0
        s_cmp_lt_u32 s{sKt}, {d}
        s_cselect_b32 s{sT3}, 0, s{sT3}
        s_add_u32 s{sT2}, s{sT2}, s{sKt}
        s_sub_u32 s{sT2}, s{sT2}, s{sT3}
        s_add_u32 s{sKt}, s{sKt}, 1
        """)
        for reg, base, step in offs:
            a(f"s_mul_i32 s{sT1}, s{sT2}, {step}\ns_add_u32 s{reg}, s{base}, s{sT1}")

    def q_init(self, a):
        a(f"""
        s_lshl_b32 s{sOffA}, s{sI}, 7
        s_lshl_b32 s{sT0}, s{sLw}, 3
        s_add_u32 s{sOffA}, s{sOffA}, s{sT0}
        s_mul_i32 s{sOffA}, s{sOffA}, 1280
        s_mul_i32 s{sOffB}, s{sLw}, {4 * 3840}
        """)
        if self.o["rot"] & 16:
            a(f"""
            s_mov_b32 s{sBaseA}, s{sOffA}
            s_mov_b32 s{sBaseB}, s{sOffB}
            s_mov_b32 s{sKt}, 0
            s_lshr_b32 s{sT0}, s{sWg}, 3
            s_lshr_b32 s{sT1}, s{sT0}, 3
            s_add_u32 s{sT0}, s{sT0}, s{sT1}
            s_and_b32 s{sRq}, s{sT0}, 3
            """)
            return
        a(f"""
        s_mov_b32 s{sKcA}, s{sRq}
        s_lshl_b32 s{sT0}, s{sRq}, 7
        s_add_u32 s{sOffA}, s{sOffA}, s{sT0}
        s_mul_i32 s{sT0}, s{sRq}, {64 * 3840}
        s_add_u32 s{sOffB}, s{sOffB}, s{sT0}
        """)

    def q_issue(self, a):
        if self.o["rot"] & 16:
            self.lead_order(a, 10, 4, sRq, [(sOffA, sBaseA, 128), (sOffB, sBaseB, 64 * 3840)])
            super().q_issue(a)
            return
        super().q_issue(a)
        self.wrap(a, sKcA, 10, [(sOffA, 128), (sOffB, 64 * 3840)])

    def m_init(self, a):
        super().m_init(a)
        a(f"""
        s_mov_b32 s{sKcA}, s{sRm}
        s_mov_b32 s{sKt}, 0
        s_mul_i32 s{sT0}, s{sRm}, {128 * 1280}
        s_add_u32 s{sOffA}, s{sOffA}, s{sT0}
        s_mul_i32 s{sT0}, s{sRm}, {128 * 3072}
        s_add_u32 s{sOffB}, s{sOffB}, s{sT0}
        """)

    def m_issue(self, a):
        super().m_issue(a)
        self.wrap(a, sKcA, 8, [(sOffA, 128 * 1280), (sOffB, 128 * 3072)])
        a(f"s_add_u32 s{sKt}, s{sKt}, 1\ns_cmp_eq_u32 s{sKt}, 8")
        a(f"""
        s_cselect_b32 s{sT1}, {8 * 128 * 1280}, 0
        s_cselect_b32 s{sT2}, {8 * 128 * 3072}, 0
        s_add_u32 s{sOffA}, s{sOffA}, s{sT1}
        s_add_u32 s{sOffB}, s{sOffB}, s{sT2}
        """)

    def f_init(self, a):
        super().f_init(a)
        a(f"""
        s_mov_b32 s{sKcA}, s{sRf}
        s_mov_b32 s{sKcB}, s{sRf}
        s_mul_i32 s{sT0}, s{sRf}, {128 * 160}
        s_add_u32 s{sOffA}, s{sOffA}, s{sT0}
        s_mul_i32 s{sT0}, s{sRf}, {128 * 4096}
        s_add_u32 s{sOffB}, s{sOffB}, s{sT0}
        """)

    def f_issue_w2(self, a):
        super().f_issue_w2(a)
        self.wrap(a, sKcB, 12, [(sOffB, 128 * 4096)])

    def f_issue_g(self, a):
        super().f_issue_g(a)
        self.wrap(a, sKcA, 12, [(sOffA, 128 * 160)])

    def wo_init(self, a):
        super().wo_init(a)
        a(f"""
        s_mov_b32 s{sKcA}, s{sRw}
        s_mul_i32 s{sT0}, s{sRw}, {128 * 1280}
        s_add_u32 s{sOffA}, s{sOffA}, s{sT0}
        s_lshl_b32 s{sT0}, s{sRw}, 8
        s_add_u32 s{sOffB}, s{sOffB}, s{sT0}
        """)

    def wo_issue(self, a):
        super().wo_issue(a)
        self.wrap(a, sKcA, 5, [(sOffA, 128 * 1280), (sOffB, 256)])

    def only_w0(self, a, fn):
        lab = a.uid("Lw0")
        a(f"s_cmp_lg_u32 s{sLw}, 0\ns_cbranch_scc1 {lab}")
        fn()
        a.label(lab)

    def nonce_load(self, a):
        a(f"s_load_dword s{sNonce}, s[{sWS}:{sWS + 1}], {WS_EPOCH}")

    def nonce_make(self, a):
        a(f"""
        s_waitcnt lgkmcnt(0)
        s_mul_i32 s{sNonce}, s{sNonce}, 1664525
        s_add_u32 s{sNonce}, s{sNonce}, 1013904223
        """)

    def flag_set(self, a, off):
        a(f"s_atomic_swap s{sNonce}, s[{sWS}:{sWS + 1}], s{off}")

    def poll_issue(self, a, vaddr, n=1):
        r = self.LV_PR
        if n == 1:
            a(f"buffer_load_dword v{r}, v{vaddr}, s[{sWS}:{sWS + 3}], 0 offen sc1")
        else:
            a(f"buffer_load_dwordx4 v[{r}:{r + 3}], v{vaddr}, s[{sWS}:{sWS + 3}], 0 offen sc1")

    def poll_test(self, a, n):
        r = self.LV_PR
        a(f"v_cmp_eq_u32 s[{sT0}:{sT0 + 1}], s{sNonce}, v{r}")
        for k in range(1, n):
            a(f"v_cmp_eq_u32 s[{sT2}:{sT2 + 1}], s{sNonce}, v{r + k}")
            a(f"s_and_b64 s[{sT0}:{sT0 + 1}], s[{sT0}:{sT0 + 1}], s[{sT2}:{sT2 + 1}]")
        a(f"s_cmp_eq_u64 s[{sT0}:{sT0 + 1}], exec")

    def poll_check(self, a, vaddr, n=1, sleep=8):
        ok, sp = a.uid("Lpok"), a.uid("Lspin")
        self.poll_test(a, n)
        a(f"s_cbranch_scc1 {ok}")
        self.spin(a, vaddr, n, ok, sp, sleep)
        a.label(ok)

    def spin(self, a, vaddr, n, ok, sp, sleep):
        a(f"s_mov_b32 s{sT6}, {SPIN_MAX}")
        a.label(sp)
        a(f"s_sleep {sleep}")
        self.poll_issue(a, vaddr, n)
        a("s_waitcnt vmcnt(0)")
        self.poll_test(a, n)
        a(f"s_cbranch_scc1 {ok}")
        a(f"s_sub_u32 s{sT6}, s{sT6}, 1\ns_cmp_lg_u32 s{sT6}, 0\ns_cbranch_scc1 {sp}")

    LV_PLA, LV_PKV, LV_PG, LV_PO, LV_PLB, LV_PR = 14, 15, 16, 17, 18, 24
    LV_P1, LV_P2, LV_DUMMY = 100, 103, 96

    def loader_poll_addrs(self, a):
        t0, t1, t2, t3 = 20, 21, 22, 23
        a(f"""
        v_lshrrev_b32 v{t0}, 4, v0
        v_mov_b32 v{t1}, s{sI}
        v_cmp_eq_u32 vcc, 3, v{t0}
        v_cndmask_b32 v{t0}, v{t0}, v{t1}, vcc
        v_lshlrev_b32 v{t0}, 6, v{t0}
        v_and_b32 v{t1}, 15, v0
        v_lshl_add_u32 v{t0}, v{t1}, 2, v{t0}
        v_add_u32 v{self.LV_PLA}, {FL_LN}, v{t0}
        v_and_b32 v{t0}, {31 if self.o["lngood"] else 63}, v0
        v_lshlrev_b32 v{t0}, 4, v{t0}
        v_add_u32 v{self.LV_PLB}, {FL_LN}, v{t0}
        v_and_b32 v{t0}, 3, v0
        v_min_u32 v{t0}, 2, v{t0}
        v_sub_u32 v{t0}, s{sI}, v{t0}
        v_max_i32 v{t0}, 0, v{t0}
        v_bfe_u32 v{t1}, v0, 2, 1
        v_lshlrev_b32 v{t1}, 3, v{t1}
        s_lshr_b32 s{sT0}, s{sP}, 1
        v_add_u32 v{t1}, s{sT0}, v{t1}
        v_lshl_add_u32 v{t0}, v{t1}, 4, v{t0}
        v_lshlrev_b32 v{t0}, 2, v{t0}
        v_add_u32 v{self.LV_PKV}, {FL_KV}, v{t0}
        v_and_b32 v{t0}, 15, v0
        s_lshr_b32 s{sT0}, s{sSt}, 1
        s_lshl_b32 s{sT0}, s{sT0}, 4
        v_add_u32 v{t0}, s{sT0}, v{t0}
        v_lshlrev_b32 v{t0}, 2, v{t0}
        v_add_u32 v{self.LV_PO}, {FL_O}, v{t0}
        v_min_u32 v{t0}, 47, v0
        v_mul_u32_u24 v{t1}, 2731, v{t0}
        v_lshrrev_b32 v{t1}, 16, v{t1}
        v_mul_u32_u24 v{t2}, 24, v{t1}
        v_sub_u32 v{t2}, v{t0}, v{t2}
        s_mul_i32 s{sT0}, s{sDt}, 80
        s_lshr_b32 s{sT0}, s{sT0}, 6
        v_add_u32 v{t1}, s{sT0}, v{t1}
        v_lshlrev_b32 v{t1}, 2, v{t1}
        v_lshl_add_u32 v{t1}, v{t2}, 6, v{t1}
        s_and_b32 s{sT0}, s{sWg}, 7
        s_mul_i32 s{sT0}, s{sT0}, 1536
        s_add_u32 s{sT0}, s{sT0}, {FL_G}
        v_add_u32 v{self.LV_PG}, s{sT0}, v{t1}
        s_cmp_eq_u32 s{sLw}, 0
        s_cselect_b32 s{sT0}, 0, {OOB}
        """)
        for r in (self.LV_PLA, self.LV_PLB, self.LV_PKV, self.LV_PO, self.LV_PG):
            a(f"v_add_u32 v{r}, s{sT0}, v{r}")

    def loader_prefetch_consts(self, a):
        t0, t1, t2 = 20, 21, 22
        for t in range(3):
            a(f"""
            v_add_u32 v{t0}, {64 * t}, v0
            v_mul_u32_u24 v{t1}, 2731, v{t0}
            v_lshrrev_b32 v{t1}, 16, v{t1}
            v_mul_u32_u24 v{t2}, 24, v{t1}
            v_sub_u32 v{t2}, v{t0}, v{t2}
            v_lshlrev_b32 v{t2}, 4, v{t2}
            v_mul_u32_u24 v{t1}, 3072, v{t1}
            v_add_u32 v{self.LV_P1 + t}, v{t1}, v{t2}
            """)
        a(f"""
        v_lshrrev_b32 v{t0}, 5, v0
        v_lshlrev_b32 v{t0}, 12, v{t0}
        v_and_b32 v{t1}, 31, v0
        v_lshl_add_u32 v{self.LV_P2}, v{t1}, 4, v{t0}
        """)

    def code_prefetch(self, a):
        if not self.o["codepf"]:
            return 0
        d = self.LV_DUMMY
        lab = a.uid("Lpc")
        a(f"s_getpc_b64 s[{sT2}:{sT2 + 1}]")
        a.label(lab)
        a(f"""
        s_lshr_b32 s{sT0}, s{sWg}, 3
        s_lshl_b32 s{sT0}, s{sT0}, 10
        s_lshl_b32 s{sT1}, s{sLw}, 15
        s_add_u32 s{sT0}, s{sT0}, s{sT1}
        v_lshl_add_u32 v20, v0, 4, s{sT0}
        s_sub_u32 s{sT2}, s{sT2}, {lab}-{NAME}_kernel
        s_subb_u32 s{sT2 + 1}, s{sT2 + 1}, 0
        v_min_u32 v20, CODE_BYTES-16, v20
        v_mov_b32 v21, s{sT2 + 1}
        v_add_co_u32 v20, vcc, s{sT2}, v20
        v_addc_co_u32 v21, vcc, 0, v21, vcc
        global_load_dwordx4 v[{d}:{d + 3}], v[20:21], off
        """)
        return 1

    def tlb_touch(self, a):
        if not self.o["tlb"]:
            return 0
        d = self.LV_DUMMY
        a(f"v_lshlrev_b32 v20, 21, v0")
        for srd in (sW1, sW2, sWS, sWO, sOUT):
            a(f"buffer_load_dword v{d}, v20, s[{srd}:{srd + 3}], 0 offen")
        return 5

    def pf_range(self, a, srd, start, nbytes):
        d = self.LV_DUMMY
        share = nbytes // 256
        per_wave = -(-share // 4096)
        a(f"""
        s_mul_i32 s{sT0}, s{sWg}, {share}
        s_mul_i32 s{sT1}, s{sLw}, {per_wave * 1024}
        s_add_u32 s{sT0}, s{sT0}, s{sT1}
        s_add_u32 s{sT0}, s{sT0}, {start}
        """)
        for k in range(per_wave):
            a(f"buffer_load_dwordx4 v[{d}:{d + 3}], v{self.LV_LIN}, s[{srd}:{srd + 3}], s{sT0} offen offset:{(k % 4) * 1024}")
            if k % 4 == 3:
                a(f"s_add_u32 s{sT0}, s{sT0}, 4096")
        return per_wave

    def pf_w1(self, a):
        if not self.o["prefetch"]:
            return 0
        d = self.LV_DUMMY
        a(f"""
        s_lshr_b32 s{sT0}, s{sWg}, 3
        s_lshl_b32 s{sT0}, s{sT0}, 6
        s_lshl_b32 s{sT1}, s{sLw}, 4
        s_add_u32 s{sT0}, s{sT0}, s{sT1}
        s_mul_i32 s{sT0}, s{sT0}, 3072
        s_and_b32 s{sT1}, s{sWg}, 7
        s_mul_i32 s{sT1}, s{sT1}, 384
        s_add_u32 s{sT0}, s{sT0}, s{sT1}
        """)
        for k in range(6):
            if k == 3:
                a(f"s_add_u32 s{sT0}, s{sT0}, {8 * 3072}")
            a(f"buffer_load_dwordx4 v[{d}:{d + 3}], v{self.LV_P1 + k % 3}, s[{sW1}:{sW1 + 3}], s{sT0} offen nt")
        return 6

    def pf_w2(self, a):
        if not self.o["prefetch"]:
            return 0
        d = self.LV_DUMMY
        a(f"""
        s_lshr_b32 s{sT0}, s{sWg}, 3
        s_mul_i32 s{sT0}, s{sT0}, 48
        s_mul_i32 s{sT1}, s{sLw}, 12
        s_add_u32 s{sT0}, s{sT0}, s{sT1}
        s_lshl_b32 s{sT0}, s{sT0}, 12
        s_and_b32 s{sT1}, s{sWg}, 7
        s_lshl_b32 s{sT1}, s{sT1}, 9
        s_add_u32 s{sT0}, s{sT0}, s{sT1}
        """)
        for k in range(6):
            a(f"buffer_load_dwordx4 v[{d}:{d + 3}], v{self.LV_P2}, s[{sW2}:{sW2 + 3}], s{sT0} offen nt")
            a(f"s_add_u32 s{sT0}, s{sT0}, 8192")
        return 6

    def dma(self, a, srd, voff, soff, add, lds_add, dep=False):
        if self.o.get("fakeh") and voff == self.LV_H:
            a(f"""
            s_add_u32 m0, s{sSW}, {lds_add}
            s_add_u32 s{sT0}, s{soff}, {add - WS_H}
            buffer_load_dwordx4 v{voff}, s[{sX}:{sX + 3}], s{sT0} offen lds
            """)
            return
        pol = ("sc1 " if self.o["ldsc1"] else "") if dep else ("nt " if (srd in (sW1, sW2) and self.o["nt"]) else "")
        a(f"""
        s_add_u32 m0, s{sSW}, {lds_add}
        s_add_u32 s{sT0}, s{soff}, {add}
        buffer_load_dwordx4 v{voff}, s[{srd}:{srd + 3}], s{sT0} offen {pol}lds
        """)

    def lds_spin(self, a, word, target):
        ok, sp = a.uid("Llok"), a.uid("Llspin")
        r = self.LV_PR
        a(f"v_mov_b32 v{r + 1}, {SCR_CNT + 4 * word}\ns_mov_b32 s{sT6}, {SPIN_MAX}")
        a.label(sp)
        a(f"""
        ds_read_b32 v{r}, v{r + 1}
        s_waitcnt lgkmcnt(0)
        v_readfirstlane_b32 s{sT0}, v{r}
        s_cmp_ge_u32 s{sT0}, {target}
        s_cbranch_scc1 {ok}
        s_sleep {self.o["lsleep"]}
        s_sub_u32 s{sT6}, s{sT6}, 1
        s_cmp_lg_u32 s{sT6}, 0
        s_cbranch_scc1 {sp}
        """)
        a.label(ok)

    LN_RAW, LN_F, LN_OFF = 64, 76, 100

    def ln_passes(self):
        return 2 if self.o["lngood"] else 1

    def ln_loads(self, a):
        off = self.LN_OFF
        n = self.ln_passes()
        a(f"""
        s_mul_i32 s{sT0}, s{sLnIdx}, {8 * n}
        s_mul_i32 s{sT1}, s{sLw}, {2 * n}
        s_add_u32 s{sT0}, s{sT0}, s{sT1}
        v_lshrrev_b32 v{off + 1}, 5, v0
        v_add_u32 v{off + 1}, s{sT0}, v{off + 1}
        v_and_b32 v{off + 2}, 31, v0
        v_lshlrev_b32 v{off + 2}, 3, v{off + 2}
        v_mul_u32_u24 v{off}, 1280, v{off + 1}
        v_add_u32 v{off}, v{off}, v{off + 2}
        """)
        for ps in range(n):
            raw = self.LN_RAW + 54 * ps
            for j in range(5):
                a(f"buffer_load_dwordx2 v[{raw + 2 * j}:{raw + 2 * j + 1}], v{off}, s[{sX}:{sX + 3}], 0 offen offset:{2560 * ps + 256 * j}")

    def ln_compute(self, a):
        for ps in range(self.ln_passes()):
            self.ln_pass(a, ps)

    def ln_pass(self, a, ps):
        raw, f, off = self.LN_RAW + 54 * ps, self.LN_F, self.LN_OFF
        acc, t, sc, keep = 104, 108, 112, 116
        P = lambda r: f"v[{r}:{r + 1}]"

        def unpack():
            for d in range(10):
                a(f"v_lshlrev_b32 v{f + 2 * d}, 16, v{raw + d}\nv_and_b32 v{f + 2 * d + 1}, s{sT3}, v{raw + d}")

        def stats():
            a(f"v_pk_add_f32 {P(acc)}, {P(f)}, {P(f + 2)}\nv_pk_mul_f32 {P(acc + 2)}, {P(f)}, {P(f)}")
            a(f"v_pk_fma_f32 {P(acc + 2)}, {P(f + 2)}, {P(f + 2)}, {P(acc + 2)}")
            for d in range(2, 10):
                a(f"v_pk_add_f32 {P(acc)}, {P(acc)}, {P(f + 2 * d)}")
                a(f"v_pk_fma_f32 {P(acc + 2)}, {P(f + 2 * d)}, {P(f + 2 * d)}, {P(acc + 2)}")
            a(f"v_add_f32 v{acc}, v{acc}, v{acc + 1}\nv_add_f32 v{acc + 2}, v{acc + 2}, v{acc + 3}\nv_nop")
            for r in (8, 4, 2, 1):
                a(f"v_add_f32_dpp v{acc}, v{acc}, v{acc} row_ror:{r} row_mask:0xf bank_mask:0xf")
                a(f"v_add_f32_dpp v{acc + 2}, v{acc + 2}, v{acc + 2} row_ror:{r} row_mask:0xf bank_mask:0xf")
                a("v_nop")
            a(f"""
            v_mov_b32 v{t}, v{acc}
            v_mov_b32 v{t + 1}, v{acc}
            v_mov_b32 v{t + 2}, v{acc + 2}
            v_mov_b32 v{t + 3}, v{acc + 2}
            v_permlane16_swap_b32 v{t}, v{t + 1}
            v_permlane16_swap_b32 v{t + 2}, v{t + 3}
            v_add_f32 v{acc}, v{t}, v{t + 1}
            v_add_f32 v{acc + 2}, v{t + 2}, v{t + 3}
            v_mul_f32 v{acc}, {f32(1 / 640)}, v{acc}
            v_mov_b32 v{t}, {f32(1e-5)}
            v_fmac_f32 v{t}, {f32(1 / 640)}, v{acc + 2}
            v_fma_f32 v{t}, -v{acc}, v{acc}, v{t}
            v_max_f32 v{t}, {f32(1e-5)}, v{t}
            v_rsq_f32 v{sc}, v{t}
            v_mul_f32 v{sc + 1}, v{acc}, v{sc}
            """)

        def scale_pack(dst):
            for d in range(10):
                a(f"v_pk_fma_f32 {P(f + 2 * d)}, {P(f + 2 * d)}, {P(sc)}, {P(sc)} op_sel:[0,0,1] op_sel_hi:[1,0,1] neg_lo:[0,0,1] neg_hi:[0,0,1]")
            for d in range(10):
                a(f"v_cvt_pk_bf16_f32 v{dst + d}, v{f + 2 * d}, v{f + 2 * d + 1}")

        a(f"s_mov_b32 s{sT3}, 0xffff0000\ns_waitcnt vmcnt({5 * (self.ln_passes() - 1 - ps)})")
        unpack()
        stats()
        H = self.LN_H + 14 * ps
        a(f"v_mov_b32 v{H + 10}, v{acc}\nv_mov_b32 v{H + 11}, v{sc}")
        scale_pack(raw)
        unpack()
        stats()
        scale_pack(H)
        a(f"""
        v_add_u32 v{H + 12}, {WS_H + 2560 * ps}, v{off}
        v_lshlrev_b32 v{off + 4}, 3, v{off + 1}
        v_add_u32 v{off + 4}, {WS_STATS + 16 * ps}, v{off + 4}
        v_and_b32 v{off + 2}, 31, v0
        v_mov_b32 v{off + 3}, {OOB}
        v_cmp_eq_u32 vcc, 0, v{off + 2}
        v_cndmask_b32 v{H + 13}, v{off + 3}, v{off + 4}, vcc
        """)

    LN_H = 212

    def ln_stores(self, a):
        if self.o.get("nolnst"):
            return
        lab = a.uid("Lnoln")
        a(f"s_cmp_eq_u32 s{sLnOn}, 0\ns_cbranch_scc1 {lab}")
        for ps in range(self.ln_passes()):
            H = self.LN_H + 14 * ps
            for j in range(5):
                a(f"buffer_store_dwordx2 v[{H + 2 * j}:{H + 2 * j + 1}], v{H + 12}, s[{sWS}:{sWS + 3}], 0 offen offset:{256 * j} sc1")
            a(f"buffer_store_dwordx2 v[{H + 10}:{H + 11}], v{H + 13}, s[{sWS}:{sWS + 3}], 0 offen sc1")
        a.label(lab)

    def loader_consts_first(self, a):
        X, W, LIN = self.LV_X, self.LV_W, self.LV_LIN
        t0, t1, t2, t3 = 20, 21, 22, 23
        a(f"""
        v_lshrrev_b32 v{t0}, 3, v0
        v_and_b32 v{t1}, 7, v0
        v_lshrrev_b32 v{t2}, 1, v{t0}
        s_and_b32 s{sT0}, s{sLw}, 1
        s_lshl_b32 s{sT0}, s{sT0}, 2
        v_or_b32 v{t3}, s{sT0}, v{t2}
        v_xor_b32 v{t3}, v{t3}, v{t1}
        v_lshlrev_b32 v{t3}, 4, v{t3}
        v_mul_u32_u24 v{X}, 1280, v{t0}
        v_add_u32 v{X}, v{X}, v{t3}
        v_lshlrev_b32 v{LIN}, 4, v0
        v_lshrrev_b32 v{t0}, 4, v0
        v_and_b32 v{t1}, 15, v0
        v_lshlrev_b32 v{t2}, 2, v{t0}
        v_xor_b32 v{t2}, v{t2}, v{t1}
        v_min_u32 v{t2}, 14, v{t2}
        s_mul_i32 s{sT0}, s{sP}, 80
        s_mul_i32 s{sT1}, s{sP}, 160
        s_add_u32 s{sT1}, s{sT1}, 1200
        v_mov_b32 v{t3}, s{sT0}
        v_mov_b32 v{W}, s{sT1}
        v_cmp_lt_u32 vcc, 4, v{t2}
        v_cndmask_b32 v{t3}, v{t3}, v{W}, vcc
        v_lshl_add_u32 v{t2}, v{t2}, 4, v{t3}
        v_mul_u32_u24 v{W}, 3840, v{t0}
        v_add_u32 v{W}, v{W}, v{t2}
        """)

    def loader_consts(self, a):
        body = Asm()
        super().loader_consts(body)
        a.items += [it for it in body.items
                    if not (it.kind == "valu" and it.wr & {("v", self.LV_W), ("v", self.LV_X), ("v", self.LV_LIN)})]

    def xt_issue(self, a):
        a(f"""
        s_lshl_b32 s{sT1}, s{sSt}, 6
        s_lshr_b32 s{sT2}, s{sLw}, 1
        s_lshl_b32 s{sT3}, s{sT2}, 5
        s_add_u32 s{sT1}, s{sT1}, s{sT3}
        s_mul_i32 s{sT1}, s{sT1}, 1280
        s_mul_i32 s{sT3}, s{sDt}, 160
        s_add_u32 s{sT1}, s{sT1}, s{sT3}
        s_mul_i32 s{sT2}, s{sT2}, 5120
        s_add_u32 s{sT2}, s{sT2}, {SCR}
        s_and_b32 s{sT3}, s{sLw}, 1
        """)

        def path(par):
            for t in ((0, 1, 2) if par == 0 else (3, 4, 4)):
                a(f"""
                s_add_u32 m0, s{sT2}, {t * 1024}
                s_nop 0
                buffer_load_dwordx4 v{self.LV_WO + t}, s[{sX}:{sX + 3}], s{sT1} offen lds
                """)
        self.by_scalar(a, sT3, path)

    def loader(self, a):
        W = lambda n: self.wait_bar(a, n)

        def Wchk(n, chk):
            self.stamp(a, 0)
            a(f"s_waitcnt vmcnt({n})")
            self.only_w0(a, chk)
            self.stamp(a, 1)
            a("s_barrier")
            self.stamp(a, 2, bump=True)
        self.loader_consts_first(a)
        a(f"s_mov_b32 s{sSlot}, 0")
        self.q_init(a)
        a("s_waitcnt lgkmcnt(0)")
        self.mark(a)
        s0 = Asm()
        self.q_issue(s0)
        dmas = [k for k, it in enumerate(s0.items) if it.kind == "dma"]
        cut = dmas[self.o["s0cut"] - 1] + 1
        a.items += s0.items[:cut]
        if self.o["pfW"]:
            self.pf_range(a, sW, 0, 640 * 3840)
        self.nonce_load(a)
        self.loader_consts(a)
        self.loader_poll_addrs(a)
        a.items += s0.items[cut:]
        nT = self.tlb_touch(a) + self.code_prefetch(a)
        self.nonce_make(a)
        lead = self.o["lead"]
        self.q_issue(a)
        if lead == 3:
            self.q_issue(a)
        self.mark(a)
        L = 8 * (lead - 1)
        n0 = self.pf_range(a, sW1, 0, 1024 * 3072) if self.o["pfw0"] else 0
        W(L + n0 + (0 if lead == 3 else nT)); self.q_issue(a)
        self.mark(a)
        W(L + n0); self.q_issue(a)
        W(L + (n0 if lead == 3 else 0))

        def ln_done():
            skip = a.uid("Llnoff")
            a(f"s_cmp_eq_u32 s{sLnOn}, 0\ns_cbranch_scc1 {skip}")
            a(f"s_lshl_b32 s{sT4}, s{sLnIdx}, 2\ns_add_u32 s{sT4}, s{sT4}, {FL_LN}")
            self.flag_set(a, sT4)
            a.label(skip)
            a(f"s_mov_b32 s{sArr}, 1\ns_atomic_add s{sArr}, s[{sDBG}:{sDBG + 1}], 0x0 glc")
        self.only_w0(a, ln_done)
        self.q_issue(a)
        W(L); self.q_issue(a)
        W(L); self.q_issue(a)
        W(L); self.q_issue(a)
        W(L)
        self.poll_issue(a, self.LV_PLB, 4)
        chk = lambda: self.poll_check(a, self.LV_PLB, 4)
        if lead == 2:
            self.q_issue(a)
            W(9)
            self.q_issue(a)
            Wchk(8, chk)
            self.m_init(a)
            self.m_issue(a)
            W(8); self.m_issue(a)
            self.m_issue(a)
        else:
            self.q_issue(a)
            W(17)
            Wchk(8, chk)
            self.m_init(a)
            self.m_issue(a)
            W(8); self.m_issue(a)
            self.m_issue(a)
        self.mark(a)
        n1b = self.pf_range(a, sW1, 1024 * 3072, 1024 * 3072) if self.o["pfw1"] else 0
        if self.o.get("touch"):
            n1b += self.pf_range(a, sWS, WS_GT, 8 * 1536 * 160)
            n1b += self.pf_range(a, sWS, WS_O, 2048 * 1280)
        a("s_barrier")
        a("s_barrier")
        self.kv_copy_out(a)

        def ln_all():
            lab = a.uid("Lep")
            a(f"s_waitcnt lgkmcnt(0)\ns_cmp_lg_u32 s{sArr}, 255\ns_cbranch_scc1 {lab}")
            a(f"s_mov_b32 s{sT4}, {WS_EPOCH}")
            self.flag_set(a, sT4)
            a.label(lab)
        Wchk(22 + n1b, ln_all)
        self.m_issue(a)
        W(22 + n1b); self.m_issue(a)
        W(16)

        def kv_done():
            a(f"""
            s_lshl_b32 s{sT4}, s{sP}, 4
            s_add_u32 s{sT4}, s{sT4}, s{sI}
            s_lshl_b32 s{sT4}, s{sT4}, 2
            s_add_u32 s{sT4}, s{sT4}, {FL_KV}
            """)
            self.flag_set(a, sT4)
        self.only_w0(a, kv_done)
        self.m_issue(a)
        self.loop(a, 7, lambda: (W(16), self.m_issue(a)))
        W(16)
        self.poll_issue(a, self.LV_PKV)
        self.m_issue(a)
        W(17); self.m_issue(a)
        W(17); self.m_issue(a)
        Wchk(16, lambda: self.poll_check(a, self.LV_PKV))
        self.panel_issue(a, WS_KP, KROW, KB, 9)
        W(17)
        self.panel_issue(a, WS_VP, VROW, VB, 9)
        W(18)
        self.f_init(a)
        a(f"s_mov_b32 s{sSlot}, 0")
        a("s_barrier")
        W(0)
        self.mark(a)
        solo = self.o["gsolo"]
        if not solo:
            self.g_copy_out(a)
            a(f"""
            s_waitcnt vmcnt(0)
            v_mov_b32 v20, {SCR_CNT}
            v_mov_b32 v21, 1
            s_mov_b32 exec_hi, 0
            s_mov_b32 exec_lo, 1
            ds_add_u32 v20, v21
            s_mov_b64 exec, -1
            """)
        self.mark(a)

        def g_pub():
            if solo:
                self.g_copy_out_solo(a)
                a(f"v_mov_b32 v20, {SCR_CNT}\nv_mov_b32 v21, 4\nds_write_b32 v20, v21\ns_waitcnt vmcnt(0)")
            else:
                self.lds_spin(a, 0, 4)
            skip = a.uid("Lgidle")
            a(f"s_cmp_eq_u32 s{sM1On}, 0\ns_cbranch_scc1 {skip}")
            a(f"""
            s_lshl_b32 s{sT4}, s{sFt}, 6
            s_lshl_b32 s{sT5}, s{sDt1}, 2
            s_add_u32 s{sT4}, s{sT4}, s{sT5}
            s_add_u32 s{sT4}, s{sT4}, {FL_G}
            """)
            for r in range(8):
                self.flag_set(a, sT4)
                if r < 7:
                    a(f"s_add_u32 s{sT4}, s{sT4}, 1536")
            a.label(skip)
        self.only_w0(a, g_pub)
        self.lds_spin(a, 0, 4)
        self.mark(a)
        if self.o["pfw2"]:
            self.pf_range(a, sW2, 0, 1536 * 4096)
            self.pf_range(a, sWO, 0, 640 * 1280)
        self.slot_begin(a)
        self.f_issue_w2(a)
        a(f"s_add_u32 s{sSW}, s{sSW}, {SLOT}")
        self.f_issue_w2(a)

        def g_sync():
            ok, sp = a.uid("Lgok"), a.uid("Lgspin")
            if not self.o.get("nogwait"):
                self.spin(a, self.LV_PG, 1, ok, sp, self.o["gsleep"])
            a.label(ok)
            a(f"v_mov_b32 v20, {SCR_CNT + 4}\nv_mov_b32 v21, 1\nds_write_b32 v20, v21")
        self.mark(a)
        self.only_w0(a, g_sync)
        self.mark(a)
        self.lds_spin(a, 1, 1)
        self.slot_begin(a)
        self.f_issue_g(a)
        a(f"s_add_u32 s{sSW}, s{sSW}, {SLOT}")
        self.f_issue_g(a)
        a(f"s_mov_b32 s{sSlot}, {2 * SLOT}")
        W(5)
        self.mark(a)
        self.f_issue(a); self.f_issue(a)
        self.o_copy_out(a)
        W(21)
        self.f_issue(a)
        W(21); self.f_issue(a)
        W(18)

        def o_done():
            a(f"""
            s_lshl_b32 s{sT4}, s{sI}, 4
            s_add_u32 s{sT4}, s{sT4}, s{sP}
            s_lshl_b32 s{sT4}, s{sT4}, 2
            s_add_u32 s{sT4}, s{sT4}, {FL_O}
            """)
            self.flag_set(a, sT4)
        self.only_w0(a, o_done)
        self.f_issue(a)
        self.xt_issue(a)
        W(21); self.f_issue(a)
        W(21); self.f_issue(a)
        W(21)
        self.poll_issue(a, self.LV_PO)
        self.f_issue(a)
        W(19); self.f_issue(a)
        W(19); self.f_issue(a)
        Wchk(18, lambda: self.poll_check(a, self.LV_PO))
        self.wo_init(a)
        self.wo_issue(a)
        self.loop(a, 4, lambda: (W(18), self.wo_issue(a)))
        W(18); W(9); W(0)
        a("s_barrier")

    def m_consts(self, a):
        t0, t1, t2, t3, t4 = 190, 191, 192, 193, 194
        saved = (self.M_ACC,)
        super().m_consts(a)

    def zero(self, a, r0, n):
        for r in reversed(range(r0, r0 + n)):
            a(f"v_mov_b32 v{r}, 0")

    def a_consts(self, a, zero_o=True):
        super().a_consts(a)

    def q_reads(self, ks, b=None):
        base = self.Q_BUF + 16 * ks
        out = []
        for tm in range(2):
            for rd in range(2):
                out.append(f"ds_read_b64_tr_b16 v[{base + 4 * tm + 2 * rd}:{base + 4 * tm + 2 * rd + 1}], v{self.Q_AA + tm} offset:{(16 * ks + 4 * rd) * 256}")
        for tn in range(2):
            out.append(f"ds_read_b128 v[{base + 8 + 4 * tn}:{base + 11 + 4 * tn}], v{self.Q_AB + ks} offset:{tn * 4096}")
        return out

    @staticmethod
    def czero(mf):
        return [m.rsplit(",", 1)[0] + ", 0" for m in mf]

    def q_group(self, ks, wn):
        base = self.Q_BUF + 16 * ks
        cs, on = self.Q_CS, self.Q_ONES
        return self.q_mfmas(ks) + [f"v_mfma_f32_16x16x32_bf16 v[{cs}:{cs + 3}], v[{base + 4 * wn}:{base + 4 * wn + 3}], v[{on}:{on + 3}], v[{cs}:{cs + 3}]"]

    def q_addr(self):
        return ([f"v_add_u32 v{self.Q_AA + tm}, s{sSlot}, v{self.Q_CA + tm}" for tm in range(2)] +
                [f"v_add_u32 v{self.Q_AB + ks}, s{sSlot}, v{self.Q_CB + ks}" for ks in range(4)])

    def q_stage(self, a, wn, first, hook=None, pre=None):
        if pre:
            pre()
        self.cbar(a)
        if hook:
            hook()
        r01 = self.q_reads(0) + self.q_reads(1)
        if first:
            for r in r01:
                a(r)
        else:
            self.spread(a, self.q_group(3, wn), r01)
        a("s_waitcnt lgkmcnt(6)")
        g0 = self.q_group(0, wn)
        self.spread(a, self.czero(g0) if first else g0, self.q_reads(2))
        a("s_waitcnt lgkmcnt(6)")
        self.spread(a, self.q_group(1, wn), self.q_reads(3))
        self.slot_next(a)
        a("s_waitcnt lgkmcnt(6)")
        g2 = self.q_group(2, wn)
        self.spread(a, g2[4:] + g2[:4], self.q_addr())
        a("s_waitcnt lgkmcnt(0)")
        if self.o.get("qmarks"):
            self.mark(a)

    @staticmethod
    def spread(a, mf, other):
        n = len(mf)
        k = 0
        for i, m in enumerate(mf):
            a(m)
            upto = -(-(len(other) * (i + 1)) // n)
            for r in other[k:upto]:
                a(r)
            k = upto

    QE_C, QE_AB, QE_T = 136, 168, 176

    def q_epilogue_pre(self, a):
        AB, T = self.QE_AB, self.QE_T + 2
        ST = self.V_ST
        a(f"""
        v_lshrrev_b32 v{T}, 5, v0
        v_lshlrev_b32 v{T + 1}, 4, v{T}
        s_lshl_b32 s{sT0}, s{sWm}, 8
        s_add_u32 s{sT0}, s{sT0}, {SCR_CS}
        v_add_u32 v{T + 1}, s{sT0}, v{T + 1}
        s_lshl_b32 s{sT1}, s{sWn}, 6
        v_and_b32 v{T + 2}, 31, v0
        v_add_u32 v{T + 2}, s{sT1}, v{T + 2}
        v_lshlrev_b32 v{T}, 3, v{T}
        v_mul_u32_u24 v{T + 3}, 80, v{T + 2}
        v_add_u32 v{T + 3}, v{T + 3}, v{T}
        v_add_u32 v{T + 3}, {SCR}, v{T + 3}
        s_mov_b32 s{sT2}, {VROW}
        s_cmp_lt_u32 s{sP}, 8
        s_cselect_b32 s{sT2}, {KROW}, s{sT2}
        v_mul_lo_u32 v{T + 4}, v{T + 2}, s{sT2}
        v_add_u32 v{T + 4}, v{T + 4}, v{T}
        v_add_u32 v{T + 4}, {SLOT}, v{T + 4}
        s_lshl_b32 s{sT3}, s{sT2}, 5
        v_add_u32 v{T + 5}, s{sT3}, v{T + 4}
        s_lshl_b32 s{sT3}, s{sT2}, 7
        v_add_u32 v{T + 6}, s{sT3}, v{T + 4}
        v_add_u32 v{T + 7}, s{sT3}, v{T + 5}
        s_waitcnt vmcnt(0)
        """)
        for tn in range(2):
            m_, r_ = ST + 2 * tn, ST + 2 * tn + 1
            o = AB + 4 * tn
            a(f"""
            v_mov_b32 v{o}, v{r_}
            v_mul_f32 v{o + 1}, v{m_}, v{r_}
            v_mul_f32 v{o + 2}, {f32(QSCALE)}, v{r_}
            v_mul_f32 v{o + 3}, {f32(QSCALE)}, v{o + 1}
            """)

    def q_epilogue(self, a, wm):
        C, AB, T = self.QE_C, self.QE_AB, self.QE_T + 2
        for tm in range(2):
            for q in range(4):
                r = C + 16 * tm + 4 * q
                a(f"ds_read_b128 v[{r}:{r + 3}], v{T + 1} offset:{tm * 128 + q * 32}")
        for tn in range(2):
            for tm in range(2):
                acc = self.Q_ACC + 16 * (2 * tm + tn)
                for q in range(4):
                    Q0 = 16 * wm + 8 * tm + 2 * q
                    if Q0 == 30:
                        continue
                    o = AB + 4 * tn + (2 if Q0 < 10 else 0)
                    for y in (acc + 4 * q, acc + 4 * q + 2):
                        a(f"v_pk_mul_f32 v[{y}:{y + 1}], v[{y}:{y + 1}], v[{o}:{o + 1}] op_sel_hi:[1,0]")
        a("s_waitcnt lgkmcnt(0)")
        for tn in range(2):
            for tm in range(2):
                acc = self.Q_ACC + 16 * (2 * tm + tn)
                quads = []
                for q in range(4):
                    Q0 = 16 * wm + 8 * tm + 2 * q
                    quads.append((Q0, AB + 4 * tn + (2 if Q0 < 10 else 0), C + 16 * tm + 4 * q, acc + 4 * q))
                live = [t for t in quads if t[0] != 30]
                for Q0, o, c, x in live:
                    for hf in range(2):
                        y = x + 2 * hf
                        a(f"v_pk_fma_f32 v[{y}:{y + 1}], v[{c + 2 * hf}:{c + 2 * hf + 1}], v[{o}:{o + 1}], v[{y}:{y + 1}] op_sel:[0,1,0] op_sel_hi:[1,1,1] neg_lo:[1,0,0] neg_hi:[1,0,0]")
                for Q0, o, c, x in live:
                    a(f"v_cvt_pk_bf16_f32 v{x}, v{x}, v{x + 1}")
                for Q0, o, c, x in live:
                    a(f"v_cvt_pk_bf16_f32 v{x + 1}, v{x + 2}, v{x + 3}")
                for Q0, o, c, x in quads:
                    if Q0 == 30:
                        skip = a.uid("Lnopad")
                        a(f"s_cmp_lt_u32 s{sP}, 8\ns_cbranch_scc1 {skip}")
                        a(f"v_mov_b32 v{x}, 0x00003f80\nv_mov_b32 v{x + 1}, 0")
                        a(f"""
                        s_mov_b32 exec_hi, 0
                        ds_write_b64 v{T + 4 + tn}, v[{x}:{x + 1}] offset:80
                        ds_write_b64 v{T + 6 + tn}, v[{x}:{x + 1}] offset:80
                        s_mov_b64 exec, -1
                        """)
                        a.label(skip)
                    elif Q0 < 10:
                        a(f"ds_write_b64 v{T + 3}, v[{x}:{x + 1}] offset:{tn * 32 * 80 + Q0 * 8}")
                    elif Q0 < 20:
                        a(f"ds_write_b64 v{T + 4 + tn}, v[{x}:{x + 1}] offset:{(Q0 - 10) * 8}")
                    else:
                        a(f"ds_write_b64 v{T + 6 + tn}, v[{x}:{x + 1}] offset:{(Q0 - 20) * 8}")
        a("s_waitcnt lgkmcnt(0)")

    def kv_copy_out(self, a):
        R, T = 32, 28
        a(f"""
        v_lshlrev_b32 v{T}, 4, v0
        s_lshl_b32 s{sT0}, s{sLw}, 10
        v_add_u32 v{T}, s{sT0}, v{T}
        v_add_u32 v{T + 1}, {SLOT}, v{T}
        s_and_b32 s{sT1}, s{sP}, 7
        s_lshl_b32 s{sT1}, s{sT1}, 4
        s_add_u32 s{sT1}, s{sT1}, s{sI}
        s_mov_b32 s{sT2}, {256 * VROW}
        s_mov_b32 s{sT3}, {WS_VP}
        s_cmp_lt_u32 s{sP}, 8
        s_cselect_b32 s{sT2}, {256 * KROW}, s{sT2}
        s_cselect_b32 s{sT3}, {WS_KP}, s{sT3}
        s_mul_i32 s{sT1}, s{sT1}, s{sT2}
        s_add_u32 s{sT1}, s{sT1}, s{sT3}
        v_add_u32 v{T + 2}, s{sT1}, v{T}
        v_add_u32 v{T + 3}, {5 * 4096}, v{T}
        v_mov_b32 v{T - 1}, {OOB}
        v_cmp_gt_u32 vcc, s{sT2}, v{T + 3}
        v_cndmask_b32 v{T + 3}, v{T - 1}, v{T + 2}, vcc
        """)
        for k in range(6):
            a(f"ds_read_b128 v[{R + 4 * k}:{R + 4 * k + 3}], v{T + 1} offset:{k * 4096}")
        for k in range(6):
            a(f"s_waitcnt lgkmcnt({5 - k})")
            a(f"s_mov_b32 s{sT0}, {k * 4096}")
            a(f"buffer_store_dwordx4 v[{R + 4 * k}:{R + 4 * k + 3}], v{T + (3 if k == 5 else 2)}, s[{sWS}:{sWS + 3}], s{sT0} offen sc1")

    def panel_issue(self, a, base, row, lds, n):
        blk = 128 * row
        per = blk // 1024
        a(f"""
        s_lshr_b32 s{sT1}, s{sP}, 1
        s_lshl_b32 s{sT1}, s{sT1}, 4
        s_add_u32 s{sT1}, s{sT1}, s{sI}
        s_sub_u32 s{sT1}, s{sT1}, 2
        s_lshl_b32 s{sT1}, s{sT1}, 1
        s_and_b32 s{sT2}, s{sP}, 1
        s_add_u32 s{sT1}, s{sT1}, s{sT2}
        s_mul_i32 s{sT1}, s{sT1}, {blk}
        s_add_u32 s{sT1}, s{sT1}, {base}
        s_lshl_b32 s{sT2}, s{sLw}, 10
        s_add_u32 s{sT1}, s{sT1}, s{sT2}
        s_add_u32 s{sT2}, s{sT2}, {lds}
        """)
        for t in range(n):
            a(f"""
            s_add_u32 s{sT3}, s{sLw}, {4 * t}
            s_cmp_ge_u32 s{sT3}, {per}
            s_cselect_b32 s{sT4}, {blk}, 0
            s_cmp_ge_u32 s{sT3}, {2 * per}
            s_cselect_b32 s{sT4}, {2 * blk}, s{sT4}
            s_add_u32 s{sT0}, s{sT1}, s{sT4}
            s_add_u32 s{sT0}, s{sT0}, {t * 4096}
            s_cmp_ge_u32 s{sT3}, {3 * per}
            s_cselect_b32 s{sT0}, {OOB}, s{sT0}
            s_add_u32 m0, s{sT2}, {t * 4096}
            s_nop 0
            buffer_load_dwordx4 v{self.LV_LIN}, s[{sWS}:{sWS + 3}], s{sT0} offen sc1 lds
            """)

    def q_csum_write(self, a):
        t0, t1 = 176, 177
        cs = self.Q_CS
        a(f"""
        v_and_b32 v{t0}, 1, v0
        v_lshlrev_b32 v{t0}, 6, v{t0}
        v_lshrrev_b32 v{t1}, 4, v0
        v_lshl_add_u32 v{t0}, v{t1}, 4, v{t0}
        s_lshl_b32 s{sT0}, s{sWm}, 8
        s_lshl_b32 s{sT1}, s{sWn}, 7
        s_add_u32 s{sT0}, s{sT0}, s{sT1}
        s_add_u32 s{sT0}, s{sT0}, {SCR_CS}
        v_add_u32 v{t0}, s{sT0}, v{t0}
        v_and_b32 v{t1}, 14, v0
        v_cmp_eq_u32 vcc, 0, v{t1}
        s_and_saveexec_b64 s[{sEx}:{sEx + 1}], vcc
        ds_write_b128 v{t0}, v[{cs}:{cs + 3}]
        s_mov_b64 exec, s[{sEx}:{sEx + 1}]
        s_waitcnt lgkmcnt(0)
        """)

    def c_qkv(self, a):
        T = 212
        for c in self.q_addr():
            a(c)

        def stats():
            ST = self.V_ST
            a(f"""
            s_lshl_b32 s{sT0}, s{sI}, 7
            s_lshl_b32 s{sT1}, s{sWn}, 6
            s_add_u32 s{sT0}, s{sT0}, s{sT1}
            v_and_b32 v{T + 1}, 31, v0
            v_add_u32 v{T + 1}, s{sT0}, v{T + 1}
            v_lshlrev_b32 v{T + 1}, 3, v{T + 1}
            v_add_u32 v{T + 1}, {WS_STATS}, v{T + 1}
            buffer_load_dwordx2 v[{ST}:{ST + 1}], v{T + 1}, s[{sWS}:{sWS + 3}], 0 offen sc1
            buffer_load_dwordx2 v[{ST + 2}:{ST + 3}], v{T + 1}, s[{sWS}:{sWS + 3}], 0 offen offset:256 sc1
            """)

        def run(wn):
            self.q_stage(a, wn, True, hook=lambda: self.ln_stores(a))
            self.mark(a)
            self.q_stage(a, wn, False)
            self.q_stage(a, wn, False, pre=lambda: a("s_waitcnt vmcnt(0)"))
            self.loop(a, 5, lambda: self.q_stage(a, wn, False))
            self.q_stage(a, wn, False, hook=stats)
            self.q_stage(a, wn, False)
            g3 = self.q_group(3, wn)
            for m in g3[4:] + g3[:4]:
                a(m)
        self.by_scalar(a, sWn, run)
        self.mark(a)
        self.q_epilogue_pre(a)
        self.q_csum_write(a)
        a("s_barrier")
        self.by_scalar(a, sWm, lambda wm: self.q_epilogue(a, wm))
        a("s_barrier")

    def m_addr(self):
        return ([f"v_add_u32 v{self.M_AA + tm}, s{sSlot}, v{self.M_CA + tm}" for tm in range(2)] +
                [f"v_add_u32 v{self.M_AB}, s{sSlot}, v{self.M_CB}"])

    def m_stage(self, a, first, pre=None, hook=None):
        if pre:
            pre()
        self.cbar(a)
        if hook:
            hook()
        r01 = self.m_reads(0) + self.m_reads(1)
        if first:
            for r in r01:
                a(r)
        else:
            self.spread(a, self.m_mfmas(2) + self.m_mfmas(3), r01)
        a("s_waitcnt lgkmcnt(6)")
        self.spread(a, self.czero(self.m_mfmas(0)) if first else self.m_mfmas(0), self.m_reads(2))
        a("s_waitcnt lgkmcnt(6)")
        self.spread(a, self.m_mfmas(1), self.m_reads(3))
        self.slot_next(a)
        for c in self.m_addr():
            a(c)
        a("s_waitcnt lgkmcnt(0)")

    def m_reduce_write(self, a, kh):
        t = 190
        src = self.M_ACC + 16 * (1 - kh)
        a(f"""
        v_lshlrev_b32 v{t}, 4, v0
        s_lshl_b32 s{sT0}, s{sLw}, 12
        s_add_u32 s{sT0}, s{sT0}, {M_RED}
        v_add_u32 v{t}, s{sT0}, v{t}
        """)
        for q in range(4):
            a(f"ds_write_b128 v{t}, v[{src + 4 * q}:{src + 4 * q + 3}] offset:{q * 1024}")
        a("s_waitcnt lgkmcnt(0)")

    ME_U = 200

    def m_epilogue_pre(self, a):
        U, B1 = self.ME_U, self.V_B1
        c0 = -2.0 * math.sqrt(2.0 / math.pi) * math.log2(math.e)
        c1 = c0 * 0.044715
        a(f"""
        s_lshl_b32 s{sT1}, s{sWn}, 5
        v_and_b32 v{U}, 31, v0
        v_add_u32 v{U}, s{sT1}, v{U}
        v_mul_u32_u24 v{U}, {GROW}, v{U}
        v_lshrrev_b32 v{U + 1}, 5, v0
        v_lshl_add_u32 v{U}, v{U + 1}, 3, v{U}
        s_lshl_b32 s{sT1}, s{sWm}, 6
        s_add_u32 s{sT1}, s{sT1}, {SLOT}
        v_add_u32 v{U}, s{sT1}, v{U}
        v_lshlrev_b32 v{U + 1}, 4, v0
        s_xor_b32 s{sT0}, s{sLw}, 2
        s_lshl_b32 s{sT0}, s{sT0}, 12
        s_add_u32 s{sT0}, s{sT0}, {M_RED}
        v_add_u32 v{U + 1}, s{sT0}, v{U + 1}
        v_mov_b32 v{U + 4}, {f32(c1)}
        v_mov_b32 v{U + 5}, {f32(c0)}
        v_mov_b32 v{U + 6}, 1.0
        s_waitcnt vmcnt(0)
        v_lshlrev_b32 v{U + 2}, 16, v{B1}
        """)

    def m_epilogue(self, a, kh):
        R, U = 136, self.ME_U
        keep = self.M_ACC + 16 * kh
        for q in range(4):
            a(f"ds_read_b128 v[{R + 4 * q}:{R + 4 * q + 3}], v{U + 1} offset:{q * 1024}")
        for r in range(0, 16, 2):
            a(f"v_pk_add_f32 v[{keep + r}:{keep + r + 1}], v[{keep + r}:{keep + r + 1}], v[{U + 2}:{U + 3}] op_sel_hi:[1,0]")
        a("s_waitcnt lgkmcnt(0)")
        P = lambda r: f"v[{r}:{r + 1}]"
        for r in range(0, 16, 2):
            a(f"v_pk_add_f32 {P(keep + r)}, {P(keep + r)}, {P(R + r)}")
        for r in range(0, 16, 2):
            a(f"v_pk_mul_f32 {P(R + r)}, {P(keep + r)}, {P(keep + r)}")
        for r in range(0, 16, 2):
            a(f"v_pk_fma_f32 {P(R + r)}, {P(R + r)}, {P(U + 4)}, {P(U + 4)} op_sel:[0,0,1] op_sel_hi:[1,0,1]")
        for r in range(0, 16, 2):
            a(f"v_pk_mul_f32 {P(R + r)}, {P(R + r)}, {P(keep + r)}")
        for r in range(16):
            a(f"v_exp_f32 v{R + r}, v{R + r}")
        for r in range(0, 16, 2):
            a(f"v_pk_add_f32 {P(R + r)}, {P(R + r)}, {P(U + 6)} op_sel_hi:[1,0]")
        for r in range(16):
            a(f"v_rcp_f32 v{R + r}, v{R + r}")
        for r in range(0, 16, 2):
            a(f"v_pk_mul_f32 {P(keep + r)}, {P(keep + r)}, {P(R + r)}")
        for q in range(4):
            x = keep + 4 * q
            a(f"v_cvt_pk_bf16_f32 v{x}, v{x}, v{x + 1}\nv_cvt_pk_bf16_f32 v{x + 1}, v{x + 2}, v{x + 3}")
            a(f"ds_write_b64 v{U}, v[{x}:{x + 1}] offset:{16 * q}")
        a("s_waitcnt lgkmcnt(0)")

    def g_copy_out_solo(self, a):
        R, T = 32, 28
        a(f"""
        v_lshrrev_b32 v{T}, 3, v0
        v_and_b32 v{T + 1}, 7, v0
        v_mul_u32_u24 v{T + 2}, {GROW}, v{T}
        v_lshl_add_u32 v{T + 2}, v{T + 1}, 4, v{T + 2}
        v_add_u32 v{T + 2}, {SLOT}, v{T + 2}
        """)
        for k in range(8):
            a(f"ds_read_b128 v[{R + 4 * k}:{R + 4 * k + 3}], v{T + 2} offset:{8 * GROW * k}")
        a(f"""
        s_lshl_b32 s{sT0}, s{sDt1}, 6
        v_lshl_add_u32 v{T + 1}, v{T + 1}, 3, s{sT0}
        v_mul_u32_u24 v{T + 3}, 820, v{T + 1}
        v_lshrrev_b32 v{T + 3}, 16, v{T + 3}
        v_mul_u32_u24 v{T + 2}, 80, v{T + 3}
        v_sub_u32 v{T + 1}, v{T + 1}, v{T + 2}
        v_mul_u32_u24 v{T + 3}, {1536 * 160}, v{T + 3}
        v_lshl_add_u32 v{T + 3}, v{T + 1}, 1, v{T + 3}
        s_lshl_b32 s{sT0}, s{sFt}, 6
        v_add_u32 v{T}, s{sT0}, v{T}
        v_mul_u32_u24 v{T}, 160, v{T}
        v_add_u32 v{T + 3}, v{T + 3}, v{T}
        s_mov_b32 s{sT1}, {WS_GT}
        s_cmp_eq_u32 s{sM1On}, 0
        s_cselect_b32 s{sT0}, {OOB}, s{sT1}
        """)
        for k in range(8):
            a(f"s_waitcnt lgkmcnt({7 - k})")
            a(f"buffer_store_dwordx4 v[{R + 4 * k}:{R + 4 * k + 3}], v{T + 3}, s[{sWS}:{sWS + 3}], s{sT0} offen sc1")
            if k < 7:
                a(f"s_add_u32 s{sT0}, s{sT0}, {8 * 160}")

    def g_copy_out(self, a):
        R, T = 40, 28
        a(f"""
        v_lshrrev_b32 v{T}, 3, v0
        s_lshl_b32 s{sT0}, s{sLw}, 4
        v_add_u32 v{T}, s{sT0}, v{T}
        v_and_b32 v{T + 1}, 7, v0
        v_mul_u32_u24 v{T + 2}, {GROW}, v{T}
        v_lshl_add_u32 v{T + 2}, v{T + 1}, 4, v{T + 2}
        v_add_u32 v{T + 2}, {SLOT}, v{T + 2}
        ds_read_b128 v[{R}:{R + 3}], v{T + 2}
        ds_read_b128 v[{R + 4}:{R + 7}], v{T + 2} offset:{8 * GROW}
        s_lshl_b32 s{sT0}, s{sDt1}, 6
        v_lshl_add_u32 v{T + 1}, v{T + 1}, 3, s{sT0}
        v_mul_u32_u24 v{T + 3}, 820, v{T + 1}
        v_lshrrev_b32 v{T + 3}, 16, v{T + 3}
        v_mul_u32_u24 v{T + 4}, 80, v{T + 3}
        v_sub_u32 v{T + 1}, v{T + 1}, v{T + 4}
        v_mul_u32_u24 v{T + 3}, {1536 * 160}, v{T + 3}
        v_lshl_add_u32 v{T + 3}, v{T + 1}, 1, v{T + 3}
        s_lshl_b32 s{sT0}, s{sFt}, 6
        v_add_u32 v{T}, s{sT0}, v{T}
        v_mul_u32_u24 v{T}, 160, v{T}
        v_add_u32 v{T + 3}, v{T + 3}, v{T}
        s_mov_b32 s{sT1}, {WS_GT}
        s_cmp_eq_u32 s{sM1On}, 0
        s_cselect_b32 s{sT0}, {OOB}, s{sT1}
        v_add_u32 v{T + 3}, s{sT0}, v{T + 3}
        s_waitcnt lgkmcnt(0)
        buffer_store_dwordx4 v[{R}:{R + 3}], v{T + 3}, s[{sWS}:{sWS + 3}], 0 offen sc1
        buffer_store_dwordx4 v[{R + 4}:{R + 7}], v{T + 3}, s[{sWS}:{sWS + 3}], 0 offen offset:{8 * 160} sc1
        """)

    def c_mix1(self, a):
        T = 200
        a(f"""
        s_lshl_b32 s{sT0}, s{sFt}, 6
        s_lshl_b32 s{sT1}, s{sWn}, 5
        s_add_u32 s{sT0}, s{sT0}, s{sT1}
        v_and_b32 v{T}, 31, v0
        v_add_u32 v{T}, s{sT0}, v{T}
        v_lshlrev_b32 v{T}, 1, v{T}
        buffer_load_ushort v{self.V_B1}, v{T}, s[{sB1}:{sB1 + 3}], 0 offen
        """)
        for c in self.m_addr():
            a(c)
        self.m_stage(a, True)
        self.zero(a, self.A_O, 16)
        self.m_stage(a, False)
        self.zero(a, self.A_O + 16, 16)
        self.m_stage(a, False)
        self.mark(a)
        self.loop(a, 13, lambda: self.m_stage(a, False))
        for m in self.m_mfmas(2) + self.m_mfmas(3):
            a(m)
        self.mark(a)
        self.m_epilogue_pre(a)
        self.by_scalar(a, sWm, lambda kh: self.m_reduce_write(a, kh))
        a("s_barrier")
        self.by_scalar(a, sWm, lambda kh: self.m_epilogue(a, kh))
        self.a_zero(a)
        self.cbar(a)

    def a_addr_consts(self, a):
        T = self.A_T
        KA, VA = self.A_KA, self.A_VA
        a(f"""
        v_and_b32 v{T}, 31, v0
        s_lshl_b32 s{sT0}, s{sLw}, 5
        v_add_u32 v{T + 1}, s{sT0}, v{T}
        v_mul_u32_u24 v{T + 1}, {KROW}, v{T + 1}
        v_add_u32 v{KA + 1}, {KB}, v{T + 1}
        v_lshrrev_b32 v{T + 2}, 5, v0
        v_lshl_add_u32 v{KA}, v{T + 2}, 4, v{KA + 1}
        v_and_b32 v{T}, 15, v0
        v_lshrrev_b32 v{T + 1}, 2, v{T}
        v_lshl_add_u32 v{T + 1}, v{T + 2}, 2, v{T + 1}
        v_add_u32 v{T + 1}, s{sT0}, v{T + 1}
        v_mul_u32_u24 v{T + 1}, {VROW}, v{T + 1}
        v_add_u32 v{T + 1}, {VB}, v{T + 1}
        v_and_b32 v{T + 3}, 3, v0
        v_lshlrev_b32 v{T + 4}, 3, v{T + 3}
        v_bfe_u32 v{T + 5}, v0, 4, 1
        """)
        for hh in range(2):
            a(f"""
            v_mov_b32 v{T + 6}, 80
            v_mov_b32 v{T + 7}, {40 * hh + 32}
            v_cmp_eq_u32 vcc, 0, v{T + 3}
            v_cndmask_b32 v{T + 7}, v{T + 6}, v{T + 7}, vcc
            v_add_u32 v{T + 6}, {40 * hh}, v{T + 4}
            v_cmp_eq_u32 vcc, 0, v{T + 5}
            v_cndmask_b32 v{T + 7}, v{T + 7}, v{T + 6}, vcc
            v_add_u32 v{VA + hh}, v{T + 1}, v{T + 7}
            """)
        a(f"""
        v_and_b32 v{T}, 31, v0
        v_lshlrev_b32 v{T + 1}, 2, v{T + 2}
        v_sub_u32 v{T}, v{T}, v{T + 1}
        v_mov_b32 v{T + 3}, {f32(-1e30)}
        """)
        for r in range(16):
            kr = 8 * (r >> 2) + (r & 3)
            a(f"""
            v_cmp_gt_i32 vcc, {kr}, v{T}
            v_cndmask_b32 v{self.A_MF + r}, v{T + 3}, 0, vcc
            v_cndmask_b32 v{self.A_MD + r}, 0, v{T + 3}, vcc
            """)

    def a_skip(self, a, n):
        a(f"s_mul_i32 s{sT1}, s{n}, {32 * KROW}\ns_mul_i32 s{sT3}, s{n}, {32 * VROW}")
        for r in (self.A_KA, self.A_KA + 1):
            a(f"v_add_u32 v{r}, s{sT1}, v{r}")
        for r in (self.A_VA, self.A_VA + 1):
            a(f"v_add_u32 v{r}, s{sT3}, v{r}")

    def a_step(self):
        return ([f"v_add_u32 v{r}, {32 * KROW}, v{r}" for r in (self.A_KA, self.A_KA + 1)] +
                [f"v_add_u32 v{r}, {32 * VROW}, v{r}" for r in (self.A_VA, self.A_VA + 1)])

    def a_zero(self, a):
        for hh in range(2):
            for base in (self.A_K, self.A_Q):
                a(f"v_mov_b32 v{base + 8 * hh + 6}, 0\nv_mov_b32 v{base + 8 * hh + 7}, 0")

    def a_qreads(self, a):
        T = self.A_T
        a(f"""
        s_lshl_b32 s{sT0}, s{sLw}, 5
        v_and_b32 v{T}, 31, v0
        v_add_u32 v{T}, s{sT0}, v{T}
        v_mul_u32_u24 v{T}, 80, v{T}
        v_add_u32 v{T}, {SCR}, v{T}
        v_lshrrev_b32 v{T + 1}, 5, v0
        v_lshl_add_u32 v{T + 1}, v{T + 1}, 4, v{T}
        """)
        for hh in range(2):
            q = self.A_Q + 8 * hh
            a(f"""
            ds_read_b64 v[{q}:{q + 1}], v{T + 1} offset:{40 * hh}
            ds_read_b64 v[{q + 2}:{q + 3}], v{T + 1} offset:{40 * hh + 8}
            ds_read_b64 v[{q + 4}:{q + 5}], v{T} offset:{40 * hh + 32}
            """)

    def a_qmask(self, a):
        for hh in range(2):
            q = self.A_Q + 8 * hh
            a(f"""
            s_mov_b32 exec_lo, 0
            v_mov_b32 v{q + 4}, 0
            v_mov_b32 v{q + 5}, 0
            s_mov_b64 exec, -1
            """)

    def kr(self, hh, dt):
        k = self.A_K + 8 * hh
        o = dt * 32 * KROW + 40 * hh
        return [f"ds_read_b64 v[{k}:{k + 1}], v{self.A_KA} offset:{o}",
                f"ds_read_b64 v[{k + 2}:{k + 3}], v{self.A_KA} offset:{o + 8}",
                f"ds_read_b64 v[{k + 4}:{k + 5}], v{self.A_KA + 1} offset:{o + 32}"]

    def vr(self, hh, dt):
        x = self.A_V + 8 * hh
        return [f"ds_read_b64_tr_b16 v[{x + 4 * aa + 2 * rd}:{x + 4 * aa + 2 * rd + 1}], v{self.A_VA + hh} offset:{(dt * 32 + 16 * aa + 8 * rd) * VROW}"
                for aa in range(2) for rd in range(2)]

    def a_slot(self, a, hv, qk_mask, do_qk, do_pv, dk, dv, rd_k=True, rd_v=True, wait=7):
        ho = 1 - hv
        sreg, p = self.A_S + 16 * hv, self.A_P + 8 * hv
        a(f"s_waitcnt lgkmcnt({wait})")
        qk = self.a_qk(ho, qk_mask) if do_qk else [None, None]
        pv = self.a_pv(ho) if do_pv else [None, None]
        kr = self.kr(ho, dk) if rd_k else []
        vr = self.vr(ho, dv) if rd_v else []
        plan = [(qk[0], kr[:2]), (qk[1], kr[2:]), (pv[0], vr[:2]), (pv[1], vr[2:])]
        for g, (m, rds) in enumerate(plan):
            if m:
                a(m)
            for r in rds:
                a(r)
            for q in range(4):
                a(f"v_exp_f32 v{sreg + 4 * g + q}, v{sreg + 4 * g + q}")
        for r in range(8):
            a(f"v_cvt_pk_bf16_f32 v{p + r}, v{sreg + 2 * r}, v{sreg + 2 * r + 1}")

    def a_iter(self, a, first, mask_a, mask_b, last):
        self.a_slot(a, 0, mask_a, True, not first, 1, 0, rd_k=not last, wait=7 if not last else 7)
        if last:
            self.a_slot(a, 1, None, False, True, 0, 0, rd_k=False, rd_v=False, wait=4)
            a("s_waitcnt lgkmcnt(0)")
            for m in self.a_pv(1):
                a(m)
        else:
            self.a_slot(a, 1, mask_b, True, True, 2, 1)
            for ins in self.a_step():
                a(ins)

    def g_publish(self, a):
        lab = a.uid("Lgp")
        T = 208
        a(f"s_cmp_lg_u32 s{sPub}, 0\ns_cbranch_scc1 {lab}")
        a(f"""
        s_mov_b32 s{sPub}, 1
        s_waitcnt vmcnt(0)
        v_mov_b32 v{T}, {SCR_CNT}
        v_mov_b32 v{T + 1}, 1
        s_mov_b32 exec_hi, 0
        s_mov_b32 exec_lo, 1
        ds_add_u32 v{T}, v{T + 1}
        s_mov_b64 exec, -1
        """)
        a.label(lab)

    def attention(self, a):
        T = self.A_T
        a(f"""
        s_lshl_b32 s{sT0}, s{sI}, 2
        s_add_u32 s{sT0}, s{sT0}, s{sLw}
        s_cmp_ge_u32 s{sT0}, 8
        s_cselect_b32 s{sT0}, 8, s{sT0}
        s_sub_u32 s{sT2}, 8, s{sT0}
        """)
        self.a_skip(a, sT2)
        self.a_qreads(a)
        for hh in range(2):
            for r in self.kr(hh, 0):
                a(r)
        a("s_waitcnt lgkmcnt(0)")
        self.a_qmask(a)
        MF, MD = self.A_MF, self.A_MD
        L = {k: a.uid("La" + k) for k in ("far", "n2", "n1", "mid", "pre", "last", "done")}

        def head(mask):
            for m in self.a_qk(0, mask):
                a(m)
            for r in self.kr(0, 1) + self.vr(0, 0):
                a(r)
        a(f"s_cmp_eq_u32 s{sT2}, 0\ns_cbranch_scc1 {L['far']}")
        a(f"s_cmp_eq_u32 s{sT2}, 7\ns_cbranch_scc1 {L['n2']}")
        a(f"s_cmp_eq_u32 s{sT2}, 8\ns_cbranch_scc1 {L['n1']}")
        head(None)
        self.a_iter(a, True, None, None, False)
        a(f"s_sub_u32 s{sCnt}, 6, s{sT2}\ns_cmp_eq_u32 s{sCnt}, 0\ns_cbranch_scc1 {L['pre']}\ns_branch {L['mid']}")
        a.label(L["n2"])
        head(None)
        self.a_iter(a, True, None, MD, False)
        a(f"s_branch {L['last']}")
        a.label(L["n1"])
        head(MD)
        self.a_iter(a, True, MD, None, True)
        a(f"s_branch {L['done']}")
        a.label(L["far"])
        head(MF)
        self.a_iter(a, True, MF, None, False)
        a(f"s_mov_b32 s{sCnt}, {1 if self.o.get('shortattn') else 6}")
        a.label(L["mid"])
        self.a_iter(a, False, None, None, False)
        a(f"s_sub_u32 s{sCnt}, s{sCnt}, 1\ns_cmp_lg_u32 s{sCnt}, 0\ns_cbranch_scc1 {L['mid']}")
        a.label(L["pre"])
        self.a_iter(a, False, None, MD, False)
        a.label(L["last"])
        self.a_iter(a, False, MD, None, True)
        a.label(L["done"])
        lfb, ldone = a.uid("Lfallback"), a.uid("Lnorm")
        self.fallback_labels = (lfb, ldone)
        self.a_rowsum(a)
        a(f"""
        v_mov_b32 v{T + 4}, {f32(2.0 ** -40)}
        v_mov_b32 v{T + 5}, {f32(2.0 ** 40)}
        v_cmp_ge_f32 s[{sT0}:{sT0 + 1}], v{T}, v{T + 4}
        v_cmp_le_f32 s[{sT2}:{sT2 + 1}], v{T}, v{T + 5}
        s_and_b64 s[{sT0}:{sT0 + 1}], s[{sT0}:{sT0 + 1}], s[{sT2}:{sT2 + 1}]
        v_cmp_ge_f32 s[{sT2}:{sT2 + 1}], v{T + 1}, v{T + 4}
        s_and_b64 s[{sT0}:{sT0 + 1}], s[{sT0}:{sT0 + 1}], s[{sT2}:{sT2 + 1}]
        v_cmp_le_f32 s[{sT2}:{sT2 + 1}], v{T + 1}, v{T + 5}
        s_and_b64 s[{sT0}:{sT0 + 1}], s[{sT0}:{sT0 + 1}], s[{sT2}:{sT2 + 1}]
        s_cmp_eq_u64 s[{sT0}:{sT0 + 1}], exec
        s_cbranch_scc0 {lfb}
        """)
        a.label(ldone)
        self.a_store(a)

    def a_store(self, a):
        T = self.A_T
        a(f"""
        v_rcp_f32 v{T + 2}, v{T}
        v_rcp_f32 v{T + 4}, v{T + 1}
        s_lshl_b32 s{sT1}, s{sLw}, 5
        v_and_b32 v{T + 6}, 31, v0
        v_add_u32 v{T + 6}, s{sT1}, v{T + 6}
        v_mul_u32_u24 v{T + 6}, 80, v{T + 6}
        v_add_u32 v{T + 6}, {SCR}, v{T + 6}
        v_lshrrev_b32 v{T + 7}, 5, v0
        v_lshl_add_u32 v{T + 7}, v{T + 7}, 3, v{T + 6}
        """)
        for hh in range(2):
            o = self.A_O + 16 * hh
            rc = T + 2 + 2 * hh
            for g in range(3):
                x = o + 4 * g
                for hf in range(2):
                    a(f"v_pk_mul_f32 v[{x + 2 * hf}:{x + 2 * hf + 1}], v[{x + 2 * hf}:{x + 2 * hf + 1}], v[{rc}:{rc + 1}] op_sel_hi:[1,0]")
                a(f"v_cvt_pk_bf16_f32 v{x}, v{x}, v{x + 1}\nv_cvt_pk_bf16_f32 v{x + 1}, v{x + 2}, v{x + 3}")
                if g < 2:
                    a(f"ds_write_b64 v{T + 7}, v[{x}:{x + 1}] offset:{40 * hh + 16 * g}")
                else:
                    a(f"s_mov_b32 exec_hi, 0\nds_write_b64 v{T + 6}, v[{x}:{x + 1}] offset:{40 * hh + 32}\ns_mov_b64 exec, -1")
        a("s_waitcnt lgkmcnt(0)")

    def o_copy_out(self, a):
        R, T = 40, 28
        a(f"""
        s_lshl_b32 s{sT0}, s{sI}, 7
        s_mul_i32 s{sT0}, s{sT0}, 1280
        s_mul_i32 s{sT1}, s{sP}, 80
        s_add_u32 s{sT0}, s{sT0}, s{sT1}
        s_add_u32 s{sT0}, s{sT0}, {WS_O}
        s_lshl_b32 s{sT1}, s{sLw}, 6
        v_add_u32 v{T}, s{sT1}, v0
        v_lshlrev_b32 v{T + 1}, 4, v{T}
        v_add_u32 v{T + 1}, {SCR}, v{T + 1}
        """)
        for k in range(3):
            a(f"ds_read_b128 v[{R + 4 * k}:{R + 4 * k + 3}], v{T + 1} offset:{k * 4096}")
        for k in range(3):
            a(f"""
            v_add_u32 v{T + 2}, {256 * k}, v{T}
            v_mul_u32_u24 v{T + 3}, 13108, v{T + 2}
            v_lshrrev_b32 v{T + 3}, 16, v{T + 3}
            v_mul_u32_u24 v{T + 4}, 5, v{T + 3}
            v_sub_u32 v{T + 4}, v{T + 2}, v{T + 4}
            v_mul_u32_u24 v{T + 3}, 1280, v{T + 3}
            v_lshl_add_u32 v{T + 3}, v{T + 4}, 4, v{T + 3}
            v_add_u32 v{T + 5 + k}, s{sT0}, v{T + 3}
            """)
        a(f"""
        v_mov_b32 v{T + 2}, {OOB}
        v_add_u32 v{T + 3}, 512, v{T}
        v_cmp_gt_u32 vcc, 640, v{T + 3}
        v_cndmask_b32 v{T + 7}, v{T + 2}, v{T + 7}, vcc
        s_waitcnt lgkmcnt(0)
        """)
        for k in range(3):
            a(f"buffer_store_dwordx4 v[{R + 4 * k}:{R + 4 * k + 3}], v{T + 5 + k}, s[{sWS}:{sWS + 3}], 0 offen sc1")

    def attention_fallback(self, a):
        lfb, ldone = self.fallback_labels
        M = 200
        a.label(lfb)
        self.a_addr_consts(a)
        self.zero(a, self.A_O, 32)
        a(f"""
        s_lshl_b32 s{sT0}, s{sI}, 2
        s_add_u32 s{sT0}, s{sT0}, s{sLw}
        s_cmp_ge_u32 s{sT0}, 8
        s_cselect_b32 s{sT0}, 8, s{sT0}
        s_sub_u32 s{sCnt}, 8, s{sT0}
        v_mov_b32 v{M}, {f32(-3e38)}
        v_mov_b32 v{M + 1}, {f32(-3e38)}
        """)
        self.a_skip(a, sCnt)
        lp, lnf, lnd = a.uid("Lfb"), a.uid("Lfbnf"), a.uid("Lfbnd")
        a.label(lp)
        for hh in range(2):
            for r in self.kr(hh, 0) + self.vr(hh, 0):
                a(r)
        for ins in self.a_step():
            a(ins)
        a("s_waitcnt lgkmcnt(0)")
        for hh in range(2):
            for m in self.a_qk(hh, None):
                a(m)
        a("s_nop 15")
        a(f"s_cmp_lg_u32 s{sCnt}, 0\ns_cbranch_scc1 {lnf}")
        for hh in range(2):
            for r in range(16):
                a(f"v_add_f32 v{self.A_S + 16 * hh + r}, v{self.A_S + 16 * hh + r}, v{self.A_MF + r}")
        a.label(lnf)
        a(f"s_cmp_lg_u32 s{sCnt}, 8\ns_cbranch_scc1 {lnd}")
        for hh in range(2):
            for r in range(16):
                a(f"v_add_f32 v{self.A_S + 16 * hh + r}, v{self.A_S + 16 * hh + r}, v{self.A_MD + r}")
        a.label(lnd)
        for hh in range(2):
            sreg, o = self.A_S + 16 * hh, self.A_O + 16 * hh
            x = M + 2
            a(f"v_max3_f32 v{x}, v{sreg}, v{sreg + 1}, v{M + hh}")
            for r in range(2, 16, 2):
                a(f"v_max3_f32 v{x}, v{sreg + r}, v{sreg + r + 1}, v{x}")
            a(f"""
            v_mov_b32 v{x + 1}, v{x}
            v_mov_b32 v{x + 2}, v{x}
            v_nop
            v_permlane32_swap_b32 v{x + 1}, v{x + 2}
            v_max_f32 v{x}, v{x + 1}, v{x + 2}
            v_sub_f32 v{x + 1}, v{M + hh}, v{x}
            v_exp_f32 v{x + 1}, v{x + 1}
            v_mov_b32 v{M + hh}, v{x}
            """)
            for r in range(16):
                a(f"v_sub_f32 v{sreg + r}, v{sreg + r}, v{x}")
            for r in range(16):
                a(f"v_mul_f32 v{o + r}, v{o + r}, v{x + 1}")
            self.a_softmax(a, hh)
            for m in self.a_pv(hh):
                a(m)
        a(f"s_add_u32 s{sCnt}, s{sCnt}, 1\ns_cmp_le_u32 s{sCnt}, 8\ns_cbranch_scc1 {lp}")
        a("s_nop 15")
        self.a_rowsum(a)
        a(f"s_branch {ldone}")

    def f_reads(self, j, wo):
        return [] if self.o.get("nofr") else super().f_reads(j, wo)

    def m_reads(self, ks):
        return [] if self.o.get("nomr") else super().m_reads(ks)

    def f_addr(self, wo):
        out = [f"v_add_u32 v{self.F_AA}, s{sSlot}, v{self.F_CA}"]
        if wo:
            out += [f"v_add_u32 v{self.F_AO + k}, s{sSlot}, v{self.F_CO + k}" for k in range(4)]
        else:
            out += [f"v_add_u32 v{self.F_AB + tn}, s{sSlot}, v{self.F_CB + tn}" for tn in range(2)]
        return out

    def f_stage(self, a, first, wo, next_wo, pre=None, hook=None):
        if pre:
            pre()
        self.cbar(a)
        if hook:
            hook()
        r0 = self.f_reads(0, wo)
        if first:
            for r in r0:
                a(r)
        else:
            self.spread(a, self.f_mfmas(1), r0)
        a("s_waitcnt lgkmcnt(0)")
        self.spread(a, self.czero(self.f_mfmas(0)) if first else self.f_mfmas(0), self.f_reads(1, wo))
        self.slot_next(a)
        a("s_waitcnt lgkmcnt(0)")
        for c in self.f_addr(next_wo):
            a(c)

    FE_X, FE_T = 208, 56

    def f_epilogue_pre(self, a):
        X, t, raw = self.FE_X, self.FE_T, 228
        B2 = self.V_B2
        a(f"""
        s_lshl_b32 s{sT1}, s{sWn}, 5
        s_lshl_b32 s{sT2}, s{sWm}, 4
        s_add_u32 s{sT1}, s{sT1}, s{sT2}
        v_and_b32 v{t}, 15, v0
        v_add_u32 v{t}, s{sT1}, v{t}
        v_mul_u32_u24 v{t + 1}, 160, v{t}
        v_lshrrev_b32 v1, 4, v0
        v_lshl_add_u32 v{t + 1}, v1, 3, v{t + 1}
        v_add_u32 v{t + 1}, {SCR}, v{t + 1}
        """)
        for tm in range(5):
            a(f"ds_read_b64 v[{raw + 2 * tm}:{raw + 2 * tm + 1}], v{t + 1} offset:{32 * tm}")
        a(f"""
        s_lshl_b32 s{sT0}, s{sSt}, 6
        v_add_u32 v{t}, s{sT0}, v{t}
        v_mul_u32_u24 v{t}, 1280, v{t}
        s_mul_i32 s{sT0}, s{sDt}, 160
        v_add_u32 v{t}, s{sT0}, v{t}
        v_lshl_add_u32 v{t}, v1, 3, v{t}
        v_lshlrev_b32 v{t + 1}, 4, v0
        s_xor_b32 s{sT0}, s{sLw}, 2
        s_mul_i32 s{sT0}, s{sT0}, 5120
        s_add_u32 s{sT0}, s{sT0}, {SLOT}
        v_add_u32 v{t + 1}, s{sT0}, v{t + 1}
        s_mov_b32 s{sT3}, 0xffff0000
        s_waitcnt vmcnt(0) lgkmcnt(0)
        v_lshlrev_b32 v238, 16, v{B2}
        """)
        for tm in range(5):
            x = X + 4 * tm
            a(f"""
            v_lshlrev_b32 v{x}, 16, v{raw + 2 * tm}
            v_and_b32 v{x + 1}, s{sT3}, v{raw + 2 * tm}
            v_lshlrev_b32 v{x + 2}, 16, v{raw + 2 * tm + 1}
            v_and_b32 v{x + 3}, s{sT3}, v{raw + 2 * tm + 1}
            """)
        for y in range(X, X + 20, 2):
            a(f"v_pk_add_f32 v[{y}:{y + 1}], v[{y}:{y + 1}], v[238:239] op_sel_hi:[1,0]")

    def f_epilogue(self, a, kh):
        R, X, t = 136, self.FE_X, self.FE_T
        for tm in range(5):
            a(f"ds_read_b128 v[{R + 4 * tm}:{R + 4 * tm + 3}], v{t + 1} offset:{tm * 1024}")
        for tm in range(5):
            k = self.F_ACC + 4 * (2 * tm + kh)
            for y in (0, 2):
                a(f"v_pk_add_f32 v[{k + y}:{k + y + 1}], v[{k + y}:{k + y + 1}], v[{X + 4 * tm + y}:{X + 4 * tm + y + 1}]")
        for tm in range(5):
            k, r = self.F_ACC + 4 * (2 * tm + kh), R + 4 * tm
            a(f"s_waitcnt lgkmcnt({4 - tm})")
            for y in (0, 2):
                a(f"v_pk_add_f32 v[{k + y}:{k + y + 1}], v[{k + y}:{k + y + 1}], v[{r + y}:{r + y + 1}]")
            a(f"v_cvt_pk_bf16_f32 v{k}, v{k}, v{k + 1}\nv_cvt_pk_bf16_f32 v{k + 1}, v{k + 2}, v{k + 3}")
            a(f"buffer_store_dwordx2 v[{k}:{k + 1}], v{t}, s[{sOUT}:{sOUT + 3}], 0 offen offset:{32 * tm} " + ("", "sc1", "nt", "sc1 nt")[self.o["outpol"]])

    def c_final(self, a):
        T = 224
        a(f"s_mov_b32 s{sSlot}, 0")
        for c in self.f_addr(False):
            a(c)

        def b2_load():
            a(f"""
            s_lshl_b32 s{sT0}, s{sSt}, 6
            s_lshl_b32 s{sT1}, s{sWn}, 5
            s_add_u32 s{sT0}, s{sT0}, s{sT1}
            s_lshl_b32 s{sT1}, s{sWm}, 4
            s_add_u32 s{sT0}, s{sT0}, s{sT1}
            v_and_b32 v{T}, 15, v0
            v_add_u32 v{T}, s{sT0}, v{T}
            v_lshlrev_b32 v{T}, 1, v{T}
            buffer_load_ushort v{self.V_B2}, v{T}, s[{sB2}:{sB2 + 3}], 0 offen
            """)
        self.f_stage(a, True, False, False, hook=b2_load)
        self.f_stage(a, False, False, False)
        self.f_stage(a, False, False, False)
        self.f_stage(a, False, False, False)
        self.mark(a)
        self.loop(a, 7, lambda: self.f_stage(a, False, False, False))
        self.f_stage(a, False, False, True)
        self.mark(a)
        self.loop(a, 2, lambda: self.f_stage(a, False, True, True))
        self.f_epilogue_pre(a)
        self.loop(a, 3, lambda: self.f_stage(a, False, True, True))
        self.f_tail(a)
        self.mark(a)
        self.by_scalar(a, sWm, lambda kh: self.f_reduce_write(a, kh))
        a("s_barrier")
        self.by_scalar(a, sWm, lambda kh: self.f_epilogue(a, kh))

    def strip_zero(self, fn, lo, hi):
        body = Asm()
        fn(body)
        return [it for it in body.items
                if not (it.mn == "v_mov_b32" and it.ops[0][0] == "v" and it.ops[1] == "0" and lo <= int(it.ops[0][1:]) < hi)]

    def consumer(self, a):
        if self.o["prio"]:
            a(f"s_setprio {self.o['prio']}")
        a("s_waitcnt lgkmcnt(0)")
        self.mark(a)
        for ps in range(self.ln_passes()):
            a(f"v_mov_b32 v{self.LN_H + 14 * ps + 12}, {OOB}\nv_mov_b32 v{self.LN_H + 14 * ps + 13}, {OOB}")
        lab = a.uid("Lnold")
        a(f"s_cmp_eq_u32 s{sLnOn}, 0\ns_cbranch_scc1 {lab}")
        self.ln_loads(a)
        a.label(lab)
        a(f"""
        v_mov_b32 v1, {SCR_CNT}
        v_mov_b32 v2, 0
        v_mov_b32 v3, 0
        ds_write_b64 v1, v[2:3]
        """)
        a.items += self.strip_zero(lambda b: B.Gen.m_consts(self, b), 64, 128)
        a.items += self.strip_zero(lambda b: B.Gen.f_consts(self, b), 64, 128)
        self.a_addr_consts(a)
        a(f"s_mov_b32 s{sSlot}, 0")
        a.items += self.strip_zero(lambda b: B.Gen.q_consts(self, b), 64, 132)
        self.mark(a)
        lab = a.uid("Lnolc")
        a(f"s_cmp_eq_u32 s{sLnOn}, 0\ns_cbranch_scc1 {lab}")
        self.ln_compute(a)
        a.label(lab)
        a("s_waitcnt lgkmcnt(0)")
        self.mark(a)
        self.c_qkv(a)
        self.mark(a)
        self.c_mix1(a)
        self.mark(a)
        self.mark(a)
        self.attention(a)
        self.mark(a)
        self.c_final(a)
        self.mark(a)

    def build(self):
        name = NAME + "_kernel"
        body = self.split(name, self.consumer, self.loader)
        if self.o.get("plainst"):
            body = "\n".join(l.replace(" sc1", "") if "buffer_store" in l else l for l in body.split("\n"))
        return B_kernel(name, body)


def B_kernel(name, body):
    return f"""; Sliding-window attention + token-mixer MLP + residual, bf16, S=2048 D=640, one persistent launch.
; @launch grid=(256,1,1) block=(512,1,1) lds={LDS_BYTES}
.amdgcn_target "amdgcn-amd-amdhsa--gfx950"
.text
.globl {name}
.p2align 8
.type {name},@function
{name}:
{body}{name}_code_end:
.set CODE_BYTES, {name}_code_end-{name}
.section .rodata,"a"
.p2align 6
.amdhsa_kernel {name}
  .amdhsa_next_free_vgpr 256
  .amdhsa_next_free_sgpr 102
  .amdhsa_accum_offset 256
  .amdhsa_group_segment_fixed_size 0
  .amdhsa_kernarg_size 88
  .amdhsa_user_sgpr_count 2
  .amdhsa_user_sgpr_kernarg_segment_ptr 1
  .amdhsa_system_sgpr_workgroup_id_x 1
.end_amdhsa_kernel
"""


if __name__ == "__main__":
    mode = sys.argv[1] if len(sys.argv) > 1 else "run"
    path = sys.argv[2] if len(sys.argv) > 2 else f"cdna_kernels/{NAME}.s"
    opts = {}
    for kv in sys.argv[3:]:
        k, val = kv.split("=")
        opts[k] = int(val)
    txt = Fused(diag=(mode == "diag"), opts=opts).build()
    open(path, "w").write(txt)
    print("wrote", path, len(txt), "bytes")
```

```python
import math
import sys

sys.path.insert(0, "tools")
from asmlib import Asm
from gen_base import *
import gen_base as B

OOB = 0x7ff00000
SPIN_MAX = 100000
FL_LN, FL_KV, FL_O, FL_G = 0x1000, 0x1400, 0x1800, 0x8000
SCR_CNT = SCR + 10752
SCR_CS = SCR + 10240
M_RED = 16384
GROW = 144
sPub, sT6 = 79, 85
sKcA, sKcB, sKt, sRq, sRm, sRf, sRw = 9, 10, 11, 12, 13, 14, 15
sBaseA, sBaseB = 16, 17
sLnOn, sLnIdx = 18, 19
sArr, sNon2 = 4, 5


class Fused(Gen):
    A_MF, A_MD, A_KA, A_VA = 2, 18, 34, 36
    F_CA, F_CB, F_CO = 38, 39, 41
    M_CA, M_CB = 45, 47
    V_ST, V_B1, V_B2, V_ARR, V_POLL = 48, 52, 53, 54, 56
    V_DUMMY = 228
    Q_ACC, Q_CS, Q_ONES, Q_BUF, Q_CA, Q_CB, Q_AA, Q_AB = 64, 128, 132, 136, 200, 202, 206, 208
    M_ACC, M_BUF, M_AA, M_AB = 64, 136, 196, 198
    A_Q, A_K, A_V, A_S, A_P, A_O, A_T = 64, 80, 96, 112, 144, 208, 192
    F_ACC, F_BUF, F_AA, F_AB, F_AO = 64, 136, 199, 200, 202

    def __init__(self, diag=False, opts=None):
        super().__init__(fused=True, diag=diag)
        self.o = dict(prefetch=0, tlb=0, lead=3, nt=0, gsleep=4, ldsc1=1, xmap=0, light=0, w1a=1024, rot=22, lngood=0, codepf=0, outpol=0, pfw1=1, pfw2=1, pfw0=1, gsolo=1, lsleep=1, prio=0, psleep=2)
        self.o.update(opts or {})

    def stamp(self, a, k, bump=False):
        if not self.o["light"]:
            super().stamp(a, k, bump)

    def diag_dump(self, a, kidx):
        wg = self.o.get("dbgout")
        if wg is None:
            return super().diag_dump(a, kidx)
        lab = a.uid("Ldbg")
        a(f"""
        s_cmp_lg_u32 s{sWg}, {wg}
        s_cbranch_scc1 {lab}
        s_cmp_lg_u32 s{sWv}, 0
        s_cbranch_scc1 {lab}
        v_readlane_b32 s{sT0}, v{self.DV + 1}, 0
        v_lshlrev_b32 v1, 2, v0
        v_mov_b32 v3, {OOB}
        v_subrev_u32 v2, s{sT0}, v{self.DV + 1}
        v_cmp_gt_u32 vcc, 16, v0
        v_cndmask_b32 v1, v3, v1, vcc
        v_cmp_eq_u32 vcc, 0, v0
        v_cndmask_b32 v1, v1, v3, vcc
        buffer_store_dword v2, v1, s[{sDBG}:{sDBG + 3}], 0 offen
        """)
        a.label(lab)

    def mark(self, a):
        if self.diag and self.o["light"]:
            if self.o.get("rt"):
                a(f"s_memrealtime s[98:99]\ns_mov_b32 m0, s{self.sStg}\ns_waitcnt lgkmcnt(0)\nv_writelane_b32 v{self.DV + 1}, s98, m0\ns_add_u32 s{self.sStg}, s{self.sStg}, 1")
            else:
                B.Gen.stamp(self, a, 1, True)

    SRDS = ((sX, 0, 2048 * 1280), (sW, 8, 640 * 3840), (sWO, 16, 640 * 1280), (sW1, 32, 2048 * 3072),
            (sB1, 40, 1536 * 2), (sW2, 48, 1536 * 4096), (sB2, 56, 2048 * 2), (sOUT, 64, 2048 * 1280),
            (sDBG, 72, 256), (sWS, 80, WS_USED))

    def prologue(self, a, lab):
        a(f"s_cmp_ge_u32 s2, 256\ns_cbranch_scc1 {lab}_end")
        for srd, off, size in self.SRDS:
            a(f"s_load_dwordx2 s[{srd}:{srd + 1}], s[0:1], {off}")
        body = Asm()
        B.Gen.prologue(self, body, lab)
        items = body.items
        first = next(k for k, it in enumerate(items) if it.mn == "v_lshrrev_b32")
        last = next(k for k, it in enumerate(items) if it.mn == "s_waitcnt")
        a.items += items[first:last]
        for srd, off, size in self.SRDS:
            if srd == sWS and self.diag:
                size *= 2
            a(f"s_mov_b32 s{srd + 2}, {size}\ns_mov_b32 s{srd + 3}, 0x00020000")
        if self.o["lngood"]:
            a(f"""
            s_lshr_b32 s{sT0}, s{sWg}, 6
            s_lshr_b32 s{sT1}, s{sWg}, 1
            s_xor_b32 s{sT1}, s{sT1}, s{sT0}
            s_and_b32 s{sT1}, s{sT1}, 1
            s_xor_b32 s{sLnOn}, s{sT1}, 1
            s_and_b32 s{sT1}, s{sWg}, 7
            s_lshl_b32 s{sLnIdx}, s{sT1}, 4
            s_lshr_b32 s{sT0}, s{sT0}, 1
            s_lshl_b32 s{sT0}, s{sT0}, 3
            s_add_u32 s{sLnIdx}, s{sLnIdx}, s{sT0}
            s_lshr_b32 s{sT0}, s{sWg}, 3
            s_and_b32 s{sT0}, s{sT0}, 7
            s_add_u32 s{sLnIdx}, s{sLnIdx}, s{sT0}
            """)
        else:
            a(f"s_mov_b32 s{sLnOn}, 1\ns_mov_b32 s{sLnIdx}, s{sWg}")
        self.rot_consts(a)
        if not self.o["xmap"]:
            return
        a(f"""
        s_and_b32 s{sT0}, s{sWg}, 7
        s_lshr_b32 s{sT1}, s{sWg}, 3
        s_lshl_b32 s{sSt}, s{sT0}, 2
        s_and_b32 s{sT2}, s{sT1}, 3
        s_add_u32 s{sSt}, s{sSt}, s{sT2}
        s_lshr_b32 s{sDt}, s{sT1}, 2
        s_cmp_lt_u32 s{sT1}, 30
        s_cselect_b32 s{sT2}, 0, 30
        s_sub_u32 s{sT1}, s{sT1}, s{sT2}
        s_mul_i32 s{sT2}, s{sT1}, 26
        s_lshr_b32 s{sT2}, s{sT2}, 8
        s_mul_i32 s{sT3}, s{sT2}, 10
        s_sub_u32 s{sDt1}, s{sT1}, s{sT3}
        s_mul_i32 s{sFt}, s{sT0}, 3
        s_add_u32 s{sFt}, s{sFt}, s{sT2}
        """)

    def smod(self, a, r, n, times):
        for _ in range(times):
            a(f"s_cmp_ge_u32 s{r}, {n}\ns_cselect_b32 s{sT5}, {n}, 0\ns_sub_u32 s{r}, s{r}, s{sT5}")

    def rot_consts(self, a):
        if not self.o["rot"]:
            for r in (sRq, sRm, sRf, sRw):
                a(f"s_mov_b32 s{r}, 0")
            return
        a(f"""
        s_lshr_b32 s{sT0}, s{sWg}, 3
        s_and_b32 s{sT1}, s{sT0}, 7
        s_lshr_b32 s{sT2}, s{sT0}, 3
        s_mul_i32 s{sT3}, s{sT2}, 3
        s_add_u32 s{sRq}, s{sT1}, s{sT3}
        s_mul_i32 s{sRf}, s{sT1}, 5
        s_add_u32 s{sRf}, s{sRf}, s{sT3}
        s_lshl_b32 s{sRw}, s{sT2}, 1
        s_add_u32 s{sRw}, s{sRw}, s{sT1}
        s_mul_i32 s{sRm}, s{sFt}, 3
        s_mul_i32 s{sT3}, s{sDt1}, 5
        s_add_u32 s{sRm}, s{sRm}, s{sT3}
        s_and_b32 s{sRm}, s{sRm}, 7
        """)
        self.smod(a, sRq, 10, 1)
        self.smod(a, sRf, 12, 3)
        self.smod(a, sRw, 5, 2)
        for bit, r in ((1, sRq), (2, sRm), (4, sRf), (8, sRw)):
            if not self.o["rot"] & bit:
                a(f"s_mov_b32 s{r}, 0")

    def wrap(self, a, kc, n, offs):
        a(f"s_add_u32 s{kc}, s{kc}, 1\ns_cmp_eq_u32 s{kc}, {n}\ns_cselect_b32 s{kc}, 0, s{kc}")
        for k, (reg, step) in enumerate(offs):
            a(f"s_cselect_b32 s{sT1 + k}, {n * step}, 0")
        for k, (reg, step) in enumerate(offs):
            a(f"s_sub_u32 s{reg}, s{reg}, s{sT1 + k}")

    def lead_order(self, a, n_chunks, period, jreg, offs):
        a(f"""
        s_and_b32 s{sT1}, s{sKt}, {period - 1}
        s_cmp_eq_u32 s{sT1}, s{jreg}
        s_cselect_b32 s{sT2}, 1, 0
        s_cmp_eq_u32 s{sKt}, {n_chunks - 1}
        s_cselect_b32 s{sT2}, 0, s{sT2}
        s_sub_u32 s{sT1}, s{sKt}, 1
        s_and_b32 s{sT1}, s{sT1}, {period - 1}
        s_cmp_eq_u32 s{sT1}, s{jreg}
        s_cselect_b32 s{sT3}, 1, 0
        s_cmp_eq_u32 s{sKt}, 0
        s_cselect_b32 s{sT3}, 0, s{sT3}
        s_add_u32 s{sT2}, s{sT2}, s{sKt}
        s_sub_u32 s{sT2}, s{sT2}, s{sT3}
        s_add_u32 s{sKt}, s{sKt}, 1
        """)
        for reg, base, step in offs:
            a(f"s_mul_i32 s{sT1}, s{sT2}, {step}\ns_add_u32 s{reg}, s{base}, s{sT1}")

    def q_init(self, a):
        super().q_init(a)
        if self.o["rot"] & 16:
            a(f"""
            s_mov_b32 s{sBaseA}, s{sOffA}
            s_mov_b32 s{sBaseB}, s{sOffB}
            s_mov_b32 s{sKt}, 0
            s_lshr_b32 s{sT0}, s{sWg}, 3
            s_lshr_b32 s{sT1}, s{sT0}, 3
            s_add_u32 s{sT0}, s{sT0}, s{sT1}
            s_and_b32 s{sRq}, s{sT0}, 3
            """)
            return
        a(f"""
        s_mov_b32 s{sKcA}, s{sRq}
        s_lshl_b32 s{sT0}, s{sRq}, 7
        s_add_u32 s{sOffA}, s{sOffA}, s{sT0}
        s_mul_i32 s{sT0}, s{sRq}, {64 * 3840}
        s_add_u32 s{sOffB}, s{sOffB}, s{sT0}
        """)

    def q_issue(self, a):
        if self.o["rot"] & 16:
            self.lead_order(a, 10, 4, sRq, [(sOffA, sBaseA, 128), (sOffB, sBaseB, 64 * 3840)])
            super().q_issue(a)
            return
        super().q_issue(a)
        self.wrap(a, sKcA, 10, [(sOffA, 128), (sOffB, 64 * 3840)])

    def m_init(self, a):
        super().m_init(a)
        a(f"""
        s_mov_b32 s{sKcA}, s{sRm}
        s_mov_b32 s{sKt}, 0
        s_mul_i32 s{sT0}, s{sRm}, {128 * 1280}
        s_add_u32 s{sOffA}, s{sOffA}, s{sT0}
        s_mul_i32 s{sT0}, s{sRm}, {128 * 3072}
        s_add_u32 s{sOffB}, s{sOffB}, s{sT0}
        """)

    def m_issue(self, a):
        super().m_issue(a)
        self.wrap(a, sKcA, 8, [(sOffA, 128 * 1280), (sOffB, 128 * 3072)])
        a(f"s_add_u32 s{sKt}, s{sKt}, 1\ns_cmp_eq_u32 s{sKt}, 8")
        a(f"""
        s_cselect_b32 s{sT1}, {8 * 128 * 1280}, 0
        s_cselect_b32 s{sT2}, {8 * 128 * 3072}, 0
        s_add_u32 s{sOffA}, s{sOffA}, s{sT1}
        s_add_u32 s{sOffB}, s{sOffB}, s{sT2}
        """)

    def f_init(self, a):
        super().f_init(a)
        a(f"""
        s_mov_b32 s{sKcA}, s{sRf}
        s_mov_b32 s{sKcB}, s{sRf}
        s_mul_i32 s{sT0}, s{sRf}, {128 * 160}
        s_add_u32 s{sOffA}, s{sOffA}, s{sT0}
        s_mul_i32 s{sT0}, s{sRf}, {128 * 4096}
        s_add_u32 s{sOffB}, s{sOffB}, s{sT0}
        """)

    def f_issue_w2(self, a):
        super().f_issue_w2(a)
        self.wrap(a, sKcB, 12, [(sOffB, 128 * 4096)])

    def f_issue_g(self, a):
        super().f_issue_g(a)
        self.wrap(a, sKcA, 12, [(sOffA, 128 * 160)])

    def wo_init(self, a):
        super().wo_init(a)
        a(f"""
        s_mov_b32 s{sKcA}, s{sRw}
        s_mul_i32 s{sT0}, s{sRw}, {128 * 1280}
        s_add_u32 s{sOffA}, s{sOffA}, s{sT0}
        s_lshl_b32 s{sT0}, s{sRw}, 8
        s_add_u32 s{sOffB}, s{sOffB}, s{sT0}
        """)

    def wo_issue(self, a):
        super().wo_issue(a)
        self.wrap(a, sKcA, 5, [(sOffA, 128 * 1280), (sOffB, 256)])

    def only_w0(self, a, fn):
        lab = a.uid("Lw0")
        a(f"s_cmp_lg_u32 s{sLw}, 0\ns_cbranch_scc1 {lab}")
        fn()
        a.label(lab)

    def nonce_load(self, a):
        a(f"s_load_dword s{sNonce}, s[{sWS}:{sWS + 1}], {WS_EPOCH}")

    def nonce_make(self, a):
        a(f"""
        s_waitcnt lgkmcnt(0)
        s_mul_i32 s{sNonce}, s{sNonce}, 1664525
        s_add_u32 s{sNonce}, s{sNonce}, 1013904223
        """)

    def flag_set(self, a, off):
        a(f"s_atomic_swap s{sNonce}, s[{sWS}:{sWS + 1}], s{off}")

    def poll_issue(self, a, vaddr, n=1):
        r = self.LV_PR
        if n == 1:
            a(f"buffer_load_dword v{r}, v{vaddr}, s[{sWS}:{sWS + 3}], 0 offen sc1")
        else:
            a(f"buffer_load_dwordx4 v[{r}:{r + 3}], v{vaddr}, s[{sWS}:{sWS + 3}], 0 offen sc1")

    def poll_test(self, a, n):
        r = self.LV_PR
        a(f"v_cmp_eq_u32 s[{sT0}:{sT0 + 1}], s{sNonce}, v{r}")
        for k in range(1, n):
            a(f"v_cmp_eq_u32 s[{sT2}:{sT2 + 1}], s{sNonce}, v{r + k}")
            a(f"s_and_b64 s[{sT0}:{sT0 + 1}], s[{sT0}:{sT0 + 1}], s[{sT2}:{sT2 + 1}]")
        a(f"s_cmp_eq_u64 s[{sT0}:{sT0 + 1}], exec")

    def poll_check(self, a, vaddr, n=1, sleep=None):
        ok, sp = a.uid("Lpok"), a.uid("Lspin")
        sleep = self.o["psleep"] if sleep is None else sleep
        self.poll_test(a, n)
        a(f"s_cbranch_scc1 {ok}")
        self.spin(a, vaddr, n, ok, sp, sleep)
        a.label(ok)

    def spin(self, a, vaddr, n, ok, sp, sleep):
        a(f"s_mov_b32 s{sT6}, {SPIN_MAX}")
        a.label(sp)
        a(f"s_sleep {sleep}")
        self.poll_issue(a, vaddr, n)
        a("s_waitcnt vmcnt(0)")
        self.poll_test(a, n)
        a(f"s_cbranch_scc1 {ok}")
        a(f"s_sub_u32 s{sT6}, s{sT6}, 1\ns_cmp_lg_u32 s{sT6}, 0\ns_cbranch_scc1 {sp}")

    LV_PLA, LV_PKV, LV_PG, LV_PO, LV_PLB, LV_PR = 14, 15, 16, 17, 18, 24
    LV_P1, LV_P2, LV_DUMMY = 100, 103, 96

    def loader_poll_addrs(self, a):
        t0, t1, t2, t3 = 20, 21, 22, 23
        a(f"""
        v_lshrrev_b32 v{t0}, 4, v0
        v_mov_b32 v{t1}, s{sI}
        v_cmp_eq_u32 vcc, 3, v{t0}
        v_cndmask_b32 v{t0}, v{t0}, v{t1}, vcc
        v_lshlrev_b32 v{t0}, 6, v{t0}
        v_and_b32 v{t1}, 15, v0
        v_lshl_add_u32 v{t0}, v{t1}, 2, v{t0}
        v_add_u32 v{self.LV_PLA}, {FL_LN}, v{t0}
        v_and_b32 v{t0}, {31 if self.o["lngood"] else 63}, v0
        v_lshlrev_b32 v{t0}, 4, v{t0}
        v_add_u32 v{self.LV_PLB}, {FL_LN}, v{t0}
        v_min_u32 v{t0}, 2, v0
        v_sub_u32 v{t0}, s{sI}, v{t0}
        v_max_i32 v{t0}, 0, v{t0}
        s_lshl_b32 s{sT0}, s{sP}, 4
        v_add_u32 v{t0}, s{sT0}, v{t0}
        v_lshlrev_b32 v{t0}, 2, v{t0}
        v_add_u32 v{self.LV_PKV}, {FL_KV}, v{t0}
        v_and_b32 v{t0}, 15, v0
        s_lshr_b32 s{sT0}, s{sSt}, 1
        s_lshl_b32 s{sT0}, s{sT0}, 4
        v_add_u32 v{t0}, s{sT0}, v{t0}
        v_lshlrev_b32 v{t0}, 2, v{t0}
        v_add_u32 v{self.LV_PO}, {FL_O}, v{t0}
        v_min_u32 v{t0}, 47, v0
        v_mul_u32_u24 v{t1}, 2731, v{t0}
        v_lshrrev_b32 v{t1}, 16, v{t1}
        v_mul_u32_u24 v{t2}, 24, v{t1}
        v_sub_u32 v{t2}, v{t0}, v{t2}
        s_mul_i32 s{sT0}, s{sDt}, 80
        s_lshr_b32 s{sT0}, s{sT0}, 6
        v_add_u32 v{t1}, s{sT0}, v{t1}
        v_lshlrev_b32 v{t1}, 2, v{t1}
        v_lshl_add_u32 v{t1}, v{t2}, 6, v{t1}
        s_and_b32 s{sT0}, s{sWg}, 7
        s_mul_i32 s{sT0}, s{sT0}, 1536
        s_add_u32 s{sT0}, s{sT0}, {FL_G}
        v_add_u32 v{self.LV_PG}, s{sT0}, v{t1}
        s_cmp_eq_u32 s{sLw}, 0
        s_cselect_b32 s{sT0}, 0, {OOB}
        """)
        for r in (self.LV_PLA, self.LV_PLB, self.LV_PKV, self.LV_PO, self.LV_PG):
            a(f"v_add_u32 v{r}, s{sT0}, v{r}")

    def loader_prefetch_consts(self, a):
        t0, t1, t2 = 20, 21, 22
        for t in range(3):
            a(f"""
            v_add_u32 v{t0}, {64 * t}, v0
            v_mul_u32_u24 v{t1}, 2731, v{t0}
            v_lshrrev_b32 v{t1}, 16, v{t1}
            v_mul_u32_u24 v{t2}, 24, v{t1}
            v_sub_u32 v{t2}, v{t0}, v{t2}
            v_lshlrev_b32 v{t2}, 4, v{t2}
            v_mul_u32_u24 v{t1}, 3072, v{t1}
            v_add_u32 v{self.LV_P1 + t}, v{t1}, v{t2}
            """)
        a(f"""
        v_lshrrev_b32 v{t0}, 5, v0
        v_lshlrev_b32 v{t0}, 12, v{t0}
        v_and_b32 v{t1}, 31, v0
        v_lshl_add_u32 v{self.LV_P2}, v{t1}, 4, v{t0}
        """)

    def code_prefetch(self, a):
        if not self.o["codepf"]:
            return 0
        d = self.LV_DUMMY
        lab = a.uid("Lpc")
        a(f"s_getpc_b64 s[{sT2}:{sT2 + 1}]")
        a.label(lab)
        a(f"""
        s_lshr_b32 s{sT0}, s{sWg}, 3
        s_lshl_b32 s{sT0}, s{sT0}, 10
        s_lshl_b32 s{sT1}, s{sLw}, 15
        s_add_u32 s{sT0}, s{sT0}, s{sT1}
        v_lshl_add_u32 v20, v0, 4, s{sT0}
        s_sub_u32 s{sT2}, s{sT2}, {lab}-{NAME}_kernel
        s_subb_u32 s{sT2 + 1}, s{sT2 + 1}, 0
        v_min_u32 v20, CODE_BYTES-16, v20
        v_mov_b32 v21, s{sT2 + 1}
        v_add_co_u32 v20, vcc, s{sT2}, v20
        v_addc_co_u32 v21, vcc, 0, v21, vcc
        global_load_dwordx4 v[{d}:{d + 3}], v[20:21], off
        """)
        return 1

    def tlb_touch(self, a):
        if not self.o["tlb"]:
            return 0
        d = self.LV_DUMMY
        a(f"v_lshlrev_b32 v20, 21, v0")
        for srd in (sW1, sW2, sWS, sWO, sOUT):
            a(f"buffer_load_dword v{d}, v20, s[{srd}:{srd + 3}], 0 offen")
        return 5

    def pf_range(self, a, srd, start, nbytes):
        d = self.LV_DUMMY
        share = nbytes // 256
        per_wave = -(-share // 4096)
        a(f"""
        s_mul_i32 s{sT0}, s{sWg}, {share}
        s_mul_i32 s{sT1}, s{sLw}, {per_wave * 1024}
        s_add_u32 s{sT0}, s{sT0}, s{sT1}
        s_add_u32 s{sT0}, s{sT0}, {start}
        """)
        for k in range(per_wave):
            a(f"buffer_load_dwordx4 v[{d}:{d + 3}], v{self.LV_LIN}, s[{srd}:{srd + 3}], s{sT0} offen offset:{(k % 4) * 1024}")
            if k % 4 == 3:
                a(f"s_add_u32 s{sT0}, s{sT0}, 4096")
        return per_wave

    def pf_w1(self, a):
        if not self.o["prefetch"]:
            return 0
        d = self.LV_DUMMY
        a(f"""
        s_lshr_b32 s{sT0}, s{sWg}, 3
        s_lshl_b32 s{sT0}, s{sT0}, 6
        s_lshl_b32 s{sT1}, s{sLw}, 4
        s_add_u32 s{sT0}, s{sT0}, s{sT1}
        s_mul_i32 s{sT0}, s{sT0}, 3072
        s_and_b32 s{sT1}, s{sWg}, 7
        s_mul_i32 s{sT1}, s{sT1}, 384
        s_add_u32 s{sT0}, s{sT0}, s{sT1}
        """)
        for k in range(6):
            if k == 3:
                a(f"s_add_u32 s{sT0}, s{sT0}, {8 * 3072}")
            a(f"buffer_load_dwordx4 v[{d}:{d + 3}], v{self.LV_P1 + k % 3}, s[{sW1}:{sW1 + 3}], s{sT0} offen nt")
        return 6

    def pf_w2(self, a):
        if not self.o["prefetch"]:
            return 0
        d = self.LV_DUMMY
        a(f"""
        s_lshr_b32 s{sT0}, s{sWg}, 3
        s_mul_i32 s{sT0}, s{sT0}, 48
        s_mul_i32 s{sT1}, s{sLw}, 12
        s_add_u32 s{sT0}, s{sT0}, s{sT1}
        s_lshl_b32 s{sT0}, s{sT0}, 12
        s_and_b32 s{sT1}, s{sWg}, 7
        s_lshl_b32 s{sT1}, s{sT1}, 9
        s_add_u32 s{sT0}, s{sT0}, s{sT1}
        """)
        for k in range(6):
            a(f"buffer_load_dwordx4 v[{d}:{d + 3}], v{self.LV_P2}, s[{sW2}:{sW2 + 3}], s{sT0} offen nt")
            a(f"s_add_u32 s{sT0}, s{sT0}, 8192")
        return 6

    def dma(self, a, srd, voff, soff, add, lds_add, dep=False):
        if self.o.get("fakeh") and voff == self.LV_H:
            a(f"""
            s_add_u32 m0, s{sSW}, {lds_add}
            s_add_u32 s{sT0}, s{soff}, {add - WS_H}
            buffer_load_dwordx4 v{voff}, s[{sX}:{sX + 3}], s{sT0} offen lds
            """)
            return
        pol = ("sc1 " if self.o["ldsc1"] else "") if dep else ("nt " if (srd in (sW1, sW2) and self.o["nt"]) else "")
        a(f"""
        s_add_u32 m0, s{sSW}, {lds_add}
        s_add_u32 s{sT0}, s{soff}, {add}
        buffer_load_dwordx4 v{voff}, s[{srd}:{srd + 3}], s{sT0} offen {pol}lds
        """)

    def lds_spin(self, a, word, target):
        ok, sp = a.uid("Llok"), a.uid("Llspin")
        r = self.LV_PR
        a(f"v_mov_b32 v{r + 1}, {SCR_CNT + 4 * word}\ns_mov_b32 s{sT6}, {SPIN_MAX}")
        a.label(sp)
        a(f"""
        ds_read_b32 v{r}, v{r + 1}
        s_waitcnt lgkmcnt(0)
        v_readfirstlane_b32 s{sT0}, v{r}
        s_cmp_ge_u32 s{sT0}, {target}
        s_cbranch_scc1 {ok}
        s_sleep {self.o["lsleep"]}
        s_sub_u32 s{sT6}, s{sT6}, 1
        s_cmp_lg_u32 s{sT6}, 0
        s_cbranch_scc1 {sp}
        """)
        a.label(ok)

    LN_RAW, LN_F, LN_OFF = 64, 76, 100

    def ln_passes(self):
        return 2 if self.o["lngood"] else 1

    def ln_loads(self, a):
        off = self.LN_OFF
        n = self.ln_passes()
        a(f"""
        s_mul_i32 s{sT0}, s{sLnIdx}, {8 * n}
        s_mul_i32 s{sT1}, s{sLw}, {2 * n}
        s_add_u32 s{sT0}, s{sT0}, s{sT1}
        v_lshrrev_b32 v{off + 1}, 5, v0
        v_add_u32 v{off + 1}, s{sT0}, v{off + 1}
        v_and_b32 v{off + 2}, 31, v0
        v_lshlrev_b32 v{off + 2}, 3, v{off + 2}
        v_mul_u32_u24 v{off}, 1280, v{off + 1}
        v_add_u32 v{off}, v{off}, v{off + 2}
        """)
        for ps in range(n):
            raw = self.LN_RAW + 54 * ps
            for j in range(5):
                a(f"buffer_load_dwordx2 v[{raw + 2 * j}:{raw + 2 * j + 1}], v{off}, s[{sX}:{sX + 3}], 0 offen offset:{2560 * ps + 256 * j}")

    def ln_compute(self, a):
        for ps in range(self.ln_passes()):
            self.ln_pass(a, ps)

    def ln_pass(self, a, ps):
        raw, f, off = self.LN_RAW + 54 * ps, self.LN_F, self.LN_OFF
        acc, t, sc, keep = 104, 108, 112, 116
        P = lambda r: f"v[{r}:{r + 1}]"

        def unpack():
            for d in range(10):
                a(f"v_lshlrev_b32 v{f + 2 * d}, 16, v{raw + d}\nv_and_b32 v{f + 2 * d + 1}, s{sT3}, v{raw + d}")

        def stats():
            a(f"v_pk_add_f32 {P(acc)}, {P(f)}, {P(f + 2)}\nv_pk_mul_f32 {P(acc + 2)}, {P(f)}, {P(f)}")
            a(f"v_pk_fma_f32 {P(acc + 2)}, {P(f + 2)}, {P(f + 2)}, {P(acc + 2)}")
            for d in range(2, 10):
                a(f"v_pk_add_f32 {P(acc)}, {P(acc)}, {P(f + 2 * d)}")
                a(f"v_pk_fma_f32 {P(acc + 2)}, {P(f + 2 * d)}, {P(f + 2 * d)}, {P(acc + 2)}")
            a(f"v_add_f32 v{acc}, v{acc}, v{acc + 1}\nv_add_f32 v{acc + 2}, v{acc + 2}, v{acc + 3}\nv_nop")
            for r in (8, 4, 2, 1):
                a(f"v_add_f32_dpp v{acc}, v{acc}, v{acc} row_ror:{r} row_mask:0xf bank_mask:0xf")
                a(f"v_add_f32_dpp v{acc + 2}, v{acc + 2}, v{acc + 2} row_ror:{r} row_mask:0xf bank_mask:0xf")
                a("v_nop")
            a(f"""
            v_mov_b32 v{t}, v{acc}
            v_mov_b32 v{t + 1}, v{acc}
            v_mov_b32 v{t + 2}, v{acc + 2}
            v_mov_b32 v{t + 3}, v{acc + 2}
            v_permlane16_swap_b32 v{t}, v{t + 1}
            v_permlane16_swap_b32 v{t + 2}, v{t + 3}
            v_add_f32 v{acc}, v{t}, v{t + 1}
            v_add_f32 v{acc + 2}, v{t + 2}, v{t + 3}
            v_mul_f32 v{acc}, {f32(1 / 640)}, v{acc}
            v_mov_b32 v{t}, {f32(1e-5)}
            v_fmac_f32 v{t}, {f32(1 / 640)}, v{acc + 2}
            v_fma_f32 v{t}, -v{acc}, v{acc}, v{t}
            v_max_f32 v{t}, {f32(1e-5)}, v{t}
            v_rsq_f32 v{sc}, v{t}
            v_mul_f32 v{sc + 1}, v{acc}, v{sc}
            """)

        def scale_pack(dst):
            for d in range(10):
                a(f"v_pk_fma_f32 {P(f + 2 * d)}, {P(f + 2 * d)}, {P(sc)}, {P(sc)} op_sel:[0,0,1] op_sel_hi:[1,0,1] neg_lo:[0,0,1] neg_hi:[0,0,1]")
            for d in range(10):
                a(f"v_cvt_pk_bf16_f32 v{dst + d}, v{f + 2 * d}, v{f + 2 * d + 1}")

        a(f"s_mov_b32 s{sT3}, 0xffff0000\ns_waitcnt vmcnt({5 * (self.ln_passes() - 1 - ps)})")
        unpack()
        stats()
        H = self.LN_H + 14 * ps
        a(f"v_mov_b32 v{H + 10}, v{acc}\nv_mov_b32 v{H + 11}, v{sc}")
        scale_pack(raw)
        unpack()
        stats()
        scale_pack(H)
        a(f"""
        v_add_u32 v{H + 12}, {WS_H + 2560 * ps}, v{off}
        v_lshlrev_b32 v{off + 4}, 3, v{off + 1}
        v_add_u32 v{off + 4}, {WS_STATS + 16 * ps}, v{off + 4}
        v_and_b32 v{off + 2}, 31, v0
        v_mov_b32 v{off + 3}, {OOB}
        v_cmp_eq_u32 vcc, 0, v{off + 2}
        v_cndmask_b32 v{H + 13}, v{off + 3}, v{off + 4}, vcc
        """)

    LN_H = 212

    def ln_stores(self, a):
        lab = a.uid("Lnoln")
        a(f"s_cmp_eq_u32 s{sLnOn}, 0\ns_cbranch_scc1 {lab}")
        for ps in range(self.ln_passes()):
            H = self.LN_H + 14 * ps
            for j in range(5):
                a(f"buffer_store_dwordx2 v[{H + 2 * j}:{H + 2 * j + 1}], v{H + 12}, s[{sWS}:{sWS + 3}], 0 offen offset:{256 * j} sc1")
            a(f"buffer_store_dwordx2 v[{H + 10}:{H + 11}], v{H + 13}, s[{sWS}:{sWS + 3}], 0 offen sc1")
        a.label(lab)

    def loader_consts_first(self, a):
        X, W, LIN = self.LV_X, self.LV_W, self.LV_LIN
        t0, t1, t2, t3 = 20, 21, 22, 23
        a(f"""
        v_lshrrev_b32 v{t0}, 3, v0
        v_and_b32 v{t1}, 7, v0
        v_lshrrev_b32 v{t2}, 1, v{t0}
        s_and_b32 s{sT0}, s{sLw}, 1
        s_lshl_b32 s{sT0}, s{sT0}, 2
        v_or_b32 v{t3}, s{sT0}, v{t2}
        v_xor_b32 v{t3}, v{t3}, v{t1}
        v_lshlrev_b32 v{t3}, 4, v{t3}
        v_mul_u32_u24 v{X}, 1280, v{t0}
        v_add_u32 v{X}, v{X}, v{t3}
        v_lshlrev_b32 v{LIN}, 4, v0
        v_lshrrev_b32 v{t0}, 4, v0
        v_and_b32 v{t1}, 15, v0
        v_lshlrev_b32 v{t2}, 2, v{t0}
        v_xor_b32 v{t2}, v{t2}, v{t1}
        v_min_u32 v{t2}, 14, v{t2}
        v_mul_u32_u24 v{t3}, 52, v{t2}
        v_lshrrev_b32 v{t3}, 8, v{t3}
        v_mul_u32_u24 v{W}, 5, v{t3}
        v_sub_u32 v{W}, v{t2}, v{W}
        v_lshlrev_b32 v{W}, 4, v{W}
        v_mul_u32_u24 v{t3}, 1280, v{t3}
        v_add_u32 v{W}, v{W}, v{t3}
        v_mul_u32_u24 v{t3}, 3840, v{t0}
        v_add_u32 v{W}, v{W}, v{t3}
        """)

    def fake_w(self, a):
        if not self.o.get("fakew"):
            return
        W = self.LV_W
        a(f"""
        v_lshrrev_b32 v20, 4, v0
        v_and_b32 v21, 15, v0
        v_lshlrev_b32 v22, 2, v20
        v_xor_b32 v22, v22, v21
        v_lshlrev_b32 v22, 4, v22
        v_mul_u32_u24 v{W}, 3840, v20
        v_add_u32 v{W}, v{W}, v22
        s_min_u32 s{sT0}, s{sP}, 14
        s_mul_i32 s{sT0}, s{sT0}, 256
        s_mul_i32 s{sT1}, s{sP}, 80
        s_sub_u32 s{sT0}, s{sT0}, s{sT1}
        v_add_u32 v{W}, s{sT0}, v{W}
        """)

    def xt_issue(self, a):
        a(f"""
        s_lshl_b32 s{sT1}, s{sSt}, 6
        s_lshr_b32 s{sT2}, s{sLw}, 1
        s_lshl_b32 s{sT3}, s{sT2}, 5
        s_add_u32 s{sT1}, s{sT1}, s{sT3}
        s_mul_i32 s{sT1}, s{sT1}, 1280
        s_mul_i32 s{sT3}, s{sDt}, 160
        s_add_u32 s{sT1}, s{sT1}, s{sT3}
        s_mul_i32 s{sT2}, s{sT2}, 5120
        s_add_u32 s{sT2}, s{sT2}, {SCR}
        s_and_b32 s{sT3}, s{sLw}, 1
        """)

        def path(par):
            for t in ((0, 1, 2) if par == 0 else (3, 4, 4)):
                a(f"""
                s_add_u32 m0, s{sT2}, {t * 1024}
                s_nop 0
                buffer_load_dwordx4 v{self.LV_WO + t}, s[{sX}:{sX + 3}], s{sT1} offen lds
                """)
        self.by_scalar(a, sT3, path)

    def loader(self, a):
        W = lambda n: self.wait_bar(a, n)

        def Wchk(n, chk):
            self.stamp(a, 0)
            a(f"s_waitcnt vmcnt({n})")
            self.only_w0(a, chk)
            self.stamp(a, 1)
            a("s_barrier")
            self.stamp(a, 2, bump=True)
        self.loader_consts_first(a)
        self.fake_w(a)
        a(f"s_mov_b32 s{sSlot}, 0")
        self.q_init(a)
        a("s_waitcnt lgkmcnt(0)")
        self.mark(a)
        self.q_issue(a)
        nT = self.tlb_touch(a) + self.code_prefetch(a)
        self.nonce_load(a)
        self.loader_consts(a)
        self.fake_w(a)
        self.loader_poll_addrs(a)
        self.nonce_make(a)
        lead = self.o["lead"]
        self.q_issue(a)
        if lead == 3:
            self.q_issue(a)
        self.mark(a)
        L = 8 * (lead - 1)
        n0 = self.pf_range(a, sW1, 0, 1024 * 3072) if self.o["pfw0"] else 0
        W(L + n0 + (0 if lead == 3 else nT)); self.q_issue(a)
        self.mark(a)
        W(L + n0); self.q_issue(a)
        W(L + (n0 if lead == 3 else 0))

        def ln_done():
            skip = a.uid("Llnoff")
            a(f"s_cmp_eq_u32 s{sLnOn}, 0\ns_cbranch_scc1 {skip}")
            a(f"s_lshl_b32 s{sT4}, s{sLnIdx}, 2\ns_add_u32 s{sT4}, s{sT4}, {FL_LN}")
            self.flag_set(a, sT4)
            a.label(skip)
            a(f"s_mov_b32 s{sArr}, 1\ns_atomic_add s{sArr}, s[{sDBG}:{sDBG + 1}], 0x0 glc")
        self.only_w0(a, ln_done)
        self.q_issue(a)
        W(L); self.q_issue(a)
        W(L); self.q_issue(a)
        W(L); self.q_issue(a)
        W(L)
        self.poll_issue(a, self.LV_PLB, 4)
        chk = lambda: self.poll_check(a, self.LV_PLB, 4)
        if lead == 2:
            self.q_issue(a)
            W(9)
            self.q_issue(a)
            Wchk(8, chk)
            self.m_init(a)
            self.m_issue(a)
            W(8); self.m_issue(a)
            self.m_issue(a)
        else:
            self.q_issue(a)
            W(17)
            Wchk(8, chk)
            self.m_init(a)
            self.m_issue(a)
            W(8); self.m_issue(a)
            self.m_issue(a)
        self.mark(a)
        n1b = self.pf_range(a, sW1, 1024 * 3072, 1024 * 3072) if self.o["pfw1"] else 0
        if self.o.get("touch"):
            n1b += self.pf_range(a, sWS, WS_GT, 8 * 1536 * 160)
            n1b += self.pf_range(a, sWS, WS_O, 2048 * 1280)
        a("s_barrier")
        a("s_barrier")
        self.kv_copy_out(a)

        def ln_all():
            lab = a.uid("Lep")
            a(f"s_waitcnt lgkmcnt(0)\ns_cmp_lg_u32 s{sArr}, 255\ns_cbranch_scc1 {lab}")
            a(f"s_mov_b32 s{sT4}, {WS_EPOCH}")
            self.flag_set(a, sT4)
            a.label(lab)
        Wchk(22 + n1b, ln_all)
        self.m_issue(a)
        W(22 + n1b); self.m_issue(a)
        W(16)

        def kv_done():
            a(f"""
            s_lshl_b32 s{sT4}, s{sP}, 4
            s_add_u32 s{sT4}, s{sT4}, s{sI}
            s_lshl_b32 s{sT4}, s{sT4}, 2
            s_add_u32 s{sT4}, s{sT4}, {FL_KV}
            """)
            self.flag_set(a, sT4)
        self.only_w0(a, kv_done)
        self.m_issue(a)
        self.loop(a, 7, lambda: (W(16), self.m_issue(a)))
        W(16)
        self.poll_issue(a, self.LV_PKV)
        self.m_issue(a)
        W(17); self.m_issue(a)
        W(17); self.m_issue(a)
        Wchk(16, lambda: self.poll_check(a, self.LV_PKV))
        self.kv_init(a)
        self.kv_issue(a, 0, 9)
        W(17)
        self.kv_issue(a, 9, 16)
        W(16)
        self.f_init(a)
        a(f"s_mov_b32 s{sSlot}, 0")
        a("s_barrier")
        W(0)
        self.mark(a)
        solo = self.o["gsolo"]
        if not solo:
            self.g_copy_out(a)
            a(f"""
            s_waitcnt vmcnt(0)
            v_mov_b32 v20, {SCR_CNT}
            v_mov_b32 v21, 1
            s_mov_b32 exec_hi, 0
            s_mov_b32 exec_lo, 1
            ds_add_u32 v20, v21
            s_mov_b64 exec, -1
            """)
        self.mark(a)

        def g_pub():
            if solo:
                self.g_copy_out_solo(a)
                a(f"v_mov_b32 v20, {SCR_CNT}\nv_mov_b32 v21, 4\nds_write_b32 v20, v21\ns_waitcnt vmcnt(0)")
            else:
                self.lds_spin(a, 0, 4)
            skip = a.uid("Lgidle")
            a(f"s_cmp_eq_u32 s{sM1On}, 0\ns_cbranch_scc1 {skip}")
            a(f"""
            s_lshl_b32 s{sT4}, s{sFt}, 6
            s_lshl_b32 s{sT5}, s{sDt1}, 2
            s_add_u32 s{sT4}, s{sT4}, s{sT5}
            s_add_u32 s{sT4}, s{sT4}, {FL_G}
            """)
            for r in range(8):
                self.flag_set(a, sT4)
                if r < 7:
                    a(f"s_add_u32 s{sT4}, s{sT4}, 1536")
            a.label(skip)
        self.only_w0(a, g_pub)
        self.lds_spin(a, 0, 4)
        self.mark(a)
        if self.o["pfw2"]:
            self.pf_range(a, sW2, 0, 1536 * 4096)
            self.pf_range(a, sWO, 0, 640 * 1280)
        self.slot_begin(a)
        self.f_issue_w2(a)
        a(f"s_add_u32 s{sSW}, s{sSW}, {SLOT}")
        self.f_issue_w2(a)

        def g_sync():
            ok, sp = a.uid("Lgok"), a.uid("Lgspin")
            self.spin(a, self.LV_PG, 1, ok, sp, self.o["gsleep"])
            a.label(ok)
            a(f"v_mov_b32 v20, {SCR_CNT + 4}\nv_mov_b32 v21, 1\nds_write_b32 v20, v21")
        self.mark(a)
        self.only_w0(a, g_sync)
        self.mark(a)
        self.lds_spin(a, 1, 1)
        self.slot_begin(a)
        self.f_issue_g(a)
        a(f"s_add_u32 s{sSW}, s{sSW}, {SLOT}")
        self.f_issue_g(a)
        a(f"s_mov_b32 s{sSlot}, {2 * SLOT}")
        W(5)
        self.mark(a)
        self.f_issue(a); self.f_issue(a)
        self.o_copy_out(a)
        W(21)
        self.f_issue(a)
        W(21); self.f_issue(a)
        W(18)

        def o_done():
            a(f"""
            s_lshl_b32 s{sT4}, s{sI}, 4
            s_add_u32 s{sT4}, s{sT4}, s{sP}
            s_lshl_b32 s{sT4}, s{sT4}, 2
            s_add_u32 s{sT4}, s{sT4}, {FL_O}
            """)
            self.flag_set(a, sT4)
        self.only_w0(a, o_done)
        self.f_issue(a)
        self.xt_issue(a)
        W(21); self.f_issue(a)
        W(21); self.f_issue(a)
        W(21)
        self.poll_issue(a, self.LV_PO)
        self.f_issue(a)
        W(19); self.f_issue(a)
        W(19); self.f_issue(a)
        Wchk(18, lambda: self.poll_check(a, self.LV_PO))
        self.wo_init(a)
        self.wo_issue(a)
        self.loop(a, 4, lambda: (W(18), self.wo_issue(a)))
        W(18); W(9); W(0)
        a("s_barrier")

    def m_consts(self, a):
        B.Gen.m_consts(self, a)

    def m_swap(self, a):
        lab = a.uid("Lmsw")
        a(f"s_cmp_eq_u32 s{sWm}, 0\ns_cbranch_scc1 {lab}")
        a(f"v_mov_b32 v1, v{self.M_CA}\nv_mov_b32 v{self.M_CA}, v{self.M_CA + 1}\nv_mov_b32 v{self.M_CA + 1}, v1")
        a.label(lab)

    def zero(self, a, r0, n):
        for r in reversed(range(r0, r0 + n)):
            a(f"v_mov_b32 v{r}, 0")

    def a_consts(self, a, zero_o=True):
        super().a_consts(a)

    def q_reads(self, ks, b=None):
        base = self.Q_BUF + 16 * ks
        out = []
        for tm in range(2):
            for rd in range(2):
                out.append(f"ds_read_b64_tr_b16 v[{base + 4 * tm + 2 * rd}:{base + 4 * tm + 2 * rd + 1}], v{self.Q_AA + tm} offset:{(16 * ks + 4 * rd) * 256}")
        for tn in range(2):
            out.append(f"ds_read_b128 v[{base + 8 + 4 * tn}:{base + 11 + 4 * tn}], v{self.Q_AB + ks} offset:{tn * 4096}")
        return out

    @staticmethod
    def czero(mf):
        return [m.rsplit(",", 1)[0] + ", 0" for m in mf]

    def q_group(self, ks, wn):
        base = self.Q_BUF + 16 * ks
        cs, on = self.Q_CS, self.Q_ONES
        return self.q_mfmas(ks) + [f"v_mfma_f32_16x16x32_bf16 v[{cs}:{cs + 3}], v[{base + 4 * wn}:{base + 4 * wn + 3}], v[{on}:{on + 3}], v[{cs}:{cs + 3}]"]

    def q_addr(self):
        return ([f"v_add_u32 v{self.Q_AA + tm}, s{sSlot}, v{self.Q_CA + tm}" for tm in range(2)] +
                [f"v_add_u32 v{self.Q_AB + ks}, s{sSlot}, v{self.Q_CB + ks}" for ks in range(4)])

    def q_stage(self, a, wn, first, hook=None, pre=None):
        if pre:
            pre()
        self.cbar(a)
        if hook:
            hook()
        r01 = self.q_reads(0) + self.q_reads(1)
        if first:
            for r in r01:
                a(r)
        else:
            self.spread(a, self.q_group(3, wn), r01)
        a("s_waitcnt lgkmcnt(6)")
        g0 = self.q_group(0, wn)
        self.spread(a, self.czero(g0) if first else g0, self.q_reads(2))
        a("s_waitcnt lgkmcnt(6)")
        self.spread(a, self.q_group(1, wn), self.q_reads(3))
        self.slot_next(a)
        a("s_waitcnt lgkmcnt(6)")
        g2 = self.q_group(2, wn)
        self.spread(a, g2[4:] + g2[:4], self.q_addr())
        a("s_waitcnt lgkmcnt(0)")
        if self.o.get("qmarks"):
            self.mark(a)

    @staticmethod
    def spread(a, mf, other):
        n = len(mf)
        k = 0
        for i, m in enumerate(mf):
            a(m)
            upto = -(-(len(other) * (i + 1)) // n)
            for r in other[k:upto]:
                a(r)
            k = upto

    QE_C, QE_AB, QE_T = 136, 168, 176

    def q_epilogue_pre(self, a):
        AB, T = self.QE_AB, self.QE_T + 2
        ST = self.V_ST
        a(f"""
        v_lshrrev_b32 v{T}, 5, v0
        v_lshlrev_b32 v{T + 1}, 4, v{T}
        s_lshl_b32 s{sT0}, s{sWm}, 8
        s_add_u32 s{sT0}, s{sT0}, {SCR_CS}
        v_add_u32 v{T + 1}, s{sT0}, v{T + 1}
        s_lshl_b32 s{sT1}, s{sWn}, 6
        v_and_b32 v{T + 2}, 31, v0
        v_add_u32 v{T + 2}, s{sT1}, v{T + 2}
        v_lshlrev_b32 v{T}, 3, v{T}
        v_mul_u32_u24 v{T + 3}, 80, v{T + 2}
        v_add_u32 v{T + 3}, v{T + 3}, v{T}
        v_add_u32 v{T + 3}, {SCR}, v{T + 3}
        v_mul_u32_u24 v{T + 4}, {KVROW}, v{T + 2}
        v_add_u32 v{T + 4}, v{T + 4}, v{T}
        v_add_u32 v{T + 4}, {SLOT}, v{T + 4}
        s_waitcnt vmcnt(0)
        """)
        for tn in range(2):
            m_, r_ = ST + 2 * tn, ST + 2 * tn + 1
            o = AB + 4 * tn
            a(f"""
            v_mov_b32 v{o}, v{r_}
            v_mul_f32 v{o + 1}, v{m_}, v{r_}
            v_mul_f32 v{o + 2}, {f32(QSCALE)}, v{r_}
            v_mul_f32 v{o + 3}, {f32(QSCALE)}, v{o + 1}
            """)

    def q_epilogue(self, a, wm):
        C, AB, T = self.QE_C, self.QE_AB, self.QE_T + 2
        for tm in range(2):
            for q in range(4):
                r = C + 16 * tm + 4 * q
                a(f"ds_read_b128 v[{r}:{r + 3}], v{T + 1} offset:{tm * 128 + q * 32}")
        for tn in range(2):
            for tm in range(2):
                acc = self.Q_ACC + 16 * (2 * tm + tn)
                for q in range(4):
                    Q0 = 16 * wm + 8 * tm + 2 * q
                    if Q0 == 30:
                        continue
                    o = AB + 4 * tn + (2 if Q0 < 10 else 0)
                    for y in (acc + 4 * q, acc + 4 * q + 2):
                        a(f"v_pk_mul_f32 v[{y}:{y + 1}], v[{y}:{y + 1}], v[{o}:{o + 1}] op_sel_hi:[1,0]")
        a("s_waitcnt lgkmcnt(0)")
        for tn in range(2):
            for tm in range(2):
                acc = self.Q_ACC + 16 * (2 * tm + tn)
                quads = []
                for q in range(4):
                    Q0 = 16 * wm + 8 * tm + 2 * q
                    quads.append((Q0, AB + 4 * tn + (2 if Q0 < 10 else 0), C + 16 * tm + 4 * q, acc + 4 * q))
                live = [t for t in quads if t[0] != 30]
                for Q0, o, c, x in live:
                    for hf in range(2):
                        y = x + 2 * hf
                        a(f"v_pk_fma_f32 v[{y}:{y + 1}], v[{c + 2 * hf}:{c + 2 * hf + 1}], v[{o}:{o + 1}], v[{y}:{y + 1}] op_sel:[0,1,0] op_sel_hi:[1,1,1] neg_lo:[1,0,0] neg_hi:[1,0,0]")
                for Q0, o, c, x in live:
                    a(f"v_cvt_pk_bf16_f32 v{x}, v{x}, v{x + 1}")
                for Q0, o, c, x in live:
                    a(f"v_cvt_pk_bf16_f32 v{x + 1}, v{x + 2}, v{x + 3}")
                for Q0, o, c, x in quads:
                    if Q0 == 30:
                        a(f"v_mov_b32 v{x}, 0x00003f80\nv_mov_b32 v{x + 1}, 0")
                        a(f"""
                        s_mov_b32 exec_hi, 0
                        ds_write_b64 v{T + 4}, v[{x}:{x + 1}] offset:{tn * 32 * KVROW + 160}
                        s_mov_b64 exec, -1
                        """)
                    elif Q0 < 10:
                        a(f"ds_write_b64 v{T + 3}, v[{x}:{x + 1}] offset:{tn * 32 * 80 + Q0 * 8}")
                    else:
                        a(f"ds_write_b64 v{T + 4}, v[{x}:{x + 1}] offset:{tn * 32 * KVROW + (Q0 - 10) * 8}")
        a("s_waitcnt lgkmcnt(0)")

    def kv_copy_out(self, a):
        R, T = 32, 28
        a(f"""
        v_lshlrev_b32 v{T}, 4, v0
        s_lshl_b32 s{sT0}, s{sLw}, 10
        v_add_u32 v{T}, s{sT0}, v{T}
        v_add_u32 v{T + 1}, {SLOT}, v{T}
        s_lshl_b32 s{sT1}, s{sP}, 11
        s_lshl_b32 s{sT2}, s{sI}, 7
        s_add_u32 s{sT1}, s{sT1}, s{sT2}
        s_mul_i32 s{sT1}, s{sT1}, {KVROW}
        s_add_u32 s{sT1}, s{sT1}, {WS_KV}
        v_add_u32 v{T + 2}, s{sT1}, v{T}
        s_cmp_eq_u32 s{sLw}, 0
        s_cselect_b32 s{sT2}, 0, {OOB}
        v_add_u32 v{T + 3}, s{sT2}, v{T + 2}
        """)
        for k in range(6):
            a(f"ds_read_b128 v[{R + 4 * k}:{R + 4 * k + 3}], v{T + 1} offset:{k * 4096}")
        for k in range(6):
            a(f"s_waitcnt lgkmcnt({5 - k})")
            a(f"s_mov_b32 s{sT0}, {k * 4096}")
            a(f"buffer_store_dwordx4 v[{R + 4 * k}:{R + 4 * k + 3}], v{T + (3 if k == 5 else 2)}, s[{sWS}:{sWS + 3}], s{sT0} offen sc1")

    def q_csum_write(self, a):
        t0, t1 = 176, 177
        cs = self.Q_CS
        a(f"""
        v_and_b32 v{t0}, 1, v0
        v_lshlrev_b32 v{t0}, 6, v{t0}
        v_lshrrev_b32 v{t1}, 4, v0
        v_lshl_add_u32 v{t0}, v{t1}, 4, v{t0}
        s_lshl_b32 s{sT0}, s{sWm}, 8
        s_lshl_b32 s{sT1}, s{sWn}, 7
        s_add_u32 s{sT0}, s{sT0}, s{sT1}
        s_add_u32 s{sT0}, s{sT0}, {SCR_CS}
        v_add_u32 v{t0}, s{sT0}, v{t0}
        v_and_b32 v{t1}, 14, v0
        v_cmp_eq_u32 vcc, 0, v{t1}
        s_and_saveexec_b64 s[{sEx}:{sEx + 1}], vcc
        ds_write_b128 v{t0}, v[{cs}:{cs + 3}]
        s_mov_b64 exec, s[{sEx}:{sEx + 1}]
        s_waitcnt lgkmcnt(0)
        """)

    def c_qkv(self, a):
        T = 212
        for c in self.q_addr():
            a(c)

        def stats():
            ST = self.V_ST
            a(f"""
            s_lshl_b32 s{sT0}, s{sI}, 7
            s_lshl_b32 s{sT1}, s{sWn}, 6
            s_add_u32 s{sT0}, s{sT0}, s{sT1}
            v_and_b32 v{T + 1}, 31, v0
            v_add_u32 v{T + 1}, s{sT0}, v{T + 1}
            v_lshlrev_b32 v{T + 1}, 3, v{T + 1}
            v_add_u32 v{T + 1}, {WS_STATS}, v{T + 1}
            buffer_load_dwordx2 v[{ST}:{ST + 1}], v{T + 1}, s[{sWS}:{sWS + 3}], 0 offen sc1
            buffer_load_dwordx2 v[{ST + 2}:{ST + 3}], v{T + 1}, s[{sWS}:{sWS + 3}], 0 offen offset:256 sc1
            """)

        def run(wn):
            self.q_stage(a, wn, True, hook=lambda: self.ln_stores(a))
            self.mark(a)
            self.q_stage(a, wn, False)
            self.q_stage(a, wn, False, pre=lambda: a("s_waitcnt vmcnt(0)"))
            self.loop(a, 5, lambda: self.q_stage(a, wn, False))
            self.q_stage(a, wn, False, hook=stats)
            self.q_stage(a, wn, False)
            g3 = self.q_group(3, wn)
            for m in g3[4:] + g3[:4]:
                a(m)
        self.by_scalar(a, sWn, run)
        self.mark(a)
        self.q_epilogue_pre(a)
        self.q_csum_write(a)
        a("s_barrier")
        self.by_scalar(a, sWm, lambda wm: self.q_epilogue(a, wm))
        a("s_barrier")

    def m_addr(self):
        return ([f"v_add_u32 v{self.M_AA + tm}, s{sSlot}, v{self.M_CA + tm}" for tm in range(2)] +
                [f"v_add_u32 v{self.M_AB}, s{sSlot}, v{self.M_CB}"])

    def m_stage(self, a, first, pre=None, hook=None):
        if pre:
            pre()
        self.cbar(a)
        if hook:
            hook()
        r01 = self.m_reads(0) + self.m_reads(1)
        if first:
            for r in r01:
                a(r)
        else:
            self.spread(a, self.m_mfmas(2) + self.m_mfmas(3), r01)
        a("s_waitcnt lgkmcnt(6)")
        self.spread(a, self.czero(self.m_mfmas(0)) if first else self.m_mfmas(0), self.m_reads(2))
        a("s_waitcnt lgkmcnt(6)")
        self.spread(a, self.m_mfmas(1), self.m_reads(3))
        self.slot_next(a)
        for c in self.m_addr():
            a(c)
        a("s_waitcnt lgkmcnt(0)")

    def m_reduce_write(self, a, kh):
        t = 190
        src = self.M_ACC + 16 * (1 - kh)
        a(f"""
        v_lshlrev_b32 v{t}, 4, v0
        s_lshl_b32 s{sT0}, s{sLw}, 12
        s_add_u32 s{sT0}, s{sT0}, {M_RED}
        v_add_u32 v{t}, s{sT0}, v{t}
        """)
        for q in range(4):
            a(f"ds_write_b128 v{t}, v[{src + 4 * q}:{src + 4 * q + 3}] offset:{q * 1024}")
        a("s_waitcnt lgkmcnt(0)")

    ME_U = 200

    def m_epilogue_pre(self, a):
        U, B1 = self.ME_U, self.V_B1
        c0 = -2.0 * math.sqrt(2.0 / math.pi) * math.log2(math.e)
        c1 = c0 * 0.044715
        a(f"""
        s_lshl_b32 s{sT1}, s{sWn}, 5
        v_and_b32 v{U}, 31, v0
        v_add_u32 v{U}, s{sT1}, v{U}
        v_mul_u32_u24 v{U}, {GROW}, v{U}
        v_lshrrev_b32 v{U + 1}, 5, v0
        v_lshl_add_u32 v{U}, v{U + 1}, 3, v{U}
        s_lshl_b32 s{sT1}, s{sWm}, 6
        s_add_u32 s{sT1}, s{sT1}, {SLOT}
        v_add_u32 v{U}, s{sT1}, v{U}
        v_lshlrev_b32 v{U + 1}, 4, v0
        s_xor_b32 s{sT0}, s{sLw}, 2
        s_lshl_b32 s{sT0}, s{sT0}, 12
        s_add_u32 s{sT0}, s{sT0}, {M_RED}
        v_add_u32 v{U + 1}, s{sT0}, v{U + 1}
        v_mov_b32 v{U + 4}, {f32(c1)}
        v_mov_b32 v{U + 5}, {f32(c0)}
        v_mov_b32 v{U + 6}, 1.0
        s_waitcnt vmcnt(0)
        v_lshlrev_b32 v{U + 2}, 16, v{B1}
        """)

    def m_epilogue(self, a, kh):
        R, U = 136, self.ME_U
        keep = self.M_ACC + 16 * kh
        for q in range(4):
            a(f"ds_read_b128 v[{R + 4 * q}:{R + 4 * q + 3}], v{U + 1} offset:{q * 1024}")
        for r in range(0, 16, 2):
            a(f"v_pk_add_f32 v[{keep + r}:{keep + r + 1}], v[{keep + r}:{keep + r + 1}], v[{U + 2}:{U + 3}] op_sel_hi:[1,0]")
        a("s_waitcnt lgkmcnt(0)")
        P = lambda r: f"v[{r}:{r + 1}]"
        for r in range(0, 16, 2):
            a(f"v_pk_add_f32 {P(keep + r)}, {P(keep + r)}, {P(R + r)}")
        for r in range(0, 16, 2):
            a(f"v_pk_mul_f32 {P(R + r)}, {P(keep + r)}, {P(keep + r)}")
        for r in range(0, 16, 2):
            a(f"v_pk_fma_f32 {P(R + r)}, {P(R + r)}, {P(U + 4)}, {P(U + 4)} op_sel:[0,0,1] op_sel_hi:[1,0,1]")
        for r in range(0, 16, 2):
            a(f"v_pk_mul_f32 {P(R + r)}, {P(R + r)}, {P(keep + r)}")
        for r in range(16):
            a(f"v_exp_f32 v{R + r}, v{R + r}")
        for r in range(0, 16, 2):
            a(f"v_pk_add_f32 {P(R + r)}, {P(R + r)}, {P(U + 6)} op_sel_hi:[1,0]")
        for r in range(16):
            a(f"v_rcp_f32 v{R + r}, v{R + r}")
        for r in range(0, 16, 2):
            a(f"v_pk_mul_f32 {P(keep + r)}, {P(keep + r)}, {P(R + r)}")
        for q in range(4):
            x = keep + 4 * q
            a(f"v_cvt_pk_bf16_f32 v{x}, v{x}, v{x + 1}\nv_cvt_pk_bf16_f32 v{x + 1}, v{x + 2}, v{x + 3}")
            a(f"ds_write_b64 v{U}, v[{x}:{x + 1}] offset:{16 * q}")
        a("s_waitcnt lgkmcnt(0)")

    def g_copy_out_solo(self, a):
        R, T = 32, 28
        a(f"""
        v_lshrrev_b32 v{T}, 3, v0
        v_and_b32 v{T + 1}, 7, v0
        v_mul_u32_u24 v{T + 2}, {GROW}, v{T}
        v_lshl_add_u32 v{T + 2}, v{T + 1}, 4, v{T + 2}
        v_add_u32 v{T + 2}, {SLOT}, v{T + 2}
        """)
        for k in range(8):
            a(f"ds_read_b128 v[{R + 4 * k}:{R + 4 * k + 3}], v{T + 2} offset:{8 * GROW * k}")
        a(f"""
        s_lshl_b32 s{sT0}, s{sDt1}, 6
        v_lshl_add_u32 v{T + 1}, v{T + 1}, 3, s{sT0}
        v_mul_u32_u24 v{T + 3}, 820, v{T + 1}
        v_lshrrev_b32 v{T + 3}, 16, v{T + 3}
        v_mul_u32_u24 v{T + 2}, 80, v{T + 3}
        v_sub_u32 v{T + 1}, v{T + 1}, v{T + 2}
        v_mul_u32_u24 v{T + 3}, {1536 * 160}, v{T + 3}
        v_lshl_add_u32 v{T + 3}, v{T + 1}, 1, v{T + 3}
        s_lshl_b32 s{sT0}, s{sFt}, 6
        v_add_u32 v{T}, s{sT0}, v{T}
        v_mul_u32_u24 v{T}, 160, v{T}
        v_add_u32 v{T + 3}, v{T + 3}, v{T}
        s_mov_b32 s{sT1}, {WS_GT}
        s_cmp_eq_u32 s{sM1On}, 0
        s_cselect_b32 s{sT0}, {OOB}, s{sT1}
        """)
        for k in range(8):
            a(f"s_waitcnt lgkmcnt({7 - k})")
            a(f"buffer_store_dwordx4 v[{R + 4 * k}:{R + 4 * k + 3}], v{T + 3}, s[{sWS}:{sWS + 3}], s{sT0} offen sc1")
            if k < 7:
                a(f"s_add_u32 s{sT0}, s{sT0}, {8 * 160}")

    def g_copy_out(self, a):
        R, T = 40, 28
        a(f"""
        v_lshrrev_b32 v{T}, 3, v0
        s_lshl_b32 s{sT0}, s{sLw}, 4
        v_add_u32 v{T}, s{sT0}, v{T}
        v_and_b32 v{T + 1}, 7, v0
        v_mul_u32_u24 v{T + 2}, {GROW}, v{T}
        v_lshl_add_u32 v{T + 2}, v{T + 1}, 4, v{T + 2}
        v_add_u32 v{T + 2}, {SLOT}, v{T + 2}
        ds_read_b128 v[{R}:{R + 3}], v{T + 2}
        ds_read_b128 v[{R + 4}:{R + 7}], v{T + 2} offset:{8 * GROW}
        s_lshl_b32 s{sT0}, s{sDt1}, 6
        v_lshl_add_u32 v{T + 1}, v{T + 1}, 3, s{sT0}
        v_mul_u32_u24 v{T + 3}, 820, v{T + 1}
        v_lshrrev_b32 v{T + 3}, 16, v{T + 3}
        v_mul_u32_u24 v{T + 4}, 80, v{T + 3}
        v_sub_u32 v{T + 1}, v{T + 1}, v{T + 4}
        v_mul_u32_u24 v{T + 3}, {1536 * 160}, v{T + 3}
        v_lshl_add_u32 v{T + 3}, v{T + 1}, 1, v{T + 3}
        s_lshl_b32 s{sT0}, s{sFt}, 6
        v_add_u32 v{T}, s{sT0}, v{T}
        v_mul_u32_u24 v{T}, 160, v{T}
        v_add_u32 v{T + 3}, v{T + 3}, v{T}
        s_mov_b32 s{sT1}, {WS_GT}
        s_cmp_eq_u32 s{sM1On}, 0
        s_cselect_b32 s{sT0}, {OOB}, s{sT1}
        v_add_u32 v{T + 3}, s{sT0}, v{T + 3}
        s_waitcnt lgkmcnt(0)
        buffer_store_dwordx4 v[{R}:{R + 3}], v{T + 3}, s[{sWS}:{sWS + 3}], 0 offen sc1
        buffer_store_dwordx4 v[{R + 4}:{R + 7}], v{T + 3}, s[{sWS}:{sWS + 3}], 0 offen offset:{8 * 160} sc1
        """)

    def c_mix1(self, a):
        T = 200
        a(f"""
        s_lshl_b32 s{sT0}, s{sFt}, 6
        s_lshl_b32 s{sT1}, s{sWn}, 5
        s_add_u32 s{sT0}, s{sT0}, s{sT1}
        v_and_b32 v{T}, 31, v0
        v_add_u32 v{T}, s{sT0}, v{T}
        v_lshlrev_b32 v{T}, 1, v{T}
        buffer_load_ushort v{self.V_B1}, v{T}, s[{sB1}:{sB1 + 3}], 0 offen
        """)
        for c in self.m_addr():
            a(c)
        self.m_stage(a, True)
        self.zero(a, self.A_O, 16)
        self.m_stage(a, False)
        self.zero(a, self.A_O + 16, 16)
        self.m_stage(a, False)
        self.mark(a)
        self.loop(a, 13, lambda: self.m_stage(a, False))
        for m in self.m_mfmas(2) + self.m_mfmas(3):
            a(m)
        self.mark(a)
        self.m_epilogue_pre(a)
        self.m_reduce_write(a, 0)
        a("s_barrier")
        self.m_epilogue(a, 0)
        self.a_zero(a)
        self.cbar(a)

    def a_addr_consts(self, a):
        keep = (self.A_O, self.A_K)
        body = Asm()
        B.Gen.a_consts(self, body)
        for it in body.items:
            if it.mn == "v_mov_b32" and it.ops[0][0] == "v":
                r = int(it.ops[0][1:])
                if self.A_O <= r < self.A_O + 32 or self.A_K <= r < self.A_K + 16:
                    continue
            a.items.append(it)

    def a_zero(self, a):
        for hh in range(2):
            for base in (self.A_K, self.A_Q):
                a(f"v_mov_b32 v{base + 8 * hh + 6}, 0\nv_mov_b32 v{base + 8 * hh + 7}, 0")

    def a_qreads(self, a):
        T = self.A_T
        a(f"""
        s_lshl_b32 s{sT0}, s{sLw}, 5
        v_and_b32 v{T}, 31, v0
        v_add_u32 v{T}, s{sT0}, v{T}
        v_mul_u32_u24 v{T}, 80, v{T}
        v_add_u32 v{T}, {SCR}, v{T}
        v_lshrrev_b32 v{T + 1}, 5, v0
        v_lshl_add_u32 v{T + 1}, v{T + 1}, 4, v{T}
        """)
        for hh in range(2):
            q = self.A_Q + 8 * hh
            a(f"""
            ds_read_b64 v[{q}:{q + 1}], v{T + 1} offset:{40 * hh}
            ds_read_b64 v[{q + 2}:{q + 3}], v{T + 1} offset:{40 * hh + 8}
            ds_read_b64 v[{q + 4}:{q + 5}], v{T} offset:{40 * hh + 32}
            """)

    def a_qmask(self, a):
        for hh in range(2):
            q = self.A_Q + 8 * hh
            a(f"""
            s_mov_b32 exec_lo, 0
            v_mov_b32 v{q + 4}, 0
            v_mov_b32 v{q + 5}, 0
            s_mov_b64 exec, -1
            """)

    def kr(self, hh, dt):
        k = self.A_K + 8 * hh
        o = dt * 32 * KVROW + 40 * hh
        return [f"ds_read_b64 v[{k}:{k + 1}], v{self.A_KA} offset:{o}",
                f"ds_read_b64 v[{k + 2}:{k + 3}], v{self.A_KA} offset:{o + 8}",
                f"ds_read_b64 v[{k + 4}:{k + 5}], v{self.A_KA + 1} offset:{o + 32}"]

    def vr(self, hh, dt):
        x = self.A_V + 8 * hh
        return [f"ds_read_b64_tr_b16 v[{x + 4 * aa + 2 * rd}:{x + 4 * aa + 2 * rd + 1}], v{self.A_VA + hh} offset:{(dt * 32 + 16 * aa + 8 * rd) * KVROW}"
                for aa in range(2) for rd in range(2)]

    def a_slot(self, a, hv, qk_mask, do_qk, do_pv, dk, dv, rd_k=True, rd_v=True, wait=7):
        ho = 1 - hv
        sreg, p = self.A_S + 16 * hv, self.A_P + 8 * hv
        a(f"s_waitcnt lgkmcnt({wait})")
        qk = self.a_qk(ho, qk_mask) if do_qk else [None, None]
        pv = self.a_pv(ho) if do_pv else [None, None]
        kr = self.kr(ho, dk) if rd_k else []
        vr = self.vr(ho, dv) if rd_v else []
        plan = [(qk[0], kr[:2]), (qk[1], kr[2:]), (pv[0], vr[:2]), (pv[1], vr[2:])]
        for g, (m, rds) in enumerate(plan):
            if m:
                a(m)
            for r in rds:
                a(r)
            for q in range(4):
                a(f"v_exp_f32 v{sreg + 4 * g + q}, v{sreg + 4 * g + q}")
        for r in range(8):
            a(f"v_cvt_pk_bf16_f32 v{p + r}, v{sreg + 2 * r}, v{sreg + 2 * r + 1}")

    def a_iter(self, a, first, mask_a, mask_b, last):
        self.a_slot(a, 0, mask_a, True, not first, 1, 0, rd_k=not last, wait=7 if not last else 7)
        if last:
            self.a_slot(a, 1, None, False, True, 0, 0, rd_k=False, rd_v=False, wait=4)
            a("s_waitcnt lgkmcnt(0)")
            for m in self.a_pv(1):
                a(m)
        else:
            self.a_slot(a, 1, mask_b, True, True, 2, 1)
            for r in (self.A_KA, self.A_KA + 1, self.A_VA, self.A_VA + 1):
                a(f"v_add_u32 v{r}, {32 * KVROW}, v{r}")

    def g_publish(self, a):
        lab = a.uid("Lgp")
        T = 208
        a(f"s_cmp_lg_u32 s{sPub}, 0\ns_cbranch_scc1 {lab}")
        a(f"""
        s_mov_b32 s{sPub}, 1
        s_waitcnt vmcnt(0)
        v_mov_b32 v{T}, {SCR_CNT}
        v_mov_b32 v{T + 1}, 1
        s_mov_b32 exec_hi, 0
        s_mov_b32 exec_lo, 1
        ds_add_u32 v{T}, v{T + 1}
        s_mov_b64 exec, -1
        """)
        a.label(lab)

    def attention(self, a):
        T = self.A_T
        a(f"""
        s_lshl_b32 s{sT0}, s{sI}, 2
        s_add_u32 s{sT0}, s{sT0}, s{sLw}
        s_cmp_ge_u32 s{sT0}, 8
        s_cselect_b32 s{sT0}, 8, s{sT0}
        s_sub_u32 s{sT2}, 8, s{sT0}
        """)
        self.a_skip(a, sT2)
        self.a_qreads(a)
        for hh in range(2):
            for r in self.kr(hh, 0):
                a(r)
        a("s_waitcnt lgkmcnt(0)")
        self.a_qmask(a)
        MF, MD = self.A_MF, self.A_MD
        L = {k: a.uid("La" + k) for k in ("far", "n2", "n1", "mid", "pre", "last", "done")}

        def head(mask):
            for m in self.a_qk(0, mask):
                a(m)
            for r in self.kr(0, 1) + self.vr(0, 0):
                a(r)
        L["rare"] = a.uid("Larare")
        a(f"s_cmp_lg_u32 s{sT2}, 0\ns_cbranch_scc1 {L['rare']}")

        def rare(b):
            def hd(mask):
                for m in self.a_qk(0, mask):
                    b(m)
                for r in self.kr(0, 1) + self.vr(0, 0):
                    b(r)
            b.label(L["rare"])
            b(f"s_cmp_eq_u32 s{sT2}, 7\ns_cbranch_scc1 {L['n2']}")
            b(f"s_cmp_eq_u32 s{sT2}, 8\ns_cbranch_scc1 {L['n1']}")
            hd(None)
            self.a_iter(b, True, None, None, False)
            b(f"s_sub_u32 s{sCnt}, 6, s{sT2}\ns_cmp_eq_u32 s{sCnt}, 0\ns_cbranch_scc1 {L['pre']}\ns_branch {L['mid']}")
            b.label(L["n2"])
            hd(None)
            self.a_iter(b, True, None, MD, False)
            b(f"s_branch {L['last']}")
            b.label(L["n1"])
            hd(MD)
            self.a_iter(b, True, MD, None, True)
            b(f"s_branch {L['done']}")
        self.cold_blocks.append(rare)
        head(MF)
        self.a_iter(a, True, MF, None, False)
        a(f"s_mov_b32 s{sCnt}, 6")
        a.label(L["mid"])
        self.a_iter(a, False, None, None, False)
        a(f"s_sub_u32 s{sCnt}, s{sCnt}, 1\ns_cmp_lg_u32 s{sCnt}, 0\ns_cbranch_scc1 {L['mid']}")
        a.label(L["pre"])
        self.a_iter(a, False, None, MD, False)
        a.label(L["last"])
        self.a_iter(a, False, MD, None, True)
        a.label(L["done"])
        lfb, ldone = a.uid("Lfallback"), a.uid("Lnorm")
        self.fallback_labels = (lfb, ldone)
        self.a_rowsum(a)
        a(f"""
        v_mov_b32 v{T + 4}, {f32(2.0 ** -40)}
        v_mov_b32 v{T + 5}, {f32(2.0 ** 40)}
        v_cmp_ge_f32 s[{sT0}:{sT0 + 1}], v{T}, v{T + 4}
        v_cmp_le_f32 s[{sT2}:{sT2 + 1}], v{T}, v{T + 5}
        s_and_b64 s[{sT0}:{sT0 + 1}], s[{sT0}:{sT0 + 1}], s[{sT2}:{sT2 + 1}]
        v_cmp_ge_f32 s[{sT2}:{sT2 + 1}], v{T + 1}, v{T + 4}
        s_and_b64 s[{sT0}:{sT0 + 1}], s[{sT0}:{sT0 + 1}], s[{sT2}:{sT2 + 1}]
        v_cmp_le_f32 s[{sT2}:{sT2 + 1}], v{T + 1}, v{T + 5}
        s_and_b64 s[{sT0}:{sT0 + 1}], s[{sT0}:{sT0 + 1}], s[{sT2}:{sT2 + 1}]
        s_cmp_eq_u64 s[{sT0}:{sT0 + 1}], exec
        s_cbranch_scc0 {lfb}
        """)
        a.label(ldone)
        self.a_store(a)

    def a_store(self, a):
        T = self.A_T
        a(f"""
        v_rcp_f32 v{T + 2}, v{T}
        v_rcp_f32 v{T + 4}, v{T + 1}
        s_lshl_b32 s{sT1}, s{sLw}, 5
        v_and_b32 v{T + 6}, 31, v0
        v_add_u32 v{T + 6}, s{sT1}, v{T + 6}
        v_mul_u32_u24 v{T + 6}, 80, v{T + 6}
        v_add_u32 v{T + 6}, {SCR}, v{T + 6}
        v_lshrrev_b32 v{T + 7}, 5, v0
        v_lshl_add_u32 v{T + 7}, v{T + 7}, 3, v{T + 6}
        """)
        for hh in range(2):
            o = self.A_O + 16 * hh
            rc = T + 2 + 2 * hh
            for g in range(3):
                x = o + 4 * g
                for hf in range(2):
                    a(f"v_pk_mul_f32 v[{x + 2 * hf}:{x + 2 * hf + 1}], v[{x + 2 * hf}:{x + 2 * hf + 1}], v[{rc}:{rc + 1}] op_sel_hi:[1,0]")
                a(f"v_cvt_pk_bf16_f32 v{x}, v{x}, v{x + 1}\nv_cvt_pk_bf16_f32 v{x + 1}, v{x + 2}, v{x + 3}")
                if g < 2:
                    a(f"ds_write_b64 v{T + 7}, v[{x}:{x + 1}] offset:{40 * hh + 16 * g}")
                else:
                    a(f"s_mov_b32 exec_hi, 0\nds_write_b64 v{T + 6}, v[{x}:{x + 1}] offset:{40 * hh + 32}\ns_mov_b64 exec, -1")
        a("s_waitcnt lgkmcnt(0)")

    def o_copy_out(self, a):
        R, T = 40, 28
        a(f"""
        s_lshl_b32 s{sT0}, s{sI}, 7
        s_mul_i32 s{sT0}, s{sT0}, 1280
        s_mul_i32 s{sT1}, s{sP}, 80
        s_add_u32 s{sT0}, s{sT0}, s{sT1}
        s_add_u32 s{sT0}, s{sT0}, {WS_O}
        s_lshl_b32 s{sT1}, s{sLw}, 6
        v_add_u32 v{T}, s{sT1}, v0
        v_lshlrev_b32 v{T + 1}, 4, v{T}
        v_add_u32 v{T + 1}, {SCR}, v{T + 1}
        """)
        for k in range(3):
            a(f"ds_read_b128 v[{R + 4 * k}:{R + 4 * k + 3}], v{T + 1} offset:{k * 4096}")
        for k in range(3):
            a(f"""
            v_add_u32 v{T + 2}, {256 * k}, v{T}
            v_mul_u32_u24 v{T + 3}, 13108, v{T + 2}
            v_lshrrev_b32 v{T + 3}, 16, v{T + 3}
            v_mul_u32_u24 v{T + 4}, 5, v{T + 3}
            v_sub_u32 v{T + 4}, v{T + 2}, v{T + 4}
            v_mul_u32_u24 v{T + 3}, 1280, v{T + 3}
            v_lshl_add_u32 v{T + 3}, v{T + 4}, 4, v{T + 3}
            v_add_u32 v{T + 5 + k}, s{sT0}, v{T + 3}
            """)
        a(f"""
        v_mov_b32 v{T + 2}, {OOB}
        v_add_u32 v{T + 3}, 512, v{T}
        v_cmp_gt_u32 vcc, 640, v{T + 3}
        v_cndmask_b32 v{T + 7}, v{T + 2}, v{T + 7}, vcc
        s_waitcnt lgkmcnt(0)
        """)
        for k in range(3):
            a(f"buffer_store_dwordx4 v[{R + 4 * k}:{R + 4 * k + 3}], v{T + 5 + k}, s[{sWS}:{sWS + 3}], 0 offen sc1")

    def attention_fallback(self, a):
        lfb, ldone = self.fallback_labels
        M = 200
        a.label(lfb)
        self.a_addr_consts(a)
        self.zero(a, self.A_O, 32)
        a(f"""
        s_lshl_b32 s{sT0}, s{sI}, 2
        s_add_u32 s{sT0}, s{sT0}, s{sLw}
        s_cmp_ge_u32 s{sT0}, 8
        s_cselect_b32 s{sT0}, 8, s{sT0}
        s_sub_u32 s{sCnt}, 8, s{sT0}
        v_mov_b32 v{M}, {f32(-3e38)}
        v_mov_b32 v{M + 1}, {f32(-3e38)}
        """)
        self.a_skip(a, sCnt)
        lp, lnf, lnd = a.uid("Lfb"), a.uid("Lfbnf"), a.uid("Lfbnd")
        a.label(lp)
        for hh in range(2):
            for r in self.kr(hh, 0) + self.vr(hh, 0):
                a(r)
        for r in (self.A_KA, self.A_KA + 1, self.A_VA, self.A_VA + 1):
            a(f"v_add_u32 v{r}, {32 * KVROW}, v{r}")
        a("s_waitcnt lgkmcnt(0)")
        for hh in range(2):
            for m in self.a_qk(hh, None):
                a(m)
        a("s_nop 15")
        a(f"s_cmp_lg_u32 s{sCnt}, 0\ns_cbranch_scc1 {lnf}")
        for hh in range(2):
            for r in range(16):
                a(f"v_add_f32 v{self.A_S + 16 * hh + r}, v{self.A_S + 16 * hh + r}, v{self.A_MF + r}")
        a.label(lnf)
        a(f"s_cmp_lg_u32 s{sCnt}, 8\ns_cbranch_scc1 {lnd}")
        for hh in range(2):
            for r in range(16):
                a(f"v_add_f32 v{self.A_S + 16 * hh + r}, v{self.A_S + 16 * hh + r}, v{self.A_MD + r}")
        a.label(lnd)
        for hh in range(2):
            sreg, o = self.A_S + 16 * hh, self.A_O + 16 * hh
            x = M + 2
            a(f"v_max3_f32 v{x}, v{sreg}, v{sreg + 1}, v{M + hh}")
            for r in range(2, 16, 2):
                a(f"v_max3_f32 v{x}, v{sreg + r}, v{sreg + r + 1}, v{x}")
            a(f"""
            v_mov_b32 v{x + 1}, v{x}
            v_mov_b32 v{x + 2}, v{x}
            v_nop
            v_permlane32_swap_b32 v{x + 1}, v{x + 2}
            v_max_f32 v{x}, v{x + 1}, v{x + 2}
            v_sub_f32 v{x + 1}, v{M + hh}, v{x}
            v_exp_f32 v{x + 1}, v{x + 1}
            v_mov_b32 v{M + hh}, v{x}
            """)
            for r in range(16):
                a(f"v_sub_f32 v{sreg + r}, v{sreg + r}, v{x}")
            for r in range(16):
                a(f"v_mul_f32 v{o + r}, v{o + r}, v{x + 1}")
            self.a_softmax(a, hh)
            for m in self.a_pv(hh):
                a(m)
        a(f"s_add_u32 s{sCnt}, s{sCnt}, 1\ns_cmp_le_u32 s{sCnt}, 8\ns_cbranch_scc1 {lp}")
        a("s_nop 15")
        self.a_rowsum(a)
        a(f"s_branch {ldone}")

    def f_reads(self, j, wo):
        return [] if self.o.get("nofr") else super().f_reads(j, wo)

    def m_reads(self, ks):
        return [] if self.o.get("nomr") else super().m_reads(ks)

    def f_addr(self, wo):
        out = [f"v_add_u32 v{self.F_AA}, s{sSlot}, v{self.F_CA}"]
        if wo:
            out += [f"v_add_u32 v{self.F_AO + k}, s{sSlot}, v{self.F_CO + k}" for k in range(4)]
        else:
            out += [f"v_add_u32 v{self.F_AB + tn}, s{sSlot}, v{self.F_CB + tn}" for tn in range(2)]
        return out

    def f_stage(self, a, first, wo, next_wo, pre=None, hook=None):
        if pre:
            pre()
        self.cbar(a)
        if hook:
            hook()
        r0 = self.f_reads(0, wo)
        if first:
            for r in r0:
                a(r)
        else:
            self.spread(a, self.f_mfmas(1), r0)
        a("s_waitcnt lgkmcnt(0)")
        self.spread(a, self.czero(self.f_mfmas(0)) if first else self.f_mfmas(0), self.f_reads(1, wo))
        self.slot_next(a)
        a("s_waitcnt lgkmcnt(0)")
        for c in self.f_addr(next_wo):
            a(c)

    FE_X, FE_T = 208, 56

    def f_epilogue_pre(self, a):
        X, t, raw = self.FE_X, self.FE_T, 228
        B2 = self.V_B2
        a(f"""
        s_lshl_b32 s{sT1}, s{sWn}, 5
        s_lshl_b32 s{sT2}, s{sWm}, 4
        s_add_u32 s{sT1}, s{sT1}, s{sT2}
        v_and_b32 v{t}, 15, v0
        v_add_u32 v{t}, s{sT1}, v{t}
        v_mul_u32_u24 v{t + 1}, 160, v{t}
        v_lshrrev_b32 v1, 4, v0
        v_lshl_add_u32 v{t + 1}, v1, 3, v{t + 1}
        v_add_u32 v{t + 1}, {SCR}, v{t + 1}
        """)
        for tm in range(5):
            a(f"ds_read_b64 v[{raw + 2 * tm}:{raw + 2 * tm + 1}], v{t + 1} offset:{32 * tm}")
        a(f"""
        s_lshl_b32 s{sT0}, s{sSt}, 6
        v_add_u32 v{t}, s{sT0}, v{t}
        v_mul_u32_u24 v{t}, 1280, v{t}
        s_mul_i32 s{sT0}, s{sDt}, 160
        v_add_u32 v{t}, s{sT0}, v{t}
        v_lshl_add_u32 v{t}, v1, 3, v{t}
        v_lshlrev_b32 v{t + 1}, 4, v0
        s_xor_b32 s{sT0}, s{sLw}, 2
        s_mul_i32 s{sT0}, s{sT0}, 5120
        s_add_u32 s{sT0}, s{sT0}, {SLOT}
        v_add_u32 v{t + 1}, s{sT0}, v{t + 1}
        s_mov_b32 s{sT3}, 0xffff0000
        s_waitcnt vmcnt(0) lgkmcnt(0)
        v_lshlrev_b32 v238, 16, v{B2}
        """)
        for tm in range(5):
            x = X + 4 * tm
            a(f"""
            v_lshlrev_b32 v{x}, 16, v{raw + 2 * tm}
            v_and_b32 v{x + 1}, s{sT3}, v{raw + 2 * tm}
            v_lshlrev_b32 v{x + 2}, 16, v{raw + 2 * tm + 1}
            v_and_b32 v{x + 3}, s{sT3}, v{raw + 2 * tm + 1}
            """)
        for y in range(X, X + 20, 2):
            a(f"v_pk_add_f32 v[{y}:{y + 1}], v[{y}:{y + 1}], v[238:239] op_sel_hi:[1,0]")

    def f_epilogue(self, a, kh):
        R, X, t = 136, self.FE_X, self.FE_T
        for tm in range(5):
            a(f"ds_read_b128 v[{R + 4 * tm}:{R + 4 * tm + 3}], v{t + 1} offset:{tm * 1024}")
        for tm in range(5):
            k = self.F_ACC + 4 * (2 * tm + kh)
            for y in (0, 2):
                a(f"v_pk_add_f32 v[{k + y}:{k + y + 1}], v[{k + y}:{k + y + 1}], v[{X + 4 * tm + y}:{X + 4 * tm + y + 1}]")
        for tm in range(5):
            k, r = self.F_ACC + 4 * (2 * tm + kh), R + 4 * tm
            a(f"s_waitcnt lgkmcnt({4 - tm})")
            for y in (0, 2):
                a(f"v_pk_add_f32 v[{k + y}:{k + y + 1}], v[{k + y}:{k + y + 1}], v[{r + y}:{r + y + 1}]")
            a(f"v_cvt_pk_bf16_f32 v{k}, v{k}, v{k + 1}\nv_cvt_pk_bf16_f32 v{k + 1}, v{k + 2}, v{k + 3}")
            a(f"buffer_store_dwordx2 v[{k}:{k + 1}], v{t}, s[{sOUT}:{sOUT + 3}], 0 offen offset:{32 * tm} " + ("", "sc1", "nt", "sc1 nt")[self.o["outpol"]])

    def c_final(self, a):
        T = 224
        a(f"s_mov_b32 s{sSlot}, 0")
        for c in self.f_addr(False):
            a(c)

        def b2_load():
            a(f"""
            s_lshl_b32 s{sT0}, s{sSt}, 6
            s_lshl_b32 s{sT1}, s{sWn}, 5
            s_add_u32 s{sT0}, s{sT0}, s{sT1}
            s_lshl_b32 s{sT1}, s{sWm}, 4
            s_add_u32 s{sT0}, s{sT0}, s{sT1}
            v_and_b32 v{T}, 15, v0
            v_add_u32 v{T}, s{sT0}, v{T}
            v_lshlrev_b32 v{T}, 1, v{T}
            buffer_load_ushort v{self.V_B2}, v{T}, s[{sB2}:{sB2 + 3}], 0 offen
            """)
        self.f_stage(a, True, False, False, hook=b2_load)
        self.f_stage(a, False, False, False)
        self.f_stage(a, False, False, False)
        self.f_stage(a, False, False, False)
        self.mark(a)
        self.loop(a, 7, lambda: self.f_stage(a, False, False, False))
        self.f_stage(a, False, False, True)
        self.mark(a)
        self.loop(a, 2, lambda: self.f_stage(a, False, True, True))
        self.f_epilogue_pre(a)
        self.loop(a, 3, lambda: self.f_stage(a, False, True, True))
        self.f_tail(a)
        self.mark(a)
        self.by_scalar(a, sWm, lambda kh: self.f_reduce_write(a, kh))
        a("s_barrier")
        self.by_scalar(a, sWm, lambda kh: self.f_epilogue(a, kh))

    def strip_zero(self, fn, lo, hi):
        body = Asm()
        fn(body)
        return [it for it in body.items
                if not (it.mn == "v_mov_b32" and it.ops[0][0] == "v" and it.ops[1] == "0" and lo <= int(it.ops[0][1:]) < hi)]

    def consumer(self, a):
        if self.o["prio"]:
            a(f"s_setprio {self.o['prio']}")
        a("s_waitcnt lgkmcnt(0)")
        self.mark(a)
        for ps in range(self.ln_passes()):
            a(f"v_mov_b32 v{self.LN_H + 14 * ps + 12}, {OOB}\nv_mov_b32 v{self.LN_H + 14 * ps + 13}, {OOB}")
        lab = a.uid("Lnold")
        a(f"s_cmp_eq_u32 s{sLnOn}, 0\ns_cbranch_scc1 {lab}")
        self.ln_loads(a)
        a.label(lab)
        a(f"""
        v_mov_b32 v1, {SCR_CNT}
        v_mov_b32 v2, 0
        v_mov_b32 v3, 0
        ds_write_b64 v1, v[2:3]
        """)
        a.items += self.strip_zero(lambda b: B.Gen.m_consts(self, b), 64, 128)
        self.m_swap(a)
        a.items += self.strip_zero(lambda b: B.Gen.f_consts(self, b), 64, 128)
        self.a_addr_consts(a)
        a(f"s_mov_b32 s{sSlot}, 0")
        a.items += self.strip_zero(lambda b: B.Gen.q_consts(self, b), 64, 132)
        self.mark(a)
        lab = a.uid("Lnolc")
        a(f"s_cmp_eq_u32 s{sLnOn}, 0\ns_cbranch_scc1 {lab}")
        self.ln_compute(a)
        a.label(lab)
        a("s_waitcnt lgkmcnt(0)")
        self.mark(a)
        self.c_qkv(a)
        self.mark(a)
        self.c_mix1(a)
        self.mark(a)
        self.mark(a)
        self.attention(a)
        self.mark(a)
        self.c_final(a)
        self.mark(a)

    def split(self, name, consumer, loader):
        a = Asm()
        self.kidx = getattr(self, "kidx", 0) + 1
        a._uid = self.kidx * 1000
        self.cold_blocks = []
        self.prologue(a, name)
        self.diag_init(a)
        a(f"s_cmp_lt_u32 s{sWv}, 4\ns_cbranch_scc1 {name}_compute")
        loader(a)
        self.stamp(a, 0, bump=True)
        self.diag_dump(a, self.kidx - 1)
        a("s_endpgm")
        a.label(name + "_compute")
        self.stamp(a, 2, bump=False)
        consumer(a)
        self.stamp(a, 0, bump=True)
        self.diag_dump(a, self.kidx - 1)
        a("s_endpgm")
        for blk in self.cold_blocks:
            blk(a)
        self.attention_fallback(a)
        a.label(name + "_end")
        a("s_endpgm")
        return a.finish()

    def build(self):
        name = NAME + "_kernel"
        return B_kernel(name, self.split(name, self.consumer, self.loader))


def B_kernel(name, body):
    return f"""; Sliding-window attention + token-mixer MLP + residual, bf16, S=2048 D=640, one persistent launch.
; @launch grid=(256,1,1) block=(512,1,1) lds={LDS_BYTES}
.amdgcn_target "amdgcn-amd-amdhsa--gfx950"
.text
.globl {name}
.p2align 8
.type {name},@function
{name}:
{body}{name}_code_end:
.set CODE_BYTES, {name}_code_end-{name}
.section .rodata,"a"
.p2align 6
.amdhsa_kernel {name}
  .amdhsa_next_free_vgpr 256
  .amdhsa_next_free_sgpr 102
  .amdhsa_accum_offset 256
  .amdhsa_group_segment_fixed_size 0
  .amdhsa_kernarg_size 88
  .amdhsa_user_sgpr_count 2
  .amdhsa_user_sgpr_kernarg_segment_ptr 1
  .amdhsa_system_sgpr_workgroup_id_x 1
.end_amdhsa_kernel
"""


if __name__ == "__main__":
    mode = sys.argv[1] if len(sys.argv) > 1 else "run"
    path = sys.argv[2] if len(sys.argv) > 2 else f"cdna_kernels/{NAME}.s"
    opts = {}
    for kv in sys.argv[3:]:
        k, val = kv.split("=")
        opts[k] = int(val)
    txt = Fused(diag=(mode == "diag"), opts=opts).build()
    open(path, "w").write(txt)
    print("wrote", path, len(txt), "bytes")
```

```python
import math
import sys

sys.path.insert(0, "tools")
from asmlib import Asm
from gen_base import *
import gen_base as B

OOB = 0x7ff00000
SPIN_MAX = 100000
FL_LN, FL_KV, FL_O, FL_G = 0x1000, 0x1400, 0x1800, 0x8000
SCR_CNT = SCR + 10752
SCR_CS = SCR + 10240
M_RED = 16384
GROW = 144
sPub, sT6 = 79, 85
sKcA, sKcB, sKt, sRq, sRm, sRf, sRw = 9, 10, 11, 12, 13, 14, 15
sBaseA, sBaseB = 16, 17
sLnOn, sLnIdx = 18, 19
sArr, sNon2 = 4, 5


class Fused(Gen):
    A_MF, A_MD, A_KA, A_VA = 2, 18, 34, 36
    F_CA, F_CB, F_CO = 38, 39, 41
    M_CA, M_CB = 45, 47
    V_ST, V_B1, V_B2, V_ARR, V_POLL = 48, 52, 53, 54, 56
    V_DUMMY = 228
    Q_ACC, Q_CS, Q_ONES, Q_BUF, Q_CA, Q_CB, Q_AA, Q_AB = 64, 128, 132, 136, 200, 202, 206, 208
    M_ACC, M_BUF, M_AA, M_AB = 64, 136, 196, 198
    A_Q, A_K, A_V, A_S, A_P, A_O, A_T = 64, 80, 96, 112, 144, 208, 192
    F_ACC, F_BUF, F_AA, F_AB, F_AO = 64, 136, 199, 200, 202

    def __init__(self, diag=False, opts=None):
        super().__init__(fused=True, diag=diag)
        self.o = dict(prefetch=0, tlb=0, lead=3, nt=0, gsleep=4, ldsc1=1, xmap=0, light=0, w1a=1024, rot=22, lngood=0, codepf=0, outpol=0, pfw1=1, pfw2=1, pfw0=1, gsolo=1, lsleep=1, prio=0, psleep=2, gprog=1)
        self.o.update(opts or {})

    def stamp(self, a, k, bump=False):
        if not self.o["light"]:
            super().stamp(a, k, bump)

    def diag_dump(self, a, kidx):
        wg = self.o.get("dbgout")
        if wg is None:
            return super().diag_dump(a, kidx)
        lab = a.uid("Ldbg")
        a(f"""
        s_cmp_lg_u32 s{sWg}, {wg}
        s_cbranch_scc1 {lab}
        s_cmp_lg_u32 s{sWv}, 0
        s_cbranch_scc1 {lab}
        v_readlane_b32 s{sT0}, v{self.DV + 1}, 0
        v_lshlrev_b32 v1, 2, v0
        v_mov_b32 v3, {OOB}
        v_subrev_u32 v2, s{sT0}, v{self.DV + 1}
        v_cmp_gt_u32 vcc, 16, v0
        v_cndmask_b32 v1, v3, v1, vcc
        v_cmp_eq_u32 vcc, 0, v0
        v_cndmask_b32 v1, v1, v3, vcc
        buffer_store_dword v2, v1, s[{sDBG}:{sDBG + 3}], 0 offen
        """)
        a.label(lab)

    def mark(self, a):
        if self.diag and self.o["light"]:
            if self.o.get("rt"):
                a(f"s_memrealtime s[98:99]\ns_mov_b32 m0, s{self.sStg}\ns_waitcnt lgkmcnt(0)\nv_writelane_b32 v{self.DV + 1}, s98, m0\ns_add_u32 s{self.sStg}, s{self.sStg}, 1")
            else:
                B.Gen.stamp(self, a, 1, True)

    SRDS = ((sX, 0, 2048 * 1280), (sW, 8, 640 * 3840), (sWO, 16, 640 * 1280), (sW1, 32, 2048 * 3072),
            (sB1, 40, 1536 * 2), (sW2, 48, 1536 * 4096), (sB2, 56, 2048 * 2), (sOUT, 64, 2048 * 1280),
            (sDBG, 72, 256), (sWS, 80, WS_USED))

    def prologue(self, a, lab):
        a(f"s_cmp_ge_u32 s2, 256\ns_cbranch_scc1 {lab}_end")
        for srd, off, size in self.SRDS:
            a(f"s_load_dwordx2 s[{srd}:{srd + 1}], s[0:1], {off}")
        body = Asm()
        B.Gen.prologue(self, body, lab)
        items = body.items
        first = next(k for k, it in enumerate(items) if it.mn == "v_lshrrev_b32")
        last = next(k for k, it in enumerate(items) if it.mn == "s_waitcnt")
        a.items += items[first:last]
        for srd, off, size in self.SRDS:
            if srd == sWS and self.diag:
                size *= 2
            a(f"s_mov_b32 s{srd + 2}, {size}\ns_mov_b32 s{srd + 3}, 0x00020000")
        if self.o["gprog"]:
            a(f"""
            s_lshr_b32 s{sT0}, s{sWg}, 6
            s_lshr_b32 s{sT1}, s{sWg}, 1
            s_xor_b32 s{sT2}, s{sT1}, s{sT0}
            s_and_b32 s{sT2}, s{sT2}, 1
            s_mul_i32 s{sT2}, s{sT2}, 3
            s_lshr_b32 s{sT0}, s{sT0}, 1
            s_lshl_b32 s{sT0}, s{sT0}, 3
            s_lshr_b32 s{sT3}, s{sWg}, 3
            s_and_b32 s{sT3}, s{sT3}, 7
            s_add_u32 s{sT0}, s{sT0}, s{sT3}
            s_cmp_lt_u32 s{sT0}, 15
            s_cselect_b32 s{sM1On}, 1, 0
            s_cselect_b32 s{sT0}, s{sT0}, 0
            s_mul_i32 s{sT3}, s{sT0}, 52
            s_lshr_b32 s{sT3}, s{sT3}, 8
            s_mul_i32 s{sT4}, s{sT3}, 5
            s_sub_u32 s{sT4}, s{sT0}, s{sT4}
            s_and_b32 s{sT5}, s{sWg}, 1
            s_mul_i32 s{sDt1}, s{sT5}, 5
            s_add_u32 s{sDt1}, s{sDt1}, s{sT4}
            s_and_b32 s{sT1}, s{sT1}, 3
            s_mul_i32 s{sFt}, s{sT1}, 6
            s_add_u32 s{sFt}, s{sFt}, s{sT2}
            s_add_u32 s{sFt}, s{sFt}, s{sT3}
            """)
        if self.o["lngood"]:
            a(f"""
            s_lshr_b32 s{sT0}, s{sWg}, 6
            s_lshr_b32 s{sT1}, s{sWg}, 1
            s_xor_b32 s{sT1}, s{sT1}, s{sT0}
            s_and_b32 s{sT1}, s{sT1}, 1
            s_xor_b32 s{sLnOn}, s{sT1}, 1
            s_and_b32 s{sT1}, s{sWg}, 7
            s_lshl_b32 s{sLnIdx}, s{sT1}, 4
            s_lshr_b32 s{sT0}, s{sT0}, 1
            s_lshl_b32 s{sT0}, s{sT0}, 3
            s_add_u32 s{sLnIdx}, s{sLnIdx}, s{sT0}
            s_lshr_b32 s{sT0}, s{sWg}, 3
            s_and_b32 s{sT0}, s{sT0}, 7
            s_add_u32 s{sLnIdx}, s{sLnIdx}, s{sT0}
            """)
        else:
            a(f"s_mov_b32 s{sLnOn}, 1\ns_mov_b32 s{sLnIdx}, s{sWg}")
        self.rot_consts(a)
        if not self.o["xmap"]:
            return
        a(f"""
        s_and_b32 s{sT0}, s{sWg}, 7
        s_lshr_b32 s{sT1}, s{sWg}, 3
        s_lshl_b32 s{sSt}, s{sT0}, 2
        s_and_b32 s{sT2}, s{sT1}, 3
        s_add_u32 s{sSt}, s{sSt}, s{sT2}
        s_lshr_b32 s{sDt}, s{sT1}, 2
        s_cmp_lt_u32 s{sT1}, 30
        s_cselect_b32 s{sT2}, 0, 30
        s_sub_u32 s{sT1}, s{sT1}, s{sT2}
        s_mul_i32 s{sT2}, s{sT1}, 26
        s_lshr_b32 s{sT2}, s{sT2}, 8
        s_mul_i32 s{sT3}, s{sT2}, 10
        s_sub_u32 s{sDt1}, s{sT1}, s{sT3}
        s_mul_i32 s{sFt}, s{sT0}, 3
        s_add_u32 s{sFt}, s{sFt}, s{sT2}
        """)

    def smod(self, a, r, n, times):
        for _ in range(times):
            a(f"s_cmp_ge_u32 s{r}, {n}\ns_cselect_b32 s{sT5}, {n}, 0\ns_sub_u32 s{r}, s{r}, s{sT5}")

    def rot_consts(self, a):
        if not self.o["rot"]:
            for r in (sRq, sRm, sRf, sRw):
                a(f"s_mov_b32 s{r}, 0")
            return
        a(f"""
        s_lshr_b32 s{sT0}, s{sWg}, 3
        s_and_b32 s{sT1}, s{sT0}, 7
        s_lshr_b32 s{sT2}, s{sT0}, 3
        s_mul_i32 s{sT3}, s{sT2}, 3
        s_add_u32 s{sRq}, s{sT1}, s{sT3}
        s_mul_i32 s{sRf}, s{sT1}, 5
        s_add_u32 s{sRf}, s{sRf}, s{sT3}
        s_lshl_b32 s{sRw}, s{sT2}, 1
        s_add_u32 s{sRw}, s{sRw}, s{sT1}
        s_mul_i32 s{sRm}, s{sFt}, 3
        s_mul_i32 s{sT3}, s{sDt1}, 5
        s_add_u32 s{sRm}, s{sRm}, s{sT3}
        s_and_b32 s{sRm}, s{sRm}, 7
        """)
        self.smod(a, sRq, 10, 1)
        self.smod(a, sRf, 12, 3)
        self.smod(a, sRw, 5, 2)
        for bit, r in ((1, sRq), (2, sRm), (4, sRf), (8, sRw)):
            if not self.o["rot"] & bit:
                a(f"s_mov_b32 s{r}, 0")

    def wrap(self, a, kc, n, offs):
        a(f"s_add_u32 s{kc}, s{kc}, 1\ns_cmp_eq_u32 s{kc}, {n}\ns_cselect_b32 s{kc}, 0, s{kc}")
        for k, (reg, step) in enumerate(offs):
            a(f"s_cselect_b32 s{sT1 + k}, {n * step}, 0")
        for k, (reg, step) in enumerate(offs):
            a(f"s_sub_u32 s{reg}, s{reg}, s{sT1 + k}")

    def lead_order(self, a, n_chunks, period, jreg, offs):
        a(f"""
        s_and_b32 s{sT1}, s{sKt}, {period - 1}
        s_cmp_eq_u32 s{sT1}, s{jreg}
        s_cselect_b32 s{sT2}, 1, 0
        s_cmp_eq_u32 s{sKt}, {n_chunks - 1}
        s_cselect_b32 s{sT2}, 0, s{sT2}
        s_sub_u32 s{sT1}, s{sKt}, 1
        s_and_b32 s{sT1}, s{sT1}, {period - 1}
        s_cmp_eq_u32 s{sT1}, s{jreg}
        s_cselect_b32 s{sT3}, 1, 0
        s_cmp_eq_u32 s{sKt}, 0
        s_cselect_b32 s{sT3}, 0, s{sT3}
        s_add_u32 s{sT2}, s{sT2}, s{sKt}
        s_sub_u32 s{sT2}, s{sT2}, s{sT3}
        s_add_u32 s{sKt}, s{sKt}, 1
        """)
        for reg, base, step in offs:
            a(f"s_mul_i32 s{sT1}, s{sT2}, {step}\ns_add_u32 s{reg}, s{base}, s{sT1}")

    def q_init(self, a):
        super().q_init(a)
        if self.o["rot"] & 16:
            a(f"""
            s_mov_b32 s{sBaseA}, s{sOffA}
            s_mov_b32 s{sBaseB}, s{sOffB}
            s_mov_b32 s{sKt}, 0
            s_lshr_b32 s{sT0}, s{sWg}, 3
            s_lshr_b32 s{sT1}, s{sT0}, 3
            s_add_u32 s{sT0}, s{sT0}, s{sT1}
            s_and_b32 s{sRq}, s{sT0}, 3
            """)
            return
        a(f"""
        s_mov_b32 s{sKcA}, s{sRq}
        s_lshl_b32 s{sT0}, s{sRq}, 7
        s_add_u32 s{sOffA}, s{sOffA}, s{sT0}
        s_mul_i32 s{sT0}, s{sRq}, {64 * 3840}
        s_add_u32 s{sOffB}, s{sOffB}, s{sT0}
        """)

    def q_issue(self, a):
        if self.o["rot"] & 16:
            self.lead_order(a, 10, 4, sRq, [(sOffA, sBaseA, 128), (sOffB, sBaseB, 64 * 3840)])
            super().q_issue(a)
            return
        super().q_issue(a)
        self.wrap(a, sKcA, 10, [(sOffA, 128), (sOffB, 64 * 3840)])

    def m_init(self, a):
        super().m_init(a)
        a(f"""
        s_mov_b32 s{sKcA}, s{sRm}
        s_mov_b32 s{sKt}, 0
        s_mul_i32 s{sT0}, s{sRm}, {128 * 1280}
        s_add_u32 s{sOffA}, s{sOffA}, s{sT0}
        s_mul_i32 s{sT0}, s{sRm}, {128 * 3072}
        s_add_u32 s{sOffB}, s{sOffB}, s{sT0}
        """)

    def m_issue(self, a):
        super().m_issue(a)
        self.wrap(a, sKcA, 8, [(sOffA, 128 * 1280), (sOffB, 128 * 3072)])
        a(f"s_add_u32 s{sKt}, s{sKt}, 1\ns_cmp_eq_u32 s{sKt}, 8")
        a(f"""
        s_cselect_b32 s{sT1}, {8 * 128 * 1280}, 0
        s_cselect_b32 s{sT2}, {8 * 128 * 3072}, 0
        s_add_u32 s{sOffA}, s{sOffA}, s{sT1}
        s_add_u32 s{sOffB}, s{sOffB}, s{sT2}
        """)

    def f_init(self, a):
        B.Gen.f_init(self, a)
        if self.o["gprog"]:
            a(f"""
            s_mov_b32 s{sBaseA}, s{sOffA}
            s_mov_b32 s{sBaseB}, s{sOffB}
            s_mov_b32 s{sKcA}, 0
            s_mov_b32 s{sKcB}, 0
            s_lshr_b32 s{sT0}, s{sWg}, 3
            s_lshr_b32 s{sT1}, s{sT0}, 3
            s_add_u32 s{sT0}, s{sT0}, s{sT1}
            s_and_b32 s{sRf}, s{sT0}, 3
            """)
            return
        a(f"""
        s_mov_b32 s{sKcA}, s{sRf}
        s_mov_b32 s{sKcB}, s{sRf}
        s_mul_i32 s{sT0}, s{sRf}, {128 * 160}
        s_add_u32 s{sOffA}, s{sOffA}, s{sT0}
        s_mul_i32 s{sT0}, s{sRf}, {128 * 4096}
        s_add_u32 s{sOffB}, s{sOffB}, s{sT0}
        """)

    def f_chunk(self, a, kc, off, base, step):
        a(f"""
        s_add_u32 s{sT1}, s{kc}, s{sRf}
        s_and_b32 s{sT1}, s{sT1}, 3
        s_mul_i32 s{sT1}, s{sT1}, 3
        s_lshr_b32 s{sT2}, s{kc}, 2
        s_add_u32 s{sT1}, s{sT1}, s{sT2}
        s_mul_i32 s{sT1}, s{sT1}, {step}
        s_add_u32 s{off}, s{base}, s{sT1}
        s_add_u32 s{kc}, s{kc}, 1
        """)

    def f_issue_w2(self, a):
        if self.o["gprog"]:
            self.f_chunk(a, sKcB, sOffB, sBaseB, 128 * 4096)
            B.Gen.f_issue_w2(self, a)
            return
        B.Gen.f_issue_w2(self, a)
        self.wrap(a, sKcB, 12, [(sOffB, 128 * 4096)])

    def f_issue_g(self, a):
        if self.o["gprog"]:
            self.f_chunk(a, sKcA, sOffA, sBaseA, 128 * 160)
            B.Gen.f_issue_g(self, a)
            return
        B.Gen.f_issue_g(self, a)
        self.wrap(a, sKcA, 12, [(sOffA, 128 * 160)])

    def wo_init(self, a):
        super().wo_init(a)
        a(f"""
        s_mov_b32 s{sKcA}, s{sRw}
        s_mul_i32 s{sT0}, s{sRw}, {128 * 1280}
        s_add_u32 s{sOffA}, s{sOffA}, s{sT0}
        s_lshl_b32 s{sT0}, s{sRw}, 8
        s_add_u32 s{sOffB}, s{sOffB}, s{sT0}
        """)

    def wo_issue(self, a):
        super().wo_issue(a)
        self.wrap(a, sKcA, 5, [(sOffA, 128 * 1280), (sOffB, 256)])

    def only_w0(self, a, fn):
        lab = a.uid("Lw0")
        a(f"s_cmp_lg_u32 s{sLw}, 0\ns_cbranch_scc1 {lab}")
        fn()
        a.label(lab)

    def nonce_load(self, a):
        a(f"s_load_dword s{sNonce}, s[{sWS}:{sWS + 1}], {WS_EPOCH}")

    def nonce_make(self, a):
        a(f"""
        s_waitcnt lgkmcnt(0)
        s_mul_i32 s{sNonce}, s{sNonce}, 1664525
        s_add_u32 s{sNonce}, s{sNonce}, 1013904223
        """)

    def flag_set(self, a, off):
        a(f"s_atomic_swap s{sNonce}, s[{sWS}:{sWS + 1}], s{off}")

    def poll_issue(self, a, vaddr, n=1):
        r = self.LV_PR
        if n == 1:
            a(f"buffer_load_dword v{r}, v{vaddr}, s[{sWS}:{sWS + 3}], 0 offen sc1")
        else:
            a(f"buffer_load_dwordx4 v[{r}:{r + 3}], v{vaddr}, s[{sWS}:{sWS + 3}], 0 offen sc1")

    def poll_test(self, a, n):
        r = self.LV_PR
        a(f"v_cmp_eq_u32 s[{sT0}:{sT0 + 1}], s{sNonce}, v{r}")
        for k in range(1, n):
            a(f"v_cmp_eq_u32 s[{sT2}:{sT2 + 1}], s{sNonce}, v{r + k}")
            a(f"s_and_b64 s[{sT0}:{sT0 + 1}], s[{sT0}:{sT0 + 1}], s[{sT2}:{sT2 + 1}]")
        a(f"s_cmp_eq_u64 s[{sT0}:{sT0 + 1}], exec")

    def poll_check(self, a, vaddr, n=1, sleep=None):
        ok, sp = a.uid("Lpok"), a.uid("Lspin")
        sleep = self.o["psleep"] if sleep is None else sleep
        self.poll_test(a, n)
        a(f"s_cbranch_scc1 {ok}")
        self.spin(a, vaddr, n, ok, sp, sleep)
        a.label(ok)

    def spin(self, a, vaddr, n, ok, sp, sleep):
        a(f"s_mov_b32 s{sT6}, {SPIN_MAX}")
        a.label(sp)
        a(f"s_sleep {sleep}")
        self.poll_issue(a, vaddr, n)
        a("s_waitcnt vmcnt(0)")
        self.poll_test(a, n)
        a(f"s_cbranch_scc1 {ok}")
        a(f"s_sub_u32 s{sT6}, s{sT6}, 1\ns_cmp_lg_u32 s{sT6}, 0\ns_cbranch_scc1 {sp}")

    LV_PLA, LV_PKV, LV_PG, LV_PO, LV_PLB, LV_PR = 14, 15, 16, 17, 18, 24
    LV_P1, LV_P2, LV_DUMMY = 100, 103, 96

    def loader_poll_addrs(self, a):
        t0, t1, t2, t3 = 20, 21, 22, 23
        a(f"""
        v_lshrrev_b32 v{t0}, 4, v0
        v_mov_b32 v{t1}, s{sI}
        v_cmp_eq_u32 vcc, 3, v{t0}
        v_cndmask_b32 v{t0}, v{t0}, v{t1}, vcc
        v_lshlrev_b32 v{t0}, 6, v{t0}
        v_and_b32 v{t1}, 15, v0
        v_lshl_add_u32 v{t0}, v{t1}, 2, v{t0}
        v_add_u32 v{self.LV_PLA}, {FL_LN}, v{t0}
        v_and_b32 v{t0}, {31 if self.o["lngood"] else 63}, v0
        v_lshlrev_b32 v{t0}, 4, v{t0}
        v_add_u32 v{self.LV_PLB}, {FL_LN}, v{t0}
        v_min_u32 v{t0}, 2, v0
        v_sub_u32 v{t0}, s{sI}, v{t0}
        v_max_i32 v{t0}, 0, v{t0}
        s_lshl_b32 s{sT0}, s{sP}, 4
        v_add_u32 v{t0}, s{sT0}, v{t0}
        v_lshlrev_b32 v{t0}, 2, v{t0}
        v_add_u32 v{self.LV_PKV}, {FL_KV}, v{t0}
        v_and_b32 v{t0}, 15, v0
        s_lshr_b32 s{sT0}, s{sSt}, 1
        s_lshl_b32 s{sT0}, s{sT0}, 4
        v_add_u32 v{t0}, s{sT0}, v{t0}
        v_lshlrev_b32 v{t0}, 2, v{t0}
        v_add_u32 v{self.LV_PO}, {FL_O}, v{t0}
        v_min_u32 v{t0}, 47, v0
        v_mul_u32_u24 v{t1}, 2731, v{t0}
        v_lshrrev_b32 v{t1}, 16, v{t1}
        v_mul_u32_u24 v{t2}, 24, v{t1}
        v_sub_u32 v{t2}, v{t0}, v{t2}
        s_mul_i32 s{sT0}, s{sDt}, 80
        s_lshr_b32 s{sT0}, s{sT0}, 6
        v_add_u32 v{t1}, s{sT0}, v{t1}
        v_lshlrev_b32 v{t1}, 2, v{t1}
        v_lshl_add_u32 v{t1}, v{t2}, 6, v{t1}
        s_and_b32 s{sT0}, s{sWg}, 7
        s_mul_i32 s{sT0}, s{sT0}, 1536
        s_add_u32 s{sT0}, s{sT0}, {FL_G}
        v_add_u32 v{self.LV_PG}, s{sT0}, v{t1}
        v_and_b32 v{t1}, 15, v0
        v_lshrrev_b32 v{t2}, 2, v{t1}
        v_mul_u32_u24 v{t2}, 6, v{t2}
        v_and_b32 v{t3}, 1, v{t1}
        v_add_u32 v{t2}, v{t2}, v{t3}
        v_lshlrev_b32 v{t2}, 6, v{t2}
        v_bfe_u32 v{t3}, v{t1}, 1, 1
        s_mul_i32 s{sT1}, s{sDt}, 80
        s_lshr_b32 s{sT1}, s{sT1}, 6
        v_add_u32 v{t3}, s{sT1}, v{t3}
        v_lshl_add_u32 v{t2}, v{t3}, 2, v{t2}
        v_add_u32 v{self.LV_PLA}, s{sT0}, v{t2}
        s_cmp_eq_u32 s{sLw}, 0
        s_cselect_b32 s{sT0}, 0, {OOB}
        """)
        for r in (self.LV_PLA, self.LV_PLB, self.LV_PKV, self.LV_PO, self.LV_PG):
            a(f"v_add_u32 v{r}, s{sT0}, v{r}")

    def loader_prefetch_consts(self, a):
        t0, t1, t2 = 20, 21, 22
        for t in range(3):
            a(f"""
            v_add_u32 v{t0}, {64 * t}, v0
            v_mul_u32_u24 v{t1}, 2731, v{t0}
            v_lshrrev_b32 v{t1}, 16, v{t1}
            v_mul_u32_u24 v{t2}, 24, v{t1}
            v_sub_u32 v{t2}, v{t0}, v{t2}
            v_lshlrev_b32 v{t2}, 4, v{t2}
            v_mul_u32_u24 v{t1}, 3072, v{t1}
            v_add_u32 v{self.LV_P1 + t}, v{t1}, v{t2}
            """)
        a(f"""
        v_lshrrev_b32 v{t0}, 5, v0
        v_lshlrev_b32 v{t0}, 12, v{t0}
        v_and_b32 v{t1}, 31, v0
        v_lshl_add_u32 v{self.LV_P2}, v{t1}, 4, v{t0}
        """)

    def code_prefetch(self, a):
        if not self.o["codepf"]:
            return 0
        d = self.LV_DUMMY
        lab = a.uid("Lpc")
        a(f"s_getpc_b64 s[{sT2}:{sT2 + 1}]")
        a.label(lab)
        a(f"""
        s_lshr_b32 s{sT0}, s{sWg}, 3
        s_lshl_b32 s{sT0}, s{sT0}, 10
        s_lshl_b32 s{sT1}, s{sLw}, 15
        s_add_u32 s{sT0}, s{sT0}, s{sT1}
        v_lshl_add_u32 v20, v0, 4, s{sT0}
        s_sub_u32 s{sT2}, s{sT2}, {lab}-{NAME}_kernel
        s_subb_u32 s{sT2 + 1}, s{sT2 + 1}, 0
        v_min_u32 v20, CODE_BYTES-16, v20
        v_mov_b32 v21, s{sT2 + 1}
        v_add_co_u32 v20, vcc, s{sT2}, v20
        v_addc_co_u32 v21, vcc, 0, v21, vcc
        global_load_dwordx4 v[{d}:{d + 3}], v[20:21], off
        """)
        return 1

    def tlb_touch(self, a):
        if not self.o["tlb"]:
            return 0
        d = self.LV_DUMMY
        a(f"v_lshlrev_b32 v20, 21, v0")
        for srd in (sW1, sW2, sWS, sWO, sOUT):
            a(f"buffer_load_dword v{d}, v20, s[{srd}:{srd + 3}], 0 offen")
        return 5

    def pf_range(self, a, srd, start, nbytes):
        d = self.LV_DUMMY
        share = nbytes // 256
        per_wave = -(-share // 4096)
        a(f"""
        s_mul_i32 s{sT0}, s{sWg}, {share}
        s_mul_i32 s{sT1}, s{sLw}, {per_wave * 1024}
        s_add_u32 s{sT0}, s{sT0}, s{sT1}
        s_add_u32 s{sT0}, s{sT0}, {start}
        """)
        for k in range(per_wave):
            a(f"buffer_load_dwordx4 v[{d}:{d + 3}], v{self.LV_LIN}, s[{srd}:{srd + 3}], s{sT0} offen offset:{(k % 4) * 1024}")
            if k % 4 == 3:
                a(f"s_add_u32 s{sT0}, s{sT0}, 4096")
        return per_wave

    def pf_w1(self, a):
        if not self.o["prefetch"]:
            return 0
        d = self.LV_DUMMY
        a(f"""
        s_lshr_b32 s{sT0}, s{sWg}, 3
        s_lshl_b32 s{sT0}, s{sT0}, 6
        s_lshl_b32 s{sT1}, s{sLw}, 4
        s_add_u32 s{sT0}, s{sT0}, s{sT1}
        s_mul_i32 s{sT0}, s{sT0}, 3072
        s_and_b32 s{sT1}, s{sWg}, 7
        s_mul_i32 s{sT1}, s{sT1}, 384
        s_add_u32 s{sT0}, s{sT0}, s{sT1}
        """)
        for k in range(6):
            if k == 3:
                a(f"s_add_u32 s{sT0}, s{sT0}, {8 * 3072}")
            a(f"buffer_load_dwordx4 v[{d}:{d + 3}], v{self.LV_P1 + k % 3}, s[{sW1}:{sW1 + 3}], s{sT0} offen nt")
        return 6

    def pf_w2(self, a):
        if not self.o["prefetch"]:
            return 0
        d = self.LV_DUMMY
        a(f"""
        s_lshr_b32 s{sT0}, s{sWg}, 3
        s_mul_i32 s{sT0}, s{sT0}, 48
        s_mul_i32 s{sT1}, s{sLw}, 12
        s_add_u32 s{sT0}, s{sT0}, s{sT1}
        s_lshl_b32 s{sT0}, s{sT0}, 12
        s_and_b32 s{sT1}, s{sWg}, 7
        s_lshl_b32 s{sT1}, s{sT1}, 9
        s_add_u32 s{sT0}, s{sT0}, s{sT1}
        """)
        for k in range(6):
            a(f"buffer_load_dwordx4 v[{d}:{d + 3}], v{self.LV_P2}, s[{sW2}:{sW2 + 3}], s{sT0} offen nt")
            a(f"s_add_u32 s{sT0}, s{sT0}, 8192")
        return 6

    def dma(self, a, srd, voff, soff, add, lds_add, dep=False):
        if self.o.get("fakeh") and voff == self.LV_H:
            a(f"""
            s_add_u32 m0, s{sSW}, {lds_add}
            s_add_u32 s{sT0}, s{soff}, {add - WS_H}
            buffer_load_dwordx4 v{voff}, s[{sX}:{sX + 3}], s{sT0} offen lds
            """)
            return
        pol = ("sc1 " if self.o["ldsc1"] else "") if dep else ("nt " if (srd in (sW1, sW2) and self.o["nt"]) else "")
        a(f"""
        s_add_u32 m0, s{sSW}, {lds_add}
        s_add_u32 s{sT0}, s{soff}, {add}
        buffer_load_dwordx4 v{voff}, s[{srd}:{srd + 3}], s{sT0} offen {pol}lds
        """)

    def lds_spin(self, a, word, target):
        ok, sp = a.uid("Llok"), a.uid("Llspin")
        r = self.LV_PR
        a(f"v_mov_b32 v{r + 1}, {SCR_CNT + 4 * word}\ns_mov_b32 s{sT6}, {SPIN_MAX}")
        a.label(sp)
        a(f"""
        ds_read_b32 v{r}, v{r + 1}
        s_waitcnt lgkmcnt(0)
        v_readfirstlane_b32 s{sT0}, v{r}
        s_cmp_ge_u32 s{sT0}, {target}
        s_cbranch_scc1 {ok}
        s_sleep {self.o["lsleep"]}
        s_sub_u32 s{sT6}, s{sT6}, 1
        s_cmp_lg_u32 s{sT6}, 0
        s_cbranch_scc1 {sp}
        """)
        a.label(ok)

    LN_RAW, LN_F, LN_OFF = 64, 76, 100

    def ln_passes(self):
        return 2 if self.o["lngood"] else 1

    def ln_loads(self, a):
        off = self.LN_OFF
        n = self.ln_passes()
        a(f"""
        s_mul_i32 s{sT0}, s{sLnIdx}, {8 * n}
        s_mul_i32 s{sT1}, s{sLw}, {2 * n}
        s_add_u32 s{sT0}, s{sT0}, s{sT1}
        v_lshrrev_b32 v{off + 1}, 5, v0
        v_add_u32 v{off + 1}, s{sT0}, v{off + 1}
        v_and_b32 v{off + 2}, 31, v0
        v_lshlrev_b32 v{off + 2}, 3, v{off + 2}
        v_mul_u32_u24 v{off}, 1280, v{off + 1}
        v_add_u32 v{off}, v{off}, v{off + 2}
        """)
        for ps in range(n):
            raw = self.LN_RAW + 54 * ps
            for j in range(5):
                a(f"buffer_load_dwordx2 v[{raw + 2 * j}:{raw + 2 * j + 1}], v{off}, s[{sX}:{sX + 3}], 0 offen offset:{2560 * ps + 256 * j}")

    def ln_compute(self, a):
        for ps in range(self.ln_passes()):
            self.ln_pass(a, ps)

    def ln_pass(self, a, ps):
        raw, f, off = self.LN_RAW + 54 * ps, self.LN_F, self.LN_OFF
        acc, t, sc, keep = 104, 108, 112, 116
        P = lambda r: f"v[{r}:{r + 1}]"

        def unpack():
            for d in range(10):
                a(f"v_lshlrev_b32 v{f + 2 * d}, 16, v{raw + d}\nv_and_b32 v{f + 2 * d + 1}, s{sT3}, v{raw + d}")

        def stats():
            a(f"v_pk_add_f32 {P(acc)}, {P(f)}, {P(f + 2)}\nv_pk_mul_f32 {P(acc + 2)}, {P(f)}, {P(f)}")
            a(f"v_pk_fma_f32 {P(acc + 2)}, {P(f + 2)}, {P(f + 2)}, {P(acc + 2)}")
            for d in range(2, 10):
                a(f"v_pk_add_f32 {P(acc)}, {P(acc)}, {P(f + 2 * d)}")
                a(f"v_pk_fma_f32 {P(acc + 2)}, {P(f + 2 * d)}, {P(f + 2 * d)}, {P(acc + 2)}")
            a(f"v_add_f32 v{acc}, v{acc}, v{acc + 1}\nv_add_f32 v{acc + 2}, v{acc + 2}, v{acc + 3}\nv_nop")
            for r in (8, 4, 2, 1):
                a(f"v_add_f32_dpp v{acc}, v{acc}, v{acc} row_ror:{r} row_mask:0xf bank_mask:0xf")
                a(f"v_add_f32_dpp v{acc + 2}, v{acc + 2}, v{acc + 2} row_ror:{r} row_mask:0xf bank_mask:0xf")
                a("v_nop")
            a(f"""
            v_mov_b32 v{t}, v{acc}
            v_mov_b32 v{t + 1}, v{acc}
            v_mov_b32 v{t + 2}, v{acc + 2}
            v_mov_b32 v{t + 3}, v{acc + 2}
            v_permlane16_swap_b32 v{t}, v{t + 1}
            v_permlane16_swap_b32 v{t + 2}, v{t + 3}
            v_add_f32 v{acc}, v{t}, v{t + 1}
            v_add_f32 v{acc + 2}, v{t + 2}, v{t + 3}
            v_mul_f32 v{acc}, {f32(1 / 640)}, v{acc}
            v_mov_b32 v{t}, {f32(1e-5)}
            v_fmac_f32 v{t}, {f32(1 / 640)}, v{acc + 2}
            v_fma_f32 v{t}, -v{acc}, v{acc}, v{t}
            v_max_f32 v{t}, {f32(1e-5)}, v{t}
            v_rsq_f32 v{sc}, v{t}
            v_mul_f32 v{sc + 1}, v{acc}, v{sc}
            """)

        def scale_pack(dst):
            for d in range(10):
                a(f"v_pk_fma_f32 {P(f + 2 * d)}, {P(f + 2 * d)}, {P(sc)}, {P(sc)} op_sel:[0,0,1] op_sel_hi:[1,0,1] neg_lo:[0,0,1] neg_hi:[0,0,1]")
            for d in range(10):
                a(f"v_cvt_pk_bf16_f32 v{dst + d}, v{f + 2 * d}, v{f + 2 * d + 1}")

        a(f"s_mov_b32 s{sT3}, 0xffff0000\ns_waitcnt vmcnt({5 * (self.ln_passes() - 1 - ps)})")
        unpack()
        stats()
        H = self.LN_H + 14 * ps
        a(f"v_mov_b32 v{H + 10}, v{acc}\nv_mov_b32 v{H + 11}, v{sc}")
        scale_pack(raw)
        unpack()
        stats()
        scale_pack(H)
        a(f"""
        v_add_u32 v{H + 12}, {WS_H + 2560 * ps}, v{off}
        v_lshlrev_b32 v{off + 4}, 3, v{off + 1}
        v_add_u32 v{off + 4}, {WS_STATS + 16 * ps}, v{off + 4}
        v_and_b32 v{off + 2}, 31, v0
        v_mov_b32 v{off + 3}, {OOB}
        v_cmp_eq_u32 vcc, 0, v{off + 2}
        v_cndmask_b32 v{H + 13}, v{off + 3}, v{off + 4}, vcc
        """)

    LN_H = 212

    def ln_stores(self, a):
        lab = a.uid("Lnoln")
        a(f"s_cmp_eq_u32 s{sLnOn}, 0\ns_cbranch_scc1 {lab}")
        for ps in range(self.ln_passes()):
            H = self.LN_H + 14 * ps
            for j in range(5):
                a(f"buffer_store_dwordx2 v[{H + 2 * j}:{H + 2 * j + 1}], v{H + 12}, s[{sWS}:{sWS + 3}], 0 offen offset:{256 * j} sc1")
            a(f"buffer_store_dwordx2 v[{H + 10}:{H + 11}], v{H + 13}, s[{sWS}:{sWS + 3}], 0 offen sc1")
        a.label(lab)

    def loader_consts_first(self, a):
        X, W, LIN = self.LV_X, self.LV_W, self.LV_LIN
        t0, t1, t2, t3 = 20, 21, 22, 23
        a(f"""
        v_lshrrev_b32 v{t0}, 3, v0
        v_and_b32 v{t1}, 7, v0
        v_lshrrev_b32 v{t2}, 1, v{t0}
        s_and_b32 s{sT0}, s{sLw}, 1
        s_lshl_b32 s{sT0}, s{sT0}, 2
        v_or_b32 v{t3}, s{sT0}, v{t2}
        v_xor_b32 v{t3}, v{t3}, v{t1}
        v_lshlrev_b32 v{t3}, 4, v{t3}
        v_mul_u32_u24 v{X}, 1280, v{t0}
        v_add_u32 v{X}, v{X}, v{t3}
        v_lshlrev_b32 v{LIN}, 4, v0
        v_lshrrev_b32 v{t0}, 4, v0
        v_and_b32 v{t1}, 15, v0
        v_lshlrev_b32 v{t2}, 2, v{t0}
        v_xor_b32 v{t2}, v{t2}, v{t1}
        v_min_u32 v{t2}, 14, v{t2}
        v_mul_u32_u24 v{t3}, 52, v{t2}
        v_lshrrev_b32 v{t3}, 8, v{t3}
        v_mul_u32_u24 v{W}, 5, v{t3}
        v_sub_u32 v{W}, v{t2}, v{W}
        v_lshlrev_b32 v{W}, 4, v{W}
        v_mul_u32_u24 v{t3}, 1280, v{t3}
        v_add_u32 v{W}, v{W}, v{t3}
        v_mul_u32_u24 v{t3}, 3840, v{t0}
        v_add_u32 v{W}, v{W}, v{t3}
        """)

    def fake_w(self, a):
        if not self.o.get("fakew"):
            return
        W = self.LV_W
        a(f"""
        v_lshrrev_b32 v20, 4, v0
        v_and_b32 v21, 15, v0
        v_lshlrev_b32 v22, 2, v20
        v_xor_b32 v22, v22, v21
        v_lshlrev_b32 v22, 4, v22
        v_mul_u32_u24 v{W}, 3840, v20
        v_add_u32 v{W}, v{W}, v22
        s_min_u32 s{sT0}, s{sP}, 14
        s_mul_i32 s{sT0}, s{sT0}, 256
        s_mul_i32 s{sT1}, s{sP}, 80
        s_sub_u32 s{sT0}, s{sT0}, s{sT1}
        v_add_u32 v{W}, s{sT0}, v{W}
        """)

    def xt_issue(self, a):
        a(f"""
        s_lshl_b32 s{sT1}, s{sSt}, 6
        s_lshr_b32 s{sT2}, s{sLw}, 1
        s_lshl_b32 s{sT3}, s{sT2}, 5
        s_add_u32 s{sT1}, s{sT1}, s{sT3}
        s_mul_i32 s{sT1}, s{sT1}, 1280
        s_mul_i32 s{sT3}, s{sDt}, 160
        s_add_u32 s{sT1}, s{sT1}, s{sT3}
        s_mul_i32 s{sT2}, s{sT2}, 5120
        s_add_u32 s{sT2}, s{sT2}, {SCR}
        s_and_b32 s{sT3}, s{sLw}, 1
        """)

        def path(par):
            for t in ((0, 1, 2) if par == 0 else (3, 4, 4)):
                a(f"""
                s_add_u32 m0, s{sT2}, {t * 1024}
                s_nop 0
                buffer_load_dwordx4 v{self.LV_WO + t}, s[{sX}:{sX + 3}], s{sT1} offen lds
                """)
        self.by_scalar(a, sT3, path)

    def loader(self, a):
        W = lambda n: self.wait_bar(a, n)

        def Wchk(n, chk):
            self.stamp(a, 0)
            a(f"s_waitcnt vmcnt({n})")
            self.only_w0(a, chk)
            self.stamp(a, 1)
            a("s_barrier")
            self.stamp(a, 2, bump=True)
        self.loader_consts_first(a)
        self.fake_w(a)
        a(f"s_mov_b32 s{sSlot}, 0")
        self.q_init(a)
        a("s_waitcnt lgkmcnt(0)")
        self.mark(a)
        self.q_issue(a)
        nT = self.tlb_touch(a) + self.code_prefetch(a)
        self.nonce_load(a)
        self.loader_consts(a)
        self.fake_w(a)
        self.loader_poll_addrs(a)
        self.nonce_make(a)
        lead = self.o["lead"]
        self.q_issue(a)
        if lead == 3:
            self.q_issue(a)
        self.mark(a)
        L = 8 * (lead - 1)
        n0 = self.pf_range(a, sW1, 0, 1024 * 3072) if self.o["pfw0"] else 0
        W(L + n0 + (0 if lead == 3 else nT)); self.q_issue(a)
        self.mark(a)
        W(L + n0); self.q_issue(a)
        W(L + (n0 if lead == 3 else 0))

        def ln_done():
            skip = a.uid("Llnoff")
            a(f"s_cmp_eq_u32 s{sLnOn}, 0\ns_cbranch_scc1 {skip}")
            a(f"s_lshl_b32 s{sT4}, s{sLnIdx}, 2\ns_add_u32 s{sT4}, s{sT4}, {FL_LN}")
            self.flag_set(a, sT4)
            a.label(skip)
            a(f"s_mov_b32 s{sArr}, 1\ns_atomic_add s{sArr}, s[{sDBG}:{sDBG + 1}], 0x0 glc")
        self.only_w0(a, ln_done)
        self.q_issue(a)
        W(L); self.q_issue(a)
        W(L); self.q_issue(a)
        W(L); self.q_issue(a)
        W(L)
        self.poll_issue(a, self.LV_PLB, 4)
        chk = lambda: self.poll_check(a, self.LV_PLB, 4)
        if lead == 2:
            self.q_issue(a)
            W(9)
            self.q_issue(a)
            Wchk(8, chk)
            self.m_init(a)
            self.m_issue(a)
            W(8); self.m_issue(a)
            self.m_issue(a)
        else:
            self.q_issue(a)
            W(17)
            Wchk(8, chk)
            self.m_init(a)
            self.m_issue(a)
            W(8); self.m_issue(a)
            self.m_issue(a)
        self.mark(a)
        n1b = self.pf_range(a, sW1, 1024 * 3072, 1024 * 3072) if self.o["pfw1"] else 0
        if self.o.get("touch"):
            n1b += self.pf_range(a, sWS, WS_GT, 8 * 1536 * 160)
            n1b += self.pf_range(a, sWS, WS_O, 2048 * 1280)
        a("s_barrier")
        a("s_barrier")
        self.kv_copy_out(a)

        def ln_all():
            lab = a.uid("Lep")
            a(f"s_waitcnt lgkmcnt(0)\ns_cmp_lg_u32 s{sArr}, 255\ns_cbranch_scc1 {lab}")
            a(f"s_mov_b32 s{sT4}, {WS_EPOCH}")
            self.flag_set(a, sT4)
            a.label(lab)
        Wchk(22 + n1b, ln_all)
        self.m_issue(a)
        W(22 + n1b); self.m_issue(a)
        W(16)

        def kv_done():
            a(f"""
            s_lshl_b32 s{sT4}, s{sP}, 4
            s_add_u32 s{sT4}, s{sT4}, s{sI}
            s_lshl_b32 s{sT4}, s{sT4}, 2
            s_add_u32 s{sT4}, s{sT4}, {FL_KV}
            """)
            self.flag_set(a, sT4)
        self.only_w0(a, kv_done)
        self.m_issue(a)
        self.loop(a, 7, lambda: (W(16), self.m_issue(a)))
        W(16)
        self.poll_issue(a, self.LV_PKV)
        self.m_issue(a)
        W(17); self.m_issue(a)
        W(17); self.m_issue(a)
        Wchk(16, lambda: self.poll_check(a, self.LV_PKV))
        self.kv_init(a)
        self.kv_issue(a, 0, 9)
        W(17)
        self.kv_issue(a, 9, 16)
        W(16)
        self.f_init(a)
        a(f"s_mov_b32 s{sSlot}, 0")
        a("s_barrier")
        W(0)
        self.mark(a)
        solo = self.o["gsolo"]
        if not solo:
            self.g_copy_out(a)
            a(f"""
            s_waitcnt vmcnt(0)
            v_mov_b32 v20, {SCR_CNT}
            v_mov_b32 v21, 1
            s_mov_b32 exec_hi, 0
            s_mov_b32 exec_lo, 1
            ds_add_u32 v20, v21
            s_mov_b64 exec, -1
            """)
        self.mark(a)

        def g_pub():
            if solo:
                self.g_copy_out_solo(a)
                a(f"v_mov_b32 v20, {SCR_CNT}\nv_mov_b32 v21, 4\nds_write_b32 v20, v21\ns_waitcnt vmcnt(0)")
            else:
                self.lds_spin(a, 0, 4)
            skip = a.uid("Lgidle")
            a(f"s_cmp_eq_u32 s{sM1On}, 0\ns_cbranch_scc1 {skip}")
            a(f"""
            s_lshl_b32 s{sT4}, s{sFt}, 6
            s_lshl_b32 s{sT5}, s{sDt1}, 2
            s_add_u32 s{sT4}, s{sT4}, s{sT5}
            s_add_u32 s{sT4}, s{sT4}, {FL_G}
            """)
            for r in range(8):
                self.flag_set(a, sT4)
                if r < 7:
                    a(f"s_add_u32 s{sT4}, s{sT4}, 1536")
            a.label(skip)
        self.only_w0(a, g_pub)
        self.lds_spin(a, 0, 4)
        self.mark(a)
        if self.o["pfw2"]:
            self.pf_range(a, sW2, 0, 1536 * 4096)
            self.pf_range(a, sWO, 0, 640 * 1280)
        self.slot_begin(a)
        self.f_issue_w2(a)
        a(f"s_add_u32 s{sSW}, s{sSW}, {SLOT}")
        self.f_issue_w2(a)

        def g_sync():
            ok, sp = a.uid("Lgok"), a.uid("Lgspin")
            self.spin(a, self.LV_PLA if self.o["gprog"] else self.LV_PG, 1, ok, sp, self.o["gsleep"])
            a.label(ok)
            a(f"v_mov_b32 v20, {SCR_CNT + 4}\nv_mov_b32 v21, 1\nds_write_b32 v20, v21")
        self.mark(a)
        self.only_w0(a, g_sync)
        self.mark(a)
        self.lds_spin(a, 1, 1)
        self.slot_begin(a)
        self.f_issue_g(a)
        a(f"s_add_u32 s{sSW}, s{sSW}, {SLOT}")
        self.f_issue_g(a)
        a(f"s_mov_b32 s{sSlot}, {2 * SLOT}")
        W(5)
        self.mark(a)
        if self.o["gprog"]:
            self.poll_issue(a, self.LV_PG)
        self.f_issue(a); self.f_issue(a)
        self.o_copy_out(a)
        if self.o["gprog"]:
            Wchk(21, lambda: self.poll_check(a, self.LV_PG))
        else:
            W(21)
        self.f_issue(a)
        W(21); self.f_issue(a)
        W(18)

        def o_done():
            a(f"""
            s_lshl_b32 s{sT4}, s{sI}, 4
            s_add_u32 s{sT4}, s{sT4}, s{sP}
            s_lshl_b32 s{sT4}, s{sT4}, 2
            s_add_u32 s{sT4}, s{sT4}, {FL_O}
            """)
            self.flag_set(a, sT4)
        self.only_w0(a, o_done)
        self.f_issue(a)
        self.xt_issue(a)
        W(21); self.f_issue(a)
        W(21); self.f_issue(a)
        W(21)
        self.poll_issue(a, self.LV_PO)
        self.f_issue(a)
        W(19); self.f_issue(a)
        W(19); self.f_issue(a)
        Wchk(18, lambda: self.poll_check(a, self.LV_PO))
        self.wo_init(a)
        self.wo_issue(a)
        self.loop(a, 4, lambda: (W(18), self.wo_issue(a)))
        W(18); W(9); W(0)
        a("s_barrier")

    def m_consts(self, a):
        B.Gen.m_consts(self, a)

    def m_swap(self, a):
        lab = a.uid("Lmsw")
        a(f"s_cmp_eq_u32 s{sWm}, 0\ns_cbranch_scc1 {lab}")
        a(f"v_mov_b32 v1, v{self.M_CA}\nv_mov_b32 v{self.M_CA}, v{self.M_CA + 1}\nv_mov_b32 v{self.M_CA + 1}, v1")
        a.label(lab)

    def zero(self, a, r0, n):
        for r in reversed(range(r0, r0 + n)):
            a(f"v_mov_b32 v{r}, 0")

    def a_consts(self, a, zero_o=True):
        super().a_consts(a)

    def q_reads(self, ks, b=None):
        base = self.Q_BUF + 16 * ks
        out = []
        for tm in range(2):
            for rd in range(2):
                out.append(f"ds_read_b64_tr_b16 v[{base + 4 * tm + 2 * rd}:{base + 4 * tm + 2 * rd + 1}], v{self.Q_AA + tm} offset:{(16 * ks + 4 * rd) * 256}")
        for tn in range(2):
            out.append(f"ds_read_b128 v[{base + 8 + 4 * tn}:{base + 11 + 4 * tn}], v{self.Q_AB + ks} offset:{tn * 4096}")
        return out

    @staticmethod
    def czero(mf):
        return [m.rsplit(",", 1)[0] + ", 0" for m in mf]

    def q_group(self, ks, wn):
        base = self.Q_BUF + 16 * ks
        cs, on = self.Q_CS, self.Q_ONES
        return self.q_mfmas(ks) + [f"v_mfma_f32_16x16x32_bf16 v[{cs}:{cs + 3}], v[{base + 4 * wn}:{base + 4 * wn + 3}], v[{on}:{on + 3}], v[{cs}:{cs + 3}]"]

    def q_addr(self):
        return ([f"v_add_u32 v{self.Q_AA + tm}, s{sSlot}, v{self.Q_CA + tm}" for tm in range(2)] +
                [f"v_add_u32 v{self.Q_AB + ks}, s{sSlot}, v{self.Q_CB + ks}" for ks in range(4)])

    def q_stage(self, a, wn, first, hook=None, pre=None):
        if pre:
            pre()
        self.cbar(a)
        if hook:
            hook()
        r01 = self.q_reads(0) + self.q_reads(1)
        if first:
            for r in r01:
                a(r)
        else:
            self.spread(a, self.q_group(3, wn), r01)
        a("s_waitcnt lgkmcnt(6)")
        g0 = self.q_group(0, wn)
        self.spread(a, self.czero(g0) if first else g0, self.q_reads(2))
        a("s_waitcnt lgkmcnt(6)")
        self.spread(a, self.q_group(1, wn), self.q_reads(3))
        self.slot_next(a)
        a("s_waitcnt lgkmcnt(6)")
        g2 = self.q_group(2, wn)
        self.spread(a, g2[4:] + g2[:4], self.q_addr())
        a("s_waitcnt lgkmcnt(0)")
        if self.o.get("qmarks"):
            self.mark(a)

    @staticmethod
    def spread(a, mf, other):
        n = len(mf)
        k = 0
        for i, m in enumerate(mf):
            a(m)
            upto = -(-(len(other) * (i + 1)) // n)
            for r in other[k:upto]:
                a(r)
            k = upto

    QE_C, QE_AB, QE_T = 136, 168, 176

    def q_epilogue_pre(self, a):
        AB, T = self.QE_AB, self.QE_T + 2
        ST = self.V_ST
        a(f"""
        v_lshrrev_b32 v{T}, 5, v0
        v_lshlrev_b32 v{T + 1}, 4, v{T}
        s_lshl_b32 s{sT0}, s{sWm}, 8
        s_add_u32 s{sT0}, s{sT0}, {SCR_CS}
        v_add_u32 v{T + 1}, s{sT0}, v{T + 1}
        s_lshl_b32 s{sT1}, s{sWn}, 6
        v_and_b32 v{T + 2}, 31, v0
        v_add_u32 v{T + 2}, s{sT1}, v{T + 2}
        v_lshlrev_b32 v{T}, 3, v{T}
        v_mul_u32_u24 v{T + 3}, 80, v{T + 2}
        v_add_u32 v{T + 3}, v{T + 3}, v{T}
        v_add_u32 v{T + 3}, {SCR}, v{T + 3}
        v_mul_u32_u24 v{T + 4}, {KVROW}, v{T + 2}
        v_add_u32 v{T + 4}, v{T + 4}, v{T}
        v_add_u32 v{T + 4}, {SLOT}, v{T + 4}
        s_waitcnt vmcnt(0)
        """)
        for tn in range(2):
            m_, r_ = ST + 2 * tn, ST + 2 * tn + 1
            o = AB + 4 * tn
            a(f"""
            v_mov_b32 v{o}, v{r_}
            v_mul_f32 v{o + 1}, v{m_}, v{r_}
            v_mul_f32 v{o + 2}, {f32(QSCALE)}, v{r_}
            v_mul_f32 v{o + 3}, {f32(QSCALE)}, v{o + 1}
            """)

    def q_epilogue(self, a, wm):
        C, AB, T = self.QE_C, self.QE_AB, self.QE_T + 2
        for tm in range(2):
            for q in range(4):
                r = C + 16 * tm + 4 * q
                a(f"ds_read_b128 v[{r}:{r + 3}], v{T + 1} offset:{tm * 128 + q * 32}")
        for tn in range(2):
            for tm in range(2):
                acc = self.Q_ACC + 16 * (2 * tm + tn)
                for q in range(4):
                    Q0 = 16 * wm + 8 * tm + 2 * q
                    if Q0 == 30:
                        continue
                    o = AB + 4 * tn + (2 if Q0 < 10 else 0)
                    for y in (acc + 4 * q, acc + 4 * q + 2):
                        a(f"v_pk_mul_f32 v[{y}:{y + 1}], v[{y}:{y + 1}], v[{o}:{o + 1}] op_sel_hi:[1,0]")
        a("s_waitcnt lgkmcnt(0)")
        for tn in range(2):
            for tm in range(2):
                acc = self.Q_ACC + 16 * (2 * tm + tn)
                quads = []
                for q in range(4):
                    Q0 = 16 * wm + 8 * tm + 2 * q
                    quads.append((Q0, AB + 4 * tn + (2 if Q0 < 10 else 0), C + 16 * tm + 4 * q, acc + 4 * q))
                live = [t for t in quads if t[0] != 30]
                for Q0, o, c, x in live:
                    for hf in range(2):
                        y = x + 2 * hf
                        a(f"v_pk_fma_f32 v[{y}:{y + 1}], v[{c + 2 * hf}:{c + 2 * hf + 1}], v[{o}:{o + 1}], v[{y}:{y + 1}] op_sel:[0,1,0] op_sel_hi:[1,1,1] neg_lo:[1,0,0] neg_hi:[1,0,0]")
                for Q0, o, c, x in live:
                    a(f"v_cvt_pk_bf16_f32 v{x}, v{x}, v{x + 1}")
                for Q0, o, c, x in live:
                    a(f"v_cvt_pk_bf16_f32 v{x + 1}, v{x + 2}, v{x + 3}")
                for Q0, o, c, x in quads:
                    if Q0 == 30:
                        a(f"v_mov_b32 v{x}, 0x00003f80\nv_mov_b32 v{x + 1}, 0")
                        a(f"""
                        s_mov_b32 exec_hi, 0
                        ds_write_b64 v{T + 4}, v[{x}:{x + 1}] offset:{tn * 32 * KVROW + 160}
                        s_mov_b64 exec, -1
                        """)
                    elif Q0 < 10:
                        a(f"ds_write_b64 v{T + 3}, v[{x}:{x + 1}] offset:{tn * 32 * 80 + Q0 * 8}")
                    else:
                        a(f"ds_write_b64 v{T + 4}, v[{x}:{x + 1}] offset:{tn * 32 * KVROW + (Q0 - 10) * 8}")
        a("s_waitcnt lgkmcnt(0)")

    def kv_copy_out(self, a):
        R, T = 32, 28
        a(f"""
        v_lshlrev_b32 v{T}, 4, v0
        s_lshl_b32 s{sT0}, s{sLw}, 10
        v_add_u32 v{T}, s{sT0}, v{T}
        v_add_u32 v{T + 1}, {SLOT}, v{T}
        s_lshl_b32 s{sT1}, s{sP}, 11
        s_lshl_b32 s{sT2}, s{sI}, 7
        s_add_u32 s{sT1}, s{sT1}, s{sT2}
        s_mul_i32 s{sT1}, s{sT1}, {KVROW}
        s_add_u32 s{sT1}, s{sT1}, {WS_KV}
        v_add_u32 v{T + 2}, s{sT1}, v{T}
        s_cmp_eq_u32 s{sLw}, 0
        s_cselect_b32 s{sT2}, 0, {OOB}
        v_add_u32 v{T + 3}, s{sT2}, v{T + 2}
        """)
        for k in range(6):
            a(f"ds_read_b128 v[{R + 4 * k}:{R + 4 * k + 3}], v{T + 1} offset:{k * 4096}")
        for k in range(6):
            a(f"s_waitcnt lgkmcnt({5 - k})")
            a(f"s_mov_b32 s{sT0}, {k * 4096}")
            a(f"buffer_store_dwordx4 v[{R + 4 * k}:{R + 4 * k + 3}], v{T + (3 if k == 5 else 2)}, s[{sWS}:{sWS + 3}], s{sT0} offen sc1")

    def q_csum_write(self, a):
        t0, t1 = 176, 177
        cs = self.Q_CS
        a(f"""
        v_and_b32 v{t0}, 1, v0
        v_lshlrev_b32 v{t0}, 6, v{t0}
        v_lshrrev_b32 v{t1}, 4, v0
        v_lshl_add_u32 v{t0}, v{t1}, 4, v{t0}
        s_lshl_b32 s{sT0}, s{sWm}, 8
        s_lshl_b32 s{sT1}, s{sWn}, 7
        s_add_u32 s{sT0}, s{sT0}, s{sT1}
        s_add_u32 s{sT0}, s{sT0}, {SCR_CS}
        v_add_u32 v{t0}, s{sT0}, v{t0}
        v_and_b32 v{t1}, 14, v0
        v_cmp_eq_u32 vcc, 0, v{t1}
        s_and_saveexec_b64 s[{sEx}:{sEx + 1}], vcc
        ds_write_b128 v{t0}, v[{cs}:{cs + 3}]
        s_mov_b64 exec, s[{sEx}:{sEx + 1}]
        s_waitcnt lgkmcnt(0)
        """)

    def c_qkv(self, a):
        T = 212
        for c in self.q_addr():
            a(c)

        def stats():
            ST = self.V_ST
            a(f"""
            s_lshl_b32 s{sT0}, s{sI}, 7
            s_lshl_b32 s{sT1}, s{sWn}, 6
            s_add_u32 s{sT0}, s{sT0}, s{sT1}
            v_and_b32 v{T + 1}, 31, v0
            v_add_u32 v{T + 1}, s{sT0}, v{T + 1}
            v_lshlrev_b32 v{T + 1}, 3, v{T + 1}
            v_add_u32 v{T + 1}, {WS_STATS}, v{T + 1}
            buffer_load_dwordx2 v[{ST}:{ST + 1}], v{T + 1}, s[{sWS}:{sWS + 3}], 0 offen sc1
            buffer_load_dwordx2 v[{ST + 2}:{ST + 3}], v{T + 1}, s[{sWS}:{sWS + 3}], 0 offen offset:256 sc1
            """)

        def run(wn):
            self.q_stage(a, wn, True, hook=lambda: self.ln_stores(a))
            self.mark(a)
            self.q_stage(a, wn, False)
            self.q_stage(a, wn, False, pre=lambda: a("s_waitcnt vmcnt(0)"))
            self.loop(a, 5, lambda: self.q_stage(a, wn, False))
            self.q_stage(a, wn, False, hook=stats)
            self.q_stage(a, wn, False)
            g3 = self.q_group(3, wn)
            for m in g3[4:] + g3[:4]:
                a(m)
        self.by_scalar(a, sWn, run)
        self.mark(a)
        self.q_epilogue_pre(a)
        self.q_csum_write(a)
        a("s_barrier")
        self.by_scalar(a, sWm, lambda wm: self.q_epilogue(a, wm))
        a("s_barrier")

    def m_addr(self):
        return ([f"v_add_u32 v{self.M_AA + tm}, s{sSlot}, v{self.M_CA + tm}" for tm in range(2)] +
                [f"v_add_u32 v{self.M_AB}, s{sSlot}, v{self.M_CB}"])

    def m_stage(self, a, first, pre=None, hook=None):
        if pre:
            pre()
        self.cbar(a)
        if hook:
            hook()
        r01 = self.m_reads(0) + self.m_reads(1)
        if first:
            for r in r01:
                a(r)
        else:
            self.spread(a, self.m_mfmas(2) + self.m_mfmas(3), r01)
        a("s_waitcnt lgkmcnt(6)")
        self.spread(a, self.czero(self.m_mfmas(0)) if first else self.m_mfmas(0), self.m_reads(2))
        a("s_waitcnt lgkmcnt(6)")
        self.spread(a, self.m_mfmas(1), self.m_reads(3))
        self.slot_next(a)
        for c in self.m_addr():
            a(c)
        a("s_waitcnt lgkmcnt(0)")

    def m_reduce_write(self, a, kh):
        t = 190
        src = self.M_ACC + 16 * (1 - kh)
        a(f"""
        v_lshlrev_b32 v{t}, 4, v0
        s_lshl_b32 s{sT0}, s{sLw}, 12
        s_add_u32 s{sT0}, s{sT0}, {M_RED}
        v_add_u32 v{t}, s{sT0}, v{t}
        """)
        for q in range(4):
            a(f"ds_write_b128 v{t}, v[{src + 4 * q}:{src + 4 * q + 3}] offset:{q * 1024}")
        a("s_waitcnt lgkmcnt(0)")

    ME_U = 200

    def m_epilogue_pre(self, a):
        U, B1 = self.ME_U, self.V_B1
        c0 = -2.0 * math.sqrt(2.0 / math.pi) * math.log2(math.e)
        c1 = c0 * 0.044715
        a(f"""
        s_lshl_b32 s{sT1}, s{sWn}, 5
        v_and_b32 v{U}, 31, v0
        v_add_u32 v{U}, s{sT1}, v{U}
        v_mul_u32_u24 v{U}, {GROW}, v{U}
        v_lshrrev_b32 v{U + 1}, 5, v0
        v_lshl_add_u32 v{U}, v{U + 1}, 3, v{U}
        s_lshl_b32 s{sT1}, s{sWm}, 6
        s_add_u32 s{sT1}, s{sT1}, {SLOT}
        v_add_u32 v{U}, s{sT1}, v{U}
        v_lshlrev_b32 v{U + 1}, 4, v0
        s_xor_b32 s{sT0}, s{sLw}, 2
        s_lshl_b32 s{sT0}, s{sT0}, 12
        s_add_u32 s{sT0}, s{sT0}, {M_RED}
        v_add_u32 v{U + 1}, s{sT0}, v{U + 1}
        v_mov_b32 v{U + 4}, {f32(c1)}
        v_mov_b32 v{U + 5}, {f32(c0)}
        v_mov_b32 v{U + 6}, 1.0
        s_waitcnt vmcnt(0)
        v_lshlrev_b32 v{U + 2}, 16, v{B1}
        """)

    def m_epilogue(self, a, kh):
        R, U = 136, self.ME_U
        keep = self.M_ACC + 16 * kh
        for q in range(4):
            a(f"ds_read_b128 v[{R + 4 * q}:{R + 4 * q + 3}], v{U + 1} offset:{q * 1024}")
        for r in range(0, 16, 2):
            a(f"v_pk_add_f32 v[{keep + r}:{keep + r + 1}], v[{keep + r}:{keep + r + 1}], v[{U + 2}:{U + 3}] op_sel_hi:[1,0]")
        a("s_waitcnt lgkmcnt(0)")
        P = lambda r: f"v[{r}:{r + 1}]"
        for r in range(0, 16, 2):
            a(f"v_pk_add_f32 {P(keep + r)}, {P(keep + r)}, {P(R + r)}")
        for r in range(0, 16, 2):
            a(f"v_pk_mul_f32 {P(R + r)}, {P(keep + r)}, {P(keep + r)}")
        for r in range(0, 16, 2):
            a(f"v_pk_fma_f32 {P(R + r)}, {P(R + r)}, {P(U + 4)}, {P(U + 4)} op_sel:[0,0,1] op_sel_hi:[1,0,1]")
        for r in range(0, 16, 2):
            a(f"v_pk_mul_f32 {P(R + r)}, {P(R + r)}, {P(keep + r)}")
        for r in range(16):
            a(f"v_exp_f32 v{R + r}, v{R + r}")
        for r in range(0, 16, 2):
            a(f"v_pk_add_f32 {P(R + r)}, {P(R + r)}, {P(U + 6)} op_sel_hi:[1,0]")
        for r in range(16):
            a(f"v_rcp_f32 v{R + r}, v{R + r}")
        for r in range(0, 16, 2):
            a(f"v_pk_mul_f32 {P(keep + r)}, {P(keep + r)}, {P(R + r)}")
        for q in range(4):
            x = keep + 4 * q
            a(f"v_cvt_pk_bf16_f32 v{x}, v{x}, v{x + 1}\nv_cvt_pk_bf16_f32 v{x + 1}, v{x + 2}, v{x + 3}")
            a(f"ds_write_b64 v{U}, v[{x}:{x + 1}] offset:{16 * q}")
        a("s_waitcnt lgkmcnt(0)")

    def g_copy_out_solo(self, a):
        R, T = 32, 28
        a(f"""
        v_lshrrev_b32 v{T}, 3, v0
        v_and_b32 v{T + 1}, 7, v0
        v_mul_u32_u24 v{T + 2}, {GROW}, v{T}
        v_lshl_add_u32 v{T + 2}, v{T + 1}, 4, v{T + 2}
        v_add_u32 v{T + 2}, {SLOT}, v{T + 2}
        """)
        for k in range(8):
            a(f"ds_read_b128 v[{R + 4 * k}:{R + 4 * k + 3}], v{T + 2} offset:{8 * GROW * k}")
        a(f"""
        s_lshl_b32 s{sT0}, s{sDt1}, 6
        v_lshl_add_u32 v{T + 1}, v{T + 1}, 3, s{sT0}
        v_mul_u32_u24 v{T + 3}, 820, v{T + 1}
        v_lshrrev_b32 v{T + 3}, 16, v{T + 3}
        v_mul_u32_u24 v{T + 2}, 80, v{T + 3}
        v_sub_u32 v{T + 1}, v{T + 1}, v{T + 2}
        v_mul_u32_u24 v{T + 3}, {1536 * 160}, v{T + 3}
        v_lshl_add_u32 v{T + 3}, v{T + 1}, 1, v{T + 3}
        s_lshl_b32 s{sT0}, s{sFt}, 6
        v_add_u32 v{T}, s{sT0}, v{T}
        v_mul_u32_u24 v{T}, 160, v{T}
        v_add_u32 v{T + 3}, v{T + 3}, v{T}
        s_mov_b32 s{sT1}, {WS_GT}
        s_cmp_eq_u32 s{sM1On}, 0
        s_cselect_b32 s{sT0}, {OOB}, s{sT1}
        """)
        for k in range(8):
            a(f"s_waitcnt lgkmcnt({7 - k})")
            a(f"buffer_store_dwordx4 v[{R + 4 * k}:{R + 4 * k + 3}], v{T + 3}, s[{sWS}:{sWS + 3}], s{sT0} offen sc1")
            if k < 7:
                a(f"s_add_u32 s{sT0}, s{sT0}, {8 * 160}")

    def g_copy_out(self, a):
        R, T = 40, 28
        a(f"""
        v_lshrrev_b32 v{T}, 3, v0
        s_lshl_b32 s{sT0}, s{sLw}, 4
        v_add_u32 v{T}, s{sT0}, v{T}
        v_and_b32 v{T + 1}, 7, v0
        v_mul_u32_u24 v{T + 2}, {GROW}, v{T}
        v_lshl_add_u32 v{T + 2}, v{T + 1}, 4, v{T + 2}
        v_add_u32 v{T + 2}, {SLOT}, v{T + 2}
        ds_read_b128 v[{R}:{R + 3}], v{T + 2}
        ds_read_b128 v[{R + 4}:{R + 7}], v{T + 2} offset:{8 * GROW}
        s_lshl_b32 s{sT0}, s{sDt1}, 6
        v_lshl_add_u32 v{T + 1}, v{T + 1}, 3, s{sT0}
        v_mul_u32_u24 v{T + 3}, 820, v{T + 1}
        v_lshrrev_b32 v{T + 3}, 16, v{T + 3}
        v_mul_u32_u24 v{T + 4}, 80, v{T + 3}
        v_sub_u32 v{T + 1}, v{T + 1}, v{T + 4}
        v_mul_u32_u24 v{T + 3}, {1536 * 160}, v{T + 3}
        v_lshl_add_u32 v{T + 3}, v{T + 1}, 1, v{T + 3}
        s_lshl_b32 s{sT0}, s{sFt}, 6
        v_add_u32 v{T}, s{sT0}, v{T}
        v_mul_u32_u24 v{T}, 160, v{T}
        v_add_u32 v{T + 3}, v{T + 3}, v{T}
        s_mov_b32 s{sT1}, {WS_GT}
        s_cmp_eq_u32 s{sM1On}, 0
        s_cselect_b32 s{sT0}, {OOB}, s{sT1}
        v_add_u32 v{T + 3}, s{sT0}, v{T + 3}
        s_waitcnt lgkmcnt(0)
        buffer_store_dwordx4 v[{R}:{R + 3}], v{T + 3}, s[{sWS}:{sWS + 3}], 0 offen sc1
        buffer_store_dwordx4 v[{R + 4}:{R + 7}], v{T + 3}, s[{sWS}:{sWS + 3}], 0 offen offset:{8 * 160} sc1
        """)

    def c_mix1(self, a):
        T = 200
        a(f"""
        s_lshl_b32 s{sT0}, s{sFt}, 6
        s_lshl_b32 s{sT1}, s{sWn}, 5
        s_add_u32 s{sT0}, s{sT0}, s{sT1}
        v_and_b32 v{T}, 31, v0
        v_add_u32 v{T}, s{sT0}, v{T}
        v_lshlrev_b32 v{T}, 1, v{T}
        buffer_load_ushort v{self.V_B1}, v{T}, s[{sB1}:{sB1 + 3}], 0 offen
        """)
        for c in self.m_addr():
            a(c)
        self.m_stage(a, True)
        self.zero(a, self.A_O, 16)
        self.m_stage(a, False)
        self.zero(a, self.A_O + 16, 16)
        self.m_stage(a, False)
        self.mark(a)
        self.loop(a, 13, lambda: self.m_stage(a, False))
        for m in self.m_mfmas(2) + self.m_mfmas(3):
            a(m)
        self.mark(a)
        self.m_epilogue_pre(a)
        self.m_reduce_write(a, 0)
        a("s_barrier")
        self.m_epilogue(a, 0)
        self.a_zero(a)
        self.cbar(a)

    def a_addr_consts(self, a):
        keep = (self.A_O, self.A_K)
        body = Asm()
        B.Gen.a_consts(self, body)
        for it in body.items:
            if it.mn == "v_mov_b32" and it.ops[0][0] == "v":
                r = int(it.ops[0][1:])
                if self.A_O <= r < self.A_O + 32 or self.A_K <= r < self.A_K + 16:
                    continue
            a.items.append(it)

    def a_zero(self, a):
        for hh in range(2):
            for base in (self.A_K, self.A_Q):
                a(f"v_mov_b32 v{base + 8 * hh + 6}, 0\nv_mov_b32 v{base + 8 * hh + 7}, 0")

    def a_qreads(self, a):
        T = self.A_T
        a(f"""
        s_lshl_b32 s{sT0}, s{sLw}, 5
        v_and_b32 v{T}, 31, v0
        v_add_u32 v{T}, s{sT0}, v{T}
        v_mul_u32_u24 v{T}, 80, v{T}
        v_add_u32 v{T}, {SCR}, v{T}
        v_lshrrev_b32 v{T + 1}, 5, v0
        v_lshl_add_u32 v{T + 1}, v{T + 1}, 4, v{T}
        """)
        for hh in range(2):
            q = self.A_Q + 8 * hh
            a(f"""
            ds_read_b64 v[{q}:{q + 1}], v{T + 1} offset:{40 * hh}
            ds_read_b64 v[{q + 2}:{q + 3}], v{T + 1} offset:{40 * hh + 8}
            ds_read_b64 v[{q + 4}:{q + 5}], v{T} offset:{40 * hh + 32}
            """)

    def a_qmask(self, a):
        for hh in range(2):
            q = self.A_Q + 8 * hh
            a(f"""
            s_mov_b32 exec_lo, 0
            v_mov_b32 v{q + 4}, 0
            v_mov_b32 v{q + 5}, 0
            s_mov_b64 exec, -1
            """)

    def kr(self, hh, dt):
        k = self.A_K + 8 * hh
        o = dt * 32 * KVROW + 40 * hh
        return [f"ds_read_b64 v[{k}:{k + 1}], v{self.A_KA} offset:{o}",
                f"ds_read_b64 v[{k + 2}:{k + 3}], v{self.A_KA} offset:{o + 8}",
                f"ds_read_b64 v[{k + 4}:{k + 5}], v{self.A_KA + 1} offset:{o + 32}"]

    def vr(self, hh, dt):
        x = self.A_V + 8 * hh
        return [f"ds_read_b64_tr_b16 v[{x + 4 * aa + 2 * rd}:{x + 4 * aa + 2 * rd + 1}], v{self.A_VA + hh} offset:{(dt * 32 + 16 * aa + 8 * rd) * KVROW}"
                for aa in range(2) for rd in range(2)]

    def a_slot(self, a, hv, qk_mask, do_qk, do_pv, dk, dv, rd_k=True, rd_v=True, wait=7):
        ho = 1 - hv
        sreg, p = self.A_S + 16 * hv, self.A_P + 8 * hv
        a(f"s_waitcnt lgkmcnt({wait})")
        qk = self.a_qk(ho, qk_mask) if do_qk else [None, None]
        pv = self.a_pv(ho) if do_pv else [None, None]
        kr = self.kr(ho, dk) if rd_k else []
        vr = self.vr(ho, dv) if rd_v else []
        plan = [(qk[0], kr[:2]), (qk[1], kr[2:]), (pv[0], vr[:2]), (pv[1], vr[2:])]
        for g, (m, rds) in enumerate(plan):
            if m:
                a(m)
            for r in rds:
                a(r)
            for q in range(4):
                a(f"v_exp_f32 v{sreg + 4 * g + q}, v{sreg + 4 * g + q}")
        for r in range(8):
            a(f"v_cvt_pk_bf16_f32 v{p + r}, v{sreg + 2 * r}, v{sreg + 2 * r + 1}")

    def a_iter(self, a, first, mask_a, mask_b, last):
        self.a_slot(a, 0, mask_a, True, not first, 1, 0, rd_k=not last, wait=7 if not last else 7)
        if last:
            self.a_slot(a, 1, None, False, True, 0, 0, rd_k=False, rd_v=False, wait=4)
            a("s_waitcnt lgkmcnt(0)")
            for m in self.a_pv(1):
                a(m)
        else:
            self.a_slot(a, 1, mask_b, True, True, 2, 1)
            for r in (self.A_KA, self.A_KA + 1, self.A_VA, self.A_VA + 1):
                a(f"v_add_u32 v{r}, {32 * KVROW}, v{r}")

    def g_publish(self, a):
        lab = a.uid("Lgp")
        T = 208
        a(f"s_cmp_lg_u32 s{sPub}, 0\ns_cbranch_scc1 {lab}")
        a(f"""
        s_mov_b32 s{sPub}, 1
        s_waitcnt vmcnt(0)
        v_mov_b32 v{T}, {SCR_CNT}
        v_mov_b32 v{T + 1}, 1
        s_mov_b32 exec_hi, 0
        s_mov_b32 exec_lo, 1
        ds_add_u32 v{T}, v{T + 1}
        s_mov_b64 exec, -1
        """)
        a.label(lab)

    def attention(self, a):
        T = self.A_T
        a(f"""
        s_lshl_b32 s{sT0}, s{sI}, 2
        s_add_u32 s{sT0}, s{sT0}, s{sLw}
        s_cmp_ge_u32 s{sT0}, 8
        s_cselect_b32 s{sT0}, 8, s{sT0}
        s_sub_u32 s{sT2}, 8, s{sT0}
        """)
        self.a_skip(a, sT2)
        self.a_qreads(a)
        for hh in range(2):
            for r in self.kr(hh, 0):
                a(r)
        a("s_waitcnt lgkmcnt(0)")
        self.a_qmask(a)
        MF, MD = self.A_MF, self.A_MD
        L = {k: a.uid("La" + k) for k in ("far", "n2", "n1", "mid", "pre", "last", "done")}

        def head(mask):
            for m in self.a_qk(0, mask):
                a(m)
            for r in self.kr(0, 1) + self.vr(0, 0):
                a(r)
        L["rare"] = a.uid("Larare")
        a(f"s_cmp_lg_u32 s{sT2}, 0\ns_cbranch_scc1 {L['rare']}")

        def rare(b):
            def hd(mask):
                for m in self.a_qk(0, mask):
                    b(m)
                for r in self.kr(0, 1) + self.vr(0, 0):
                    b(r)
            b.label(L["rare"])
            b(f"s_cmp_eq_u32 s{sT2}, 7\ns_cbranch_scc1 {L['n2']}")
            b(f"s_cmp_eq_u32 s{sT2}, 8\ns_cbranch_scc1 {L['n1']}")
            hd(None)
            self.a_iter(b, True, None, None, False)
            b(f"s_sub_u32 s{sCnt}, 6, s{sT2}\ns_cmp_eq_u32 s{sCnt}, 0\ns_cbranch_scc1 {L['pre']}\ns_branch {L['mid']}")
            b.label(L["n2"])
            hd(None)
            self.a_iter(b, True, None, MD, False)
            b(f"s_branch {L['last']}")
            b.label(L["n1"])
            hd(MD)
            self.a_iter(b, True, MD, None, True)
            b(f"s_branch {L['done']}")
        self.cold_blocks.append(rare)
        head(MF)
        self.a_iter(a, True, MF, None, False)
        a(f"s_mov_b32 s{sCnt}, 6")
        a.label(L["mid"])
        self.a_iter(a, False, None, None, False)
        a(f"s_sub_u32 s{sCnt}, s{sCnt}, 1\ns_cmp_lg_u32 s{sCnt}, 0\ns_cbranch_scc1 {L['mid']}")
        a.label(L["pre"])
        self.a_iter(a, False, None, MD, False)
        a.label(L["last"])
        self.a_iter(a, False, MD, None, True)
        a.label(L["done"])
        lfb, ldone = a.uid("Lfallback"), a.uid("Lnorm")
        self.fallback_labels = (lfb, ldone)
        self.a_rowsum(a)
        a(f"""
        v_mov_b32 v{T + 4}, {f32(2.0 ** -40)}
        v_mov_b32 v{T + 5}, {f32(2.0 ** 40)}
        v_cmp_ge_f32 s[{sT0}:{sT0 + 1}], v{T}, v{T + 4}
        v_cmp_le_f32 s[{sT2}:{sT2 + 1}], v{T}, v{T + 5}
        s_and_b64 s[{sT0}:{sT0 + 1}], s[{sT0}:{sT0 + 1}], s[{sT2}:{sT2 + 1}]
        v_cmp_ge_f32 s[{sT2}:{sT2 + 1}], v{T + 1}, v{T + 4}
        s_and_b64 s[{sT0}:{sT0 + 1}], s[{sT0}:{sT0 + 1}], s[{sT2}:{sT2 + 1}]
        v_cmp_le_f32 s[{sT2}:{sT2 + 1}], v{T + 1}, v{T + 5}
        s_and_b64 s[{sT0}:{sT0 + 1}], s[{sT0}:{sT0 + 1}], s[{sT2}:{sT2 + 1}]
        s_cmp_eq_u64 s[{sT0}:{sT0 + 1}], exec
        s_cbranch_scc0 {lfb}
        """)
        a.label(ldone)
        self.a_store(a)

    def a_store(self, a):
        T = self.A_T
        a(f"""
        v_rcp_f32 v{T + 2}, v{T}
        v_rcp_f32 v{T + 4}, v{T + 1}
        s_lshl_b32 s{sT1}, s{sLw}, 5
        v_and_b32 v{T + 6}, 31, v0
        v_add_u32 v{T + 6}, s{sT1}, v{T + 6}
        v_mul_u32_u24 v{T + 6}, 80, v{T + 6}
        v_add_u32 v{T + 6}, {SCR}, v{T + 6}
        v_lshrrev_b32 v{T + 7}, 5, v0
        v_lshl_add_u32 v{T + 7}, v{T + 7}, 3, v{T + 6}
        """)
        for hh in range(2):
            o = self.A_O + 16 * hh
            rc = T + 2 + 2 * hh
            for g in range(3):
                x = o + 4 * g
                for hf in range(2):
                    a(f"v_pk_mul_f32 v[{x + 2 * hf}:{x + 2 * hf + 1}], v[{x + 2 * hf}:{x + 2 * hf + 1}], v[{rc}:{rc + 1}] op_sel_hi:[1,0]")
                a(f"v_cvt_pk_bf16_f32 v{x}, v{x}, v{x + 1}\nv_cvt_pk_bf16_f32 v{x + 1}, v{x + 2}, v{x + 3}")
                if g < 2:
                    a(f"ds_write_b64 v{T + 7}, v[{x}:{x + 1}] offset:{40 * hh + 16 * g}")
                else:
                    a(f"s_mov_b32 exec_hi, 0\nds_write_b64 v{T + 6}, v[{x}:{x + 1}] offset:{40 * hh + 32}\ns_mov_b64 exec, -1")
        a("s_waitcnt lgkmcnt(0)")

    def o_copy_out(self, a):
        R, T = 40, 28
        a(f"""
        s_lshl_b32 s{sT0}, s{sI}, 7
        s_mul_i32 s{sT0}, s{sT0}, 1280
        s_mul_i32 s{sT1}, s{sP}, 80
        s_add_u32 s{sT0}, s{sT0}, s{sT1}
        s_add_u32 s{sT0}, s{sT0}, {WS_O}
        s_lshl_b32 s{sT1}, s{sLw}, 6
        v_add_u32 v{T}, s{sT1}, v0
        v_lshlrev_b32 v{T + 1}, 4, v{T}
        v_add_u32 v{T + 1}, {SCR}, v{T + 1}
        """)
        for k in range(3):
            a(f"ds_read_b128 v[{R + 4 * k}:{R + 4 * k + 3}], v{T + 1} offset:{k * 4096}")
        for k in range(3):
            a(f"""
            v_add_u32 v{T + 2}, {256 * k}, v{T}
            v_mul_u32_u24 v{T + 3}, 13108, v{T + 2}
            v_lshrrev_b32 v{T + 3}, 16, v{T + 3}
            v_mul_u32_u24 v{T + 4}, 5, v{T + 3}
            v_sub_u32 v{T + 4}, v{T + 2}, v{T + 4}
            v_mul_u32_u24 v{T + 3}, 1280, v{T + 3}
            v_lshl_add_u32 v{T + 3}, v{T + 4}, 4, v{T + 3}
            v_add_u32 v{T + 5 + k}, s{sT0}, v{T + 3}
            """)
        a(f"""
        v_mov_b32 v{T + 2}, {OOB}
        v_add_u32 v{T + 3}, 512, v{T}
        v_cmp_gt_u32 vcc, 640, v{T + 3}
        v_cndmask_b32 v{T + 7}, v{T + 2}, v{T + 7}, vcc
        s_waitcnt lgkmcnt(0)
        """)
        for k in range(3):
            a(f"buffer_store_dwordx4 v[{R + 4 * k}:{R + 4 * k + 3}], v{T + 5 + k}, s[{sWS}:{sWS + 3}], 0 offen sc1")

    def attention_fallback(self, a):
        lfb, ldone = self.fallback_labels
        M = 200
        a.label(lfb)
        self.a_addr_consts(a)
        self.zero(a, self.A_O, 32)
        a(f"""
        s_lshl_b32 s{sT0}, s{sI}, 2
        s_add_u32 s{sT0}, s{sT0}, s{sLw}
        s_cmp_ge_u32 s{sT0}, 8
        s_cselect_b32 s{sT0}, 8, s{sT0}
        s_sub_u32 s{sCnt}, 8, s{sT0}
        v_mov_b32 v{M}, {f32(-3e38)}
        v_mov_b32 v{M + 1}, {f32(-3e38)}
        """)
        self.a_skip(a, sCnt)
        lp, lnf, lnd = a.uid("Lfb"), a.uid("Lfbnf"), a.uid("Lfbnd")
        a.label(lp)
        for hh in range(2):
            for r in self.kr(hh, 0) + self.vr(hh, 0):
                a(r)
        for r in (self.A_KA, self.A_KA + 1, self.A_VA, self.A_VA + 1):
            a(f"v_add_u32 v{r}, {32 * KVROW}, v{r}")
        a("s_waitcnt lgkmcnt(0)")
        for hh in range(2):
            for m in self.a_qk(hh, None):
                a(m)
        a("s_nop 15")
        a(f"s_cmp_lg_u32 s{sCnt}, 0\ns_cbranch_scc1 {lnf}")
        for hh in range(2):
            for r in range(16):
                a(f"v_add_f32 v{self.A_S + 16 * hh + r}, v{self.A_S + 16 * hh + r}, v{self.A_MF + r}")
        a.label(lnf)
        a(f"s_cmp_lg_u32 s{sCnt}, 8\ns_cbranch_scc1 {lnd}")
        for hh in range(2):
            for r in range(16):
                a(f"v_add_f32 v{self.A_S + 16 * hh + r}, v{self.A_S + 16 * hh + r}, v{self.A_MD + r}")
        a.label(lnd)
        for hh in range(2):
            sreg, o = self.A_S + 16 * hh, self.A_O + 16 * hh
            x = M + 2
            a(f"v_max3_f32 v{x}, v{sreg}, v{sreg + 1}, v{M + hh}")
            for r in range(2, 16, 2):
                a(f"v_max3_f32 v{x}, v{sreg + r}, v{sreg + r + 1}, v{x}")
            a(f"""
            v_mov_b32 v{x + 1}, v{x}
            v_mov_b32 v{x + 2}, v{x}
            v_nop
            v_permlane32_swap_b32 v{x + 1}, v{x + 2}
            v_max_f32 v{x}, v{x + 1}, v{x + 2}
            v_sub_f32 v{x + 1}, v{M + hh}, v{x}
            v_exp_f32 v{x + 1}, v{x + 1}
            v_mov_b32 v{M + hh}, v{x}
            """)
            for r in range(16):
                a(f"v_sub_f32 v{sreg + r}, v{sreg + r}, v{x}")
            for r in range(16):
                a(f"v_mul_f32 v{o + r}, v{o + r}, v{x + 1}")
            self.a_softmax(a, hh)
            for m in self.a_pv(hh):
                a(m)
        a(f"s_add_u32 s{sCnt}, s{sCnt}, 1\ns_cmp_le_u32 s{sCnt}, 8\ns_cbranch_scc1 {lp}")
        a("s_nop 15")
        self.a_rowsum(a)
        a(f"s_branch {ldone}")

    def f_reads(self, j, wo):
        return [] if self.o.get("nofr") else super().f_reads(j, wo)

    def m_reads(self, ks):
        return [] if self.o.get("nomr") else super().m_reads(ks)

    def f_addr(self, wo):
        out = [f"v_add_u32 v{self.F_AA}, s{sSlot}, v{self.F_CA}"]
        if wo:
            out += [f"v_add_u32 v{self.F_AO + k}, s{sSlot}, v{self.F_CO + k}" for k in range(4)]
        else:
            out += [f"v_add_u32 v{self.F_AB + tn}, s{sSlot}, v{self.F_CB + tn}" for tn in range(2)]
        return out

    def f_stage(self, a, first, wo, next_wo, pre=None, hook=None):
        if pre:
            pre()
        self.cbar(a)
        if hook:
            hook()
        r0 = self.f_reads(0, wo)
        if first:
            for r in r0:
                a(r)
        else:
            self.spread(a, self.f_mfmas(1), r0)
        a("s_waitcnt lgkmcnt(0)")
        self.spread(a, self.czero(self.f_mfmas(0)) if first else self.f_mfmas(0), self.f_reads(1, wo))
        self.slot_next(a)
        a("s_waitcnt lgkmcnt(0)")
        for c in self.f_addr(next_wo):
            a(c)

    FE_X, FE_T = 208, 56

    def f_epilogue_pre(self, a):
        X, t, raw = self.FE_X, self.FE_T, 228
        B2 = self.V_B2
        a(f"""
        s_lshl_b32 s{sT1}, s{sWn}, 5
        s_lshl_b32 s{sT2}, s{sWm}, 4
        s_add_u32 s{sT1}, s{sT1}, s{sT2}
        v_and_b32 v{t}, 15, v0
        v_add_u32 v{t}, s{sT1}, v{t}
        v_mul_u32_u24 v{t + 1}, 160, v{t}
        v_lshrrev_b32 v1, 4, v0
        v_lshl_add_u32 v{t + 1}, v1, 3, v{t + 1}
        v_add_u32 v{t + 1}, {SCR}, v{t + 1}
        """)
        for tm in range(5):
            a(f"ds_read_b64 v[{raw + 2 * tm}:{raw + 2 * tm + 1}], v{t + 1} offset:{32 * tm}")
        a(f"""
        s_lshl_b32 s{sT0}, s{sSt}, 6
        v_add_u32 v{t}, s{sT0}, v{t}
        v_mul_u32_u24 v{t}, 1280, v{t}
        s_mul_i32 s{sT0}, s{sDt}, 160
        v_add_u32 v{t}, s{sT0}, v{t}
        v_lshl_add_u32 v{t}, v1, 3, v{t}
        v_lshlrev_b32 v{t + 1}, 4, v0
        s_xor_b32 s{sT0}, s{sLw}, 2
        s_mul_i32 s{sT0}, s{sT0}, 5120
        s_add_u32 s{sT0}, s{sT0}, {SLOT}
        v_add_u32 v{t + 1}, s{sT0}, v{t + 1}
        s_mov_b32 s{sT3}, 0xffff0000
        s_waitcnt vmcnt(0) lgkmcnt(0)
        v_lshlrev_b32 v238, 16, v{B2}
        """)
        for tm in range(5):
            x = X + 4 * tm
            a(f"""
            v_lshlrev_b32 v{x}, 16, v{raw + 2 * tm}
            v_and_b32 v{x + 1}, s{sT3}, v{raw + 2 * tm}
            v_lshlrev_b32 v{x + 2}, 16, v{raw + 2 * tm + 1}
            v_and_b32 v{x + 3}, s{sT3}, v{raw + 2 * tm + 1}
            """)
        for y in range(X, X + 20, 2):
            a(f"v_pk_add_f32 v[{y}:{y + 1}], v[{y}:{y + 1}], v[238:239] op_sel_hi:[1,0]")

    def f_epilogue(self, a, kh):
        R, X, t = 136, self.FE_X, self.FE_T
        for tm in range(5):
            a(f"ds_read_b128 v[{R + 4 * tm}:{R + 4 * tm + 3}], v{t + 1} offset:{tm * 1024}")
        for tm in range(5):
            k = self.F_ACC + 4 * (2 * tm + kh)
            for y in (0, 2):
                a(f"v_pk_add_f32 v[{k + y}:{k + y + 1}], v[{k + y}:{k + y + 1}], v[{X + 4 * tm + y}:{X + 4 * tm + y + 1}]")
        for tm in range(5):
            k, r = self.F_ACC + 4 * (2 * tm + kh), R + 4 * tm
            a(f"s_waitcnt lgkmcnt({4 - tm})")
            for y in (0, 2):
                a(f"v_pk_add_f32 v[{k + y}:{k + y + 1}], v[{k + y}:{k + y + 1}], v[{r + y}:{r + y + 1}]")
            a(f"v_cvt_pk_bf16_f32 v{k}, v{k}, v{k + 1}\nv_cvt_pk_bf16_f32 v{k + 1}, v{k + 2}, v{k + 3}")
            a(f"buffer_store_dwordx2 v[{k}:{k + 1}], v{t}, s[{sOUT}:{sOUT + 3}], 0 offen offset:{32 * tm} " + ("", "sc1", "nt", "sc1 nt")[self.o["outpol"]])

    def c_final(self, a):
        T = 224
        a(f"s_mov_b32 s{sSlot}, 0")
        for c in self.f_addr(False):
            a(c)

        def b2_load():
            a(f"""
            s_lshl_b32 s{sT0}, s{sSt}, 6
            s_lshl_b32 s{sT1}, s{sWn}, 5
            s_add_u32 s{sT0}, s{sT0}, s{sT1}
            s_lshl_b32 s{sT1}, s{sWm}, 4
            s_add_u32 s{sT0}, s{sT0}, s{sT1}
            v_and_b32 v{T}, 15, v0
            v_add_u32 v{T}, s{sT0}, v{T}
            v_lshlrev_b32 v{T}, 1, v{T}
            buffer_load_ushort v{self.V_B2}, v{T}, s[{sB2}:{sB2 + 3}], 0 offen
            """)
        self.f_stage(a, True, False, False, hook=b2_load)
        self.f_stage(a, False, False, False)
        self.f_stage(a, False, False, False)
        self.f_stage(a, False, False, False)
        self.mark(a)
        self.loop(a, 7, lambda: self.f_stage(a, False, False, False))
        self.f_stage(a, False, False, True)
        self.mark(a)
        self.loop(a, 2, lambda: self.f_stage(a, False, True, True))
        self.f_epilogue_pre(a)
        self.loop(a, 3, lambda: self.f_stage(a, False, True, True))
        self.f_tail(a)
        self.mark(a)
        self.by_scalar(a, sWm, lambda kh: self.f_reduce_write(a, kh))
        a("s_barrier")
        self.by_scalar(a, sWm, lambda kh: self.f_epilogue(a, kh))

    def strip_zero(self, fn, lo, hi):
        body = Asm()
        fn(body)
        return [it for it in body.items
                if not (it.mn == "v_mov_b32" and it.ops[0][0] == "v" and it.ops[1] == "0" and lo <= int(it.ops[0][1:]) < hi)]

    def consumer(self, a):
        if self.o["prio"]:
            a(f"s_setprio {self.o['prio']}")
        a("s_waitcnt lgkmcnt(0)")
        self.mark(a)
        for ps in range(self.ln_passes()):
            a(f"v_mov_b32 v{self.LN_H + 14 * ps + 12}, {OOB}\nv_mov_b32 v{self.LN_H + 14 * ps + 13}, {OOB}")
        lab = a.uid("Lnold")
        a(f"s_cmp_eq_u32 s{sLnOn}, 0\ns_cbranch_scc1 {lab}")
        self.ln_loads(a)
        a.label(lab)
        a(f"""
        v_mov_b32 v1, {SCR_CNT}
        v_mov_b32 v2, 0
        v_mov_b32 v3, 0
        ds_write_b64 v1, v[2:3]
        """)
        a.items += self.strip_zero(lambda b: B.Gen.m_consts(self, b), 64, 128)
        self.m_swap(a)
        a.items += self.strip_zero(lambda b: B.Gen.f_consts(self, b), 64, 128)
        self.a_addr_consts(a)
        a(f"s_mov_b32 s{sSlot}, 0")
        a.items += self.strip_zero(lambda b: B.Gen.q_consts(self, b), 64, 132)
        self.mark(a)
        lab = a.uid("Lnolc")
        a(f"s_cmp_eq_u32 s{sLnOn}, 0\ns_cbranch_scc1 {lab}")
        self.ln_compute(a)
        a.label(lab)
        a("s_waitcnt lgkmcnt(0)")
        self.mark(a)
        self.c_qkv(a)
        self.mark(a)
        self.c_mix1(a)
        self.mark(a)
        self.mark(a)
        self.attention(a)
        self.mark(a)
        self.c_final(a)
        self.mark(a)

    def split(self, name, consumer, loader):
        a = Asm()
        self.kidx = getattr(self, "kidx", 0) + 1
        a._uid = self.kidx * 1000
        self.cold_blocks = []
        self.prologue(a, name)
        self.diag_init(a)
        a(f"s_cmp_lt_u32 s{sWv}, 4\ns_cbranch_scc1 {name}_compute")
        loader(a)
        self.stamp(a, 0, bump=True)
        self.diag_dump(a, self.kidx - 1)
        a("s_endpgm")
        a.label(name + "_compute")
        self.stamp(a, 2, bump=False)
        consumer(a)
        self.stamp(a, 0, bump=True)
        self.diag_dump(a, self.kidx - 1)
        a("s_endpgm")
        for blk in self.cold_blocks:
            blk(a)
        self.attention_fallback(a)
        a.label(name + "_end")
        a("s_endpgm")
        return a.finish()

    def build(self):
        name = NAME + "_kernel"
        return B_kernel(name, self.split(name, self.consumer, self.loader))


def B_kernel(name, body):
    return f"""; out = x + Attn(LN(x)) Wo + Mixer(LN(LN(x))), bf16, S=2048 D=640 H=32 Dh=20 W=256 F=1536.  One persistent launch.
; @launch grid=(256,1,1) block=(512,1,1) lds={LDS_BYTES}
.amdgcn_target "amdgcn-amd-amdhsa--gfx950"
.text
.globl {name}
.p2align 8
.type {name},@function
{name}:
{body}{name}_code_end:
.set CODE_BYTES, {name}_code_end-{name}
.section .rodata,"a"
.p2align 6
.amdhsa_kernel {name}
  .amdhsa_next_free_vgpr 256
  .amdhsa_next_free_sgpr 102
  .amdhsa_accum_offset 256
  .amdhsa_group_segment_fixed_size 0
  .amdhsa_kernarg_size 88
  .amdhsa_user_sgpr_count 2
  .amdhsa_user_sgpr_kernarg_segment_ptr 1
  .amdhsa_system_sgpr_workgroup_id_x 1
.end_amdhsa_kernel
"""


if __name__ == "__main__":
    mode = sys.argv[1] if len(sys.argv) > 1 else "run"
    path = sys.argv[2] if len(sys.argv) > 2 else f"cdna_kernels/{NAME}.s"
    opts = {}
    for kv in sys.argv[3:]:
        k, val = kv.split("=")
        opts[k] = int(val)
    txt = Fused(diag=(mode == "diag"), opts=opts).build()
    open(path, "w").write(txt)
    print("wrote", path, len(txt), "bytes")
```

```python
import math
import sys

sys.path.insert(0, "tools")
from asmlib import Asm
from gen_base import *
import gen_base as B

OOB = 0x7ff00000
SPIN_MAX = 100000
FL_LN, FL_KV, FL_O, FL_G = 0x1000, 0x1400, 0x1800, 0x8000
SCR_CNT = SCR + 10752
SCR_CS = SCR + 10240
M_RED = 16384
GROW = 144
sPub, sT6 = 79, 85
sKcA, sKcB, sKt, sRq, sRm, sRf, sRw = 9, 10, 11, 12, 13, 14, 15
sBaseA, sBaseB = 16, 17
sLnOn, sLnIdx = 18, 19
sArr, sNon2 = 4, 5


class Fused(Gen):
    A_MF, A_MD, A_KA, A_VA = 2, 18, 34, 36
    F_CA, F_CB, F_CO = 38, 39, 41
    M_CA, M_CB = 45, 47
    V_ST, V_B1, V_B2, V_ARR, V_POLL = 48, 52, 53, 54, 56
    V_DUMMY = 228
    Q_ACC, Q_CS, Q_ONES, Q_BUF, Q_CA, Q_CB, Q_AA, Q_AB = 64, 128, 132, 136, 200, 202, 206, 208
    M_ACC, M_BUF, M_AA, M_AB = 64, 136, 196, 198
    A_Q, A_K, A_V, A_S, A_P, A_O, A_T = 64, 80, 96, 112, 144, 208, 192
    F_ACC, F_BUF, F_AA, F_AB, F_AO = 64, 136, 199, 200, 202

    def __init__(self, diag=False, opts=None):
        super().__init__(fused=True, diag=diag)
        self.o = dict(prefetch=0, tlb=0, lead=3, nt=0, gsleep=4, ldsc1=1, xmap=0, light=0, w1a=1024, rot=22, lngood=0, codepf=0, outpol=0, pfw1=1, pfw2=1, pfw0=1, gsolo=1, lsleep=1, prio=0, psleep=2, gprog=1, pbearly=1)
        self.o.update(opts or {})

    def stamp(self, a, k, bump=False):
        if not self.o["light"]:
            super().stamp(a, k, bump)

    def diag_dump(self, a, kidx):
        wg = self.o.get("dbgout")
        if wg is None:
            return super().diag_dump(a, kidx)
        lab = a.uid("Ldbg")
        a(f"""
        s_cmp_lg_u32 s{sWg}, {wg}
        s_cbranch_scc1 {lab}
        s_cmp_lg_u32 s{sWv}, 0
        s_cbranch_scc1 {lab}
        v_readlane_b32 s{sT0}, v{self.DV + 1}, 0
        v_lshlrev_b32 v1, 2, v0
        v_mov_b32 v3, {OOB}
        v_subrev_u32 v2, s{sT0}, v{self.DV + 1}
        v_cmp_gt_u32 vcc, 16, v0
        v_cndmask_b32 v1, v3, v1, vcc
        v_cmp_eq_u32 vcc, 0, v0
        v_cndmask_b32 v1, v1, v3, vcc
        buffer_store_dword v2, v1, s[{sDBG}:{sDBG + 3}], 0 offen
        """)
        a.label(lab)

    def mark(self, a):
        if self.diag and self.o["light"]:
            if self.o.get("rt"):
                a(f"s_memrealtime s[98:99]\ns_mov_b32 m0, s{self.sStg}\ns_waitcnt lgkmcnt(0)\nv_writelane_b32 v{self.DV + 1}, s98, m0\ns_add_u32 s{self.sStg}, s{self.sStg}, 1")
            else:
                B.Gen.stamp(self, a, 1, True)

    SRDS = ((sX, 0, 2048 * 1280), (sW, 8, 640 * 3840), (sWO, 16, 640 * 1280), (sW1, 32, 2048 * 3072),
            (sB1, 40, 1536 * 2), (sW2, 48, 1536 * 4096), (sB2, 56, 2048 * 2), (sOUT, 64, 2048 * 1280),
            (sDBG, 72, 256), (sWS, 80, WS_USED))

    def prologue(self, a, lab):
        a(f"s_cmp_ge_u32 s2, 256\ns_cbranch_scc1 {lab}_end")
        for srd, off, size in self.SRDS:
            a(f"s_load_dwordx2 s[{srd}:{srd + 1}], s[0:1], {off}")
        body = Asm()
        B.Gen.prologue(self, body, lab)
        items = body.items
        first = next(k for k, it in enumerate(items) if it.mn == "v_lshrrev_b32")
        last = next(k for k, it in enumerate(items) if it.mn == "s_waitcnt")
        a.items += items[first:last]
        for srd, off, size in self.SRDS:
            if srd == sWS and self.diag:
                size *= 2
            a(f"s_mov_b32 s{srd + 2}, {size}\ns_mov_b32 s{srd + 3}, 0x00020000")
        if self.o["gprog"]:
            a(f"""
            s_lshr_b32 s{sT0}, s{sWg}, 6
            s_lshr_b32 s{sT1}, s{sWg}, 1
            s_xor_b32 s{sT2}, s{sT1}, s{sT0}
            s_and_b32 s{sT2}, s{sT2}, 1
            s_mul_i32 s{sT2}, s{sT2}, 3
            s_lshr_b32 s{sT0}, s{sT0}, 1
            s_lshl_b32 s{sT0}, s{sT0}, 3
            s_lshr_b32 s{sT3}, s{sWg}, 3
            s_and_b32 s{sT3}, s{sT3}, 7
            s_add_u32 s{sT0}, s{sT0}, s{sT3}
            s_cmp_lt_u32 s{sT0}, 15
            s_cselect_b32 s{sM1On}, 1, 0
            s_cselect_b32 s{sT0}, s{sT0}, 0
            s_mul_i32 s{sT3}, s{sT0}, 52
            s_lshr_b32 s{sT3}, s{sT3}, 8
            s_mul_i32 s{sT4}, s{sT3}, 5
            s_sub_u32 s{sT4}, s{sT0}, s{sT4}
            s_and_b32 s{sT5}, s{sWg}, 1
            s_mul_i32 s{sDt1}, s{sT5}, 5
            s_add_u32 s{sDt1}, s{sDt1}, s{sT4}
            s_and_b32 s{sT1}, s{sT1}, 3
            s_mul_i32 s{sFt}, s{sT1}, 6
            s_add_u32 s{sFt}, s{sFt}, s{sT2}
            s_add_u32 s{sFt}, s{sFt}, s{sT3}
            """)
        if self.o["lngood"]:
            a(f"""
            s_lshr_b32 s{sT0}, s{sWg}, 6
            s_lshr_b32 s{sT1}, s{sWg}, 1
            s_xor_b32 s{sT1}, s{sT1}, s{sT0}
            s_and_b32 s{sT1}, s{sT1}, 1
            s_xor_b32 s{sLnOn}, s{sT1}, 1
            s_and_b32 s{sT1}, s{sWg}, 7
            s_lshl_b32 s{sLnIdx}, s{sT1}, 4
            s_lshr_b32 s{sT0}, s{sT0}, 1
            s_lshl_b32 s{sT0}, s{sT0}, 3
            s_add_u32 s{sLnIdx}, s{sLnIdx}, s{sT0}
            s_lshr_b32 s{sT0}, s{sWg}, 3
            s_and_b32 s{sT0}, s{sT0}, 7
            s_add_u32 s{sLnIdx}, s{sLnIdx}, s{sT0}
            """)
        else:
            a(f"s_mov_b32 s{sLnOn}, 1\ns_mov_b32 s{sLnIdx}, s{sWg}")
        self.rot_consts(a)
        if not self.o["xmap"]:
            return
        a(f"""
        s_and_b32 s{sT0}, s{sWg}, 7
        s_lshr_b32 s{sT1}, s{sWg}, 3
        s_lshl_b32 s{sSt}, s{sT0}, 2
        s_and_b32 s{sT2}, s{sT1}, 3
        s_add_u32 s{sSt}, s{sSt}, s{sT2}
        s_lshr_b32 s{sDt}, s{sT1}, 2
        s_cmp_lt_u32 s{sT1}, 30
        s_cselect_b32 s{sT2}, 0, 30
        s_sub_u32 s{sT1}, s{sT1}, s{sT2}
        s_mul_i32 s{sT2}, s{sT1}, 26
        s_lshr_b32 s{sT2}, s{sT2}, 8
        s_mul_i32 s{sT3}, s{sT2}, 10
        s_sub_u32 s{sDt1}, s{sT1}, s{sT3}
        s_mul_i32 s{sFt}, s{sT0}, 3
        s_add_u32 s{sFt}, s{sFt}, s{sT2}
        """)

    def smod(self, a, r, n, times):
        for _ in range(times):
            a(f"s_cmp_ge_u32 s{r}, {n}\ns_cselect_b32 s{sT5}, {n}, 0\ns_sub_u32 s{r}, s{r}, s{sT5}")

    def rot_consts(self, a):
        if not self.o["rot"]:
            for r in (sRq, sRm, sRf, sRw):
                a(f"s_mov_b32 s{r}, 0")
            return
        a(f"""
        s_lshr_b32 s{sT0}, s{sWg}, 3
        s_and_b32 s{sT1}, s{sT0}, 7
        s_lshr_b32 s{sT2}, s{sT0}, 3
        s_mul_i32 s{sT3}, s{sT2}, 3
        s_add_u32 s{sRq}, s{sT1}, s{sT3}
        s_mul_i32 s{sRf}, s{sT1}, 5
        s_add_u32 s{sRf}, s{sRf}, s{sT3}
        s_lshl_b32 s{sRw}, s{sT2}, 1
        s_add_u32 s{sRw}, s{sRw}, s{sT1}
        s_mul_i32 s{sRm}, s{sFt}, 3
        s_mul_i32 s{sT3}, s{sDt1}, 5
        s_add_u32 s{sRm}, s{sRm}, s{sT3}
        s_and_b32 s{sRm}, s{sRm}, 7
        """)
        self.smod(a, sRq, 10, 1)
        self.smod(a, sRf, 12, 3)
        self.smod(a, sRw, 5, 2)
        for bit, r in ((1, sRq), (2, sRm), (4, sRf), (8, sRw)):
            if not self.o["rot"] & bit:
                a(f"s_mov_b32 s{r}, 0")

    def wrap(self, a, kc, n, offs):
        a(f"s_add_u32 s{kc}, s{kc}, 1\ns_cmp_eq_u32 s{kc}, {n}\ns_cselect_b32 s{kc}, 0, s{kc}")
        for k, (reg, step) in enumerate(offs):
            a(f"s_cselect_b32 s{sT1 + k}, {n * step}, 0")
        for k, (reg, step) in enumerate(offs):
            a(f"s_sub_u32 s{reg}, s{reg}, s{sT1 + k}")

    def lead_order(self, a, n_chunks, period, jreg, offs):
        a(f"""
        s_and_b32 s{sT1}, s{sKt}, {period - 1}
        s_cmp_eq_u32 s{sT1}, s{jreg}
        s_cselect_b32 s{sT2}, 1, 0
        s_cmp_eq_u32 s{sKt}, {n_chunks - 1}
        s_cselect_b32 s{sT2}, 0, s{sT2}
        s_sub_u32 s{sT1}, s{sKt}, 1
        s_and_b32 s{sT1}, s{sT1}, {period - 1}
        s_cmp_eq_u32 s{sT1}, s{jreg}
        s_cselect_b32 s{sT3}, 1, 0
        s_cmp_eq_u32 s{sKt}, 0
        s_cselect_b32 s{sT3}, 0, s{sT3}
        s_add_u32 s{sT2}, s{sT2}, s{sKt}
        s_sub_u32 s{sT2}, s{sT2}, s{sT3}
        s_add_u32 s{sKt}, s{sKt}, 1
        """)
        for reg, base, step in offs:
            a(f"s_mul_i32 s{sT1}, s{sT2}, {step}\ns_add_u32 s{reg}, s{base}, s{sT1}")

    def q_init(self, a):
        super().q_init(a)
        if self.o["rot"] & 16:
            a(f"""
            s_mov_b32 s{sBaseA}, s{sOffA}
            s_mov_b32 s{sBaseB}, s{sOffB}
            s_mov_b32 s{sKt}, 0
            s_lshr_b32 s{sT0}, s{sWg}, 3
            s_lshr_b32 s{sT1}, s{sT0}, 3
            s_add_u32 s{sT0}, s{sT0}, s{sT1}
            s_and_b32 s{sRq}, s{sT0}, 3
            """)
            return
        a(f"""
        s_mov_b32 s{sKcA}, s{sRq}
        s_lshl_b32 s{sT0}, s{sRq}, 7
        s_add_u32 s{sOffA}, s{sOffA}, s{sT0}
        s_mul_i32 s{sT0}, s{sRq}, {64 * 3840}
        s_add_u32 s{sOffB}, s{sOffB}, s{sT0}
        """)

    def q_issue(self, a):
        if self.o["rot"] & 16:
            self.lead_order(a, 10, 4, sRq, [(sOffA, sBaseA, 128), (sOffB, sBaseB, 64 * 3840)])
            super().q_issue(a)
            return
        super().q_issue(a)
        self.wrap(a, sKcA, 10, [(sOffA, 128), (sOffB, 64 * 3840)])

    def m_init(self, a):
        super().m_init(a)
        a(f"""
        s_mov_b32 s{sKcA}, s{sRm}
        s_mov_b32 s{sKt}, 0
        s_mul_i32 s{sT0}, s{sRm}, {128 * 1280}
        s_add_u32 s{sOffA}, s{sOffA}, s{sT0}
        s_mul_i32 s{sT0}, s{sRm}, {128 * 3072}
        s_add_u32 s{sOffB}, s{sOffB}, s{sT0}
        """)

    def m_issue(self, a):
        super().m_issue(a)
        self.wrap(a, sKcA, 8, [(sOffA, 128 * 1280), (sOffB, 128 * 3072)])
        a(f"s_add_u32 s{sKt}, s{sKt}, 1\ns_cmp_eq_u32 s{sKt}, 8")
        a(f"""
        s_cselect_b32 s{sT1}, {8 * 128 * 1280}, 0
        s_cselect_b32 s{sT2}, {8 * 128 * 3072}, 0
        s_add_u32 s{sOffA}, s{sOffA}, s{sT1}
        s_add_u32 s{sOffB}, s{sOffB}, s{sT2}
        """)

    def f_init(self, a):
        B.Gen.f_init(self, a)
        if self.o["gprog"]:
            a(f"""
            s_mov_b32 s{sBaseA}, s{sOffA}
            s_mov_b32 s{sBaseB}, s{sOffB}
            s_mov_b32 s{sKcA}, 0
            s_mov_b32 s{sKcB}, 0
            s_lshr_b32 s{sT0}, s{sWg}, 3
            s_lshr_b32 s{sT1}, s{sT0}, 3
            s_add_u32 s{sT0}, s{sT0}, s{sT1}
            s_and_b32 s{sRf}, s{sT0}, 3
            """)
            return
        a(f"""
        s_mov_b32 s{sKcA}, s{sRf}
        s_mov_b32 s{sKcB}, s{sRf}
        s_mul_i32 s{sT0}, s{sRf}, {128 * 160}
        s_add_u32 s{sOffA}, s{sOffA}, s{sT0}
        s_mul_i32 s{sT0}, s{sRf}, {128 * 4096}
        s_add_u32 s{sOffB}, s{sOffB}, s{sT0}
        """)

    def f_chunk(self, a, kc, off, base, step):
        a(f"""
        s_add_u32 s{sT1}, s{kc}, s{sRf}
        s_and_b32 s{sT1}, s{sT1}, 3
        s_mul_i32 s{sT1}, s{sT1}, 3
        s_lshr_b32 s{sT2}, s{kc}, 2
        s_add_u32 s{sT1}, s{sT1}, s{sT2}
        s_mul_i32 s{sT1}, s{sT1}, {step}
        s_add_u32 s{off}, s{base}, s{sT1}
        s_add_u32 s{kc}, s{kc}, 1
        """)

    def f_issue_w2(self, a):
        if self.o["gprog"]:
            self.f_chunk(a, sKcB, sOffB, sBaseB, 128 * 4096)
            B.Gen.f_issue_w2(self, a)
            return
        B.Gen.f_issue_w2(self, a)
        self.wrap(a, sKcB, 12, [(sOffB, 128 * 4096)])

    def f_issue_g(self, a):
        if self.o["gprog"]:
            self.f_chunk(a, sKcA, sOffA, sBaseA, 128 * 160)
            B.Gen.f_issue_g(self, a)
            return
        B.Gen.f_issue_g(self, a)
        self.wrap(a, sKcA, 12, [(sOffA, 128 * 160)])

    def wo_init(self, a):
        super().wo_init(a)
        a(f"""
        s_mov_b32 s{sKcA}, s{sRw}
        s_mul_i32 s{sT0}, s{sRw}, {128 * 1280}
        s_add_u32 s{sOffA}, s{sOffA}, s{sT0}
        s_lshl_b32 s{sT0}, s{sRw}, 8
        s_add_u32 s{sOffB}, s{sOffB}, s{sT0}
        """)

    def wo_issue(self, a):
        super().wo_issue(a)
        self.wrap(a, sKcA, 5, [(sOffA, 128 * 1280), (sOffB, 256)])

    def only_w0(self, a, fn):
        lab = a.uid("Lw0")
        a(f"s_cmp_lg_u32 s{sLw}, 0\ns_cbranch_scc1 {lab}")
        fn()
        a.label(lab)

    def nonce_load(self, a):
        a(f"s_load_dword s{sNonce}, s[{sWS}:{sWS + 1}], {WS_EPOCH}")

    def nonce_make(self, a):
        a(f"""
        s_waitcnt lgkmcnt(0)
        s_mul_i32 s{sNonce}, s{sNonce}, 1664525
        s_add_u32 s{sNonce}, s{sNonce}, 1013904223
        """)

    def flag_set(self, a, off):
        a(f"s_atomic_swap s{sNonce}, s[{sWS}:{sWS + 1}], s{off}")

    def poll_issue(self, a, vaddr, n=1):
        r = self.LV_PR
        if n == 1:
            a(f"buffer_load_dword v{r}, v{vaddr}, s[{sWS}:{sWS + 3}], 0 offen sc1")
        else:
            a(f"buffer_load_dwordx4 v[{r}:{r + 3}], v{vaddr}, s[{sWS}:{sWS + 3}], 0 offen sc1")

    def poll_test(self, a, n):
        r = self.LV_PR
        a(f"v_cmp_eq_u32 s[{sT0}:{sT0 + 1}], s{sNonce}, v{r}")
        for k in range(1, n):
            a(f"v_cmp_eq_u32 s[{sT2}:{sT2 + 1}], s{sNonce}, v{r + k}")
            a(f"s_and_b64 s[{sT0}:{sT0 + 1}], s[{sT0}:{sT0 + 1}], s[{sT2}:{sT2 + 1}]")
        a(f"s_cmp_eq_u64 s[{sT0}:{sT0 + 1}], exec")

    def poll_check(self, a, vaddr, n=1, sleep=None):
        ok, sp = a.uid("Lpok"), a.uid("Lspin")
        sleep = self.o["psleep"] if sleep is None else sleep
        self.poll_test(a, n)
        a(f"s_cbranch_scc1 {ok}")
        self.spin(a, vaddr, n, ok, sp, sleep)
        a.label(ok)

    def spin(self, a, vaddr, n, ok, sp, sleep):
        a(f"s_mov_b32 s{sT6}, {SPIN_MAX}")
        a.label(sp)
        a(f"s_sleep {sleep}")
        self.poll_issue(a, vaddr, n)
        a("s_waitcnt vmcnt(0)")
        self.poll_test(a, n)
        a(f"s_cbranch_scc1 {ok}")
        a(f"s_sub_u32 s{sT6}, s{sT6}, 1\ns_cmp_lg_u32 s{sT6}, 0\ns_cbranch_scc1 {sp}")

    LV_PLA, LV_PKV, LV_PG, LV_PO, LV_PLB, LV_PR = 14, 15, 16, 17, 18, 24
    LV_P1, LV_P2, LV_DUMMY = 100, 103, 96

    def loader_poll_addrs(self, a):
        t0, t1, t2, t3 = 20, 21, 22, 23
        a(f"""
        v_lshrrev_b32 v{t0}, 4, v0
        v_mov_b32 v{t1}, s{sI}
        v_cmp_eq_u32 vcc, 3, v{t0}
        v_cndmask_b32 v{t0}, v{t0}, v{t1}, vcc
        v_lshlrev_b32 v{t0}, 6, v{t0}
        v_and_b32 v{t1}, 15, v0
        v_lshl_add_u32 v{t0}, v{t1}, 2, v{t0}
        v_add_u32 v{self.LV_PLA}, {FL_LN}, v{t0}
        v_and_b32 v{t0}, {31 if self.o["lngood"] else 63}, v0
        v_lshlrev_b32 v{t0}, 4, v{t0}
        v_add_u32 v{self.LV_PLB}, {FL_LN}, v{t0}
        v_min_u32 v{t0}, 2, v0
        v_sub_u32 v{t0}, s{sI}, v{t0}
        v_max_i32 v{t0}, 0, v{t0}
        s_lshl_b32 s{sT0}, s{sP}, 4
        v_add_u32 v{t0}, s{sT0}, v{t0}
        v_lshlrev_b32 v{t0}, 2, v{t0}
        v_add_u32 v{self.LV_PKV}, {FL_KV}, v{t0}
        v_and_b32 v{t0}, 15, v0
        s_lshr_b32 s{sT0}, s{sSt}, 1
        s_lshl_b32 s{sT0}, s{sT0}, 4
        v_add_u32 v{t0}, s{sT0}, v{t0}
        v_lshlrev_b32 v{t0}, 2, v{t0}
        v_add_u32 v{self.LV_PO}, {FL_O}, v{t0}
        v_min_u32 v{t0}, 47, v0
        v_mul_u32_u24 v{t1}, 2731, v{t0}
        v_lshrrev_b32 v{t1}, 16, v{t1}
        v_mul_u32_u24 v{t2}, 24, v{t1}
        v_sub_u32 v{t2}, v{t0}, v{t2}
        s_mul_i32 s{sT0}, s{sDt}, 80
        s_lshr_b32 s{sT0}, s{sT0}, 6
        v_add_u32 v{t1}, s{sT0}, v{t1}
        v_lshlrev_b32 v{t1}, 2, v{t1}
        v_lshl_add_u32 v{t1}, v{t2}, 6, v{t1}
        s_and_b32 s{sT0}, s{sWg}, 7
        s_mul_i32 s{sT0}, s{sT0}, 1536
        s_add_u32 s{sT0}, s{sT0}, {FL_G}
        v_add_u32 v{self.LV_PG}, s{sT0}, v{t1}
        v_and_b32 v{t1}, 15, v0
        v_lshrrev_b32 v{t2}, 2, v{t1}
        v_mul_u32_u24 v{t2}, 6, v{t2}
        v_and_b32 v{t3}, 1, v{t1}
        v_add_u32 v{t2}, v{t2}, v{t3}
        v_lshlrev_b32 v{t2}, 6, v{t2}
        v_bfe_u32 v{t3}, v{t1}, 1, 1
        s_mul_i32 s{sT1}, s{sDt}, 80
        s_lshr_b32 s{sT1}, s{sT1}, 6
        v_add_u32 v{t3}, s{sT1}, v{t3}
        v_lshl_add_u32 v{t2}, v{t3}, 2, v{t2}
        v_add_u32 v{self.LV_PLA}, s{sT0}, v{t2}
        s_cmp_eq_u32 s{sLw}, 0
        s_cselect_b32 s{sT0}, 0, {OOB}
        """)
        for r in (self.LV_PLA, self.LV_PLB, self.LV_PKV, self.LV_PO, self.LV_PG):
            a(f"v_add_u32 v{r}, s{sT0}, v{r}")

    def loader_prefetch_consts(self, a):
        t0, t1, t2 = 20, 21, 22
        for t in range(3):
            a(f"""
            v_add_u32 v{t0}, {64 * t}, v0
            v_mul_u32_u24 v{t1}, 2731, v{t0}
            v_lshrrev_b32 v{t1}, 16, v{t1}
            v_mul_u32_u24 v{t2}, 24, v{t1}
            v_sub_u32 v{t2}, v{t0}, v{t2}
            v_lshlrev_b32 v{t2}, 4, v{t2}
            v_mul_u32_u24 v{t1}, 3072, v{t1}
            v_add_u32 v{self.LV_P1 + t}, v{t1}, v{t2}
            """)
        a(f"""
        v_lshrrev_b32 v{t0}, 5, v0
        v_lshlrev_b32 v{t0}, 12, v{t0}
        v_and_b32 v{t1}, 31, v0
        v_lshl_add_u32 v{self.LV_P2}, v{t1}, 4, v{t0}
        """)

    def code_prefetch(self, a):
        if not self.o["codepf"]:
            return 0
        d = self.LV_DUMMY
        lab = a.uid("Lpc")
        a(f"s_getpc_b64 s[{sT2}:{sT2 + 1}]")
        a.label(lab)
        a(f"""
        s_lshr_b32 s{sT0}, s{sWg}, 3
        s_lshl_b32 s{sT0}, s{sT0}, 10
        s_lshl_b32 s{sT1}, s{sLw}, 15
        s_add_u32 s{sT0}, s{sT0}, s{sT1}
        v_lshl_add_u32 v20, v0, 4, s{sT0}
        s_sub_u32 s{sT2}, s{sT2}, {lab}-{NAME}_kernel
        s_subb_u32 s{sT2 + 1}, s{sT2 + 1}, 0
        v_min_u32 v20, CODE_BYTES-16, v20
        v_mov_b32 v21, s{sT2 + 1}
        v_add_co_u32 v20, vcc, s{sT2}, v20
        v_addc_co_u32 v21, vcc, 0, v21, vcc
        global_load_dwordx4 v[{d}:{d + 3}], v[20:21], off
        """)
        return 1

    def tlb_touch(self, a):
        if not self.o["tlb"]:
            return 0
        d = self.LV_DUMMY
        a(f"v_lshlrev_b32 v20, 21, v0")
        for srd in (sW1, sW2, sWS, sWO, sOUT):
            a(f"buffer_load_dword v{d}, v20, s[{srd}:{srd + 3}], 0 offen")
        return 5

    def pf_range(self, a, srd, start, nbytes):
        d = self.LV_DUMMY
        share = nbytes // 256
        per_wave = -(-share // 4096)
        a(f"""
        s_mul_i32 s{sT0}, s{sWg}, {share}
        s_mul_i32 s{sT1}, s{sLw}, {per_wave * 1024}
        s_add_u32 s{sT0}, s{sT0}, s{sT1}
        s_add_u32 s{sT0}, s{sT0}, {start}
        """)
        for k in range(per_wave):
            a(f"buffer_load_dwordx4 v[{d}:{d + 3}], v{self.LV_LIN}, s[{srd}:{srd + 3}], s{sT0} offen offset:{(k % 4) * 1024}")
            if k % 4 == 3:
                a(f"s_add_u32 s{sT0}, s{sT0}, 4096")
        return per_wave

    def pf_w1(self, a):
        if not self.o["prefetch"]:
            return 0
        d = self.LV_DUMMY
        a(f"""
        s_lshr_b32 s{sT0}, s{sWg}, 3
        s_lshl_b32 s{sT0}, s{sT0}, 6
        s_lshl_b32 s{sT1}, s{sLw}, 4
        s_add_u32 s{sT0}, s{sT0}, s{sT1}
        s_mul_i32 s{sT0}, s{sT0}, 3072
        s_and_b32 s{sT1}, s{sWg}, 7
        s_mul_i32 s{sT1}, s{sT1}, 384
        s_add_u32 s{sT0}, s{sT0}, s{sT1}
        """)
        for k in range(6):
            if k == 3:
                a(f"s_add_u32 s{sT0}, s{sT0}, {8 * 3072}")
            a(f"buffer_load_dwordx4 v[{d}:{d + 3}], v{self.LV_P1 + k % 3}, s[{sW1}:{sW1 + 3}], s{sT0} offen nt")
        return 6

    def pf_w2(self, a):
        if not self.o["prefetch"]:
            return 0
        d = self.LV_DUMMY
        a(f"""
        s_lshr_b32 s{sT0}, s{sWg}, 3
        s_mul_i32 s{sT0}, s{sT0}, 48
        s_mul_i32 s{sT1}, s{sLw}, 12
        s_add_u32 s{sT0}, s{sT0}, s{sT1}
        s_lshl_b32 s{sT0}, s{sT0}, 12
        s_and_b32 s{sT1}, s{sWg}, 7
        s_lshl_b32 s{sT1}, s{sT1}, 9
        s_add_u32 s{sT0}, s{sT0}, s{sT1}
        """)
        for k in range(6):
            a(f"buffer_load_dwordx4 v[{d}:{d + 3}], v{self.LV_P2}, s[{sW2}:{sW2 + 3}], s{sT0} offen nt")
            a(f"s_add_u32 s{sT0}, s{sT0}, 8192")
        return 6

    def dma(self, a, srd, voff, soff, add, lds_add, dep=False):
        if self.o.get("fakeh") and voff == self.LV_H:
            a(f"""
            s_add_u32 m0, s{sSW}, {lds_add}
            s_add_u32 s{sT0}, s{soff}, {add - WS_H}
            buffer_load_dwordx4 v{voff}, s[{sX}:{sX + 3}], s{sT0} offen lds
            """)
            return
        pol = ("sc1 " if self.o["ldsc1"] else "") if dep else ("nt " if (srd in (sW1, sW2) and self.o["nt"]) else "")
        a(f"""
        s_add_u32 m0, s{sSW}, {lds_add}
        s_add_u32 s{sT0}, s{soff}, {add}
        buffer_load_dwordx4 v{voff}, s[{srd}:{srd + 3}], s{sT0} offen {pol}lds
        """)

    def lds_spin(self, a, word, target):
        ok, sp = a.uid("Llok"), a.uid("Llspin")
        r = self.LV_PR
        a(f"v_mov_b32 v{r + 1}, {SCR_CNT + 4 * word}\ns_mov_b32 s{sT6}, {SPIN_MAX}")
        a.label(sp)
        a(f"""
        ds_read_b32 v{r}, v{r + 1}
        s_waitcnt lgkmcnt(0)
        v_readfirstlane_b32 s{sT0}, v{r}
        s_cmp_ge_u32 s{sT0}, {target}
        s_cbranch_scc1 {ok}
        s_sleep {self.o["lsleep"]}
        s_sub_u32 s{sT6}, s{sT6}, 1
        s_cmp_lg_u32 s{sT6}, 0
        s_cbranch_scc1 {sp}
        """)
        a.label(ok)

    LN_RAW, LN_F, LN_OFF = 64, 76, 100

    def ln_passes(self):
        return 2 if self.o["lngood"] else 1

    def ln_loads(self, a):
        off = self.LN_OFF
        n = self.ln_passes()
        a(f"""
        s_mul_i32 s{sT0}, s{sLnIdx}, {8 * n}
        s_mul_i32 s{sT1}, s{sLw}, {2 * n}
        s_add_u32 s{sT0}, s{sT0}, s{sT1}
        v_lshrrev_b32 v{off + 1}, 5, v0
        v_add_u32 v{off + 1}, s{sT0}, v{off + 1}
        v_and_b32 v{off + 2}, 31, v0
        v_lshlrev_b32 v{off + 2}, 3, v{off + 2}
        v_mul_u32_u24 v{off}, 1280, v{off + 1}
        v_add_u32 v{off}, v{off}, v{off + 2}
        """)
        for ps in range(n):
            raw = self.LN_RAW + 54 * ps
            for j in range(5):
                a(f"buffer_load_dwordx2 v[{raw + 2 * j}:{raw + 2 * j + 1}], v{off}, s[{sX}:{sX + 3}], 0 offen offset:{2560 * ps + 256 * j}")

    def ln_compute(self, a):
        for ps in range(self.ln_passes()):
            self.ln_pass(a, ps)

    def ln_pass(self, a, ps):
        raw, f, off = self.LN_RAW + 54 * ps, self.LN_F, self.LN_OFF
        acc, t, sc, keep = 104, 108, 112, 116
        P = lambda r: f"v[{r}:{r + 1}]"

        def unpack():
            for d in range(10):
                a(f"v_lshlrev_b32 v{f + 2 * d}, 16, v{raw + d}\nv_and_b32 v{f + 2 * d + 1}, s{sT3}, v{raw + d}")

        def stats():
            a(f"v_pk_add_f32 {P(acc)}, {P(f)}, {P(f + 2)}\nv_pk_mul_f32 {P(acc + 2)}, {P(f)}, {P(f)}")
            a(f"v_pk_fma_f32 {P(acc + 2)}, {P(f + 2)}, {P(f + 2)}, {P(acc + 2)}")
            for d in range(2, 10):
                a(f"v_pk_add_f32 {P(acc)}, {P(acc)}, {P(f + 2 * d)}")
                a(f"v_pk_fma_f32 {P(acc + 2)}, {P(f + 2 * d)}, {P(f + 2 * d)}, {P(acc + 2)}")
            a(f"v_add_f32 v{acc}, v{acc}, v{acc + 1}\nv_add_f32 v{acc + 2}, v{acc + 2}, v{acc + 3}\nv_nop")
            for r in (8, 4, 2, 1):
                a(f"v_add_f32_dpp v{acc}, v{acc}, v{acc} row_ror:{r} row_mask:0xf bank_mask:0xf")
                a(f"v_add_f32_dpp v{acc + 2}, v{acc + 2}, v{acc + 2} row_ror:{r} row_mask:0xf bank_mask:0xf")
                a("v_nop")
            a(f"""
            v_mov_b32 v{t}, v{acc}
            v_mov_b32 v{t + 1}, v{acc}
            v_mov_b32 v{t + 2}, v{acc + 2}
            v_mov_b32 v{t + 3}, v{acc + 2}
            v_permlane16_swap_b32 v{t}, v{t + 1}
            v_permlane16_swap_b32 v{t + 2}, v{t + 3}
            v_add_f32 v{acc}, v{t}, v{t + 1}
            v_add_f32 v{acc + 2}, v{t + 2}, v{t + 3}
            v_mul_f32 v{acc}, {f32(1 / 640)}, v{acc}
            v_mov_b32 v{t}, {f32(1e-5)}
            v_fmac_f32 v{t}, {f32(1 / 640)}, v{acc + 2}
            v_fma_f32 v{t}, -v{acc}, v{acc}, v{t}
            v_max_f32 v{t}, {f32(1e-5)}, v{t}
            v_rsq_f32 v{sc}, v{t}
            v_mul_f32 v{sc + 1}, v{acc}, v{sc}
            """)

        def scale_pack(dst):
            for d in range(10):
                a(f"v_pk_fma_f32 {P(f + 2 * d)}, {P(f + 2 * d)}, {P(sc)}, {P(sc)} op_sel:[0,0,1] op_sel_hi:[1,0,1] neg_lo:[0,0,1] neg_hi:[0,0,1]")
            for d in range(10):
                a(f"v_cvt_pk_bf16_f32 v{dst + d}, v{f + 2 * d}, v{f + 2 * d + 1}")

        a(f"s_mov_b32 s{sT3}, 0xffff0000\ns_waitcnt vmcnt({5 * (self.ln_passes() - 1 - ps)})")
        unpack()
        stats()
        H = self.LN_H + 14 * ps
        a(f"v_mov_b32 v{H + 10}, v{acc}\nv_mov_b32 v{H + 11}, v{sc}")
        scale_pack(raw)
        unpack()
        stats()
        scale_pack(H)
        a(f"""
        v_add_u32 v{H + 12}, {WS_H + 2560 * ps}, v{off}
        v_lshlrev_b32 v{off + 4}, 3, v{off + 1}
        v_add_u32 v{off + 4}, {WS_STATS + 16 * ps}, v{off + 4}
        v_and_b32 v{off + 2}, 31, v0
        v_mov_b32 v{off + 3}, {OOB}
        v_cmp_eq_u32 vcc, 0, v{off + 2}
        v_cndmask_b32 v{H + 13}, v{off + 3}, v{off + 4}, vcc
        """)

    LN_H = 212

    def ln_stores(self, a):
        lab = a.uid("Lnoln")
        a(f"s_cmp_eq_u32 s{sLnOn}, 0\ns_cbranch_scc1 {lab}")
        for ps in range(self.ln_passes()):
            H = self.LN_H + 14 * ps
            for j in range(5):
                a(f"buffer_store_dwordx2 v[{H + 2 * j}:{H + 2 * j + 1}], v{H + 12}, s[{sWS}:{sWS + 3}], 0 offen offset:{256 * j} sc1")
            a(f"buffer_store_dwordx2 v[{H + 10}:{H + 11}], v{H + 13}, s[{sWS}:{sWS + 3}], 0 offen sc1")
        a.label(lab)

    def loader_consts_first(self, a):
        X, W, LIN = self.LV_X, self.LV_W, self.LV_LIN
        t0, t1, t2, t3 = 20, 21, 22, 23
        a(f"""
        v_lshrrev_b32 v{t0}, 3, v0
        v_and_b32 v{t1}, 7, v0
        v_lshrrev_b32 v{t2}, 1, v{t0}
        s_and_b32 s{sT0}, s{sLw}, 1
        s_lshl_b32 s{sT0}, s{sT0}, 2
        v_or_b32 v{t3}, s{sT0}, v{t2}
        v_xor_b32 v{t3}, v{t3}, v{t1}
        v_lshlrev_b32 v{t3}, 4, v{t3}
        v_mul_u32_u24 v{X}, 1280, v{t0}
        v_add_u32 v{X}, v{X}, v{t3}
        v_lshlrev_b32 v{LIN}, 4, v0
        v_lshrrev_b32 v{t0}, 4, v0
        v_and_b32 v{t1}, 15, v0
        v_lshlrev_b32 v{t2}, 2, v{t0}
        v_xor_b32 v{t2}, v{t2}, v{t1}
        v_min_u32 v{t2}, 14, v{t2}
        v_mul_u32_u24 v{t3}, 52, v{t2}
        v_lshrrev_b32 v{t3}, 8, v{t3}
        v_mul_u32_u24 v{W}, 5, v{t3}
        v_sub_u32 v{W}, v{t2}, v{W}
        v_lshlrev_b32 v{W}, 4, v{W}
        v_mul_u32_u24 v{t3}, 1280, v{t3}
        v_add_u32 v{W}, v{W}, v{t3}
        v_mul_u32_u24 v{t3}, 3840, v{t0}
        v_add_u32 v{W}, v{W}, v{t3}
        """)

    def fake_w(self, a):
        if not self.o.get("fakew"):
            return
        W = self.LV_W
        a(f"""
        v_lshrrev_b32 v20, 4, v0
        v_and_b32 v21, 15, v0
        v_lshlrev_b32 v22, 2, v20
        v_xor_b32 v22, v22, v21
        v_lshlrev_b32 v22, 4, v22
        v_mul_u32_u24 v{W}, 3840, v20
        v_add_u32 v{W}, v{W}, v22
        s_min_u32 s{sT0}, s{sP}, 14
        s_mul_i32 s{sT0}, s{sT0}, 256
        s_mul_i32 s{sT1}, s{sP}, 80
        s_sub_u32 s{sT0}, s{sT0}, s{sT1}
        v_add_u32 v{W}, s{sT0}, v{W}
        """)

    def xt_issue(self, a):
        a(f"""
        s_lshl_b32 s{sT1}, s{sSt}, 6
        s_lshr_b32 s{sT2}, s{sLw}, 1
        s_lshl_b32 s{sT3}, s{sT2}, 5
        s_add_u32 s{sT1}, s{sT1}, s{sT3}
        s_mul_i32 s{sT1}, s{sT1}, 1280
        s_mul_i32 s{sT3}, s{sDt}, 160
        s_add_u32 s{sT1}, s{sT1}, s{sT3}
        s_mul_i32 s{sT2}, s{sT2}, 5120
        s_add_u32 s{sT2}, s{sT2}, {SCR}
        s_and_b32 s{sT3}, s{sLw}, 1
        """)

        def path(par):
            for t in ((0, 1, 2) if par == 0 else (3, 4, 4)):
                a(f"""
                s_add_u32 m0, s{sT2}, {t * 1024}
                s_nop 0
                buffer_load_dwordx4 v{self.LV_WO + t}, s[{sX}:{sX + 3}], s{sT1} offen lds
                """)
        self.by_scalar(a, sT3, path)

    def loader(self, a):
        W = lambda n: self.wait_bar(a, n)

        def Wchk(n, chk):
            self.stamp(a, 0)
            a(f"s_waitcnt vmcnt({n})")
            self.only_w0(a, chk)
            self.stamp(a, 1)
            a("s_barrier")
            self.stamp(a, 2, bump=True)
        self.loader_consts_first(a)
        self.fake_w(a)
        a(f"s_mov_b32 s{sSlot}, 0")
        self.q_init(a)
        a("s_waitcnt lgkmcnt(0)")
        self.mark(a)
        self.q_issue(a)
        nT = self.tlb_touch(a) + self.code_prefetch(a)
        self.nonce_load(a)
        self.loader_consts(a)
        self.fake_w(a)
        self.loader_poll_addrs(a)
        self.nonce_make(a)
        lead = self.o["lead"]
        self.q_issue(a)
        if lead == 3:
            self.q_issue(a)
        self.mark(a)
        L = 8 * (lead - 1)
        n0 = self.pf_range(a, sW1, 0, 1024 * 3072) if self.o["pfw0"] else 0
        W(L + n0 + (0 if lead == 3 else nT)); self.q_issue(a)
        self.mark(a)
        W(L + n0); self.q_issue(a)
        W(L + (n0 if lead == 3 else 0))

        def ln_done():
            skip = a.uid("Llnoff")
            a(f"s_cmp_eq_u32 s{sLnOn}, 0\ns_cbranch_scc1 {skip}")
            a(f"s_lshl_b32 s{sT4}, s{sLnIdx}, 2\ns_add_u32 s{sT4}, s{sT4}, {FL_LN}")
            self.flag_set(a, sT4)
            a.label(skip)
            a(f"s_mov_b32 s{sArr}, 1\ns_atomic_add s{sArr}, s[{sDBG}:{sDBG + 1}], 0x0 glc")
        self.only_w0(a, ln_done)
        self.q_issue(a)
        W(L); self.q_issue(a)
        W(L); self.q_issue(a)
        W(L); self.q_issue(a)
        W(L)
        self.poll_issue(a, self.LV_PLB, 4)
        chk = lambda: self.poll_check(a, self.LV_PLB, 4)
        if lead == 2:
            self.q_issue(a)
            W(9)
            self.q_issue(a)
            Wchk(8, chk)
            self.m_init(a)
            self.m_issue(a)
            W(8); self.m_issue(a)
            self.m_issue(a)
        else:
            self.q_issue(a)
            W(17)
            Wchk(8, chk)
            self.m_init(a)
            self.m_issue(a)
            W(8); self.m_issue(a)
            self.m_issue(a)
        self.mark(a)
        n1b = self.pf_range(a, sW1, 1024 * 3072, 1024 * 3072) if self.o["pfw1"] else 0
        if self.o.get("touch"):
            n1b += self.pf_range(a, sWS, WS_GT, 8 * 1536 * 160)
            n1b += self.pf_range(a, sWS, WS_O, 2048 * 1280)
        a("s_barrier")
        a("s_barrier")
        self.kv_copy_out(a)

        def ln_all():
            lab = a.uid("Lep")
            a(f"s_waitcnt lgkmcnt(0)\ns_cmp_lg_u32 s{sArr}, 255\ns_cbranch_scc1 {lab}")
            a(f"s_mov_b32 s{sT4}, {WS_EPOCH}")
            self.flag_set(a, sT4)
            a.label(lab)
        Wchk(22 + n1b, ln_all)
        self.m_issue(a)
        W(22 + n1b); self.m_issue(a)
        W(16)

        def kv_done():
            a(f"""
            s_lshl_b32 s{sT4}, s{sP}, 4
            s_add_u32 s{sT4}, s{sT4}, s{sI}
            s_lshl_b32 s{sT4}, s{sT4}, 2
            s_add_u32 s{sT4}, s{sT4}, {FL_KV}
            """)
            self.flag_set(a, sT4)
        self.only_w0(a, kv_done)
        self.m_issue(a)
        self.loop(a, 7, lambda: (W(16), self.m_issue(a)))
        W(16)
        self.poll_issue(a, self.LV_PKV)
        self.m_issue(a)
        W(17); self.m_issue(a)
        W(17); self.m_issue(a)
        Wchk(16, lambda: self.poll_check(a, self.LV_PKV))
        self.kv_init(a)
        self.kv_issue(a, 0, 9)
        W(17)
        self.kv_issue(a, 9, 16)
        W(16)
        self.f_init(a)
        a(f"s_mov_b32 s{sSlot}, 0")
        a("s_barrier")
        W(0)
        self.mark(a)
        solo = self.o["gsolo"]
        if not solo:
            self.g_copy_out(a)
            a(f"""
            s_waitcnt vmcnt(0)
            v_mov_b32 v20, {SCR_CNT}
            v_mov_b32 v21, 1
            s_mov_b32 exec_hi, 0
            s_mov_b32 exec_lo, 1
            ds_add_u32 v20, v21
            s_mov_b64 exec, -1
            """)
        self.mark(a)

        def g_pub():
            if solo:
                self.g_copy_out_solo(a)
                a(f"v_mov_b32 v20, {SCR_CNT}\nv_mov_b32 v21, 4\nds_write_b32 v20, v21\ns_waitcnt vmcnt(0)")
            else:
                self.lds_spin(a, 0, 4)
            skip = a.uid("Lgidle")
            a(f"s_cmp_eq_u32 s{sM1On}, 0\ns_cbranch_scc1 {skip}")
            a(f"""
            s_lshl_b32 s{sT4}, s{sFt}, 6
            s_lshl_b32 s{sT5}, s{sDt1}, 2
            s_add_u32 s{sT4}, s{sT4}, s{sT5}
            s_add_u32 s{sT4}, s{sT4}, {FL_G}
            """)
            for r in range(8):
                self.flag_set(a, sT4)
                if r < 7:
                    a(f"s_add_u32 s{sT4}, s{sT4}, 1536")
            a.label(skip)
        self.only_w0(a, g_pub)
        self.lds_spin(a, 0, 4)
        self.mark(a)
        if self.o["pfw2"]:
            self.pf_range(a, sW2, 0, 1536 * 4096)
            self.pf_range(a, sWO, 0, 640 * 1280)
        self.slot_begin(a)
        self.f_issue_w2(a)
        a(f"s_add_u32 s{sSW}, s{sSW}, {SLOT}")
        self.f_issue_w2(a)

        def g_sync():
            ok, sp = a.uid("Lgok"), a.uid("Lgspin")
            self.spin(a, self.LV_PLA if self.o["gprog"] else self.LV_PG, 1, ok, sp, self.o["gsleep"])
            a.label(ok)
            a(f"v_mov_b32 v20, {SCR_CNT + 4}\nv_mov_b32 v21, 1\nds_write_b32 v20, v21")
        self.mark(a)
        self.only_w0(a, g_sync)
        self.mark(a)
        self.lds_spin(a, 1, 1)
        self.slot_begin(a)
        self.f_issue_g(a)
        a(f"s_add_u32 s{sSW}, s{sSW}, {SLOT}")
        self.f_issue_g(a)
        a(f"s_mov_b32 s{sSlot}, {2 * SLOT}")
        if self.o["gprog"] and self.o["pbearly"]:
            self.poll_issue(a, self.LV_PG)
        W(6 if self.o["gprog"] and self.o["pbearly"] else 5)
        self.mark(a)
        if self.o["gprog"] and not self.o["pbearly"]:
            self.poll_issue(a, self.LV_PG)
        self.f_issue(a); self.f_issue(a)
        self.o_copy_out(a)
        if self.o["gprog"]:
            Wchk(21, lambda: self.poll_check(a, self.LV_PG))
        else:
            W(21)
        self.f_issue(a)
        W(21); self.f_issue(a)
        W(18)

        def o_done():
            a(f"""
            s_lshl_b32 s{sT4}, s{sI}, 4
            s_add_u32 s{sT4}, s{sT4}, s{sP}
            s_lshl_b32 s{sT4}, s{sT4}, 2
            s_add_u32 s{sT4}, s{sT4}, {FL_O}
            """)
            self.flag_set(a, sT4)
        self.only_w0(a, o_done)
        self.f_issue(a)
        self.xt_issue(a)
        W(21); self.f_issue(a)
        W(21); self.f_issue(a)
        W(21)
        self.poll_issue(a, self.LV_PO)
        self.f_issue(a)
        W(19); self.f_issue(a)
        W(19); self.f_issue(a)
        Wchk(18, lambda: self.poll_check(a, self.LV_PO))
        self.wo_init(a)
        self.wo_issue(a)
        self.loop(a, 4, lambda: (W(18), self.wo_issue(a)))
        W(18); W(9); W(0)
        a("s_barrier")

    def m_consts(self, a):
        B.Gen.m_consts(self, a)

    def m_swap(self, a):
        lab = a.uid("Lmsw")
        a(f"s_cmp_eq_u32 s{sWm}, 0\ns_cbranch_scc1 {lab}")
        a(f"v_mov_b32 v1, v{self.M_CA}\nv_mov_b32 v{self.M_CA}, v{self.M_CA + 1}\nv_mov_b32 v{self.M_CA + 1}, v1")
        a.label(lab)

    def zero(self, a, r0, n):
        for r in reversed(range(r0, r0 + n)):
            a(f"v_mov_b32 v{r}, 0")

    def a_consts(self, a, zero_o=True):
        super().a_consts(a)

    def q_reads(self, ks, b=None):
        base = self.Q_BUF + 16 * ks
        out = []
        for tm in range(2):
            for rd in range(2):
                out.append(f"ds_read_b64_tr_b16 v[{base + 4 * tm + 2 * rd}:{base + 4 * tm + 2 * rd + 1}], v{self.Q_AA + tm} offset:{(16 * ks + 4 * rd) * 256}")
        for tn in range(2):
            out.append(f"ds_read_b128 v[{base + 8 + 4 * tn}:{base + 11 + 4 * tn}], v{self.Q_AB + ks} offset:{tn * 4096}")
        return out

    @staticmethod
    def czero(mf):
        return [m.rsplit(",", 1)[0] + ", 0" for m in mf]

    def q_group(self, ks, wn):
        base = self.Q_BUF + 16 * ks
        cs, on = self.Q_CS, self.Q_ONES
        return self.q_mfmas(ks) + [f"v_mfma_f32_16x16x32_bf16 v[{cs}:{cs + 3}], v[{base + 4 * wn}:{base + 4 * wn + 3}], v[{on}:{on + 3}], v[{cs}:{cs + 3}]"]

    def q_addr(self):
        return ([f"v_add_u32 v{self.Q_AA + tm}, s{sSlot}, v{self.Q_CA + tm}" for tm in range(2)] +
                [f"v_add_u32 v{self.Q_AB + ks}, s{sSlot}, v{self.Q_CB + ks}" for ks in range(4)])

    def q_stage(self, a, wn, first, hook=None, pre=None):
        if pre:
            pre()
        self.cbar(a)
        if hook:
            hook()
        r01 = self.q_reads(0) + self.q_reads(1)
        if first:
            for r in r01:
                a(r)
        else:
            self.spread(a, self.q_group(3, wn), r01)
        a("s_waitcnt lgkmcnt(6)")
        g0 = self.q_group(0, wn)
        self.spread(a, self.czero(g0) if first else g0, self.q_reads(2))
        a("s_waitcnt lgkmcnt(6)")
        self.spread(a, self.q_group(1, wn), self.q_reads(3))
        self.slot_next(a)
        a("s_waitcnt lgkmcnt(6)")
        g2 = self.q_group(2, wn)
        self.spread(a, g2[4:] + g2[:4], self.q_addr())
        a("s_waitcnt lgkmcnt(0)")
        if self.o.get("qmarks"):
            self.mark(a)

    @staticmethod
    def spread(a, mf, other):
        n = len(mf)
        k = 0
        for i, m in enumerate(mf):
            a(m)
            upto = -(-(len(other) * (i + 1)) // n)
            for r in other[k:upto]:
                a(r)
            k = upto

    QE_C, QE_AB, QE_T = 136, 168, 176

    def q_epilogue_pre(self, a):
        AB, T = self.QE_AB, self.QE_T + 2
        ST = self.V_ST
        a(f"""
        v_lshrrev_b32 v{T}, 5, v0
        v_lshlrev_b32 v{T + 1}, 4, v{T}
        s_lshl_b32 s{sT0}, s{sWm}, 8
        s_add_u32 s{sT0}, s{sT0}, {SCR_CS}
        v_add_u32 v{T + 1}, s{sT0}, v{T + 1}
        s_lshl_b32 s{sT1}, s{sWn}, 6
        v_and_b32 v{T + 2}, 31, v0
        v_add_u32 v{T + 2}, s{sT1}, v{T + 2}
        v_lshlrev_b32 v{T}, 3, v{T}
        v_mul_u32_u24 v{T + 3}, 80, v{T + 2}
        v_add_u32 v{T + 3}, v{T + 3}, v{T}
        v_add_u32 v{T + 3}, {SCR}, v{T + 3}
        v_mul_u32_u24 v{T + 4}, {KVROW}, v{T + 2}
        v_add_u32 v{T + 4}, v{T + 4}, v{T}
        v_add_u32 v{T + 4}, {SLOT}, v{T + 4}
        s_waitcnt vmcnt(0)
        """)
        for tn in range(2):
            m_, r_ = ST + 2 * tn, ST + 2 * tn + 1
            o = AB + 4 * tn
            a(f"""
            v_mov_b32 v{o}, v{r_}
            v_mul_f32 v{o + 1}, v{m_}, v{r_}
            v_mul_f32 v{o + 2}, {f32(QSCALE)}, v{r_}
            v_mul_f32 v{o + 3}, {f32(QSCALE)}, v{o + 1}
            """)

    def q_epilogue(self, a, wm):
        C, AB, T = self.QE_C, self.QE_AB, self.QE_T + 2
        for tm in range(2):
            for q in range(4):
                r = C + 16 * tm + 4 * q
                a(f"ds_read_b128 v[{r}:{r + 3}], v{T + 1} offset:{tm * 128 + q * 32}")
        for tn in range(2):
            for tm in range(2):
                acc = self.Q_ACC + 16 * (2 * tm + tn)
                for q in range(4):
                    Q0 = 16 * wm + 8 * tm + 2 * q
                    if Q0 == 30:
                        continue
                    o = AB + 4 * tn + (2 if Q0 < 10 else 0)
                    for y in (acc + 4 * q, acc + 4 * q + 2):
                        a(f"v_pk_mul_f32 v[{y}:{y + 1}], v[{y}:{y + 1}], v[{o}:{o + 1}] op_sel_hi:[1,0]")
        a("s_waitcnt lgkmcnt(0)")
        for tn in range(2):
            for tm in range(2):
                acc = self.Q_ACC + 16 * (2 * tm + tn)
                quads = []
                for q in range(4):
                    Q0 = 16 * wm + 8 * tm + 2 * q
                    quads.append((Q0, AB + 4 * tn + (2 if Q0 < 10 else 0), C + 16 * tm + 4 * q, acc + 4 * q))
                live = [t for t in quads if t[0] != 30]
                for Q0, o, c, x in live:
                    for hf in range(2):
                        y = x + 2 * hf
                        a(f"v_pk_fma_f32 v[{y}:{y + 1}], v[{c + 2 * hf}:{c + 2 * hf + 1}], v[{o}:{o + 1}], v[{y}:{y + 1}] op_sel:[0,1,0] op_sel_hi:[1,1,1] neg_lo:[1,0,0] neg_hi:[1,0,0]")
                for Q0, o, c, x in live:
                    a(f"v_cvt_pk_bf16_f32 v{x}, v{x}, v{x + 1}")
                for Q0, o, c, x in live:
                    a(f"v_cvt_pk_bf16_f32 v{x + 1}, v{x + 2}, v{x + 3}")
                for Q0, o, c, x in quads:
                    if Q0 == 30:
                        a(f"v_mov_b32 v{x}, 0x00003f80\nv_mov_b32 v{x + 1}, 0")
                        a(f"""
                        s_mov_b32 exec_hi, 0
                        ds_write_b64 v{T + 4}, v[{x}:{x + 1}] offset:{tn * 32 * KVROW + 160}
                        s_mov_b64 exec, -1
                        """)
                    elif Q0 < 10:
                        a(f"ds_write_b64 v{T + 3}, v[{x}:{x + 1}] offset:{tn * 32 * 80 + Q0 * 8}")
                    else:
                        a(f"ds_write_b64 v{T + 4}, v[{x}:{x + 1}] offset:{tn * 32 * KVROW + (Q0 - 10) * 8}")
        a("s_waitcnt lgkmcnt(0)")

    def kv_copy_out(self, a):
        R, T = 32, 28
        a(f"""
        v_lshlrev_b32 v{T}, 4, v0
        s_lshl_b32 s{sT0}, s{sLw}, 10
        v_add_u32 v{T}, s{sT0}, v{T}
        v_add_u32 v{T + 1}, {SLOT}, v{T}
        s_lshl_b32 s{sT1}, s{sP}, 11
        s_lshl_b32 s{sT2}, s{sI}, 7
        s_add_u32 s{sT1}, s{sT1}, s{sT2}
        s_mul_i32 s{sT1}, s{sT1}, {KVROW}
        s_add_u32 s{sT1}, s{sT1}, {WS_KV}
        v_add_u32 v{T + 2}, s{sT1}, v{T}
        s_cmp_eq_u32 s{sLw}, 0
        s_cselect_b32 s{sT2}, 0, {OOB}
        v_add_u32 v{T + 3}, s{sT2}, v{T + 2}
        """)
        for k in range(6):
            a(f"ds_read_b128 v[{R + 4 * k}:{R + 4 * k + 3}], v{T + 1} offset:{k * 4096}")
        for k in range(6):
            a(f"s_waitcnt lgkmcnt({5 - k})")
            a(f"s_mov_b32 s{sT0}, {k * 4096}")
            a(f"buffer_store_dwordx4 v[{R + 4 * k}:{R + 4 * k + 3}], v{T + (3 if k == 5 else 2)}, s[{sWS}:{sWS + 3}], s{sT0} offen sc1")

    def q_csum_write(self, a):
        t0, t1 = 176, 177
        cs = self.Q_CS
        a(f"""
        v_and_b32 v{t0}, 1, v0
        v_lshlrev_b32 v{t0}, 6, v{t0}
        v_lshrrev_b32 v{t1}, 4, v0
        v_lshl_add_u32 v{t0}, v{t1}, 4, v{t0}
        s_lshl_b32 s{sT0}, s{sWm}, 8
        s_lshl_b32 s{sT1}, s{sWn}, 7
        s_add_u32 s{sT0}, s{sT0}, s{sT1}
        s_add_u32 s{sT0}, s{sT0}, {SCR_CS}
        v_add_u32 v{t0}, s{sT0}, v{t0}
        v_and_b32 v{t1}, 14, v0
        v_cmp_eq_u32 vcc, 0, v{t1}
        s_and_saveexec_b64 s[{sEx}:{sEx + 1}], vcc
        ds_write_b128 v{t0}, v[{cs}:{cs + 3}]
        s_mov_b64 exec, s[{sEx}:{sEx + 1}]
        s_waitcnt lgkmcnt(0)
        """)

    def c_qkv(self, a):
        T = 212
        for c in self.q_addr():
            a(c)

        def stats():
            ST = self.V_ST
            a(f"""
            s_lshl_b32 s{sT0}, s{sI}, 7
            s_lshl_b32 s{sT1}, s{sWn}, 6
            s_add_u32 s{sT0}, s{sT0}, s{sT1}
            v_and_b32 v{T + 1}, 31, v0
            v_add_u32 v{T + 1}, s{sT0}, v{T + 1}
            v_lshlrev_b32 v{T + 1}, 3, v{T + 1}
            v_add_u32 v{T + 1}, {WS_STATS}, v{T + 1}
            buffer_load_dwordx2 v[{ST}:{ST + 1}], v{T + 1}, s[{sWS}:{sWS + 3}], 0 offen sc1
            buffer_load_dwordx2 v[{ST + 2}:{ST + 3}], v{T + 1}, s[{sWS}:{sWS + 3}], 0 offen offset:256 sc1
            """)

        def run(wn):
            self.q_stage(a, wn, True, hook=lambda: self.ln_stores(a))
            self.mark(a)
            self.q_stage(a, wn, False)
            self.q_stage(a, wn, False, pre=lambda: a("s_waitcnt vmcnt(0)"))
            self.loop(a, 5, lambda: self.q_stage(a, wn, False))
            self.q_stage(a, wn, False, hook=stats)
            self.q_stage(a, wn, False)
            g3 = self.q_group(3, wn)
            for m in g3[4:] + g3[:4]:
                a(m)
        self.by_scalar(a, sWn, run)
        self.mark(a)
        self.q_epilogue_pre(a)
        self.q_csum_write(a)
        a("s_barrier")
        self.by_scalar(a, sWm, lambda wm: self.q_epilogue(a, wm))
        a("s_barrier")

    def m_addr(self):
        return ([f"v_add_u32 v{self.M_AA + tm}, s{sSlot}, v{self.M_CA + tm}" for tm in range(2)] +
                [f"v_add_u32 v{self.M_AB}, s{sSlot}, v{self.M_CB}"])

    def m_stage(self, a, first, pre=None, hook=None):
        if pre:
            pre()
        self.cbar(a)
        if hook:
            hook()
        r01 = self.m_reads(0) + self.m_reads(1)
        if first:
            for r in r01:
                a(r)
        else:
            self.spread(a, self.m_mfmas(2) + self.m_mfmas(3), r01)
        a("s_waitcnt lgkmcnt(6)")
        self.spread(a, self.czero(self.m_mfmas(0)) if first else self.m_mfmas(0), self.m_reads(2))
        a("s_waitcnt lgkmcnt(6)")
        self.spread(a, self.m_mfmas(1), self.m_reads(3))
        self.slot_next(a)
        for c in self.m_addr():
            a(c)
        a("s_waitcnt lgkmcnt(0)")

    def m_reduce_write(self, a, kh):
        t = 190
        src = self.M_ACC + 16 * (1 - kh)
        a(f"""
        v_lshlrev_b32 v{t}, 4, v0
        s_lshl_b32 s{sT0}, s{sLw}, 12
        s_add_u32 s{sT0}, s{sT0}, {M_RED}
        v_add_u32 v{t}, s{sT0}, v{t}
        """)
        for q in range(4):
            a(f"ds_write_b128 v{t}, v[{src + 4 * q}:{src + 4 * q + 3}] offset:{q * 1024}")
        a("s_waitcnt lgkmcnt(0)")

    ME_U = 200

    def m_epilogue_pre(self, a):
        U, B1 = self.ME_U, self.V_B1
        c0 = -2.0 * math.sqrt(2.0 / math.pi) * math.log2(math.e)
        c1 = c0 * 0.044715
        a(f"""
        s_lshl_b32 s{sT1}, s{sWn}, 5
        v_and_b32 v{U}, 31, v0
        v_add_u32 v{U}, s{sT1}, v{U}
        v_mul_u32_u24 v{U}, {GROW}, v{U}
        v_lshrrev_b32 v{U + 1}, 5, v0
        v_lshl_add_u32 v{U}, v{U + 1}, 3, v{U}
        s_lshl_b32 s{sT1}, s{sWm}, 6
        s_add_u32 s{sT1}, s{sT1}, {SLOT}
        v_add_u32 v{U}, s{sT1}, v{U}
        v_lshlrev_b32 v{U + 1}, 4, v0
        s_xor_b32 s{sT0}, s{sLw}, 2
        s_lshl_b32 s{sT0}, s{sT0}, 12
        s_add_u32 s{sT0}, s{sT0}, {M_RED}
        v_add_u32 v{U + 1}, s{sT0}, v{U + 1}
        v_mov_b32 v{U + 4}, {f32(c1)}
        v_mov_b32 v{U + 5}, {f32(c0)}
        v_mov_b32 v{U + 6}, 1.0
        s_waitcnt vmcnt(0)
        v_lshlrev_b32 v{U + 2}, 16, v{B1}
        """)

    def m_epilogue(self, a, kh):
        R, U = 136, self.ME_U
        keep = self.M_ACC + 16 * kh
        for q in range(4):
            a(f"ds_read_b128 v[{R + 4 * q}:{R + 4 * q + 3}], v{U + 1} offset:{q * 1024}")
        for r in range(0, 16, 2):
            a(f"v_pk_add_f32 v[{keep + r}:{keep + r + 1}], v[{keep + r}:{keep + r + 1}], v[{U + 2}:{U + 3}] op_sel_hi:[1,0]")
        a("s_waitcnt lgkmcnt(0)")
        P = lambda r: f"v[{r}:{r + 1}]"
        for r in range(0, 16, 2):
            a(f"v_pk_add_f32 {P(keep + r)}, {P(keep + r)}, {P(R + r)}")
        for r in range(0, 16, 2):
            a(f"v_pk_mul_f32 {P(R + r)}, {P(keep + r)}, {P(keep + r)}")
        for r in range(0, 16, 2):
            a(f"v_pk_fma_f32 {P(R + r)}, {P(R + r)}, {P(U + 4)}, {P(U + 4)} op_sel:[0,0,1] op_sel_hi:[1,0,1]")
        for r in range(0, 16, 2):
            a(f"v_pk_mul_f32 {P(R + r)}, {P(R + r)}, {P(keep + r)}")
        for r in range(16):
            a(f"v_exp_f32 v{R + r}, v{R + r}")
        for r in range(0, 16, 2):
            a(f"v_pk_add_f32 {P(R + r)}, {P(R + r)}, {P(U + 6)} op_sel_hi:[1,0]")
        for r in range(16):
            a(f"v_rcp_f32 v{R + r}, v{R + r}")
        for r in range(0, 16, 2):
            a(f"v_pk_mul_f32 {P(keep + r)}, {P(keep + r)}, {P(R + r)}")
        for q in range(4):
            x = keep + 4 * q
            a(f"v_cvt_pk_bf16_f32 v{x}, v{x}, v{x + 1}\nv_cvt_pk_bf16_f32 v{x + 1}, v{x + 2}, v{x + 3}")
            a(f"ds_write_b64 v{U}, v[{x}:{x + 1}] offset:{16 * q}")
        a("s_waitcnt lgkmcnt(0)")

    def g_copy_out_solo(self, a):
        R, T = 32, 28
        a(f"""
        v_lshrrev_b32 v{T}, 3, v0
        v_and_b32 v{T + 1}, 7, v0
        v_mul_u32_u24 v{T + 2}, {GROW}, v{T}
        v_lshl_add_u32 v{T + 2}, v{T + 1}, 4, v{T + 2}
        v_add_u32 v{T + 2}, {SLOT}, v{T + 2}
        """)
        for k in range(8):
            a(f"ds_read_b128 v[{R + 4 * k}:{R + 4 * k + 3}], v{T + 2} offset:{8 * GROW * k}")
        a(f"""
        s_lshl_b32 s{sT0}, s{sDt1}, 6
        v_lshl_add_u32 v{T + 1}, v{T + 1}, 3, s{sT0}
        v_mul_u32_u24 v{T + 3}, 820, v{T + 1}
        v_lshrrev_b32 v{T + 3}, 16, v{T + 3}
        v_mul_u32_u24 v{T + 2}, 80, v{T + 3}
        v_sub_u32 v{T + 1}, v{T + 1}, v{T + 2}
        v_mul_u32_u24 v{T + 3}, {1536 * 160}, v{T + 3}
        v_lshl_add_u32 v{T + 3}, v{T + 1}, 1, v{T + 3}
        s_lshl_b32 s{sT0}, s{sFt}, 6
        v_add_u32 v{T}, s{sT0}, v{T}
        v_mul_u32_u24 v{T}, 160, v{T}
        v_add_u32 v{T + 3}, v{T + 3}, v{T}
        s_mov_b32 s{sT1}, {WS_GT}
        s_cmp_eq_u32 s{sM1On}, 0
        s_cselect_b32 s{sT0}, {OOB}, s{sT1}
        """)
        for k in range(8):
            a(f"s_waitcnt lgkmcnt({7 - k})")
            a(f"buffer_store_dwordx4 v[{R + 4 * k}:{R + 4 * k + 3}], v{T + 3}, s[{sWS}:{sWS + 3}], s{sT0} offen sc1")
            if k < 7:
                a(f"s_add_u32 s{sT0}, s{sT0}, {8 * 160}")

    def g_copy_out(self, a):
        R, T = 40, 28
        a(f"""
        v_lshrrev_b32 v{T}, 3, v0
        s_lshl_b32 s{sT0}, s{sLw}, 4
        v_add_u32 v{T}, s{sT0}, v{T}
        v_and_b32 v{T + 1}, 7, v0
        v_mul_u32_u24 v{T + 2}, {GROW}, v{T}
        v_lshl_add_u32 v{T + 2}, v{T + 1}, 4, v{T + 2}
        v_add_u32 v{T + 2}, {SLOT}, v{T + 2}
        ds_read_b128 v[{R}:{R + 3}], v{T + 2}
        ds_read_b128 v[{R + 4}:{R + 7}], v{T + 2} offset:{8 * GROW}
        s_lshl_b32 s{sT0}, s{sDt1}, 6
        v_lshl_add_u32 v{T + 1}, v{T + 1}, 3, s{sT0}
        v_mul_u32_u24 v{T + 3}, 820, v{T + 1}
        v_lshrrev_b32 v{T + 3}, 16, v{T + 3}
        v_mul_u32_u24 v{T + 4}, 80, v{T + 3}
        v_sub_u32 v{T + 1}, v{T + 1}, v{T + 4}
        v_mul_u32_u24 v{T + 3}, {1536 * 160}, v{T + 3}
        v_lshl_add_u32 v{T + 3}, v{T + 1}, 1, v{T + 3}
        s_lshl_b32 s{sT0}, s{sFt}, 6
        v_add_u32 v{T}, s{sT0}, v{T}
        v_mul_u32_u24 v{T}, 160, v{T}
        v_add_u32 v{T + 3}, v{T + 3}, v{T}
        s_mov_b32 s{sT1}, {WS_GT}
        s_cmp_eq_u32 s{sM1On}, 0
        s_cselect_b32 s{sT0}, {OOB}, s{sT1}
        v_add_u32 v{T + 3}, s{sT0}, v{T + 3}
        s_waitcnt lgkmcnt(0)
        buffer_store_dwordx4 v[{R}:{R + 3}], v{T + 3}, s[{sWS}:{sWS + 3}], 0 offen sc1
        buffer_store_dwordx4 v[{R + 4}:{R + 7}], v{T + 3}, s[{sWS}:{sWS + 3}], 0 offen offset:{8 * 160} sc1
        """)

    def c_mix1(self, a):
        T = 200
        a(f"""
        s_lshl_b32 s{sT0}, s{sFt}, 6
        s_lshl_b32 s{sT1}, s{sWn}, 5
        s_add_u32 s{sT0}, s{sT0}, s{sT1}
        v_and_b32 v{T}, 31, v0
        v_add_u32 v{T}, s{sT0}, v{T}
        v_lshlrev_b32 v{T}, 1, v{T}
        buffer_load_ushort v{self.V_B1}, v{T}, s[{sB1}:{sB1 + 3}], 0 offen
        """)
        for c in self.m_addr():
            a(c)
        self.m_stage(a, True)
        self.zero(a, self.A_O, 16)
        self.m_stage(a, False)
        self.zero(a, self.A_O + 16, 16)
        self.m_stage(a, False)
        self.mark(a)
        self.loop(a, 13, lambda: self.m_stage(a, False))
        for m in self.m_mfmas(2) + self.m_mfmas(3):
            a(m)
        self.mark(a)
        self.m_epilogue_pre(a)
        self.m_reduce_write(a, 0)
        a("s_barrier")
        self.m_epilogue(a, 0)
        self.a_zero(a)
        self.cbar(a)

    def a_addr_consts(self, a):
        keep = (self.A_O, self.A_K)
        body = Asm()
        B.Gen.a_consts(self, body)
        for it in body.items:
            if it.mn == "v_mov_b32" and it.ops[0][0] == "v":
                r = int(it.ops[0][1:])
                if self.A_O <= r < self.A_O + 32 or self.A_K <= r < self.A_K + 16:
                    continue
            a.items.append(it)

    def a_zero(self, a):
        for hh in range(2):
            for base in (self.A_K, self.A_Q):
                a(f"v_mov_b32 v{base + 8 * hh + 6}, 0\nv_mov_b32 v{base + 8 * hh + 7}, 0")

    def a_qreads(self, a):
        T = self.A_T
        a(f"""
        s_lshl_b32 s{sT0}, s{sLw}, 5
        v_and_b32 v{T}, 31, v0
        v_add_u32 v{T}, s{sT0}, v{T}
        v_mul_u32_u24 v{T}, 80, v{T}
        v_add_u32 v{T}, {SCR}, v{T}
        v_lshrrev_b32 v{T + 1}, 5, v0
        v_lshl_add_u32 v{T + 1}, v{T + 1}, 4, v{T}
        """)
        for hh in range(2):
            q = self.A_Q + 8 * hh
            a(f"""
            ds_read_b64 v[{q}:{q + 1}], v{T + 1} offset:{40 * hh}
            ds_read_b64 v[{q + 2}:{q + 3}], v{T + 1} offset:{40 * hh + 8}
            ds_read_b64 v[{q + 4}:{q + 5}], v{T} offset:{40 * hh + 32}
            """)

    def a_qmask(self, a):
        for hh in range(2):
            q = self.A_Q + 8 * hh
            a(f"""
            s_mov_b32 exec_lo, 0
            v_mov_b32 v{q + 4}, 0
            v_mov_b32 v{q + 5}, 0
            s_mov_b64 exec, -1
            """)

    def kr(self, hh, dt):
        k = self.A_K + 8 * hh
        o = dt * 32 * KVROW + 40 * hh
        return [f"ds_read_b64 v[{k}:{k + 1}], v{self.A_KA} offset:{o}",
                f"ds_read_b64 v[{k + 2}:{k + 3}], v{self.A_KA} offset:{o + 8}",
                f"ds_read_b64 v[{k + 4}:{k + 5}], v{self.A_KA + 1} offset:{o + 32}"]

    def vr(self, hh, dt):
        x = self.A_V + 8 * hh
        return [f"ds_read_b64_tr_b16 v[{x + 4 * aa + 2 * rd}:{x + 4 * aa + 2 * rd + 1}], v{self.A_VA + hh} offset:{(dt * 32 + 16 * aa + 8 * rd) * KVROW}"
                for aa in range(2) for rd in range(2)]

    def a_slot(self, a, hv, qk_mask, do_qk, do_pv, dk, dv, rd_k=True, rd_v=True, wait=7):
        ho = 1 - hv
        sreg, p = self.A_S + 16 * hv, self.A_P + 8 * hv
        a(f"s_waitcnt lgkmcnt({wait})")
        qk = self.a_qk(ho, qk_mask) if do_qk else [None, None]
        pv = self.a_pv(ho) if do_pv else [None, None]
        kr = self.kr(ho, dk) if rd_k else []
        vr = self.vr(ho, dv) if rd_v else []
        plan = [(qk[0], kr[:2]), (qk[1], kr[2:]), (pv[0], vr[:2]), (pv[1], vr[2:])]
        for g, (m, rds) in enumerate(plan):
            if m:
                a(m)
            for r in rds:
                a(r)
            for q in range(4):
                a(f"v_exp_f32 v{sreg + 4 * g + q}, v{sreg + 4 * g + q}")
        for r in range(8):
            a(f"v_cvt_pk_bf16_f32 v{p + r}, v{sreg + 2 * r}, v{sreg + 2 * r + 1}")

    def a_iter(self, a, first, mask_a, mask_b, last):
        self.a_slot(a, 0, mask_a, True, not first, 1, 0, rd_k=not last, wait=7 if not last else 7)
        if last:
            self.a_slot(a, 1, None, False, True, 0, 0, rd_k=False, rd_v=False, wait=4)
            a("s_waitcnt lgkmcnt(0)")
            for m in self.a_pv(1):
                a(m)
        else:
            self.a_slot(a, 1, mask_b, True, True, 2, 1)
            for r in (self.A_KA, self.A_KA + 1, self.A_VA, self.A_VA + 1):
                a(f"v_add_u32 v{r}, {32 * KVROW}, v{r}")

    def g_publish(self, a):
        lab = a.uid("Lgp")
        T = 208
        a(f"s_cmp_lg_u32 s{sPub}, 0\ns_cbranch_scc1 {lab}")
        a(f"""
        s_mov_b32 s{sPub}, 1
        s_waitcnt vmcnt(0)
        v_mov_b32 v{T}, {SCR_CNT}
        v_mov_b32 v{T + 1}, 1
        s_mov_b32 exec_hi, 0
        s_mov_b32 exec_lo, 1
        ds_add_u32 v{T}, v{T + 1}
        s_mov_b64 exec, -1
        """)
        a.label(lab)

    def attention(self, a):
        T = self.A_T
        a(f"""
        s_lshl_b32 s{sT0}, s{sI}, 2
        s_add_u32 s{sT0}, s{sT0}, s{sLw}
        s_cmp_ge_u32 s{sT0}, 8
        s_cselect_b32 s{sT0}, 8, s{sT0}
        s_sub_u32 s{sT2}, 8, s{sT0}
        """)
        self.a_skip(a, sT2)
        self.a_qreads(a)
        for hh in range(2):
            for r in self.kr(hh, 0):
                a(r)
        a("s_waitcnt lgkmcnt(0)")
        self.a_qmask(a)
        MF, MD = self.A_MF, self.A_MD
        L = {k: a.uid("La" + k) for k in ("far", "n2", "n1", "mid", "pre", "last", "done")}

        def head(mask):
            for m in self.a_qk(0, mask):
                a(m)
            for r in self.kr(0, 1) + self.vr(0, 0):
                a(r)
        L["rare"] = a.uid("Larare")
        a(f"s_cmp_lg_u32 s{sT2}, 0\ns_cbranch_scc1 {L['rare']}")

        def rare(b):
            def hd(mask):
                for m in self.a_qk(0, mask):
                    b(m)
                for r in self.kr(0, 1) + self.vr(0, 0):
                    b(r)
            b.label(L["rare"])
            b(f"s_cmp_eq_u32 s{sT2}, 7\ns_cbranch_scc1 {L['n2']}")
            b(f"s_cmp_eq_u32 s{sT2}, 8\ns_cbranch_scc1 {L['n1']}")
            hd(None)
            self.a_iter(b, True, None, None, False)
            b(f"s_sub_u32 s{sCnt}, 6, s{sT2}\ns_cmp_eq_u32 s{sCnt}, 0\ns_cbranch_scc1 {L['pre']}\ns_branch {L['mid']}")
            b.label(L["n2"])
            hd(None)
            self.a_iter(b, True, None, MD, False)
            b(f"s_branch {L['last']}")
            b.label(L["n1"])
            hd(MD)
            self.a_iter(b, True, MD, None, True)
            b(f"s_branch {L['done']}")
        self.cold_blocks.append(rare)
        head(MF)
        self.a_iter(a, True, MF, None, False)
        a(f"s_mov_b32 s{sCnt}, 6")
        a.label(L["mid"])
        self.a_iter(a, False, None, None, False)
        a(f"s_sub_u32 s{sCnt}, s{sCnt}, 1\ns_cmp_lg_u32 s{sCnt}, 0\ns_cbranch_scc1 {L['mid']}")
        a.label(L["pre"])
        self.a_iter(a, False, None, MD, False)
        a.label(L["last"])
        self.a_iter(a, False, MD, None, True)
        a.label(L["done"])
        lfb, ldone = a.uid("Lfallback"), a.uid("Lnorm")
        self.fallback_labels = (lfb, ldone)
        self.a_rowsum(a)
        a(f"""
        v_mov_b32 v{T + 4}, {f32(2.0 ** -40)}
        v_mov_b32 v{T + 5}, {f32(2.0 ** 40)}
        v_cmp_ge_f32 s[{sT0}:{sT0 + 1}], v{T}, v{T + 4}
        v_cmp_le_f32 s[{sT2}:{sT2 + 1}], v{T}, v{T + 5}
        s_and_b64 s[{sT0}:{sT0 + 1}], s[{sT0}:{sT0 + 1}], s[{sT2}:{sT2 + 1}]
        v_cmp_ge_f32 s[{sT2}:{sT2 + 1}], v{T + 1}, v{T + 4}
        s_and_b64 s[{sT0}:{sT0 + 1}], s[{sT0}:{sT0 + 1}], s[{sT2}:{sT2 + 1}]
        v_cmp_le_f32 s[{sT2}:{sT2 + 1}], v{T + 1}, v{T + 5}
        s_and_b64 s[{sT0}:{sT0 + 1}], s[{sT0}:{sT0 + 1}], s[{sT2}:{sT2 + 1}]
        s_cmp_eq_u64 s[{sT0}:{sT0 + 1}], exec
        s_cbranch_scc0 {lfb}
        """)
        a.label(ldone)
        self.a_store(a)

    def a_store(self, a):
        T = self.A_T
        a(f"""
        v_rcp_f32 v{T + 2}, v{T}
        v_rcp_f32 v{T + 4}, v{T + 1}
        s_lshl_b32 s{sT1}, s{sLw}, 5
        v_and_b32 v{T + 6}, 31, v0
        v_add_u32 v{T + 6}, s{sT1}, v{T + 6}
        v_mul_u32_u24 v{T + 6}, 80, v{T + 6}
        v_add_u32 v{T + 6}, {SCR}, v{T + 6}
        v_lshrrev_b32 v{T + 7}, 5, v0
        v_lshl_add_u32 v{T + 7}, v{T + 7}, 3, v{T + 6}
        """)
        for hh in range(2):
            o = self.A_O + 16 * hh
            rc = T + 2 + 2 * hh
            for g in range(3):
                x = o + 4 * g
                for hf in range(2):
                    a(f"v_pk_mul_f32 v[{x + 2 * hf}:{x + 2 * hf + 1}], v[{x + 2 * hf}:{x + 2 * hf + 1}], v[{rc}:{rc + 1}] op_sel_hi:[1,0]")
                a(f"v_cvt_pk_bf16_f32 v{x}, v{x}, v{x + 1}\nv_cvt_pk_bf16_f32 v{x + 1}, v{x + 2}, v{x + 3}")
                if g < 2:
                    a(f"ds_write_b64 v{T + 7}, v[{x}:{x + 1}] offset:{40 * hh + 16 * g}")
                else:
                    a(f"s_mov_b32 exec_hi, 0\nds_write_b64 v{T + 6}, v[{x}:{x + 1}] offset:{40 * hh + 32}\ns_mov_b64 exec, -1")
        a("s_waitcnt lgkmcnt(0)")

    def o_copy_out(self, a):
        R, T = 40, 28
        a(f"""
        s_lshl_b32 s{sT0}, s{sI}, 7
        s_mul_i32 s{sT0}, s{sT0}, 1280
        s_mul_i32 s{sT1}, s{sP}, 80
        s_add_u32 s{sT0}, s{sT0}, s{sT1}
        s_add_u32 s{sT0}, s{sT0}, {WS_O}
        s_lshl_b32 s{sT1}, s{sLw}, 6
        v_add_u32 v{T}, s{sT1}, v0
        v_lshlrev_b32 v{T + 1}, 4, v{T}
        v_add_u32 v{T + 1}, {SCR}, v{T + 1}
        """)
        for k in range(3):
            a(f"ds_read_b128 v[{R + 4 * k}:{R + 4 * k + 3}], v{T + 1} offset:{k * 4096}")
        for k in range(3):
            a(f"""
            v_add_u32 v{T + 2}, {256 * k}, v{T}
            v_mul_u32_u24 v{T + 3}, 13108, v{T + 2}
            v_lshrrev_b32 v{T + 3}, 16, v{T + 3}
            v_mul_u32_u24 v{T + 4}, 5, v{T + 3}
            v_sub_u32 v{T + 4}, v{T + 2}, v{T + 4}
            v_mul_u32_u24 v{T + 3}, 1280, v{T + 3}
            v_lshl_add_u32 v{T + 3}, v{T + 4}, 4, v{T + 3}
            v_add_u32 v{T + 5 + k}, s{sT0}, v{T + 3}
            """)
        a(f"""
        v_mov_b32 v{T + 2}, {OOB}
        v_add_u32 v{T + 3}, 512, v{T}
        v_cmp_gt_u32 vcc, 640, v{T + 3}
        v_cndmask_b32 v{T + 7}, v{T + 2}, v{T + 7}, vcc
        s_waitcnt lgkmcnt(0)
        """)
        for k in range(3):
            a(f"buffer_store_dwordx4 v[{R + 4 * k}:{R + 4 * k + 3}], v{T + 5 + k}, s[{sWS}:{sWS + 3}], 0 offen sc1")

    def attention_fallback(self, a):
        lfb, ldone = self.fallback_labels
        M = 200
        a.label(lfb)
        self.a_addr_consts(a)
        self.zero(a, self.A_O, 32)
        a(f"""
        s_lshl_b32 s{sT0}, s{sI}, 2
        s_add_u32 s{sT0}, s{sT0}, s{sLw}
        s_cmp_ge_u32 s{sT0}, 8
        s_cselect_b32 s{sT0}, 8, s{sT0}
        s_sub_u32 s{sCnt}, 8, s{sT0}
        v_mov_b32 v{M}, {f32(-3e38)}
        v_mov_b32 v{M + 1}, {f32(-3e38)}
        """)
        self.a_skip(a, sCnt)
        lp, lnf, lnd = a.uid("Lfb"), a.uid("Lfbnf"), a.uid("Lfbnd")
        a.label(lp)
        for hh in range(2):
            for r in self.kr(hh, 0) + self.vr(hh, 0):
                a(r)
        for r in (self.A_KA, self.A_KA + 1, self.A_VA, self.A_VA + 1):
            a(f"v_add_u32 v{r}, {32 * KVROW}, v{r}")
        a("s_waitcnt lgkmcnt(0)")
        for hh in range(2):
            for m in self.a_qk(hh, None):
                a(m)
        a("s_nop 15")
        a(f"s_cmp_lg_u32 s{sCnt}, 0\ns_cbranch_scc1 {lnf}")
        for hh in range(2):
            for r in range(16):
                a(f"v_add_f32 v{self.A_S + 16 * hh + r}, v{self.A_S + 16 * hh + r}, v{self.A_MF + r}")
        a.label(lnf)
        a(f"s_cmp_lg_u32 s{sCnt}, 8\ns_cbranch_scc1 {lnd}")
        for hh in range(2):
            for r in range(16):
                a(f"v_add_f32 v{self.A_S + 16 * hh + r}, v{self.A_S + 16 * hh + r}, v{self.A_MD + r}")
        a.label(lnd)
        for hh in range(2):
            sreg, o = self.A_S + 16 * hh, self.A_O + 16 * hh
            x = M + 2
            a(f"v_max3_f32 v{x}, v{sreg}, v{sreg + 1}, v{M + hh}")
            for r in range(2, 16, 2):
                a(f"v_max3_f32 v{x}, v{sreg + r}, v{sreg + r + 1}, v{x}")
            a(f"""
            v_mov_b32 v{x + 1}, v{x}
            v_mov_b32 v{x + 2}, v{x}
            v_nop
            v_permlane32_swap_b32 v{x + 1}, v{x + 2}
            v_max_f32 v{x}, v{x + 1}, v{x + 2}
            v_sub_f32 v{x + 1}, v{M + hh}, v{x}
            v_exp_f32 v{x + 1}, v{x + 1}
            v_mov_b32 v{M + hh}, v{x}
            """)
            for r in range(16):
                a(f"v_sub_f32 v{sreg + r}, v{sreg + r}, v{x}")
            for r in range(16):
                a(f"v_mul_f32 v{o + r}, v{o + r}, v{x + 1}")
            self.a_softmax(a, hh)
            for m in self.a_pv(hh):
                a(m)
        a(f"s_add_u32 s{sCnt}, s{sCnt}, 1\ns_cmp_le_u32 s{sCnt}, 8\ns_cbranch_scc1 {lp}")
        a("s_nop 15")
        self.a_rowsum(a)
        a(f"s_branch {ldone}")

    def f_reads(self, j, wo):
        return [] if self.o.get("nofr") else super().f_reads(j, wo)

    def m_reads(self, ks):
        return [] if self.o.get("nomr") else super().m_reads(ks)

    def f_addr(self, wo):
        out = [f"v_add_u32 v{self.F_AA}, s{sSlot}, v{self.F_CA}"]
        if wo:
            out += [f"v_add_u32 v{self.F_AO + k}, s{sSlot}, v{self.F_CO + k}" for k in range(4)]
        else:
            out += [f"v_add_u32 v{self.F_AB + tn}, s{sSlot}, v{self.F_CB + tn}" for tn in range(2)]
        return out

    def f_stage(self, a, first, wo, next_wo, pre=None, hook=None):
        if pre:
            pre()
        self.cbar(a)
        if hook:
            hook()
        r0 = self.f_reads(0, wo)
        if first:
            for r in r0:
                a(r)
        else:
            self.spread(a, self.f_mfmas(1), r0)
        a("s_waitcnt lgkmcnt(0)")
        self.spread(a, self.czero(self.f_mfmas(0)) if first else self.f_mfmas(0), self.f_reads(1, wo))
        self.slot_next(a)
        a("s_waitcnt lgkmcnt(0)")
        for c in self.f_addr(next_wo):
            a(c)

    FE_X, FE_T = 208, 56

    def f_epilogue_pre(self, a):
        X, t, raw = self.FE_X, self.FE_T, 228
        B2 = self.V_B2
        a(f"""
        s_lshl_b32 s{sT1}, s{sWn}, 5
        s_lshl_b32 s{sT2}, s{sWm}, 4
        s_add_u32 s{sT1}, s{sT1}, s{sT2}
        v_and_b32 v{t}, 15, v0
        v_add_u32 v{t}, s{sT1}, v{t}
        v_mul_u32_u24 v{t + 1}, 160, v{t}
        v_lshrrev_b32 v1, 4, v0
        v_lshl_add_u32 v{t + 1}, v1, 3, v{t + 1}
        v_add_u32 v{t + 1}, {SCR}, v{t + 1}
        """)
        for tm in range(5):
            a(f"ds_read_b64 v[{raw + 2 * tm}:{raw + 2 * tm + 1}], v{t + 1} offset:{32 * tm}")
        a(f"""
        s_lshl_b32 s{sT0}, s{sSt}, 6
        v_add_u32 v{t}, s{sT0}, v{t}
        v_mul_u32_u24 v{t}, 1280, v{t}
        s_mul_i32 s{sT0}, s{sDt}, 160
        v_add_u32 v{t}, s{sT0}, v{t}
        v_lshl_add_u32 v{t}, v1, 3, v{t}
        v_lshlrev_b32 v{t + 1}, 4, v0
        s_xor_b32 s{sT0}, s{sLw}, 2
        s_mul_i32 s{sT0}, s{sT0}, 5120
        s_add_u32 s{sT0}, s{sT0}, {SLOT}
        v_add_u32 v{t + 1}, s{sT0}, v{t + 1}
        s_mov_b32 s{sT3}, 0xffff0000
        s_waitcnt vmcnt(0) lgkmcnt(0)
        v_lshlrev_b32 v238, 16, v{B2}
        """)
        for tm in range(5):
            x = X + 4 * tm
            a(f"""
            v_lshlrev_b32 v{x}, 16, v{raw + 2 * tm}
            v_and_b32 v{x + 1}, s{sT3}, v{raw + 2 * tm}
            v_lshlrev_b32 v{x + 2}, 16, v{raw + 2 * tm + 1}
            v_and_b32 v{x + 3}, s{sT3}, v{raw + 2 * tm + 1}
            """)
        for y in range(X, X + 20, 2):
            a(f"v_pk_add_f32 v[{y}:{y + 1}], v[{y}:{y + 1}], v[238:239] op_sel_hi:[1,0]")

    def f_epilogue(self, a, kh):
        R, X, t = 136, self.FE_X, self.FE_T
        for tm in range(5):
            a(f"ds_read_b128 v[{R + 4 * tm}:{R + 4 * tm + 3}], v{t + 1} offset:{tm * 1024}")
        for tm in range(5):
            k = self.F_ACC + 4 * (2 * tm + kh)
            for y in (0, 2):
                a(f"v_pk_add_f32 v[{k + y}:{k + y + 1}], v[{k + y}:{k + y + 1}], v[{X + 4 * tm + y}:{X + 4 * tm + y + 1}]")
        for tm in range(5):
            k, r = self.F_ACC + 4 * (2 * tm + kh), R + 4 * tm
            a(f"s_waitcnt lgkmcnt({4 - tm})")
            for y in (0, 2):
                a(f"v_pk_add_f32 v[{k + y}:{k + y + 1}], v[{k + y}:{k + y + 1}], v[{r + y}:{r + y + 1}]")
            a(f"v_cvt_pk_bf16_f32 v{k}, v{k}, v{k + 1}\nv_cvt_pk_bf16_f32 v{k + 1}, v{k + 2}, v{k + 3}")
            a(f"buffer_store_dwordx2 v[{k}:{k + 1}], v{t}, s[{sOUT}:{sOUT + 3}], 0 offen offset:{32 * tm} " + ("", "sc1", "nt", "sc1 nt")[self.o["outpol"]])

    def c_final(self, a):
        T = 224
        a(f"s_mov_b32 s{sSlot}, 0")
        for c in self.f_addr(False):
            a(c)

        def b2_load():
            a(f"""
            s_lshl_b32 s{sT0}, s{sSt}, 6
            s_lshl_b32 s{sT1}, s{sWn}, 5
            s_add_u32 s{sT0}, s{sT0}, s{sT1}
            s_lshl_b32 s{sT1}, s{sWm}, 4
            s_add_u32 s{sT0}, s{sT0}, s{sT1}
            v_and_b32 v{T}, 15, v0
            v_add_u32 v{T}, s{sT0}, v{T}
            v_lshlrev_b32 v{T}, 1, v{T}
            buffer_load_ushort v{self.V_B2}, v{T}, s[{sB2}:{sB2 + 3}], 0 offen
            """)
        self.f_stage(a, True, False, False, hook=b2_load)
        self.f_stage(a, False, False, False)
        self.f_stage(a, False, False, False)
        self.f_stage(a, False, False, False)
        self.mark(a)
        self.loop(a, 7, lambda: self.f_stage(a, False, False, False))
        self.f_stage(a, False, False, True)
        self.mark(a)
        self.loop(a, 2, lambda: self.f_stage(a, False, True, True))
        self.f_epilogue_pre(a)
        self.loop(a, 3, lambda: self.f_stage(a, False, True, True))
        self.f_tail(a)
        self.mark(a)
        self.by_scalar(a, sWm, lambda kh: self.f_reduce_write(a, kh))
        a("s_barrier")
        self.by_scalar(a, sWm, lambda kh: self.f_epilogue(a, kh))

    def strip_zero(self, fn, lo, hi):
        body = Asm()
        fn(body)
        return [it for it in body.items
                if not (it.mn == "v_mov_b32" and it.ops[0][0] == "v" and it.ops[1] == "0" and lo <= int(it.ops[0][1:]) < hi)]

    def consumer(self, a):
        if self.o["prio"]:
            a(f"s_setprio {self.o['prio']}")
        a("s_waitcnt lgkmcnt(0)")
        self.mark(a)
        for ps in range(self.ln_passes()):
            a(f"v_mov_b32 v{self.LN_H + 14 * ps + 12}, {OOB}\nv_mov_b32 v{self.LN_H + 14 * ps + 13}, {OOB}")
        lab = a.uid("Lnold")
        a(f"s_cmp_eq_u32 s{sLnOn}, 0\ns_cbranch_scc1 {lab}")
        self.ln_loads(a)
        a.label(lab)
        a(f"""
        v_mov_b32 v1, {SCR_CNT}
        v_mov_b32 v2, 0
        v_mov_b32 v3, 0
        ds_write_b64 v1, v[2:3]
        """)
        a.items += self.strip_zero(lambda b: B.Gen.m_consts(self, b), 64, 128)
        self.m_swap(a)
        a.items += self.strip_zero(lambda b: B.Gen.f_consts(self, b), 64, 128)
        self.a_addr_consts(a)
        a(f"s_mov_b32 s{sSlot}, 0")
        a.items += self.strip_zero(lambda b: B.Gen.q_consts(self, b), 64, 132)
        self.mark(a)
        lab = a.uid("Lnolc")
        a(f"s_cmp_eq_u32 s{sLnOn}, 0\ns_cbranch_scc1 {lab}")
        self.ln_compute(a)
        a.label(lab)
        a("s_waitcnt lgkmcnt(0)")
        self.mark(a)
        self.c_qkv(a)
        self.mark(a)
        self.c_mix1(a)
        self.mark(a)
        self.mark(a)
        self.attention(a)
        self.mark(a)
        self.c_final(a)
        self.mark(a)

    def split(self, name, consumer, loader):
        a = Asm()
        self.kidx = getattr(self, "kidx", 0) + 1
        a._uid = self.kidx * 1000
        self.cold_blocks = []
        self.prologue(a, name)
        self.diag_init(a)
        a(f"s_cmp_lt_u32 s{sWv}, 4\ns_cbranch_scc1 {name}_compute")
        loader(a)
        self.stamp(a, 0, bump=True)
        self.diag_dump(a, self.kidx - 1)
        a("s_endpgm")
        a.label(name + "_compute")
        self.stamp(a, 2, bump=False)
        consumer(a)
        self.stamp(a, 0, bump=True)
        self.diag_dump(a, self.kidx - 1)
        a("s_endpgm")
        for blk in self.cold_blocks:
            blk(a)
        self.attention_fallback(a)
        a.label(name + "_end")
        a("s_endpgm")
        return a.finish()

    def build(self):
        name = NAME + "_kernel"
        return B_kernel(name, self.split(name, self.consumer, self.loader))


def B_kernel(name, body):
    return f"""; out = x + Attn(LN(x)) Wo + Mixer(LN(LN(x))), bf16, S=2048 D=640 H=32 Dh=20 W=256 F=1536.  One persistent launch.
; @launch grid=(256,1,1) block=(512,1,1) lds={LDS_BYTES}
.amdgcn_target "amdgcn-amd-amdhsa--gfx950"
.text
.globl {name}
.p2align 8
.type {name},@function
{name}:
{body}{name}_code_end:
.set CODE_BYTES, {name}_code_end-{name}
.section .rodata,"a"
.p2align 6
.amdhsa_kernel {name}
  .amdhsa_next_free_vgpr 256
  .amdhsa_next_free_sgpr 102
  .amdhsa_accum_offset 256
  .amdhsa_group_segment_fixed_size 0
  .amdhsa_kernarg_size 88
  .amdhsa_user_sgpr_count 2
  .amdhsa_user_sgpr_kernarg_segment_ptr 1
  .amdhsa_system_sgpr_workgroup_id_x 1
.end_amdhsa_kernel
"""


if __name__ == "__main__":
    mode = sys.argv[1] if len(sys.argv) > 1 else "run"
    path = sys.argv[2] if len(sys.argv) > 2 else f"cdna_kernels/{NAME}.s"
    opts = {}
    for kv in sys.argv[3:]:
        k, val = kv.split("=")
        opts[k] = int(val)
    txt = Fused(diag=(mode == "diag"), opts=opts).build()
    open(path, "w").write(txt)
    print("wrote", path, len(txt), "bytes")
```
